```python
import torch

def _softmax(x, axis=-1):
    return torch.softmax(x, dim=axis)
def _gelu(x):
    return torch.nn.functional.gelu(x, approximate="tanh")
def _silu(x):
    return torch.nn.functional.silu(x)
def _sigmoid(x):
    return torch.sigmoid(x)
def _layernorm(x, axis=-1, eps=1e-5):
    m = x.mean(dim=axis, keepdim=True)
    v = x.var(dim=axis, keepdim=True, unbiased=False)
    return (x - m) / torch.sqrt(v + eps)
def _scatter_add(tgt, idx, src, axis=0):
    return tgt.clone().index_add_(axis, idx, src)
def _segment_sum(src, seg, n):
    out = torch.zeros((n,) + src.shape[1:], dtype=src.dtype)
    return out.index_add_(0, seg, src)
def _pad(x, pw):
    flat = tuple(v for pair in reversed(pw) for v in pair)
    return torch.nn.functional.pad(x, flat)

kernel_name = 'concat_heads__grouped_kv_mqa__ssm_conv_s4__prompt'

def setup_inputs():

    _w = (lambda a: (lambda t: t.to(torch.bfloat16) if t.is_floating_point() else t)(torch.as_tensor(a)))
    def _A_setup():
        B, S, D, H = 1, 2048, 512, 32
        Dh = D // H
        return {
            "x": _w((lambda *s: torch.randn(*s, dtype=torch.bfloat16) * 0.05)(B, S, D)),
            "wq": _w((lambda *s: torch.randn(*s, dtype=torch.bfloat16) * 0.8)(D, H * Dh)),
            "wk": _w((lambda *s: torch.randn(*s, dtype=torch.bfloat16) * 0.8)(D, Dh)),
            "wv": _w((lambda *s: torch.randn(*s, dtype=torch.bfloat16) * 0.05)(D, Dh)),
            "wo": _w((lambda *s: torch.randn(*s, dtype=torch.bfloat16) * 0.05)(H * Dh, D)),
        }
    _A_in = _A_setup()

    def _B_setup():
        B, L, D, N = 1, 2048, 512, 128
        A_re = -(lambda _x: torch.exp(torch.as_tensor(_x)))((lambda *s: torch.randn(*s, dtype=torch.bfloat16) * 3.2)(D, N))
        A_im = torch.pi * (lambda *s: torch.randn(*s, dtype=torch.bfloat16) * 0.05)(D, N)
        B_re = (lambda *s: torch.randn(*s, dtype=torch.bfloat16) * 0.1)(D, N)
        B_im = (lambda *s: torch.randn(*s, dtype=torch.bfloat16) * 0.1)(D, N)
        C_re = (lambda *s: torch.randn(*s, dtype=torch.bfloat16) * 0.1)(D, N)
        C_im = (lambda *s: torch.randn(*s, dtype=torch.bfloat16) * 0.1)(D, N)
        log_dt = (lambda *s: torch.randn(*s, dtype=torch.bfloat16) * 0.05)(D) * 0.5 - 4.0
        Dskip = (lambda *s: torch.randn(*s, dtype=torch.bfloat16) * 0.05)(D)
        return {
            "u": _w((lambda *s: torch.randn(*s, dtype=torch.bfloat16) * 0.05)(B, L, D)),
            "A_re": _w(A_re),
            "A_im": _w(A_im),
            "B_re": _w(B_re),
            "B_im": _w(B_im),
            "C_re": _w(C_re),
            "C_im": _w(C_im),
            "log_dt": _w(log_dt),
            "Dskip": _w(Dskip),
        }
    _B_in = _B_setup()

    return {
        "A_x": _A_in["x"],
        "A_wq": _A_in["wq"],
        "A_wk": _A_in["wk"],
        "A_wv": _A_in["wv"],
        "A_wo": _A_in["wo"],
        "B_u": _B_in["u"],
        "B_A_re": _B_in["A_re"],
        "B_A_im": _B_in["A_im"],
        "B_B_re": _B_in["B_re"],
        "B_B_im": _B_in["B_im"],
        "B_C_re": _B_in["C_re"],
        "B_C_im": _B_in["C_im"],
        "B_log_dt": _B_in["log_dt"],
        "B_Dskip": _B_in["Dskip"],
    }

def reference(A_x, A_wq, A_wk, A_wv, A_wo, B_u, B_A_re, B_A_im, B_B_re, B_B_im, B_C_re, B_C_im, B_log_dt, B_Dskip):
    def _A_ref(x, wq, wk, wv, wo):
        B, S, D = x.shape
        H = 32
        Dh = D // H
        q = (lambda x, *d: x.permute(*d))((x @ wq).reshape(B, S, H, Dh), 0, 2, 1, 3)
        k = x @ wk
        v = x @ wv
        scores = torch.einsum("bhqd,bkd->bhqk", q, k) * (Dh ** -0.5)
        p = _softmax(scores, axis=-1)
        o = torch.einsum("bhqk,bkd->bhqd", p, v)
        return (lambda x, *d: x.permute(*d))(o, 0, 2, 1, 3).reshape(B, S, H * Dh) @ wo

    def _B_ref(u, A_re, A_im, B_re, B_im, C_re, C_im, log_dt, Dskip):
        Bsz, L, D = u.shape
        dt = torch.exp(log_dt)[:, None]
        A = A_re + 1j * A_im
        Bc = B_re + 1j * B_im
        Cc = C_re + 1j * C_im
        logdA = dt * A
        dB = dt * Bc
        l = (lambda x, dt: x.to(dt))(torch.arange(L), A_re.dtype)
        P = torch.exp(logdA[:, :, None] * l[None, None, :])
        K = torch.einsum("dn,dnl,dn->dl", Cc, P, dB).real
        L2 = 2 * L
        Kp = _pad(K, ((0, 0), (0, L)))
        up = (lambda x, *d: x.permute(*d))(u, 0, 2, 1)
        up = _pad(up, ((0, 0), (0, 0), (0, L)))
        Kf = (lambda x, axes=(-2,-1): torch.fft.rfft2(x.float(), dim=axes))(Kp[:, None, :], axes=(-2, -1))
        Uf = (lambda x, axes=(-2,-1): torch.fft.rfft2(x.float(), dim=axes))(up[:, :, None, :], axes=(-2, -1))
        Yf = Uf * Kf[None, :, :, :]
        y = (lambda x, s, axes=(-2,-1): torch.fft.irfft2(x, s=s, dim=axes).to(torch.bfloat16))(Yf, (1, L2), axes=(-2, -1))[:, :, 0, :L]
        y = (lambda x, *d: x.permute(*d))(y, 0, 2, 1) + u * Dskip[None, None, :]
        return y

    a = _A_ref(A_x, A_wq, A_wk, A_wv, A_wo)
    b = _B_ref(B_u, B_A_re, B_A_im, B_B_re, B_B_im, B_C_re, B_C_im, B_log_dt, B_Dskip)
    return torch.concatenate([a, b], axis=-1)
```

```python
import re

class Asm:
    def __init__(self):
        self.lines = []
        self.uid = 0
    def __call__(self, s):
        for l in s.split("\n"):
            l = l.strip()
            if l:
                self.lines.append(l)
    def label(self, name):
        self.lines.append(name + ":")
    def newlabel(self, base="L"):
        self.uid += 1
        return f"{base}_{self.uid}"

def v(a, n=1):
    return f"v{a}" if n == 1 else f"v[{a}:{a+n-1}]"
def s(a, n=1):
    return f"s{a}" if n == 1 else f"s[{a}:{a+n-1}]"

_reg = re.compile(r"^-?\|?(?:abs\()?([vsa])(\d+)\)?\|?$")
_rng = re.compile(r"^-?([vsa])\[(\d+):(\d+)\]$")
def regs(op):
    op = op.strip()
    m = _reg.match(op)
    if m: return {(m.group(1), int(m.group(2)))}
    m = _rng.match(op)
    if m: return {(m.group(1), i) for i in range(int(m.group(2)), int(m.group(3)) + 1)}
    if op == "vcc": return {("s", "vcc")}
    if op == "exec": return {("s", "exec")}
    if op == "m0": return {("s", "m0")}
    return set()

TRANS = ("v_exp_", "v_log_", "v_rcp_", "v_rsq_", "v_sqrt_", "v_sin_", "v_cos_")
class Ins:
    def __init__(self, text):
        self.text = text
        t = text.split(";")[0].strip()
        parts = t.split(None, 1)
        self.op = parts[0]
        rest = parts[1] if len(parts) > 1 else ""
        ops = [o.strip() for o in rest.split(",")] if rest else []
        ops = [o.split()[0] if o else o for o in ops]
        self.ops = ops
        op = self.op
        self.is_mfma = op.startswith("v_mfma") or op.startswith("v_smfmac")
        self.is_valu = op.startswith("v_") and not self.is_mfma
        self.is_trans = op.startswith(TRANS)
        self.is_vmem = op.startswith(("buffer_", "global_"))
        self.is_ds = op.startswith("ds_")
        self.is_salu = op.startswith("s_")
        self.w = set(); self.r = set(); self.srcC = set(); self.srcAB = set(); self.sdata = set()
        self.passes = 0
        self.lds_dma = self.is_vmem and (" lds" in t or "_lds_" in op)
        if self.is_mfma:
            self.passes = 8 if "32x32" in op else 4
            self.w = regs(ops[0])
            self.srcAB = regs(ops[1]) | regs(ops[2])
            if op.startswith("v_smfmac"):
                self.srcC = set(self.w); self.srcAB |= regs(ops[3])
            else:
                self.srcC = regs(ops[3])
            self.r = self.srcAB | self.srcC
        elif self.is_valu:
            if op.startswith("v_cmp"):
                self.w = regs(ops[0]);
                for o in ops[1:]: self.r |= regs(o)
                if op.startswith("v_cmpx"): self.w |= {("s", "exec")}
            elif op.startswith(("v_permlane16_swap", "v_permlane32_swap", "v_swap")):
                self.w = regs(ops[0]) | regs(ops[1]); self.r = set(self.w)
            else:
                self.w = regs(ops[0])
                k = 1
                if op.startswith(("v_add_co", "v_sub_co", "v_addc_co", "v_subb_co")):
                    self.w |= regs(ops[1]); k = 2
                for o in ops[k:]: self.r |= regs(o)
                if op.startswith(("v_fmac", "v_writelane")) or "UNUSED_PRESERVE" in t or "_dpp" in op: self.r |= regs(ops[0])
        elif self.is_vmem:
            if "store" in op:
                self.sdata = regs(ops[0]) if op.startswith("buffer_") else regs(ops[1])
                for o in ops: self.r |= regs(o)
            elif self.lds_dma:
                for o in ops: self.r |= regs(o)
                self.r |= {("s", "m0")}
            else:
                self.w = regs(ops[0])
                for o in ops[1:]: self.r |= regs(o)
                if "d16" in op or "atomic" in op: self.r |= regs(ops[0])
        elif self.is_ds:
            if op.startswith(("ds_read", "ds_bpermute", "ds_permute", "ds_swizzle")) or "_rtn" in op:
                self.w = regs(ops[0])
                for o in ops[1:]: self.r |= regs(o)
            else:
                for o in ops: self.r |= regs(o)
        elif self.is_salu:
            if op.startswith(("s_cmp", "s_cbranch", "s_branch", "s_nop", "s_waitcnt", "s_barrier", "s_sleep", "s_setprio", "s_endpgm", "s_bitcmp")):
                for o in ops: self.r |= regs(o)
            else:
                self.w = regs(ops[0]) if ops else set()
                for o in ops[1:]: self.r |= regs(o)
                if "saveexec" in op: self.w |= {("s", "exec")}
        self.states = 1
        if op == "s_nop": self.states = int(ops[0]) + 1
        if "nocount" in text: self.states = 0
        self.wide_store = self.is_vmem and "store" in op and ("x3" in op or "x4" in op)

def isv(r): return r[0] in "va"
def iss(r): return r[0] == "s"

def need(p, c):
    n = 0
    pw_v = {r for r in p.w if isv(r)}; pw_s = {r for r in p.w if iss(r)}
    if p.is_mfma:
        big = p.passes == 8
        if c.is_mfma:
            if pw_v & c.srcAB: n = max(n, 12 if big else 8)
            if pw_v & c.srcC:
                if not (c.srcC == pw_v and c.passes == p.passes): n = max(n, 10 if big else 6)
            elif pw_v & c.w: n = max(n, 12 if big else 8)
        elif c.is_valu or c.is_vmem or c.is_ds:
            if pw_v & (c.r | c.w): n = max(n, 12 if big else 8)
        if c.is_valu and (p.srcC & c.w): n = max(n, 7 if big else 3)
    if p.is_valu:
        if c.is_mfma and (pw_v & c.r): n = max(n, 2)
        if c.is_mfma and ("s", "exec") in pw_s: n = max(n, 4)
        if c.is_vmem and (pw_s & c.r): n = max(n, 5)
        if c.is_valu and (pw_s & c.r): n = max(n, 4 if c.op.startswith(("v_readlane", "v_writelane")) else 2)
        if c.is_salu and (pw_s & c.r): n = max(n, 3)
        if c.op.startswith(("v_readfirstlane", "v_readlane")) and (pw_v & c.r): n = max(n, 1)
        if c.op.startswith("v_permlane") and (pw_v & c.r): n = max(n, 2)
        if "_dpp" in c.op and (pw_v & c.r): n = max(n, 2)
        if p.is_trans and c.is_valu and not c.is_trans and (pw_v & c.r): n = max(n, 1)
        if ("sdwa" in p.op or "op_sel" in p.text and p.op.startswith("v_cvt")) and c.is_valu and (pw_v & (c.r | c.w)): n = max(n, 1)
        if ("s", "exec") in pw_s and c.is_valu: n = max(n, 5)
    if p.is_salu and ("s", "m0") in p.w and c.lds_dma: n = max(n, 1)
    if p.wide_store and (p.sdata & c.w): n = max(n, 2)
    return n

def hazard_pass(lines, verbose=False):
    out = []; hist = []; ninserted = 0
    for l in lines:
        if l == "HZ_RESET":
            hist = []; continue
        if l.endswith(":") or l.startswith(".") or l.startswith(";"):
            out.append(l); continue
        c = Ins(l)
        dist = 0; req = 0
        for p in reversed(hist):
            if dist >= 20: break
            k = need(p, c)
            if k - dist > req: req = k - dist
            dist += p.states
        if req > 0:
            ninserted += 1
            if verbose: print("nop", req, "before", l)
            while req > 0:
                k = min(req, 16)
                out.append(f"s_nop {k-1}"); hist.append(Ins(f"s_nop {k-1}")); req -= k
        out.append(l); hist.append(c)
        if len(hist) > 40: hist = hist[-24:]
        if c.op in ("s_branch", "s_endpgm"): hist = []
    return out, ninserted
```

```python
import sys, struct, argparse
from asmlib import Asm, v, s, hazard_pass

NAME = "concat_heads__grouped_kv_mqa__ssm_conv_s4__prompt"
def fbits(x): return "0x%08x" % struct.unpack("<I", struct.pack("<f", x))[0]
import math
LOG2E = math.log2(math.e)

R0   = 0
XE   = 32768
W    = 65536
GEN  = 131072
QB   = 147456
KVR  = 155648
CNT  = 159744
LDS_BYTES = 160000
KCOPY = 6912; KCH = 2 * KCOPY
UCOPY = 4416; UCH = 4 * UCOPY
YX   = W + 36864
OX1  = W
OX2  = YX
PSLOT = 2304
C_KV, C_WQA, C_WQB, C_XL, C_QE, C_QL, C_FL, C_KT0, C_KT1, C_KU, C_Y, C_PE, C_PED, C_PL, C_O1, C_O2 = [4 * i for i in range(16)]

WS_FLAG = 4096
WS_KV   = 65536
KVT     = 2304
WS_O    = 262144
WS_STAMP = 4 << 20
WS_DBG  = 5 << 20
WS_SIZE = 16 << 20

sWG, sWAVE, sG, sR, sP, sW4 = 2, 3, 4, 5, 6, 7
sT0, sT1, sT2, sT3, sT4, sT5 = 8, 9, 10, 11, 12, 13
sCLS = 14; sROT = 15
pX, pWQ, pWK, pWV, pWO, pU, pARE, pAIM, pBRE, pBIM, pCRE, pCIM, pLDT, pDSK, pOUT, pDBG, pWS = [16 + 2 * i for i in range(17)]
sNONCE, sBUD = 50, 51
rA, rB, rC, rWS = 52, 56, 60, 64
sLOOP = 68; sSOF = 69
sSTAMP = 70
OOB = 0x7ff00000

class Gen:
    def __init__(self, dbg=False, opts=None):
        self.a = Asm(); self.dbg = dbg; self.o = opts or {}
    def opt(self, k, d=None): return self.o.get(k, d)

    def srd(self, r, p, nbytes):
        a = self.a
        a(f"s_mov_b32 {s(r)}, {s(p)}\ns_mov_b32 {s(r+1)}, {s(p+1)}\ns_mov_b32 {s(r+2)}, {nbytes}\ns_mov_b32 {s(r+3)}, 0x20000")
    def stamp(self, i):
        if self.dbg: self.a(f"s_memrealtime {s(sSTAMP+2*i,2)}")
    def arrive(self, c, vz, vone):
        self.a(f"s_mov_b64 exec, 1\nds_add_u32 {v(vz)}, {v(vone)} offset:{c}\ns_mov_b64 exec, -1")
    def waitc(self, c, n, vz, vt):
        a = self.a; L = a.newlabel("Lw"); D = a.newlabel("Ld")
        a.label(L)
        a(f"""ds_read_b32 {v(vt)}, {v(vz)} offset:{c}
        s_waitcnt lgkmcnt(0)
        v_readfirstlane_b32 {s(sT0)}, {v(vt)}
        s_cmp_ge_u32 {s(sT0)}, {n}
        s_cbranch_scc1 {D}
        s_sleep 1 ; nocount
        s_sub_u32 {s(sBUD)}, {s(sBUD)}, 1 ; nocount
        s_cbranch_scc0 {L} ; nocount
        s_mov_b32 {s(sBUD)}, 0 ; nocount""")
        a.label(D)
    def cmul(self, d, x, m, t):
        self.a(f"v_pk_mul_f32 {v(t,2)}, {v(x,2)}, {v(m,2)} op_sel_hi:[1,0]")
        self.a(f"v_pk_fma_f32 {v(d,2)}, {v(x,2)}, {v(m,2)}, {v(t,2)} op_sel:[1,1,0] op_sel_hi:[0,1,1] neg_lo:[0,1,0]")

    def build(self):
        a = self.a
        self.entry()
        self.role_late_start()
        self.role_early_start()
        self.qproj_and_attention()
        self.role_s()
        self.finish()
        lines, n = hazard_pass(a.lines, verbose=self.opt("vhz"))
        body = "\n".join(l if l.endswith(":") or l.startswith(".") else "    " + l for l in lines)
        head = f"""; fused MQA attention + S4 long convolution, one persistent launch (generated by gen/gen.py)
; @launch grid=(256,1,1) block=(768,1,1) lds={LDS_BYTES}
.amdgcn_target "amdgcn-amd-amdhsa--gfx950"
.text
.globl {NAME}_kernel
.p2align 8
.type {NAME}_kernel,@function
{NAME}_kernel:
"""
        tail = f"""
.section .rodata,"a"
.p2align 6
.amdhsa_kernel {NAME}_kernel
  .amdhsa_next_free_vgpr 168
  .amdhsa_next_free_sgpr 96
  .amdhsa_accum_offset 168
  .amdhsa_group_segment_fixed_size 0
  .amdhsa_kernarg_size 136
  .amdhsa_user_sgpr_count 2
  .amdhsa_user_sgpr_kernarg_segment_ptr 1
  .amdhsa_system_sgpr_workgroup_id_x 1
  .amdhsa_float_denorm_mode_32 3
.end_amdhsa_kernel
"""
        return head + body + tail

    vL, vZ, vONE, vT = 0, 1, 2, 3

    def entry(self):
        a = self.a
        if self.dbg:
            for i in range(12): a(f"s_mov_b64 {s(sSTAMP+2*i,2)}, 0")
        self.stamp(0)
        a(f"""s_cmp_ge_u32 s2, 256
        s_cbranch_scc1 L_exit
        s_load_dwordx16 s[16:31], s[0:1], 0
        s_load_dwordx16 s[32:47], s[0:1], 64
        s_load_dwordx2 s[48:49], s[0:1], 128
        v_lshrrev_b32 v3, 6, v0
        v_and_b32 v0, 63, v0
        v_readfirstlane_b32 {s(sWAVE)}, v3
        v_mov_b32 v1, {CNT}
        v_mov_b32 v2, 1
        s_and_b32 {s(sT0)}, s2, 7
        s_lshr_b32 {s(sT1)}, s2, 3
        s_lshl_b32 {s(sG)}, {s(sT0)}, 2
        s_lshr_b32 {s(sT2)}, {s(sT1)}, 3
        s_add_u32 {s(sG)}, {s(sG)}, {s(sT2)}
        s_and_b32 {s(sR)}, {s(sT1)}, 7
        s_lshl_b32 {s(sP)}, {s(sT0)}, 5
        s_add_u32 {s(sP)}, {s(sP)}, {s(sT1)}
        s_and_b32 {s(sROT)}, {s(sT1)}, 15
        s_mov_b32 {s(sBUD)}, 200000
        s_and_b32 {s(sW4)}, {s(sWAVE)}, 3
        s_lshr_b32 {s(sCLS)}, {s(sWAVE)}, 2
        v_lshl_add_u32 v4, v0, 2, v1
        v_mov_b32 v5, 0
        s_cmp_eq_u32 {s(sWAVE)}, 11
        s_cbranch_scc0 L_nozero
        ds_write_b32 v4, v5""")
        a.label("L_nozero")
        a(f"""s_waitcnt lgkmcnt(0)""")
        self.srd(rWS, pWS, WS_SIZE)
        a(f"""s_cmp_eq_u32 {s(sCLS)}, 2
        s_cbranch_scc1 L_role_s""")
        self.srd(rA, pX, 2097152)
        a(f"""s_load_dword {s(sNONCE)}, {s(pWS,2)}, 0
        s_cmp_eq_u32 {s(sCLS)}, 0
        s_cbranch_scc1 L_role_early""")

    def role_late_start(self):
        a = self.a; vL, vZ, vONE, vT = self.vL, self.vZ, self.vONE, self.vT
        a("s_setprio 3")
        a(f"""s_and_b32 {s(sT0)}, {s(sR)}, 3
        s_lshl_b32 {s(sT1)}, {s(sG)}, 2
        s_add_u32 {s(sT1)}, {s(sT1)}, {s(sT0)}
        s_lshl_b32 {s(sT1)}, {s(sT1)}, 14
        s_lshl_b32 {s(sT2)}, {s(sW4)}, 8
        s_add_u32 {s(sT1)}, {s(sT1)}, {s(sT2)}
        v_and_b32 v4, 15, v0
        v_lshrrev_b32 v5, 4, v0
        v_lshlrev_b32 v6, 10, v4
        v_lshl_add_u32 v6, v5, 4, v6""")
        for k in range(4):
            a(f"buffer_load_dwordx4 {v(8+4*k,4)}, v6, {s(rA,4)}, {s(sT1)} offen offset:{64*k}")
        a(f"""s_cmp_ge_u32 {s(sR)}, 4
        s_cselect_b32 {s(rB)}, {s(pWV)}, {s(pWK)}
        s_cselect_b32 {s(rB+1)}, {s(pWV+1)}, {s(pWK+1)}
        s_mov_b32 {s(rB+2)}, 16384
        s_mov_b32 {s(rB+3)}, 0x20000
        s_lshl_b32 {s(sT2)}, {s(sW4)}, 12
        v_lshrrev_b32 v7, 4, v0
        v_and_b32 v7, 1, v7
        v_lshlrev_b32 v7, 7, v7
        v_lshlrev_b32 v24, 4, v0
        v_xor_b32 v7, v7, v24
        s_add_u32 m0, {s(sT2)}, {R0}""")
        for k in range(4):
            a(f"buffer_load_dwordx4 v7, {s(rB,4)}, {s(sT2)} offen offset:{1024*k} lds")
        a(f"""s_lshl_b32 {s(sT3)}, {s(sG)}, 6
        s_lshl_b32 {s(sT4)}, {s(sR)}, 2
        s_add_u32 {s(sT3)}, {s(sT3)}, {s(sT4)}
        s_add_u32 {s(sT3)}, {s(sT3)}, {s(sW4)}
        s_lshl_b32 {s(sT3)}, {s(sT3)}, 10
        s_add_u32 {s(sT3)}, {s(sT3)}, {WS_O}
        s_add_u32 {s(sT4)}, {s(sT3)}, 32768
        v_mov_b32 v28, -1
        v_mov_b32 v29, -1
        v_mov_b32 v30, -1
        v_mov_b32 v31, -1
        buffer_store_dwordx4 v[28:31], v24, {s(rWS,4)}, {s(sT3)} offen sc1
        buffer_store_dwordx4 v[28:31], v24, {s(rWS,4)}, {s(sT4)} offen sc1""")
        a(f"""v_bfe_u32 v25, v0, 2, 2
        v_lshl_add_u32 v25, v5, 3, v25
        v_and_b32 v26, 1, v5
        v_lshl_add_u32 v25, v26, 2, v25
        v_lshlrev_b32 v25, 5, v25
        v_and_b32 v26, 3, v0
        v_lshl_add_u32 v25, v26, 3, v25
        v_add_u32 v25, {s(sT2)}, v25
        v_xor_b32 v26, 0x80, v25
        s_barrier
        s_waitcnt vmcnt(2) lgkmcnt(0)""")
        self.stamp(1)
        for k in range(4):
            a(f"ds_read_b64_tr_b16 {v(32+4*k,2)}, v25 offset:{R0+1024*k}")
            a(f"ds_read_b64_tr_b16 {v(34+4*k,2)}, v26 offset:{R0+1024*k}")
        a(f"""s_cmp_ge_u32 {s(sR)}, 4
        s_cbranch_scc1 L_kv_v""")
        for k in range(4):
            a(f"s_waitcnt lgkmcnt({6-2*k})")
            a(f"v_mfma_f32_16x16x32_bf16 v[48:51], {v(32+4*k,4)}, {v(8+4*k,4)}, {'0' if k==0 else 'v[48:51]'}")
        a("s_branch L_kv_j")
        a.label("L_kv_v")
        for k in range(4):
            a(f"s_waitcnt lgkmcnt({6-2*k})")
            a(f"v_mfma_f32_16x16x32_bf16 v[48:51], {v(8+4*k,4)}, {v(32+4*k,4)}, {'0' if k==0 else 'v[48:51]'}")
        a.label("L_kv_j")
        a(f"""s_lshl_b32 {s(sT2)}, {s(sW4)}, 10
        s_add_u32 {s(sT2)}, {s(sT2)}, {KVR}
        v_add_u32 v27, {s(sT2)}, v24
        s_nop 5
        ds_write_b128 v27, v[48:51]
        s_waitcnt vmcnt(0) lgkmcnt(0)""")
        self.arrive(C_KV, vZ, vONE)
        self.waitc(C_KV, 4, vZ, vT)
        a(f"""s_cmp_eq_u32 {s(sW4)}, 0
        s_cbranch_scc0 L_kv_done""")
        a(f"""ds_read_b128 v[52:55], v27 offset:1024
        ds_read_b128 v[56:59], v27 offset:2048
        ds_read_b128 v[60:63], v27 offset:3072
        s_cmp_ge_u32 {s(sR)}, 4
        s_cselect_b32 {s(sT2)}, 1.0, {fbits(0.25*LOG2E)}
        s_cselect_b32 {s(sT3)}, 1024, 0
        s_cselect_b32 {s(sT4)}, 5, 4
        s_lshl_b32 {s(sT4)}, {s(sT4)}, 7
        s_bitcmp1_b32 {s(sR)}, 0
        s_cselect_b32 {s(sT4)}, {s(sT4)}, 0
        s_add_u32 {s(sT3)}, {s(sT3)}, {s(sT4)}
        s_bfe_u32 {s(sT4)}, {s(sR)}, 0x10001
        s_lshl_b32 {s(sT5)}, {s(sG)}, 1
        s_add_u32 {s(sT4)}, {s(sT4)}, {s(sT5)}
        s_mul_i32 {s(sT4)}, {s(sT4)}, {KVT}
        s_add_u32 {s(sT3)}, {s(sT3)}, {s(sT4)}
        s_add_u32 {s(sT3)}, {s(sT3)}, {WS_KV}
        v_lshlrev_b32 v6, 5, v4
        v_lshl_add_u32 v6, v5, 3, v6
        s_waitcnt lgkmcnt(0)""")
        for i in range(4): a(f"v_add_f32 v{48+i}, v{48+i}, v{52+i}")
        for i in range(4): a(f"v_add_f32 v{56+i}, v{56+i}, v{60+i}")
        for i in range(4): a(f"v_add_f32 v{48+i}, v{48+i}, v{56+i}")
        for i in range(4): a(f"v_mul_f32 v{48+i}, {s(sT2)}, v{48+i}")
        a(f"""v_cvt_pk_bf16_f32 v52, v48, v49
        v_cvt_pk_bf16_f32 v53, v50, v51
        buffer_store_dwordx2 v[52:53], v6, {s(rWS,4)}, {s(sT3)} offen sc1
        s_cmp_ge_u32 {s(sR)}, 4
        s_cbranch_scc0 L_kv_noones
        v_mov_b32 v54, 0x3f803f80
        v_mov_b32 v55, 0x3f803f80
        v_lshlrev_b32 v7, 3, v0
        s_mov_b64 exec, 0xffff
        buffer_store_dwordx2 v[54:55], v7, {s(rWS,4)}, {s(sT3)} offen offset:512 sc1
        s_mov_b64 exec, -1""")
        a.label("L_kv_noones")
        a(f"""s_lshl_b32 {s(sT2)}, {s(sG)}, 3
        s_add_u32 {s(sT2)}, {s(sT2)}, {s(sR)}
        s_lshl_b32 {s(sT2)}, {s(sT2)}, 7
        s_add_u32 {s(sT2)}, {s(sT2)}, {WS_FLAG}
        s_add_u32 {s(sT3)}, {s(sNONCE)}, 0x9e3779b9
        v_mov_b32 v54, {s(sT3)}
        v_mov_b32 v7, 0
        s_waitcnt vmcnt(0)
        s_mov_b64 exec, 1
        buffer_store_dword v54, v7, {s(rWS,4)}, {s(sT2)} offen sc1
        s_mov_b64 exec, -1""")
        a.label("L_kv_done")
        self.stamp(2)
        a("s_setprio 1")
        self.x_dma(R0, 32)
        a("s_waitcnt vmcnt(0)")
        self.arrive(C_XL, vZ, vONE)
        self.waitc(C_XL, 4, vZ, vT)
        a(f"""s_mov_b32 {s(sT5)}, {R0}
        s_branch L_qproj""")

    def x_dma(self, lds, row0):
        a = self.a
        a(f"""s_lshl_b32 {s(sT1)}, {s(sG)}, 16
        s_lshl_b32 {s(sT2)}, {s(sW4)}, 13
        s_add_u32 {s(sT1)}, {s(sT1)}, {s(sT2)}
        s_add_u32 {s(sT1)}, {s(sT1)}, {row0*1024}
        s_add_u32 m0, {s(sT2)}, {lds}
        s_and_b32 {s(sT3)}, {s(sW4)}, 1
        s_lshl_b32 {s(sT3)}, {s(sT3)}, 7
        v_lshlrev_b32 v4, 4, v0
        v_xor_b32 v4, {s(sT3)}, v4""")
        for i in range(8):
            if i == 4:
                a(f"s_add_u32 {s(sT1)}, {s(sT1)}, 4096\ns_add_u32 m0, m0, 4096")
            if i == 0:
                a(f"buffer_load_dwordx4 v4, {s(rA,4)}, {s(sT1)} offen lds")
            else:
                a(f"v_xor_b32 v{5+(i&1)}, {16*i}, v4")
                a(f"buffer_load_dwordx4 v{5+(i&1)}, {s(rA,4)}, {s(sT1)} offen offset:{1024*(i&3)} lds")

    def role_early_start(self):
        a = self.a; vL, vZ, vONE, vT = self.vL, self.vZ, self.vONE, self.vT
        a.label("L_role_early")
        a("s_setprio 2")
        self.srd(rB, pWQ, 524288)
        self.x_dma(XE, 0)
        a(f"""v_lshrrev_b32 v7, 3, v0
        v_and_b32 v8, 7, v0
        v_and_b32 v9, 2, v7
        v_xor_b32 v8, v8, v9
        s_and_b32 {s(sT3)}, {s(sW4)}, 1
        s_lshl_b32 {s(sT3)}, {s(sT3)}, 2
        v_xor_b32 v8, {s(sT3)}, v8
        v_lshlrev_b32 v7, 10, v7
        v_lshl_add_u32 v7, v8, 4, v7
        s_lshl_b32 {s(sT1)}, {s(sW4)}, 13
        s_lshl_b32 {s(sT2)}, {s(sR)}, 7
        s_add_u32 {s(sT1)}, {s(sT1)}, {s(sT2)}
        s_lshl_b32 {s(sT2)}, {s(sW4)}, 10
        s_add_u32 m0, {s(sT2)}, {W}""")
        for i in range(16):
            a(f"buffer_load_dwordx4 v7, {s(rB,4)}, {s(sT1)} offen lds")
            if i < 15: a(f"s_add_u32 m0, m0, 4096\ns_add_u32 {s(sT1)}, {s(sT1)}, 32768")
        a("s_barrier")
        a("s_waitcnt vmcnt(8)")
        self.stamp(1)
        self.arrive(C_WQA, vZ, vONE)
        a(f"s_mov_b32 {s(sT5)}, {XE}")

    Q0, O0, S0, KA = 8, 24, 88, 120
    vKO, vVO, vIDX = 4, 5, 6
    def qproj_and_attention(self):
        a = self.a; vL, vZ, vONE, vT = self.vL, self.vZ, self.vONE, self.vT
        a.label("L_qproj")
        a(f"""v_and_b32 v4, 15, v0
        v_lshrrev_b32 v5, 4, v0
        v_xor_b32 v6, v4, v5
        v_lshlrev_b32 v6, 4, v6
        v_lshl_add_u32 v6, v4, 10, v6
        v_add_u32 v144, {s(sT5)}, v6
        v_xor_b32 v145, 64, v144
        v_xor_b32 v146, 0x80, v144
        v_xor_b32 v147, 0xc0, v144
        v_bfe_u32 v6, v0, 2, 2
        v_lshl_add_u32 v7, v5, 3, v6
        v_lshlrev_b32 v7, 7, v7
        v_and_b32 v6, 2, v6
        v_and_b32 v8, 1, v5
        v_lshl_add_u32 v6, v8, 2, v6
        s_lshl_b32 {s(sT1)}, {s(sW4)}, 1
        v_xor_b32 v6, {s(sT1)}, v6
        v_lshl_add_u32 v7, v6, 4, v7
        v_and_b32 v6, 3, v0
        v_lshl_add_u32 v7, v6, 3, v7
        v_add_u32 v148, {W}, v7""")
        self.waitc(C_WQA, 4, vZ, vT)
        def rd(sx):
            b = 24 + 12 * (sx % 3)
            a(f"ds_read_b64_tr_b16 {v(b+8,2)}, v148 offset:{4096*sx}")
            a(f"ds_read_b64_tr_b16 {v(b+10,2)}, v148 offset:{4096*sx+512}")
            a(f"ds_read_b128 {v(b,4)}, v{144+(sx&3)} offset:{256*(sx>>2)}")
            a(f"ds_read_b128 {v(b+4,4)}, v{144+(sx&3)} offset:{256*(sx>>2)+16384}")
        def mm(sx):
            b = 24 + 12 * (sx % 3)
            a(f"v_mfma_f32_16x16x32_bf16 v[64:67], {v(b+8,4)}, {v(b,4)}, {'0' if sx==0 else 'v[64:67]'}")
            a(f"v_mfma_f32_16x16x32_bf16 v[68:71], {v(b+8,4)}, {v(b+4,4)}, {'0' if sx==0 else 'v[68:71]'}")
        for half in range(2):
            s0 = 8 * half
            if half == 1:
                a(f"""s_cmp_eq_u32 {s(sCLS)}, 0
                s_cbranch_scc0 L_q_nob
                s_waitcnt vmcnt(0)""")
                self.arrive(C_WQB, vZ, vONE)
                a.label("L_q_nob")
                self.waitc(C_WQB, 4, vZ, vT)
            rd(s0); rd(s0 + 1)
            for sx in range(s0, s0 + 8):
                if sx + 2 < s0 + 8:
                    rd(sx + 2); a("s_waitcnt lgkmcnt(8)")
                else:
                    a(f"s_waitcnt lgkmcnt({4*(s0+7-sx)})")
                mm(sx)
        self.stamp(3)
        a(f"""s_lshl_b32 {s(sT1)}, {s(sW4)}, 13
        s_add_u32 {s(sT1)}, {s(sT1)}, {WS_FLAG}
        v_lshlrev_b32 v149, 7, v0
        s_cmp_eq_u32 {s(sCLS)}, 0
        s_cbranch_scc0 L_q_nopoll0
        buffer_load_dword v150, v149, {s(rWS,4)}, {s(sT1)} offen sc1""")
        a.label("L_q_nopoll0")
        a(f"""v_lshrrev_b32 v6, 1, v5
        v_lshlrev_b32 v6, 9, v6
        v_lshl_add_u32 v6, v4, 4, v6
        v_and_b32 v7, 1, v5
        v_lshl_add_u32 v6, v7, 3, v6
        s_lshl_b32 {s(sT2)}, {s(sWAVE)}, 10
        s_add_u32 {s(sT2)}, {s(sT2)}, {QB}
        v_add_u32 v6, {s(sT2)}, v6
        v_cvt_pk_bf16_f32 v72, v64, v65
        v_cvt_pk_bf16_f32 v73, v66, v67
        v_cvt_pk_bf16_f32 v74, v68, v69
        v_cvt_pk_bf16_f32 v75, v70, v71
        ds_write_b64 v6, v[72:73]
        ds_write_b64 v6, v[74:75] offset:256
        s_lshl_b32 {s(sT2)}, {s(sCLS)}, 2
        v_add_u32 v151, {s(sT2)}, v1
        s_waitcnt lgkmcnt(0)""")
        self.arrive(C_QE, 151, vONE)
        Q0, O0, S0, KA = self.Q0, self.O0, self.S0, self.KA
        vKO, vVO, vIDX = self.vKO, self.vVO, self.vIDX
        a(f"""s_mul_i32 {s(sT2)}, {s(sW4)}, {16*KVT}
        s_add_u32 {s(sT2)}, {s(sT2)}, {WS_KV}
        v_and_b32 v7, 31, v0
        v_lshrrev_b32 v8, 5, v0
        v_lshlrev_b32 v4, 5, v7
        v_lshl_add_u32 v4, v8, 4, v4
        v_add_u32 v4, {s(sT2)}, v4
        v_and_b32 v9, 3, v7
        v_bfe_u32 v10, v7, 2, 1
        v_lshl_add_u32 v9, v10, 3, v9
        v_bfe_u32 v10, v7, 3, 1
        v_lshl_add_u32 v9, v10, 2, v9
        v_lshlrev_b32 v9, 5, v9
        v_cmp_gt_u32 vcc, 16, v7
        v_mov_b32 v10, {OOB}
        v_cndmask_b32 v9, v10, v9, vcc
        v_and_b32 v10, 27, v7
        v_cmp_eq_u32 vcc, 16, v10
        v_mov_b32 v10, 512
        v_cndmask_b32 v9, v9, v10, vcc
        v_lshl_add_u32 v9, v8, 4, v9
        v_add_u32 v5, {s(sT2)}, v9
        v_mov_b32 v6, 0xdddddddd""")
        for i in range(64): a(f"v_mov_b32 v{O0+i}, 0")
        for i in range(8): a(f"v_mov_b32 v{S0+24+i}, 0")
        for i in range(4): a(f"v_mov_b32 v{KA+20+i}, 0")
        a(f"""s_cmp_eq_u32 {s(sCLS)}, 0
        s_cbranch_scc0 L_late_flags
        s_add_u32 {s(sT3)}, {s(sNONCE)}, 0x9e3779b9""")
        a.label("L_poll")
        a(f"""s_waitcnt vmcnt(0)
        v_cmp_eq_u32 vcc, {s(sT3)}, v150
        s_cmp_eq_u64 vcc, exec
        s_cbranch_scc1 L_poll_ok
        buffer_load_dword v150, v149, {s(rWS,4)}, {s(sT1)} offen sc1
        s_sub_u32 {s(sBUD)}, {s(sBUD)}, 1
        s_cbranch_scc0 L_poll
        s_mov_b32 {s(sBUD)}, 0
        s_waitcnt vmcnt(0)""")
        a.label("L_poll_ok")
        self.arrive(C_FL, vZ, vONE)
        a("s_branch L_flags_done")
        a.label("L_late_flags")
        self.waitc(C_FL, 4, vZ, vT)
        a.label("L_flags_done")
        self.stamp(4)
        KB = KA + 12
        def sof_next():
            a(f"""s_add_u32 {s(sROT)}, {s(sROT)}, 1
            s_and_b32 {s(sROT)}, {s(sROT)}, 15
            s_mul_i32 {s(sSOF)}, {s(sROT)}, {KVT}""")
        def ldK(b): a(f"buffer_load_dwordx4 {v(b,4)}, v{vKO}, {s(rWS,4)}, {s(sSOF)} offen sc1")
        def ldV0(b): a(f"buffer_load_dwordx4 {v(b+4,4)}, v{vVO}, {s(rWS,4)}, {s(sSOF)} offen offset:1024 sc1")
        def ldV1(b): a(f"buffer_load_dwordx4 {v(b+8,4)}, v{vVO}, {s(rWS,4)}, {s(sSOF)} offen offset:1664 sc1")
        a(f"s_mul_i32 {s(sSOF)}, {s(sROT)}, {KVT}")
        ldK(KA); ldV0(KA); ldV1(KA)
        sof_next()
        ldK(KB); ldV0(KB)
        self.waitc(C_QE, 4, 151, vT)
        a(f"""s_lshl_b32 {s(sT2)}, {s(sCLS)}, 12
        s_add_u32 {s(sT2)}, {s(sT2)}, {QB}
        v_lshl_add_u32 v7, v0, 4, {s(sT2)}""")
        for i in range(4):
            a(f"""s_add_u32 {s(sT3)}, {s(sW4)}, {i}
            s_and_b32 {s(sT3)}, {s(sT3)}, 3
            s_lshl_b32 {s(sT3)}, {s(sT3)}, 10
            v_add_u32 v{144+i}, {s(sT3)}, v7
            ds_read_b128 {v(Q0+4*i,4)}, v{144+i}""")
        a(f"""s_mov_b32 {s(sLOOP)}, 8
        s_waitcnt vmcnt(2) lgkmcnt(0)
        v_mfma_f32_32x32x16_bf16 {v(S0,16)}, {v(KA,4)}, {v(Q0,4)}, 0
        s_nop 11""")
        self.stamp(5)
        a(".p2align 6")
        a.label("L_att")
        for t in range(2):
            cur = KA if t == 0 else KB; oth = KB if t == 0 else KA
            for i in range(4):
                S = S0 + 16 * (i & 1); Sn = S0 + 16 * ((i + 1) & 1)
                def ex(a0, a1):
                    for k in range(a0, a1): a(f"v_exp_f32 v{S+k}, v{S+k}")
                ex(0, 2)
                if i == 1: a("s_waitcnt vmcnt(3)")
                pv = oth if i == 0 else cur
                a(f"v_smfmac_f32_32x32x32_bf16 {v(O0+16*((i-1)&3),16)}, {v(pv+8,4)}, {v(Sn+8,8)}, v{vIDX}")
                if i == 0: ldV1(oth)
                if i == 1: sof_next()
                ex(2, 5)
                if i == 3: a("s_waitcnt vmcnt(2)")
                kk = oth if i == 3 else cur
                a(f"v_mfma_f32_32x32x16_bf16 {v(Sn,16)}, {v(kk,4)}, {v(Q0+4*((i+1)&3),4)}, 0")
                if i == 2: ldK(cur)
                ex(5, 10)
                a(f"v_smfmac_f32_32x32x32_bf16 {v(O0+16*i,16)}, {v(cur+4,4)}, {v(S,8)}, v{vIDX}")
                if i == 3: ldV0(cur)
                if t == 1 and i == 3:
                    ex(10, 13)
                    a(f"s_sub_u32 {s(sLOOP)}, {s(sLOOP)}, 1\ns_cmp_lg_u32 {s(sLOOP)}, 0")
                    ex(13, 16)
                else:
                    ex(10, 16)
        a("s_cbranch_scc1 L_att")
        a(f"s_nop 1")
        a(f"v_smfmac_f32_32x32x32_bf16 {v(O0+48,16)}, {v(KB+8,4)}, {v(S0+24,8)}, v{vIDX}")
        self.stamp(6)
        self.att_tail()

    def att_tail(self):
        a = self.a; vL, vZ, vONE, vT = self.vL, self.vZ, self.vONE, self.vT
        Q0, O0, S0, KA = self.Q0, self.O0, self.S0, self.KA
        a(f"""s_cmp_eq_u32 {s(sCLS)}, 0
        s_cselect_b32 {s(sT2)}, {C_QL}, {C_PED}
        s_cselect_b32 {s(sT3)}, {C_PE}, {C_PL}
        v_add_u32 v144, {s(sT2)}, v1
        v_add_u32 v145, {s(sT3)}, v1""")
        self.waitc(0, 4, 144, vT)
        a("v_lshlrev_b32 v146, 4, v0\nv_lshlrev_b32 v147, 2, v0")
        for i in range(1, 4):
            a(f"""s_add_u32 {s(sT2)}, {s(sW4)}, {i}
            s_and_b32 {s(sT2)}, {s(sT2)}, 3
            s_mul_i32 {s(sT2)}, {s(sT2)}, {3*PSLOT}
            v_add_u32 v148, {s(sT2)}, v146
            v_add_u32 v149, {s(sT2)}, v147
            ds_write_b128 v148, {v(O0+16*i,4)} offset:{R0+(i-1)*PSLOT}
            ds_write_b128 v148, {v(O0+16*i+4,4)} offset:{R0+(i-1)*PSLOT+1024}
            ds_write_b32 v149, v{O0+16*i+8} offset:{R0+(i-1)*PSLOT+2048}""")
        a(f"""s_mul_i32 {s(sT2)}, {s(sW4)}, {3*PSLOT}
        v_add_u32 v148, {s(sT2)}, v146
        v_add_u32 v149, {s(sT2)}, v147
        s_waitcnt vmcnt(0) lgkmcnt(0)""")
        self.arrive(0, 145, vONE)
        self.waitc(0, 4, 145, vT)
        for i in range(1, 4):
            a(f"""ds_read_b128 {v(O0+16*i,4)}, v148 offset:{R0+(i-1)*PSLOT}
            ds_read_b128 {v(O0+16*i+4,4)}, v148 offset:{R0+(i-1)*PSLOT+1024}
            ds_read_b32 v{O0+16*i+8}, v149 offset:{R0+(i-1)*PSLOT+2048}""")
        a(f"""s_lshl_b32 {s(sT3)}, {s(sG)}, 1
        s_add_u32 {s(sT3)}, {s(sT3)}, {s(sCLS)}
        s_lshl_b32 {s(sT3)}, {s(sT3)}, 5
        s_lshl_b32 {s(sT4)}, {s(sR)}, 2
        s_add_u32 {s(sT3)}, {s(sT3)}, {s(sT4)}
        s_add_u32 {s(sT3)}, {s(sT3)}, {s(sW4)}
        s_lshl_b32 {s(sT3)}, {s(sT3)}, 10
        s_add_u32 {s(sT5)}, {s(sT3)}, {WS_O}
        s_waitcnt lgkmcnt(3)""")
        for k in range(9): a(f"v_add_f32 v{O0+16+k}, v{O0+16+k}, v{O0+32+k}")
        a("s_waitcnt lgkmcnt(0)")
        for k in range(9): a(f"v_add_f32 v{O0+k}, v{O0+k}, v{O0+48+k}")
        a(f"s_cmp_eq_u32 {s(sCLS)}, 0\ns_cbranch_scc0 L_no_ped")
        self.arrive(C_PED, vZ, vONE)
        a.label("L_no_ped")
        for k in range(9): a(f"v_add_f32 v{O0+k}, v{O0+k}, v{O0+16+k}")
        a(f"""v_add_f32 v150, v{O0}, v{O0+1}
        v_add_f32 v151, v{O0+2}, v{O0+3}
        v_add_f32 v152, v{O0+4}, v{O0+5}
        v_add_f32 v153, v{O0+6}, v{O0+7}
        v_add_f32 v150, v150, v151
        v_add_f32 v152, v152, v153
        v_add_f32 v150, v150, v152
        v_mov_b32 v151, 0x7f800000
        v_cmp_lt_f32 {s(sT2,2)}, |v150|, v151
        v_cmp_le_f32 vcc, {fbits(2.0**-60)}, v{O0+8}
        s_and_b64 {s(sT2,2)}, {s(sT2,2)}, vcc
        v_cmp_ge_f32 vcc, {fbits(2.0**60)}, v{O0+8}
        s_and_b64 vcc, {s(sT2,2)}, vcc""")
        if self.opt("force_fallback"): a("s_mov_b64 vcc, 0")
        a(f"""s_cmp_eq_u64 vcc, exec
        s_cbranch_scc0 L_fallback""")
        a.label("L_att_fin")
        a(f"v_rcp_f32 v150, v{O0+8}")
        for k in range(8): a(f"v_mul_f32 v{O0+k}, v150, v{O0+k}")
        for k in range(4): a(f"v_cvt_pk_bf16_f32 v{152+k}, v{O0+2*k}, v{O0+2*k+1}")
        for k in range(4): a(f"v_min_u32 v{152+k}, -2, v{152+k}")
        a(f"buffer_store_dwordx4 v[152:155], v146, {s(rWS,4)}, {s(sT5)} offen sc1")
        a(f"""s_or_b32 {s(sT2)}, {s(sWG)}, {s(sWAVE)}
        s_cmp_eq_u32 {s(sT2)}, 0
        s_cbranch_scc0 L_end
        s_add_u32 {s(sT3)}, {s(sNONCE)}, 0x9e3779b9
        v_mov_b32 v150, {s(sT3)}
        v_mov_b32 v151, 0
        s_mov_b64 exec, 1
        buffer_store_dword v150, v151, {s(rWS,4)}, 0 offen sc1
        s_mov_b64 exec, -1
        s_branch L_end""")
        self.fallback()

    def fallback(self):
        a = self.a
        Q0, O0, S0, KA = self.Q0, self.O0, self.S0, self.KA
        vKO, vVO, vIDX = self.vKO, self.vVO, self.vIDX
        C0 = O0 + 16
        a.label("L_fallback")
        a(f"""s_mul_i32 {s(sT2)}, {s(sW4)}, {16*KVT}
        v_subrev_u32 v7, {s(sT2)}, v{vKO}
        v_subrev_u32 v151, {s(sT2)}, v{vVO}
        v_mov_b32 v150, 0xff800000
        s_mov_b32 {s(sSOF)}, 0""")
        a.label("L_fb1")
        a(f"""buffer_load_dwordx4 {v(KA,4)}, v7, {s(rWS,4)}, {s(sSOF)} offen sc1
        s_waitcnt vmcnt(0)
        v_mfma_f32_32x32x16_bf16 {v(S0,16)}, {v(KA,4)}, {v(Q0,4)}, 0""")
        for k in range(8): a(f"v_max3_f32 v150, v150, v{S0+2*k}, v{S0+2*k+1}")
        a(f"""s_add_u32 {s(sSOF)}, {s(sSOF)}, {KVT}
        s_cmp_lt_u32 {s(sSOF)}, {64*KVT}
        s_cbranch_scc1 L_fb1
        v_mov_b32 v152, v150
        v_permlane32_swap_b32 v150, v152
        v_max_f32 v150, v150, v152""")
        for k in range(16): a(f"v_sub_f32 v{C0+k}, 0, v150")
        for k in range(16): a(f"v_mov_b32 v{O0+k}, 0")
        a(f"s_mov_b32 {s(sSOF)}, 0")
        a.label("L_fb2")
        a(f"""buffer_load_dwordx4 {v(KA,4)}, v7, {s(rWS,4)}, {s(sSOF)} offen sc1
        buffer_load_dwordx4 {v(KA+4,4)}, v151, {s(rWS,4)}, {s(sSOF)} offen offset:1024 sc1
        buffer_load_dwordx4 {v(KA+8,4)}, v151, {s(rWS,4)}, {s(sSOF)} offen offset:1664 sc1
        s_waitcnt vmcnt(0)
        v_mfma_f32_32x32x16_bf16 {v(S0,16)}, {v(KA,4)}, {v(Q0,4)}, {v(C0,16)}""")
        for k in range(16): a(f"v_exp_f32 v{S0+k}, v{S0+k}")
        a(f"""v_smfmac_f32_32x32x32_bf16 {v(O0,16)}, {v(KA+4,4)}, {v(S0,8)}, v{vIDX}
        v_smfmac_f32_32x32x32_bf16 {v(O0,16)}, {v(KA+8,4)}, {v(S0+8,8)}, v{vIDX}
        s_add_u32 {s(sSOF)}, {s(sSOF)}, {KVT}
        s_cmp_lt_u32 {s(sSOF)}, {64*KVT}
        s_nop 9
        s_cbranch_scc1 L_fb2
        s_nop 3
        s_branch L_att_fin""")

    def role_s(self):
        a = self.a; vL, vZ, vONE, vT = self.vL, self.vZ, self.vONE, self.vT
        a.label("L_role_s")
        a(f"s_setprio {self.opt('sprio', 0)}")
        sCH, sMH = sLOOP, sSOF
        a(f"""s_and_b32 {s(sCH)}, {s(sW4)}, 1
        s_lshr_b32 {s(sMH)}, {s(sW4)}, 1
        s_lshl_b32 {s(sT0)}, {s(sP)}, 2
        s_load_dword {s(sT4)}, {s(pLDT,2)}, {s(sT0)}
        s_load_dword {s(sT5)}, {s(pDSK,2)}, {s(sT0)}
        s_lshl_b32 {s(sT1)}, {s(sP)}, 9
        s_lshl_b32 {s(sT2)}, {s(sCH)}, 8
        s_add_u32 {s(sT1)}, {s(sT1)}, {s(sT2)}
        s_lshl_b32 {s(sT2)}, {s(sMH)}, 7
        s_add_u32 {s(sT1)}, {s(sT1)}, {s(sT2)}
        v_lshlrev_b32 v4, 1, v0
        s_mov_b32 {s(rA+2)}, 131072
        s_mov_b32 {s(rA+3)}, 0x20000""")
        for i, p in enumerate([pARE, pAIM, pBRE, pBIM, pCRE, pCIM]):
            a(f"s_mov_b32 {s(rA)}, {s(p)}\ns_mov_b32 {s(rA+1)}, {s(p+1)}")
            a(f"buffer_load_ushort v{8+i}, v4, {s(rA,4)}, {s(sT1)} offen")
        a(f"""s_lshl_b32 {s(sT2)}, {s(sW4)}, 12
        s_add_u32 {s(sT2)}, {s(sT2)}, {GEN}
        v_bfe_u32 v5, v0, 1, 2
        v_lshlrev_b32 v5, 4, v5
        v_lshl_add_u32 v5, v0, 6, v5
        v_add_u32 v150, {s(sT2)}, v5
        v_xor_b32 v151, 16, v150
        v_xor_b32 v152, 32, v150
        v_xor_b32 v153, 48, v150
        v_bfe_u32 v5, v0, 2, 2
        v_lshrrev_b32 v6, 5, v0
        v_lshl_add_u32 v6, v6, 3, v5
        v_lshlrev_b32 v6, 6, v6
        v_bfe_u32 v7, v0, 4, 1
        v_lshlrev_b32 v7, 1, v7
        v_bfe_u32 v14, v0, 1, 1
        v_add_u32 v7, v7, v14
        v_lshrrev_b32 v5, 1, v5
        v_xor_b32 v7, v7, v5
        v_lshl_add_u32 v6, v7, 4, v6
        v_and_b32 v7, 1, v0
        v_lshl_add_u32 v6, v7, 3, v6
        v_add_u32 v154, {s(sT2)}, v6
        v_xor_b32 v155, 32, v154
        s_barrier
        s_waitcnt lgkmcnt(0)
        s_lshl_b32 {s(sT2)}, {s(sCH)}, 4
        s_lshr_b32 {s(sT4)}, {s(sT4)}, {s(sT2)}
        s_lshl_b32 {s(sT4)}, {s(sT4)}, 16
        s_lshr_b32 {s(sT5)}, {s(sT5)}, {s(sT2)}
        s_lshl_b32 {s(sT5)}, {s(sT5)}, 16
        v_mov_b32 v14, {fbits(LOG2E)}
        v_mul_f32 v15, {s(sT4)}, v14
        v_exp_f32 v15, v15
        v_cvt_pk_bf16_f32 v15, v15, v15
        v_and_b32 v15, 0xffff0000, v15
        s_waitcnt vmcnt(0)""")
        self.stamp(1)
        for i in range(6): a(f"v_lshlrev_b32 v{8+i}, 16, v{8+i}")
        Z1, Z2, Z4, Z8, Z256, CB, TMP = 18, 20, 22, 24, 26, 16, 28
        a(f"""v_mul_f32 v8, v15, v8
        v_mul_f32 v9, v15, v9
        v_mul_f32 v10, v15, v10
        v_mul_f32 v11, v15, v11
        v_mul_f32 v8, v14, v8
        v_mul_f32 v9, 0.15915494, v9""")
        self.cmul(CB, 10, 12, TMP)
        def cpow(d, mult):
            if mult != 1:
                a(f"v_mul_f32 v30, {fbits(mult)}, v8\nv_mul_f32 v31, {fbits(mult)}, v9")
                x, y = 30, 31
            else:
                x, y = 8, 9
            a(f"""v_exp_f32 v28, v{x}
            v_rndne_f32 v29, v{y}
            v_sub_f32 v29, v{y}, v29
            v_cos_f32 v{d}, v29
            v_sin_f32 v{d+1}, v29
            v_mul_f32 v{d}, v28, v{d}
            v_mul_f32 v{d+1}, v28, v{d+1}""")
        cpow(Z1, 1); cpow(Z256, 256)
        self.cmul(Z2, Z1, Z1, TMP); self.cmul(Z4, Z2, Z2, TMP); self.cmul(Z8, Z4, Z4, TMP)
        RE, IM = 32, 48
        FB = 64
        FA = 96
        ACC = 112
        X0, X1 = 128, 130
        def wr(src):
            for c in range(4): a(f"ds_write_b128 v{150+c}, {v(src+4*c,4)}")
        def rdtr(dst):
            for ks in range(4):
                a(f"ds_read_b64_tr_b16 {v(dst+4*ks,2)}, v154 offset:{1024*ks}")
                a(f"ds_read_b64_tr_b16 {v(dst+4*ks+2,2)}, v155 offset:{1024*ks+256}")
        a(f"v_mov_b32 v{X0}, 1.0\nv_mov_b32 v{X0+1}, 0")
        for j in range(0, 32, 2):
            if j > 0: self.cmul(X0, X1, Z8, TMP)
            self.cmul(X1, X0, Z8, TMP)
            a(f"v_cvt_pk_bf16_f32 v{RE+j//2}, v{X0}, v{X1}")
            a(f"v_cvt_pk_bf16_f32 v{IM+j//2}, -v{X0+1}, -v{X1+1}")
        wr(RE); rdtr(FB); wr(IM); rdtr(FB + 16)
        B = [CB] + [132 + 2 * m for m in range(7)]
        for m in range(1, 8): self.cmul(B[m], B[m - 1], Z256, TMP)
        Y0, Y1 = 146, 148
        def pack(row, x, y):
            a(f"v_cvt_pk_bf16_f32 v{RE+row//2}, v{x}, v{y}")
            a(f"v_cvt_pk_bf16_f32 v{IM+row//2}, v{x+1}, v{y+1}")
        a("s_waitcnt lgkmcnt(8)")
        self.cmul(X1, CB, Z1, TMP); pack(0, CB, X1)
        for row in (2, 4, 6):
            self.cmul(X0, X1, Z1, TMP); self.cmul(X1, X0, Z1, TMP); pack(row, X0, X1)
        self.cmul(X0, B[1], Z2, TMP); pack(8, B[1], X0)
        self.cmul(X1, X0, Z2, TMP); pack(10, X1, X1)
        self.cmul(X0, X1, Z2, TMP); pack(12, X1, X0)
        self.cmul(X1, X0, Z2, TMP); pack(14, X1, X1)
        for q, m in ((16, 2), (20, 3)):
            self.cmul(X0, B[m], Z4, TMP); pack(q, B[m], X0)
            self.cmul(X1, X0, Z4, TMP); pack(q + 2, X1, X1)
        for q, m in ((24, 4), (26, 6), (28, 5), (30, 7)):
            self.cmul(X0, B[m], Z8, TMP); pack(q, B[m], X0)
        wr(RE); rdtr(FA)
        a("s_waitcnt lgkmcnt(0)")
        for ks in range(4):
            a(f"v_mfma_f32_32x32x16_bf16 {v(ACC,16)}, {v(FA+4*ks,4)}, {v(FB+4*ks,4)}, {'0' if ks==0 else v(ACC,16)}")
        wr(IM); rdtr(RE)
        a("s_waitcnt lgkmcnt(0)")
        for ks in range(4):
            a(f"v_mfma_f32_32x32x16_bf16 {v(ACC,16)}, {v(RE+4*ks,4)}, {v(FB+16+4*ks,4)}, {v(ACC,16)}")
        self.stamp(2)
        self.srd(rB, pU, 2097152)
        a(f"""s_lshl_b32 {s(sT1)}, {s(sW4)}, 19
        s_lshl_b32 {s(sT2)}, {s(sP)}, 2
        s_add_u32 {s(sT1)}, {s(sT1)}, {s(sT2)}
        s_add_u32 {s(sT2)}, {s(sT1)}, 4096
        v_lshlrev_b32 v4, 13, v0""")
        UG = 156
        if self.opt("ug_wait", 1): self.waitc(C_FL, 4, vZ, vT)
        for i in range(8):
            a(f"buffer_load_dword v{UG+i}, v4, {s(rB,4)}, {s(sT1 if i<4 else sT2)} offen offset:{1024*(i&3)}")
        a(f"""s_lshl_b32 {s(sT2)}, {s(sCH)}, 12
        s_add_u32 {s(sT2)}, {s(sT2)}, {GEN+8192}
        v_lshl_add_u32 v5, v0, 4, {s(sT2)}
        s_lshl_b32 {s(sT2)}, {s(sCH)}, 2
        v_add_u32 v6, {s(sT2)}, v1
        s_mul_i32 {s(sT3)}, {s(sCH)}, {KCH}
        s_add_u32 {s(sT3)}, {s(sT3)}, {XE}
        s_cmp_eq_u32 {s(sMH)}, 0
        s_cbranch_scc1 L_s_expand""")
        for c in range(4): a(f"ds_write_b128 v5, {v(ACC+4*c,4)} offset:{1024*c}")
        a("s_waitcnt lgkmcnt(0)")
        self.arrive(C_KT0, 6, vONE)
        a("s_branch L_s_ucopy")
        a.label("L_s_expand")
        self.waitc(C_KT0, 1, 6, vT)
        for c in range(4): a(f"ds_read_b128 {v(32+4*c,4)}, v5 offset:{1024*c}")
        self.waitc(C_QE, 4, vZ, vT)
        a(f"""v_lshl_add_u32 v7, v0, 4, {s(sT3)}
        v_mov_b32 v48, 0
        v_mov_b32 v49, 0
        v_mov_b32 v50, 0
        v_mov_b32 v51, 0""")
        for cp in range(2):
            for off in (0, 1024, 1136):
                a(f"ds_write_b128 v7, v[48:51] offset:{cp*KCOPY+off}")
        for k in range(16): a(f"v_add_f32 v{ACC+k}, v{ACC+k}, v{32+k}")
        a(f"""v_cmp_eq_u32 vcc, 0, v0
        v_mov_b32 v9, {s(sT5)}
        v_cndmask_b32 v9, 0, v9, vcc
        v_add_f32 v{ACC}, v{ACC}, v9
        v_bfe_u32 v8, v0, 3, 2
        v_mul_u32_u24 v8, 144, v8
        v_and_b32 v9, 7, v0
        v_lshl_add_u32 v8, v9, 4, v8
        v_add_u32 v8, {s(sT3)}, v8
        v_lshrrev_b32 v9, 5, v0
        v_lshlrev_b32 v10, 3, v9
        v_sub_u32 v10, v8, v10
        v_mul_u32_u24 v9, 576, v9
        v_add_u32 v9, v8, v9
        v_and_b32 v11, 1, v0
        v_cmp_eq_u32 vcc, 0, v11""")
        A = ACC
        a(f"""v_cvt_pk_bf16_f32 v32, v{A+3}, v{A+2}
        v_cvt_pk_bf16_f32 v33, v{A+1}, v{A}
        ds_write_b64 v10, v[32:33] offset:{144*15+8}
        v_cvt_pk_bf16_f32 v34, v{A+6}, v{A+5}
        v_cvt_pk_bf16_f32 v35, v{A+4}, v{A+4}
        ds_write_b64 v10, v[34:35] offset:{144*19+8}
        v_cvt_pk_bf16_f32 v36, v{A+10}, v{A+10}
        v_cvt_pk_bf16_f32 v37, v{A+9}, v{A+9}
        v_cvt_pk_bf16_f32 v38, v{A+9}, v{A+8}
        v_cvt_pk_bf16_f32 v39, v{A+8}, v{A+8}
        ds_write_b128 v9, v[36:39] offset:{144*23}""")
        for q, (ra, dst, blk) in enumerate(((A + 12, 40, 31), (A + 14, 44, 39))):
            a(f"""v_cndmask_b32 v11, v{ra+1}, v{ra}, vcc
            v_cvt_pk_bf16_f32 v{dst}, v{ra+1}, v{ra+1}
            v_cvt_pk_bf16_f32 v{dst+1}, v{ra+1}, v11
            v_cvt_pk_bf16_f32 v{dst+2}, v{ra}, v{ra}
            v_cvt_pk_bf16_f32 v{dst+3}, v{ra}, v{ra}
            ds_write_b128 v9, {v(dst,4)} offset:{144*blk}""")
        a(f"""v_lshrrev_b32 v8, 3, v0
        v_mul_u32_u24 v8, 144, v8
        v_and_b32 v9, 7, v0
        v_lshl_add_u32 v8, v9, 4, v8
        v_add_u32 v8, {s(sT3)}, v8
        v_cmp_eq_u32 vcc, 0, v9
        v_mov_b32 v10, 16
        v_cndmask_b32 v10, v10, 32, vcc
        v_sub_u32 v10, v8, v10""")
        for it in range(4):
            a(f"ds_read_b128 {v(64+8*it,4)}, v8 offset:{144*(15+8*it)}")
            a(f"ds_read_b32 v{68+8*it}, v10 offset:{144*(15+8*it)}")
        for it in range(4):
            b = 64 + 8 * it
            a(f"s_waitcnt lgkmcnt({6-2*it+it})")
            for k in range(4): a(f"v_alignbit_b32 v{32+4*it+k}, v{b+k+1}, v{b+k}, 16")
            a(f"ds_write_b128 v8, {v(32+4*it,4)} offset:{KCOPY+144*(15+8*it)}")
        a.label("L_s_ucopy")
        self.stamp(3)
        self.waitc(C_QL, 4, vZ, vT)
        a(f"""s_cmp_eq_u32 {s(sW4)}, 0
        s_cbranch_scc0 L_s_nouz
        v_lshrrev_b32 v8, 3, v0
        v_mul_u32_u24 v8, {UCOPY}, v8
        v_and_b32 v9, 7, v0
        v_lshl_add_u32 v8, v9, 4, v8
        v_add_u32 v8, {W}, v8
        v_mov_b32 v48, 0
        v_mov_b32 v49, 0
        v_mov_b32 v50, 0
        v_mov_b32 v51, 0
        ds_write_b128 v8, v[48:51]""")
        a.label("L_s_nouz")
        a(f"""s_lshl_b32 {s(sT2)}, {s(sW4)}, 10
        s_add_u32 {s(sT2)}, {s(sT2)}, {W}
        v_lshl_add_u32 v8, v0, 4, {s(sT2)}
        s_mov_b32 {s(sT0)}, 0x05040100
        s_mov_b32 {s(sT1)}, 0x07060302
        s_waitcnt vmcnt(0)""")
        self.stamp(4)
        for k in range(4):
            a(f"v_perm_b32 v{32+k}, v{UG+2*k+1}, v{UG+2*k}, {s(sT0)}")
            a(f"v_perm_b32 v{36+k}, v{UG+2*k+1}, v{UG+2*k}, {s(sT1)}")
        for ch in range(2):
            d = 32 + 4 * ch
            for ph in range(4):
                off = ch * UCH + ph * UCOPY + 128 - 4 * (ph + 1)
                if ph == 3:
                    a(f"ds_write_b128 v8, {v(d,4)} offset:{off}")
                elif ph == 1:
                    a(f"ds_write_b64 v8, {v(d,2)} offset:{off}\nds_write_b64 v8, {v(d+2,2)} offset:{off+8}")
                else:
                    a(f"v_add_u32 v9, {off}, v8")
                    a(f"ds_write2_b32 v9, v{d}, v{d+1} offset0:0 offset1:1\nds_write2_b32 v9, v{d+2}, v{d+3} offset0:2 offset1:3")
        a("s_waitcnt lgkmcnt(0)")
        self.arrive(C_KU, vZ, vONE)
        a(f"""s_mul_i32 {s(sT2)}, {s(sMH)}, 1152
        s_sub_u32 {s(sT3)}, {s(sT3)}, {s(sT2)}
        v_and_b32 v10, 15, v0
        v_mul_u32_u24 v8, 144, v10
        v_bfe_u32 v10, v0, 4, 1
        v_mul_u32_u24 v10, {KCOPY}, v10
        v_add_u32 v8, v8, v10
        v_lshrrev_b32 v11, 5, v0
        v_lshlrev_b32 v11, 4, v11
        v_sub_u32 v8, v8, v11
        v_add_u32 v8, {s(sT3)}, v8
        s_mul_i32 {s(sT2)}, {s(sCH)}, {UCH}
        s_lshl_b32 {s(sT4)}, {s(sMH)}, 10
        s_add_u32 {s(sT2)}, {s(sT2)}, {s(sT4)}
        s_add_u32 {s(sT2)}, {s(sT2)}, {W}
        v_and_b32 v10, 3, v0
        v_mul_u32_u24 v9, {UCOPY}, v10
        v_bfe_u32 v10, v0, 2, 3
        v_lshl_add_u32 v9, v10, 4, v9
        v_add_u32 v9, v9, v11
        v_add_u32 v9, {s(sT2)}, v9""")
        T0, T1 = 64, 80
        for k in range(32): a(f"v_mov_b32 v{T0+k}, 0")
        self.waitc(C_KU, 4, vZ, vT)
        self.stamp(5)
        def crd(u, b):
            ao = 144 * 15 + 16 * (7 - 2 * u) if u < 4 else 144 * 14 + 16 * 7
            a(f"ds_read_b128 {v(b,4)}, v8 offset:{ao}")
            a(f"ds_read_b128 {v(b+8,4)}, v9 offset:{32*u}")
            a(f"ds_read_b128 {v(b+12,4)}, v9 offset:{32*u+2048}")
            a(f"ds_read_b128 {v(b+4,4)}, v8 offset:{ao+2304}")
        F = [32, 48]
        crd(0, F[0])
        a(f"s_mov_b32 {s(sT4)}, 8")
        a.label("L_conv")
        for u in range(4):
            b = F[u & 1]
            crd(u + 1, F[(u + 1) & 1])
            a("s_waitcnt lgkmcnt(4)")
            a(f"v_mfma_f32_32x32x16_bf16 {v(T0,16)}, {v(b,4)}, {v(b+8,4)}, {v(T0,16)}")
            a(f"v_mfma_f32_32x32x16_bf16 {v(T1,16)}, {v(b,4)}, {v(b+12,4)}, {v(T1,16)}")
            a(f"v_mfma_f32_32x32x16_bf16 {v(T1,16)}, {v(b+4,4)}, {v(b+8,4)}, {v(T1,16)}")
        a(f"""v_subrev_u32 v8, 144, v8
        v_add_u32 v9, 128, v9
        s_sub_u32 {s(sT4)}, {s(sT4)}, 1
        s_cmp_lg_u32 {s(sT4)}, 0
        s_cbranch_scc1 L_conv""")
        self.stamp(6)
        def xchg_write(base, accs):
            a(f"""s_lshl_b32 {s(sT2)}, {s(sW4)}, 11
            s_add_u32 {s(sT2)}, {s(sT2)}, {base}
            v_lshl_add_u32 v10, v0, 4, {s(sT2)}
            s_lshl_b32 {s(sT2)}, {s(sW4)}, 13
            s_add_u32 {s(sT2)}, {s(sT2)}, {base}
            v_lshl_add_u32 v11, v0, 4, {s(sT2)}""")
            for q in range(4):
                a(f"ds_write_b128 v10, {v(accs+8*q,4)} offset:{8192*q}")
                a(f"ds_write_b128 v10, {v(accs+8*q+4,4)} offset:{8192*q+1024}")
        def xchg_read(dst):
            for w in range(4):
                a(f"ds_read_b128 {v(dst+8*w,4)}, v11 offset:{2048*w}")
                a(f"ds_read_b128 {v(dst+8*w+4,4)}, v11 offset:{2048*w+1024}")
        a("s_waitcnt lgkmcnt(0)")
        xchg_write(YX, T0)
        a("s_waitcnt lgkmcnt(0)")
        self.arrive(C_Y, vZ, vONE)
        self.srd(rC, pOUT, 4194304)
        a(f"""s_lshl_b32 {s(sT1)}, {s(sMH)}, 21
        s_xor_b32 {s(sT2)}, {s(sCH)}, 1
        s_lshl_b32 {s(sT2)}, {s(sT2)}, 11
        s_add_u32 {s(sT1)}, {s(sT1)}, {s(sT2)}
        s_lshl_b32 {s(sT2)}, {s(sP)}, 2
        s_add_u32 {s(sT1)}, {s(sT1)}, {s(sT2)}
        s_add_u32 {s(sT1)}, {s(sT1)}, 1024
        v_and_b32 v12, 31, v0
        v_lshlrev_b32 v12, 12, v12
        v_lshrrev_b32 v13, 5, v0
        v_lshl_add_u32 v12, v13, 19, v12""")
        self.waitc(C_Y, 4, vZ, vT)
        xchg_read(32)
        self.srd(rB, pWO, 524288)
        a(f"""v_lshrrev_b32 v14, 3, v0
        v_and_b32 v15, 7, v0
        v_and_b32 v16, 2, v14
        v_lshlrev_b32 v16, 1, v16
        v_xor_b32 v15, v15, v16
        v_lshlrev_b32 v14, 10, v14
        v_lshl_add_u32 v14, v15, 4, v14
        s_lshl_b32 {s(sT3)}, {s(sW4)}, 17
        s_lshl_b32 {s(sT2)}, {s(sR)}, 7
        s_add_u32 {s(sT3)}, {s(sT3)}, {s(sT2)}
        s_lshl_b32 {s(sT4)}, {s(sW4)}, 13
        s_add_u32 {s(sT4)}, {s(sT4)}, {XE}""")
        def wo_dma():
            a(f"s_mov_b32 m0, {s(sT4)}")
            for i in range(8):
                a(f"buffer_load_dwordx4 v14, {s(rB,4)}, {s(sT3)} offen lds")
                if i < 7: a("s_add_u32 m0, m0, 1024")
                a(f"s_add_u32 {s(sT3)}, {s(sT3)}, 8192")
        wo_dma()
        a("s_waitcnt lgkmcnt(0)")
        for k in range(8):
            a(f"v_add_f32 v{32+k}, v{32+k}, v{48+k}\nv_add_f32 v{40+k}, v{40+k}, v{56+k}")
        for k in range(8):
            a(f"v_cvt_pk_bf16_f32 v{32+k}, v{32+k}, v{40+k}")
        for k in range(8):
            row = 8 * (k >> 2) + (k & 3)
            a(f"s_add_u32 {s(sT2)}, {s(sT1)}, {row*64*2048}")
            a(f"buffer_store_dword v{32+k}, v12, {s(rC,4)}, {s(sT2)} offen")
        self.stamp(7)
        WOF = 96
        a(f"""v_bfe_u32 v15, v0, 2, 2
        v_lshrrev_b32 v16, 5, v0
        v_lshl_add_u32 v16, v16, 3, v15
        v_lshlrev_b32 v16, 7, v16
        v_and_b32 v15, 2, v15
        v_lshl_add_u32 v16, v15, 5, v16
        v_bfe_u32 v15, v0, 4, 1
        v_lshl_add_u32 v16, v15, 5, v16
        v_and_b32 v15, 1, v0
        v_lshl_add_u32 v16, v15, 4, v16
        v_bfe_u32 v15, v0, 1, 1
        v_lshl_add_u32 v16, v15, 3, v16
        v_add_u32 v16, {s(sT4)}, v16
        v_xor_b32 v17, 64, v16""")
        for rnd in range(2):
            a("s_waitcnt vmcnt(8)" if rnd == 0 else "s_waitcnt vmcnt(0)")
            for ks in range(4):
                for ct in range(2):
                    d = WOF + 32 * rnd + 8 * ks + 4 * ct
                    a(f"ds_read_b64_tr_b16 {v(d,2)}, v{16+ct} offset:{2048*ks}")
                    a(f"ds_read_b64_tr_b16 {v(d+2,2)}, v{16+ct} offset:{2048*ks+512}")
            if rnd == 0:
                a("s_waitcnt lgkmcnt(0)")
                wo_dma()
        self.waitc(C_FL, 4, vZ, vT)
        self.stamp(8)
        a(f"""s_lshl_b32 {s(sT3)}, {s(sG)}, 16
        s_lshl_b32 {s(sT2)}, {s(sW4)}, 13
        s_add_u32 {s(sT3)}, {s(sT3)}, {s(sT2)}
        s_add_u32 {s(sT3)}, {s(sT3)}, {WS_O}
        v_lshlrev_b32 v14, 4, v0
        s_lshl_b32 {s(sT1)}, {s(sG)}, 17
        s_lshl_b32 {s(sT2)}, {s(sR)}, 7
        s_add_u32 {s(sT1)}, {s(sT1)}, {s(sT2)}
        s_lshl_b32 {s(sT2)}, {s(sW4)}, 5
        s_add_u32 {s(sT1)}, {s(sT1)}, {s(sT2)}
        v_and_b32 v12, 31, v0
        v_lshlrev_b32 v12, 11, v12
        v_lshl_add_u32 v12, v13, 4, v12""")
        OF = 32; AC = 64
        for rnd in range(2):
            Lp = f"L_opoll{rnd}"; Lo = f"L_ook{rnd}"
            if rnd == 1:
                a(f"s_add_u32 {s(sT3)}, {s(sT3)}, 32768\ns_add_u32 {s(sT1)}, {s(sT1)}, 65536")
                a(f"s_setprio {self.opt('sprio2', 3)}")
            a(f"s_add_u32 {s(sT4)}, {s(sT3)}, 4096")
            a.label(Lp)
            for h in range(8):
                a(f"buffer_load_dwordx4 {v(OF+4*h,4)}, v14, {s(rWS,4)}, {s(sT3 if h<4 else sT4)} offen offset:{1024*(h&3)} sc1")
            for h in range(8):
                a(f"s_waitcnt vmcnt({7-h})")
                b = OF + 4 * h
                if h == 0:
                    a(f"v_max_u32 v15, v{b}, v{b+1}")
                else:
                    a(f"v_max3_u32 v15, v15, v{b}, v{b+1}")
                a(f"v_max3_u32 v15, v15, v{b+2}, v{b+3}")
            a(f"""v_cmp_ne_u32 vcc, -1, v15
            s_cmp_eq_u64 vcc, exec
            s_cbranch_scc1 {Lo}
            s_sleep {self.opt('osleep', 2)}
            s_sub_u32 {s(sBUD)}, {s(sBUD)}, 1
            s_cbranch_scc0 {Lp}
            s_mov_b32 {s(sBUD)}, 0""")
            a.label(Lo)
            self.stamp(9 + rnd)
            for h in range(8):
                for ct in range(2):
                    w = WOF + 8 * h + 4 * ct
                    a(f"v_mfma_f32_32x32x16_bf16 {v(AC+16*ct,16)}, {v(w,4)}, {v(OF+4*h,4)}, {'0' if h==0 else v(AC+16*ct,16)}")
            xchg_write(OX1 if rnd == 0 else OX2, AC)
            a("s_waitcnt lgkmcnt(0)")
            self.arrive(C_O1 + 4 * rnd, vZ, vONE)
            self.waitc(C_O1 + 4 * rnd, 4, vZ, vT)
            xchg_read(32)
            a("s_waitcnt lgkmcnt(4)")
            for k in range(8): a(f"v_add_f32 v{32+k}, v{32+k}, v{40+k}")
            a("s_waitcnt lgkmcnt(0)")
            for k in range(8): a(f"v_add_f32 v{48+k}, v{48+k}, v{56+k}")
            for k in range(8): a(f"v_add_f32 v{32+k}, v{32+k}, v{48+k}")
            for k in range(4): a(f"v_cvt_pk_bf16_f32 v{20+k}, v{32+2*k}, v{33+2*k}")
            a(f"buffer_store_dwordx4 v[20:23], v12, {s(rC,4)}, {s(sT1)} offen")

    def finish(self):
        a = self.a
        a.label("L_end")
        if self.dbg:
            a("s_waitcnt vmcnt(0)")
            self.stamp(11)
            a(f"""s_waitcnt lgkmcnt(0)
            s_mul_i32 {s(sT0)}, {s(sWG)}, 12
            s_add_u32 {s(sT0)}, {s(sT0)}, {s(sWAVE)}
            s_lshl_b32 {s(sT0)}, {s(sT0)}, 6
            s_add_u32 {s(sT0)}, {s(sT0)}, {WS_STAMP}
            v_mov_b32 v4, 0""")
            for i in range(12): a(f"v_mov_b32 v{8+i}, {s(sSTAMP+2*i)}")
            a(f"v_mov_b32 v20, {s(sBUD)}")
            a("s_mov_b64 exec, 1")
            for i in range(3): a(f"buffer_store_dwordx4 {v(8+4*i,4)}, v4, {s(rWS,4)}, {s(sT0)} offen offset:{16*i}")
            a(f"buffer_store_dword v20, v4, {s(rWS,4)}, {s(sT0)} offen offset:48")
        a.label("L_exit")
        a("s_endpgm")

if __name__ == "__main__":
    ap = argparse.ArgumentParser()
    ap.add_argument("-o", default=f"cdna_kernels/{NAME}.s")
    ap.add_argument("--dbg", action="store_true")
    ap.add_argument("opts", nargs="*")
    args = ap.parse_args()
    opts = {}
    for kv in args.opts:
        k, _, val = kv.partition("=")
        opts[k] = int(val) if val else 1
    open(args.o, "w").write(Gen(args.dbg, opts).build())
```

```python
import sys, struct, argparse
from asmlib import Asm, v, s, hazard_pass

NAME = "concat_heads__grouped_kv_mqa__ssm_conv_s4__prompt"
def fbits(x): return "0x%08x" % struct.unpack("<I", struct.pack("<f", x))[0]
import math
LOG2E = math.log2(math.e)

R0   = 0
XE   = 32768
W    = 65536
GEN  = 131072
QB   = 147456
KVR  = 155648
CNT  = 159744
LDS_BYTES = 160000
KCOPY = 6912; KCH = 2 * KCOPY
UCOPY = 4416; UCH = 4 * UCOPY
YX   = W + 36864
OX1  = W
OX2  = YX
PSLOT = 2304
C_KV, C_WQA, C_WQB, C_XL, C_QE, C_QL, C_FL, C_KT0, C_KT1, C_KU, C_Y, C_PE, C_PED, C_PL, C_O1, C_O2, C_OE, C_OL, C_UT, C_YT = [4 * i for i in range(20)]

WS_FLAG = 4096
WS_FLAG2 = 4096 + 32768
WS_FLAG3 = 4096 + 2 * 32768
WS_FLAG4 = 4096 + 3 * 32768
WS_KV   = 147456
KVT     = 2304
WS_O    = 1 << 19
WS_UT = 6 << 20
WS_YT = 8 << 20
WS_STAMP = 4 << 20
WS_DBG  = 5 << 20
WS_SIZE = 16 << 20

sWG, sWAVE, sG, sR, sP, sW4 = 2, 3, 4, 5, 6, 7
sT0, sT1, sT2, sT3, sT4, sT5 = 8, 9, 10, 11, 12, 13
sCLS = 14; sROT = 15
pX, pWQ, pWK, pWV, pWO, pU, pARE, pAIM, pBRE, pBIM, pCRE, pCIM, pLDT, pDSK, pOUT, pDBG, pWS = [16 + 2 * i for i in range(17)]
sNONCE, sBUD = 50, 51
rA, rB, rC, rWS = 52, 56, 60, 64
sLOOP = 68; sSOF = 69
sSTAMP = 70
OOB = 0x7ff00000

class Gen:
    def __init__(self, dbg=False, opts=None):
        self.a = Asm(); self.dbg = dbg; self.o = opts or {}
    def opt(self, k, d=None): return self.o.get(k, d)

    def srd(self, r, p, nbytes):
        a = self.a
        a(f"s_mov_b32 {s(r)}, {s(p)}\ns_mov_b32 {s(r+1)}, {s(p+1)}\ns_mov_b32 {s(r+2)}, {nbytes}\ns_mov_b32 {s(r+3)}, 0x20000")
    def stamp(self, i):
        if self.dbg: self.a(f"{'s_memtime' if self.opt('cyc') else 's_memrealtime'} {s(sSTAMP+2*i,2)}")
    def arrive(self, c, vz, vone):
        self.a(f"s_mov_b64 exec, 1\nds_add_u32 {v(vz)}, {v(vone)} offset:{c}\ns_mov_b64 exec, -1")
    def waitc(self, c, n, vz, vt, slp=1):
        a = self.a; L = a.newlabel("Lw"); D = a.newlabel("Ld")
        a.label(L)
        a(f"""ds_read_b32 {v(vt)}, {v(vz)} offset:{c}
        s_waitcnt lgkmcnt(0)
        v_readfirstlane_b32 {s(sT0)}, {v(vt)}
        s_cmp_ge_u32 {s(sT0)}, {n}
        s_cbranch_scc1 {D}
        s_sleep {slp} ; nocount
        s_sub_u32 {s(sBUD)}, {s(sBUD)}, 1 ; nocount
        s_cbranch_scc0 {L} ; nocount
        s_mov_b32 {s(sBUD)}, 0 ; nocount""")
        a.label(D)
    def s_publish(self, cnt, base):
        a = self.a; L = a.newlabel("Lpub")
        a("s_waitcnt vmcnt(0)")
        self.arrive(cnt, self.vZ, self.vONE)
        a(f"s_cmp_eq_u32 {s(sW4)}, 0\ns_cbranch_scc0 {L}")
        self.waitc(cnt, 4, self.vZ, self.vT)
        a(f"""s_lshl_b32 {s(sT2)}, {s(sP)}, 7
        s_add_u32 {s(sT2)}, {s(sT2)}, {base}
        v_mov_b32 v18, 0
        s_mov_b64 exec, 1
        buffer_store_dword v167, v18, {s(rWS,4)}, {s(sT2)} offen sc1
        s_mov_b64 exec, -1""")
        a.label(L)
    def s_poll(self, sbase, mask, slp=4):
        a = self.a; Lp = a.newlabel("Lpoll"); Lo = a.newlabel("Lok")
        a(f"v_and_b32 v18, {mask}, v0\nv_lshlrev_b32 v18, 7, v18")
        a.label(Lp)
        a(f"""buffer_load_dword v19, v18, {s(rWS,4)}, {s(sbase)} offen sc1
        s_waitcnt vmcnt(0)
        v_cmp_eq_u32 vcc, v167, v19
        s_cmp_eq_u64 vcc, exec
        s_cbranch_scc1 {Lo}
        s_sleep {slp} ; nocount
        s_sub_u32 {s(sBUD)}, {s(sBUD)}, 1 ; nocount
        s_cbranch_scc0 {Lp} ; nocount
        s_mov_b32 {s(sBUD)}, 0 ; nocount""")
        a.label(Lo)
    def cmul(self, d, x, m, t):
        self.a(f"v_pk_mul_f32 {v(t,2)}, {v(x,2)}, {v(m,2)} op_sel_hi:[1,0]")
        self.a(f"v_pk_fma_f32 {v(d,2)}, {v(x,2)}, {v(m,2)}, {v(t,2)} op_sel:[1,1,0] op_sel_hi:[0,1,1] neg_lo:[0,1,0]")

    def build(self):
        a = self.a
        self.entry()
        self.role_late_start()
        self.role_early_start()
        self.qproj_and_attention()
        self.role_s()
        self.finish()
        lines, n = hazard_pass(a.lines, verbose=self.opt("vhz"))
        body = "\n".join(l if l.endswith(":") or l.startswith(".") else "    " + l for l in lines)
        head = f"""; fused MQA attention + S4 long convolution, one persistent launch (generated by gen/gen.py)
; @launch grid=(256,1,1) block=(768,1,1) lds={LDS_BYTES}
.amdgcn_target "amdgcn-amd-amdhsa--gfx950"
.text
.globl {NAME}_kernel
.p2align 8
.type {NAME}_kernel,@function
{NAME}_kernel:
"""
        tail = f"""
.section .rodata,"a"
.p2align 6
.amdhsa_kernel {NAME}_kernel
  .amdhsa_next_free_vgpr 168
  .amdhsa_next_free_sgpr 96
  .amdhsa_accum_offset 168
  .amdhsa_group_segment_fixed_size 0
  .amdhsa_kernarg_size 136
  .amdhsa_user_sgpr_count 2
  .amdhsa_user_sgpr_kernarg_segment_ptr 1
  .amdhsa_system_sgpr_workgroup_id_x 1
  .amdhsa_float_denorm_mode_32 3
.end_amdhsa_kernel
"""
        return head + body + tail

    vL, vZ, vONE, vT = 0, 1, 2, 3

    def entry(self):
        a = self.a
        if self.dbg:
            for i in range(12): a(f"s_mov_b64 {s(sSTAMP+2*i,2)}, 0")
        self.stamp(0)
        a(f"""s_cmp_ge_u32 s2, 256
        s_cbranch_scc1 L_exit
        s_load_dwordx16 s[16:31], s[0:1], 0
        s_load_dwordx16 s[32:47], s[0:1], 64
        s_load_dwordx2 s[48:49], s[0:1], 128
        v_lshrrev_b32 v3, 6, v0
        v_and_b32 v0, 63, v0
        v_readfirstlane_b32 {s(sWAVE)}, v3
        v_mov_b32 v1, {CNT}
        v_mov_b32 v2, 1
        s_and_b32 {s(sT0)}, s2, 7
        s_lshr_b32 {s(sT1)}, s2, 3
        s_lshl_b32 {s(sG)}, {s(sT0)}, 2
        s_lshr_b32 {s(sT2)}, {s(sT1)}, 3
        s_add_u32 {s(sG)}, {s(sG)}, {s(sT2)}
        s_and_b32 {s(sR)}, {s(sT1)}, 7
        s_lshl_b32 {s(sP)}, {s(sT0)}, 5
        s_add_u32 {s(sP)}, {s(sP)}, {s(sT1)}
        s_and_b32 {s(sROT)}, {s(sT1)}, 15
        s_mov_b32 {s(sBUD)}, 200000
        s_and_b32 {s(sW4)}, {s(sWAVE)}, 3
        s_lshr_b32 {s(sCLS)}, {s(sWAVE)}, 2
        v_lshl_add_u32 v4, v0, 2, v1
        v_mov_b32 v5, 0
        s_cmp_eq_u32 {s(sWAVE)}, 11
        s_cbranch_scc0 L_nozero
        ds_write_b32 v4, v5""")
        a.label("L_nozero")
        a(f"""s_waitcnt lgkmcnt(0)
        s_barrier""")
        self.srd(rWS, pWS, WS_SIZE)
        a(f"""s_cmp_eq_u32 {s(sCLS)}, 2
        s_cbranch_scc1 L_role_s""")
        self.srd(rA, pX, 2097152)
        a(f"""s_load_dword {s(sNONCE)}, {s(pWS,2)}, 0
        s_cmp_eq_u32 {s(sCLS)}, 0
        s_cbranch_scc1 L_role_early""")

    def role_late_start(self):
        a = self.a; vL, vZ, vONE, vT = self.vL, self.vZ, self.vONE, self.vT
        a("s_setprio 3")
        a(f"""s_and_b32 {s(sT0)}, {s(sR)}, 3
        s_lshl_b32 {s(sT1)}, {s(sG)}, 2
        s_add_u32 {s(sT1)}, {s(sT1)}, {s(sT0)}
        s_lshl_b32 {s(sT1)}, {s(sT1)}, 14
        s_lshl_b32 {s(sT2)}, {s(sW4)}, 8
        s_add_u32 {s(sT1)}, {s(sT1)}, {s(sT2)}
        v_and_b32 v4, 15, v0
        v_lshrrev_b32 v5, 4, v0
        v_lshlrev_b32 v6, 10, v4
        v_lshl_add_u32 v6, v5, 4, v6""")
        for k in range(4):
            a(f"buffer_load_dwordx4 {v(8+4*k,4)}, v6, {s(rA,4)}, {s(sT1)} offen offset:{64*k}")
        a(f"""s_cmp_ge_u32 {s(sR)}, 4
        s_cselect_b32 {s(rB)}, {s(pWV)}, {s(pWK)}
        s_cselect_b32 {s(rB+1)}, {s(pWV+1)}, {s(pWK+1)}
        s_mov_b32 {s(rB+2)}, 16384
        s_mov_b32 {s(rB+3)}, 0x20000
        s_lshl_b32 {s(sT2)}, {s(sW4)}, 12
        v_lshrrev_b32 v7, 4, v0
        v_and_b32 v7, 1, v7
        v_lshlrev_b32 v7, 7, v7
        v_lshlrev_b32 v24, 4, v0
        v_xor_b32 v7, v7, v24
        s_add_u32 m0, {s(sT2)}, {R0}""")
        for k in range(4):
            a(f"buffer_load_dwordx4 v7, {s(rB,4)}, {s(sT2)} offen offset:{1024*k} lds")
        a(f"""v_bfe_u32 v25, v0, 2, 2
        v_lshl_add_u32 v25, v5, 3, v25
        v_and_b32 v26, 1, v5
        v_lshl_add_u32 v25, v26, 2, v25
        v_lshlrev_b32 v25, 5, v25
        v_and_b32 v26, 3, v0
        v_lshl_add_u32 v25, v26, 3, v25
        v_add_u32 v25, {s(sT2)}, v25
        v_xor_b32 v26, 0x80, v25
        s_waitcnt vmcnt(0) lgkmcnt(0)""")
        self.stamp(1)
        for k in range(4):
            a(f"ds_read_b64_tr_b16 {v(32+4*k,2)}, v25 offset:{R0+1024*k}")
            a(f"ds_read_b64_tr_b16 {v(34+4*k,2)}, v26 offset:{R0+1024*k}")
        a(f"""s_cmp_ge_u32 {s(sR)}, 4
        s_cbranch_scc1 L_kv_v""")
        for k in range(4):
            a(f"s_waitcnt lgkmcnt({6-2*k})")
            a(f"v_mfma_f32_16x16x32_bf16 v[48:51], {v(32+4*k,4)}, {v(8+4*k,4)}, {'0' if k==0 else 'v[48:51]'}")
        a("s_branch L_kv_j")
        a.label("L_kv_v")
        for k in range(4):
            a(f"s_waitcnt lgkmcnt({6-2*k})")
            a(f"v_mfma_f32_16x16x32_bf16 v[48:51], {v(8+4*k,4)}, {v(32+4*k,4)}, {'0' if k==0 else 'v[48:51]'}")
        a.label("L_kv_j")
        a(f"""s_lshl_b32 {s(sT2)}, {s(sW4)}, 10
        s_add_u32 {s(sT2)}, {s(sT2)}, {KVR}
        v_add_u32 v27, {s(sT2)}, v24
        s_add_u32 {s(sT3)}, {s(sNONCE)}, 0x9e3779b9
        v_mov_b32 v28, {s(sT3)}
        ds_write_b32 v1, v28 offset:128
        s_nop 3
        ds_write_b128 v27, v[48:51]
        s_waitcnt lgkmcnt(0)""")
        self.arrive(C_KV, vZ, vONE)
        self.waitc(C_KV, 4, vZ, vT)
        a(f"""s_cmp_eq_u32 {s(sW4)}, 0
        s_cbranch_scc0 L_kv_done""")
        a(f"""ds_read_b128 v[52:55], v27 offset:1024
        ds_read_b128 v[56:59], v27 offset:2048
        ds_read_b128 v[60:63], v27 offset:3072
        s_cmp_ge_u32 {s(sR)}, 4
        s_cselect_b32 {s(sT2)}, 1.0, {fbits(0.25*LOG2E)}
        s_cselect_b32 {s(sT3)}, 1024, 0
        s_cselect_b32 {s(sT4)}, 5, 4
        s_lshl_b32 {s(sT4)}, {s(sT4)}, 7
        s_bitcmp1_b32 {s(sR)}, 0
        s_cselect_b32 {s(sT4)}, {s(sT4)}, 0
        s_add_u32 {s(sT3)}, {s(sT3)}, {s(sT4)}
        s_bfe_u32 {s(sT4)}, {s(sR)}, 0x10001
        s_lshl_b32 {s(sT5)}, {s(sG)}, 1
        s_add_u32 {s(sT4)}, {s(sT4)}, {s(sT5)}
        s_mul_i32 {s(sT4)}, {s(sT4)}, {KVT}
        s_add_u32 {s(sT3)}, {s(sT3)}, {s(sT4)}
        s_add_u32 {s(sT3)}, {s(sT3)}, {WS_KV}
        v_lshlrev_b32 v6, 5, v4
        v_lshl_add_u32 v6, v5, 3, v6
        s_waitcnt lgkmcnt(0)""")
        for i in range(4): a(f"v_add_f32 v{48+i}, v{48+i}, v{52+i}")
        for i in range(4): a(f"v_add_f32 v{56+i}, v{56+i}, v{60+i}")
        for i in range(4): a(f"v_add_f32 v{48+i}, v{48+i}, v{56+i}")
        for i in range(4): a(f"v_mul_f32 v{48+i}, {s(sT2)}, v{48+i}")
        a(f"""v_cvt_pk_bf16_f32 v52, v48, v49
        v_cvt_pk_bf16_f32 v53, v50, v51
        buffer_store_dwordx2 v[52:53], v6, {s(rWS,4)}, {s(sT3)} offen sc1
        s_cmp_ge_u32 {s(sR)}, 4
        s_cbranch_scc0 L_kv_noones
        v_mov_b32 v54, 0x3f803f80
        v_mov_b32 v55, 0x3f803f80
        v_lshlrev_b32 v7, 3, v0
        s_mov_b64 exec, 0xffff
        buffer_store_dwordx2 v[54:55], v7, {s(rWS,4)}, {s(sT3)} offen offset:512 sc1
        s_mov_b64 exec, -1""")
        a.label("L_kv_noones")
        a(f"""s_lshl_b32 {s(sT2)}, {s(sG)}, 3
        s_add_u32 {s(sT2)}, {s(sT2)}, {s(sR)}
        s_lshl_b32 {s(sT2)}, {s(sT2)}, 7
        s_add_u32 {s(sT2)}, {s(sT2)}, {WS_FLAG}
        s_add_u32 {s(sT3)}, {s(sNONCE)}, 0x9e3779b9
        v_mov_b32 v54, {s(sT3)}
        v_mov_b32 v7, 0
        s_waitcnt vmcnt(0)
        s_mov_b64 exec, 1
        buffer_store_dword v54, v7, {s(rWS,4)}, {s(sT2)} offen sc1
        s_mov_b64 exec, -1""")
        a.label("L_kv_done")
        self.stamp(2)
        self.x_dma(R0, 32)
        a("s_waitcnt vmcnt(0)")
        self.arrive(C_XL, vZ, vONE)
        self.waitc(C_XL, 4, vZ, vT)
        if self.opt("qlwait", 1): self.waitc(C_QE, 4, vZ, vT, slp=2)
        a(f"""s_mov_b32 {s(sT5)}, {R0}
        s_branch L_qproj""")

    def x_dma(self, lds, row0):
        a = self.a
        a(f"""s_lshl_b32 {s(sT1)}, {s(sG)}, 16
        s_lshl_b32 {s(sT2)}, {s(sW4)}, 13
        s_add_u32 {s(sT1)}, {s(sT1)}, {s(sT2)}
        s_add_u32 {s(sT1)}, {s(sT1)}, {row0*1024}
        s_add_u32 m0, {s(sT2)}, {lds}
        s_and_b32 {s(sT3)}, {s(sW4)}, 1
        s_lshl_b32 {s(sT3)}, {s(sT3)}, 7
        v_lshlrev_b32 v4, 4, v0
        v_xor_b32 v4, {s(sT3)}, v4""")
        for i in range(8):
            if i == 4:
                a(f"s_add_u32 {s(sT1)}, {s(sT1)}, 4096\ns_add_u32 m0, m0, 4096")
            if i == 0:
                a(f"buffer_load_dwordx4 v4, {s(rA,4)}, {s(sT1)} offen lds")
            else:
                a(f"v_xor_b32 v{5+(i&1)}, {16*i}, v4")
                a(f"buffer_load_dwordx4 v{5+(i&1)}, {s(rA,4)}, {s(sT1)} offen offset:{1024*(i&3)} lds")

    def role_early_start(self):
        a = self.a; vL, vZ, vONE, vT = self.vL, self.vZ, self.vONE, self.vT
        a.label("L_role_early")
        a("s_setprio 3")
        self.srd(rB, pWQ, 524288)
        self.x_dma(XE, 0)
        a(f"""v_lshrrev_b32 v7, 3, v0
        v_and_b32 v8, 7, v0
        v_and_b32 v9, 2, v7
        v_xor_b32 v8, v8, v9
        s_and_b32 {s(sT3)}, {s(sW4)}, 1
        s_lshl_b32 {s(sT3)}, {s(sT3)}, 2
        v_xor_b32 v8, {s(sT3)}, v8
        v_lshlrev_b32 v7, 10, v7
        v_lshl_add_u32 v7, v8, 4, v7
        s_lshl_b32 {s(sT1)}, {s(sW4)}, 13
        s_lshl_b32 {s(sT2)}, {s(sR)}, 7
        s_add_u32 {s(sT1)}, {s(sT1)}, {s(sT2)}
        s_lshl_b32 {s(sT2)}, {s(sW4)}, 10
        s_add_u32 m0, {s(sT2)}, {W}""")
        if self.opt("xwait", 1): a("s_waitcnt vmcnt(0)")
        for i in range(16):
            a(f"buffer_load_dwordx4 v7, {s(rB,4)}, {s(sT1)} offen lds")
            if i < 15: a(f"s_add_u32 m0, m0, 4096\ns_add_u32 {s(sT1)}, {s(sT1)}, 32768")
        a("s_waitcnt vmcnt(8)")
        self.stamp(1)
        self.arrive(C_WQA, vZ, vONE)
        a(f"s_mov_b32 {s(sT5)}, {XE}")

    Q0, O0, S0, KA = 8, 24, 88, 120
    vKO, vVO, vIDX = 4, 5, 6
    def qproj_and_attention(self):
        a = self.a; vL, vZ, vONE, vT = self.vL, self.vZ, self.vONE, self.vT
        a.label("L_qproj")
        a(f"""v_and_b32 v4, 15, v0
        v_lshrrev_b32 v5, 4, v0
        v_xor_b32 v6, v4, v5
        v_lshlrev_b32 v6, 4, v6
        v_lshl_add_u32 v6, v4, 10, v6
        v_add_u32 v144, {s(sT5)}, v6
        v_xor_b32 v145, 64, v144
        v_xor_b32 v146, 0x80, v144
        v_xor_b32 v147, 0xc0, v144
        v_bfe_u32 v6, v0, 2, 2
        v_lshl_add_u32 v7, v5, 3, v6
        v_lshlrev_b32 v7, 7, v7
        v_and_b32 v6, 2, v6
        v_and_b32 v8, 1, v5
        v_lshl_add_u32 v6, v8, 2, v6
        s_lshl_b32 {s(sT1)}, {s(sW4)}, 1
        v_xor_b32 v6, {s(sT1)}, v6
        v_lshl_add_u32 v7, v6, 4, v7
        v_and_b32 v6, 3, v0
        v_lshl_add_u32 v7, v6, 3, v7
        v_add_u32 v148, {W}, v7""")
        self.waitc(C_WQA, 4, vZ, vT)
        def rd(sx):
            b = 24 + 12 * (sx % 3)
            a(f"ds_read_b64_tr_b16 {v(b+8,2)}, v148 offset:{4096*sx}")
            a(f"ds_read_b64_tr_b16 {v(b+10,2)}, v148 offset:{4096*sx+512}")
            a(f"ds_read_b128 {v(b,4)}, v{144+(sx&3)} offset:{256*(sx>>2)}")
            a(f"ds_read_b128 {v(b+4,4)}, v{144+(sx&3)} offset:{256*(sx>>2)+16384}")
        def mm(sx):
            b = 24 + 12 * (sx % 3)
            a(f"v_mfma_f32_16x16x32_bf16 v[64:67], {v(b+8,4)}, {v(b,4)}, {'0' if sx==0 else 'v[64:67]'}")
            a(f"v_mfma_f32_16x16x32_bf16 v[68:71], {v(b+8,4)}, {v(b+4,4)}, {'0' if sx==0 else 'v[68:71]'}")
        for half in range(2):
            s0 = 8 * half
            if half == 1:
                a(f"""s_cmp_eq_u32 {s(sCLS)}, 0
                s_cbranch_scc0 L_q_nob
                s_waitcnt vmcnt(0)""")
                self.arrive(C_WQB, vZ, vONE)
                a.label("L_q_nob")
                self.waitc(C_WQB, 4, vZ, vT)
            rd(s0); rd(s0 + 1)
            for sx in range(s0, s0 + 8):
                if sx + 2 < s0 + 8:
                    rd(sx + 2); a("s_waitcnt lgkmcnt(8)")
                else:
                    a(f"s_waitcnt lgkmcnt({4*(s0+7-sx)})")
                mm(sx)
        self.stamp(3)
        a(f"""s_lshl_b32 {s(sT1)}, {s(sW4)}, 13
        s_add_u32 {s(sT1)}, {s(sT1)}, {WS_FLAG}
        v_lshlrev_b32 v93, 7, v0
        s_cmp_eq_u32 {s(sCLS)}, 0
        s_cbranch_scc0 L_q_nopoll0
        buffer_load_dword v94, v93, {s(rWS,4)}, {s(sT1)} offen sc1""")
        a.label("L_q_nopoll0")
        a(f"""v_lshrrev_b32 v6, 1, v5
        v_lshlrev_b32 v6, 9, v6
        v_lshl_add_u32 v6, v4, 4, v6
        v_and_b32 v7, 1, v5
        v_lshl_add_u32 v6, v7, 3, v6
        s_lshl_b32 {s(sT2)}, {s(sWAVE)}, 10
        s_add_u32 {s(sT2)}, {s(sT2)}, {QB}
        v_add_u32 v6, {s(sT2)}, v6
        v_cvt_pk_bf16_f32 v72, v64, v65
        v_cvt_pk_bf16_f32 v73, v66, v67
        v_cvt_pk_bf16_f32 v74, v68, v69
        v_cvt_pk_bf16_f32 v75, v70, v71
        ds_write_b64 v6, v[72:73]
        ds_write_b64 v6, v[74:75] offset:256
        s_lshl_b32 {s(sT2)}, {s(sCLS)}, 2
        v_add_u32 v92, {s(sT2)}, v1
        s_waitcnt lgkmcnt(0)""")
        self.arrive(C_QE, 92, vONE)
        Q0, O0, S0, KA = self.Q0, self.O0, self.S0, self.KA
        vKO, vVO, vIDX = self.vKO, self.vVO, self.vIDX
        a(f"""s_mul_i32 {s(sT2)}, {s(sW4)}, {16*KVT}
        s_add_u32 {s(sT2)}, {s(sT2)}, {WS_KV}
        v_and_b32 v7, 31, v0
        v_lshrrev_b32 v8, 5, v0
        v_lshlrev_b32 v4, 5, v7
        v_lshl_add_u32 v4, v8, 4, v4
        v_add_u32 v4, {s(sT2)}, v4
        v_and_b32 v9, 3, v7
        v_bfe_u32 v10, v7, 2, 1
        v_lshl_add_u32 v9, v10, 3, v9
        v_bfe_u32 v10, v7, 3, 1
        v_lshl_add_u32 v9, v10, 2, v9
        v_lshlrev_b32 v9, 5, v9
        v_cmp_gt_u32 vcc, 16, v7
        v_mov_b32 v10, {OOB}
        v_cndmask_b32 v9, v10, v9, vcc
        v_and_b32 v10, 27, v7
        v_cmp_eq_u32 vcc, 16, v10
        v_mov_b32 v10, 512
        v_cndmask_b32 v9, v9, v10, vcc
        v_lshl_add_u32 v9, v8, 4, v9
        v_add_u32 v5, {s(sT2)}, v9
        v_mov_b32 v6, 0xdddddddd""")
        for i in range(64): a(f"v_mov_b32 v{O0+i}, 0")
        for i in range(8): a(f"v_mov_b32 v{S0+24+i}, 0")
        for i in range(4): a(f"v_mov_b32 v{KA+12*self.opt('nbuf',4)-4+i}, 0")
        a(f"""s_cmp_eq_u32 {s(sCLS)}, 0
        s_cbranch_scc0 L_late_flags
        s_add_u32 {s(sT3)}, {s(sNONCE)}, 0x9e3779b9""")
        a.label("L_poll")
        a(f"""s_waitcnt vmcnt(0)
        v_cmp_eq_u32 vcc, {s(sT3)}, v94
        s_cmp_eq_u64 vcc, exec
        s_cbranch_scc1 L_poll_ok
        buffer_load_dword v94, v93, {s(rWS,4)}, {s(sT1)} offen sc1
        s_sub_u32 {s(sBUD)}, {s(sBUD)}, 1
        s_cbranch_scc0 L_poll
        s_mov_b32 {s(sBUD)}, 0
        s_waitcnt vmcnt(0)""")
        a.label("L_poll_ok")
        self.arrive(C_FL, vZ, vONE)
        a("s_branch L_flags_done")
        a.label("L_late_flags")
        self.waitc(C_FL, 4, vZ, vT)
        a.label("L_flags_done")
        self.stamp(4)
        NB = self.opt("nbuf", 4)
        BUF = [KA + 12 * i for i in range(NB)]
        sN = sT4
        def sof_next():
            a(f"""s_add_u32 {s(sROT)}, {s(sROT)}, 1
            s_and_b32 {s(sROT)}, {s(sROT)}, 15
            s_mul_i32 {s(sSOF)}, {s(sROT)}, {KVT}""")
            if self.inloop:
                a(f"""s_cmp_eq_u32 {s(sLOOP)}, 1
                s_cselect_b32 {s(sSOF)}, {OOB}, {s(sSOF)}""")
        SC = {0: "sc1", 1: "", 2: "sc0", 3: "nt", 4: "sc0 sc1"}[self.opt("kvsc", 0)]
        self.inloop = False
        def ldK(b):
            if not (self.inloop and self.opt("nold")): a(f"buffer_load_dwordx4 {v(b,4)}, v{vKO}, {s(rWS,4)}, {s(sSOF)} offen {SC}")
        def ldV0(b):
            if not (self.inloop and self.opt("nold")): a(f"buffer_load_dwordx4 {v(b+4,4)}, v{vVO}, {s(rWS,4)}, {s(sSOF)} offen offset:1024 {SC}")
        def ldV1(b):
            if not (self.inloop and self.opt("nold")): a(f"buffer_load_dwordx4 {v(b+8,4)}, v{vVO}, {s(rWS,4)}, {s(sSOF)} offen offset:1664 {SC}")
        a(f"s_mul_i32 {s(sSOF)}, {s(sROT)}, {KVT}")
        for b in range(NB):
            if b: sof_next()
            ldK(BUF[b]); ldV0(BUF[b])
            if b < NB - 1: ldV1(BUF[b])
        self.waitc(C_QE, 4, 92, vT)
        a(f"""s_lshl_b32 {s(sT2)}, {s(sCLS)}, 12
        s_add_u32 {s(sT2)}, {s(sT2)}, {QB}
        v_lshl_add_u32 v7, v0, 4, {s(sT2)}""")
        for i in range(4):
            a(f"""s_add_u32 {s(sT3)}, {s(sW4)}, {i}
            s_and_b32 {s(sT3)}, {s(sT3)}, 3
            s_lshl_b32 {s(sT3)}, {s(sT3)}, 10
            v_add_u32 v{S0+i}, {s(sT3)}, v7
            ds_read_b128 {v(Q0+4*i,4)}, v{S0+i}""")
        a(f"""s_mov_b32 {s(sLOOP)}, {16//NB}
        s_waitcnt vmcnt({3*NB-4}) lgkmcnt(0)
        v_mfma_f32_32x32x16_bf16 {v(S0,16)}, {v(KA,4)}, {v(Q0,4)}, 0
        s_nop 11""")
        self.stamp(5)
        a(f"""s_setprio {self.opt('eprio', 1)}
        s_cmp_eq_u32 {s(sCLS)}, 0
        s_cbranch_scc1 L_att0
        s_setprio {self.opt('lprio', 0)}""")
        a.label("L_att0")
        a(".p2align 6")
        a.label("L_att")
        self.inloop = True
        for t in range(NB):
            cur = BUF[t]; prv = BUF[(t - 1) % NB]; nxt = BUF[(t + 1) % NB]
            for i in range(4):
                S = S0 + 16 * (i & 1); Sn = S0 + 16 * ((i + 1) & 1)
                def ex(a0, a1):
                    for k in range(a0, a1): a(f"v_exp_f32 v{S+k}, v{S+k}")
                ex(0, 2)
                if i == 1 and NB == 2 and not self.opt("nowait"): a("s_waitcnt vmcnt(3)")
                pv = prv if i == 0 else cur
                a(f"v_smfmac_f32_32x32x32_bf16 {v(O0+16*((i-1)&3),16)}, {v(pv+8,4)}, {v(Sn+8,8)}, v{vIDX}")
                if i == 0: ldV1(prv)
                if i == 1 and not self.opt("nosof"): sof_next()
                ex(2, 5)
                if i == 3 and not self.opt("nowait"): a(f"s_waitcnt vmcnt({2 if NB == 2 else 3*NB-5})")
                kk = nxt if i == 3 else cur
                a(f"v_mfma_f32_32x32x16_bf16 {v(Sn,16)}, {v(kk,4)}, {v(Q0+4*((i+1)&3),4)}, 0")
                if i == 2: ldK(cur)
                ex(5, 10)
                a(f"v_smfmac_f32_32x32x32_bf16 {v(O0+16*i,16)}, {v(cur+4,4)}, {v(S,8)}, v{vIDX}")
                if i == 3: ldV0(cur)
                if t == NB - 1 and i == 3:
                    ex(10, 13)
                    a(f"s_sub_u32 {s(sLOOP)}, {s(sLOOP)}, 1\ns_cmp_lg_u32 {s(sLOOP)}, 0")
                    ex(13, 16)
                else:
                    ex(10, 16)
        a("s_cbranch_scc1 L_att")
        a(f"s_nop 1")
        a(f"v_smfmac_f32_32x32x32_bf16 {v(O0+48,16)}, {v(BUF[-1]+8,4)}, {v(S0+24,8)}, v{vIDX}")
        self.stamp(6)
        self.att_tail()

    def att_tail(self):
        a = self.a; vL, vZ, vONE, vT = self.vL, self.vZ, self.vONE, self.vT
        Q0, O0, S0, KA = self.Q0, self.O0, self.S0, self.KA
        a("s_waitcnt vmcnt(0)")
        a(f"""s_cmp_eq_u32 {s(sCLS)}, 0
        s_cselect_b32 {s(sT2)}, {C_QL}, {C_PED}
        s_cselect_b32 {s(sT3)}, {C_PE}, {C_PL}
        v_add_u32 v144, {s(sT2)}, v1
        v_add_u32 v145, {s(sT3)}, v1""")
        self.waitc(0, 4, 144, vT)
        a("v_lshlrev_b32 v146, 4, v0\nv_lshlrev_b32 v147, 2, v0")
        for i in range(1, 4):
            a(f"""s_add_u32 {s(sT2)}, {s(sW4)}, {i}
            s_and_b32 {s(sT2)}, {s(sT2)}, 3
            s_mul_i32 {s(sT2)}, {s(sT2)}, {3*PSLOT}
            v_add_u32 v148, {s(sT2)}, v146
            v_add_u32 v149, {s(sT2)}, v147
            ds_write_b128 v148, {v(O0+16*i,4)} offset:{R0+(i-1)*PSLOT}
            ds_write_b128 v148, {v(O0+16*i+4,4)} offset:{R0+(i-1)*PSLOT+1024}
            ds_write_b32 v149, v{O0+16*i+8} offset:{R0+(i-1)*PSLOT+2048}""")
        a(f"""s_mul_i32 {s(sT2)}, {s(sW4)}, {3*PSLOT}
        v_add_u32 v148, {s(sT2)}, v146
        v_add_u32 v149, {s(sT2)}, v147
        s_waitcnt vmcnt(0) lgkmcnt(0)""")
        self.arrive(0, 145, vONE)
        self.waitc(0, 4, 145, vT)
        for i in range(1, 4):
            a(f"""ds_read_b128 {v(O0+16*i,4)}, v148 offset:{R0+(i-1)*PSLOT}
            ds_read_b128 {v(O0+16*i+4,4)}, v148 offset:{R0+(i-1)*PSLOT+1024}
            ds_read_b32 v{O0+16*i+8}, v149 offset:{R0+(i-1)*PSLOT+2048}""")
        a(f"""s_lshl_b32 {s(sT3)}, {s(sG)}, 1
        s_add_u32 {s(sT3)}, {s(sT3)}, {s(sCLS)}
        s_lshl_b32 {s(sT3)}, {s(sT3)}, 5
        s_lshl_b32 {s(sT4)}, {s(sR)}, 2
        s_add_u32 {s(sT3)}, {s(sT3)}, {s(sT4)}
        s_add_u32 {s(sT3)}, {s(sT3)}, {s(sW4)}
        s_lshl_b32 {s(sT3)}, {s(sT3)}, 10
        s_add_u32 {s(sT5)}, {s(sT3)}, {WS_O}
        s_waitcnt lgkmcnt(3)""")
        for k in range(9): a(f"v_add_f32 v{O0+16+k}, v{O0+16+k}, v{O0+32+k}")
        a("s_waitcnt lgkmcnt(0)")
        for k in range(9): a(f"v_add_f32 v{O0+k}, v{O0+k}, v{O0+48+k}")
        a(f"s_cmp_eq_u32 {s(sCLS)}, 0\ns_cbranch_scc0 L_no_ped")
        self.arrive(C_PED, vZ, vONE)
        a.label("L_no_ped")
        for k in range(9): a(f"v_add_f32 v{O0+k}, v{O0+k}, v{O0+16+k}")
        a(f"""v_add_f32 v150, v{O0}, v{O0+1}
        v_add_f32 v151, v{O0+2}, v{O0+3}
        v_add_f32 v152, v{O0+4}, v{O0+5}
        v_add_f32 v153, v{O0+6}, v{O0+7}
        v_add_f32 v150, v150, v151
        v_add_f32 v152, v152, v153
        v_add_f32 v150, v150, v152
        v_mov_b32 v151, 0x7f800000
        v_cmp_lt_f32 {s(sT2,2)}, |v150|, v151
        v_cmp_le_f32 vcc, {fbits(2.0**-60)}, v{O0+8}
        s_and_b64 {s(sT2,2)}, {s(sT2,2)}, vcc
        v_cmp_ge_f32 vcc, {fbits(2.0**60)}, v{O0+8}
        s_and_b64 vcc, {s(sT2,2)}, vcc""")
        if self.opt("force_fallback"): a("s_mov_b64 vcc, 0")
        a(f"""s_cmp_eq_u64 vcc, exec
        s_cbranch_scc0 L_fallback""")
        a.label("L_att_fin")
        a(f"v_rcp_f32 v150, v{O0+8}")
        for k in range(8): a(f"v_mul_f32 v{O0+k}, v150, v{O0+k}")
        for k in range(4): a(f"v_cvt_pk_bf16_f32 v{152+k}, v{O0+2*k}, v{O0+2*k+1}")
        for k in range(4): a(f"v_min_u32 v{152+k}, -2, v{152+k}")
        a(f"""s_cmp_eq_u32 {s(sCLS)}, 0
        s_cbranch_scc1 L_pub_early""")
        self.waitc(C_OE, 4, vZ, vT)
        a(f"buffer_store_dwordx4 v[152:155], v146, {s(rWS,4)}, {s(sT5)} offen sc1")
        self.arrive(C_OL, vZ, vONE)
        a("s_branch L_end")
        a.label("L_pub_early")
        a(f"""buffer_store_dwordx4 v[152:155], v146, {s(rWS,4)}, {s(sT5)} offen sc1
        v_mov_b32 v156, -1
        v_mov_b32 v157, -1
        v_mov_b32 v158, -1
        v_mov_b32 v159, -1
        s_add_u32 {s(sT5)}, {s(sT5)}, 32768
        buffer_store_dwordx4 v[156:159], v146, {s(rWS,4)}, {s(sT5)} offen sc1
        s_waitcnt vmcnt(0)""")
        self.arrive(C_OE, vZ, vONE)
        a(f"""s_cmp_eq_u32 {s(sWAVE)}, 0
        s_cbranch_scc0 L_end""")
        self.waitc(C_OE, 4, vZ, vT)
        a(f"""s_lshl_b32 {s(sT2)}, {s(sG)}, 3
        s_add_u32 {s(sT2)}, {s(sT2)}, {s(sR)}
        s_lshl_b32 {s(sT2)}, {s(sT2)}, 7
        s_add_u32 {s(sT2)}, {s(sT2)}, {WS_FLAG2}
        s_add_u32 {s(sT3)}, {s(sNONCE)}, 0x9e3779b9
        v_mov_b32 v150, {s(sT3)}
        v_mov_b32 v151, 0
        s_mov_b64 exec, 1
        buffer_store_dword v150, v151, {s(rWS,4)}, {s(sT2)} offen sc1
        s_cmp_eq_u32 {s(sWG)}, 0
        s_cbranch_scc0 L_noepoch
        buffer_store_dword v150, v151, {s(rWS,4)}, 0 offen sc1""")
        a.label("L_noepoch")
        a("s_mov_b64 exec, -1\ns_branch L_end")
        self.fallback()

    def fallback(self):
        a = self.a
        Q0, O0, S0, KA = self.Q0, self.O0, self.S0, self.KA
        vKO, vVO, vIDX = self.vKO, self.vVO, self.vIDX
        C0 = O0 + 16
        a.label("L_fallback")
        a(f"""s_mul_i32 {s(sT2)}, {s(sW4)}, {16*KVT}
        v_subrev_u32 v7, {s(sT2)}, v{vKO}
        v_subrev_u32 v151, {s(sT2)}, v{vVO}
        v_mov_b32 v150, 0xff800000
        s_mov_b32 {s(sSOF)}, 0""")
        a.label("L_fb1")
        a(f"""buffer_load_dwordx4 {v(KA,4)}, v7, {s(rWS,4)}, {s(sSOF)} offen sc1
        s_waitcnt vmcnt(0)
        v_mfma_f32_32x32x16_bf16 {v(S0,16)}, {v(KA,4)}, {v(Q0,4)}, 0""")
        for k in range(8): a(f"v_max3_f32 v150, v150, v{S0+2*k}, v{S0+2*k+1}")
        a(f"""s_add_u32 {s(sSOF)}, {s(sSOF)}, {KVT}
        s_cmp_lt_u32 {s(sSOF)}, {64*KVT}
        s_cbranch_scc1 L_fb1
        v_mov_b32 v152, v150
        v_permlane32_swap_b32 v150, v152
        v_max_f32 v150, v150, v152""")
        for k in range(16): a(f"v_sub_f32 v{C0+k}, 0, v150")
        for k in range(16): a(f"v_mov_b32 v{O0+k}, 0")
        a(f"s_mov_b32 {s(sSOF)}, 0")
        a.label("L_fb2")
        a(f"""buffer_load_dwordx4 {v(KA,4)}, v7, {s(rWS,4)}, {s(sSOF)} offen sc1
        buffer_load_dwordx4 {v(KA+4,4)}, v151, {s(rWS,4)}, {s(sSOF)} offen offset:1024 sc1
        buffer_load_dwordx4 {v(KA+8,4)}, v151, {s(rWS,4)}, {s(sSOF)} offen offset:1664 sc1
        s_waitcnt vmcnt(0)
        v_mfma_f32_32x32x16_bf16 {v(S0,16)}, {v(KA,4)}, {v(Q0,4)}, {v(C0,16)}""")
        for k in range(16): a(f"v_exp_f32 v{S0+k}, v{S0+k}")
        a(f"""v_smfmac_f32_32x32x32_bf16 {v(O0,16)}, {v(KA+4,4)}, {v(S0,8)}, v{vIDX}
        v_smfmac_f32_32x32x32_bf16 {v(O0,16)}, {v(KA+8,4)}, {v(S0+8,8)}, v{vIDX}
        s_add_u32 {s(sSOF)}, {s(sSOF)}, {KVT}
        s_cmp_lt_u32 {s(sSOF)}, {64*KVT}
        s_nop 9
        s_cbranch_scc1 L_fb2
        s_nop 3
        s_branch L_att_fin""")

    def role_s(self):
        a = self.a; vL, vZ, vONE, vT = self.vL, self.vZ, self.vONE, self.vT
        a.label("L_role_s")
        a(f"s_setprio {self.opt('sprio', 2)}")
        sCH, sMH = sLOOP, sSOF
        a(f"""s_and_b32 {s(sCH)}, {s(sW4)}, 1
        s_lshr_b32 {s(sMH)}, {s(sW4)}, 1
        s_lshl_b32 {s(sT0)}, {s(sP)}, 2
        s_load_dword {s(sT4)}, {s(pLDT,2)}, {s(sT0)}
        s_load_dword {s(sT5)}, {s(pDSK,2)}, {s(sT0)}
        s_lshl_b32 {s(sT1)}, {s(sP)}, 9
        s_lshl_b32 {s(sT2)}, {s(sCH)}, 8
        s_add_u32 {s(sT1)}, {s(sT1)}, {s(sT2)}
        s_lshl_b32 {s(sT2)}, {s(sMH)}, 7
        s_add_u32 {s(sT1)}, {s(sT1)}, {s(sT2)}
        v_lshlrev_b32 v4, 1, v0
        s_mov_b32 {s(rA+2)}, 131072
        s_mov_b32 {s(rA+3)}, 0x20000""")
        for i, p in enumerate([pARE, pAIM, pBRE, pBIM, pCRE, pCIM]):
            a(f"s_mov_b32 {s(rA)}, {s(p)}\ns_mov_b32 {s(rA+1)}, {s(p+1)}")
            a(f"buffer_load_ushort v{8+i}, v4, {s(rA,4)}, {s(sT1)} offen")
        a(f"""s_lshl_b32 {s(sT2)}, {s(sW4)}, 12
        s_add_u32 {s(sT2)}, {s(sT2)}, {GEN}
        v_bfe_u32 v5, v0, 1, 2
        v_lshlrev_b32 v5, 4, v5
        v_lshl_add_u32 v5, v0, 6, v5
        v_add_u32 v150, {s(sT2)}, v5
        v_xor_b32 v151, 16, v150
        v_xor_b32 v152, 32, v150
        v_xor_b32 v153, 48, v150
        v_bfe_u32 v5, v0, 2, 2
        v_lshrrev_b32 v6, 5, v0
        v_lshl_add_u32 v6, v6, 3, v5
        v_lshlrev_b32 v6, 6, v6
        v_bfe_u32 v7, v0, 4, 1
        v_lshlrev_b32 v7, 1, v7
        v_bfe_u32 v14, v0, 1, 1
        v_add_u32 v7, v7, v14
        v_lshrrev_b32 v5, 1, v5
        v_xor_b32 v7, v7, v5
        v_lshl_add_u32 v6, v7, 4, v6
        v_and_b32 v7, 1, v0
        v_lshl_add_u32 v6, v7, 3, v6
        v_add_u32 v154, {s(sT2)}, v6
        v_xor_b32 v155, 32, v154
        s_waitcnt lgkmcnt(0)
        s_lshl_b32 {s(sT2)}, {s(sCH)}, 4
        s_lshr_b32 {s(sT4)}, {s(sT4)}, {s(sT2)}
        s_lshl_b32 {s(sT4)}, {s(sT4)}, 16
        s_lshr_b32 {s(sT5)}, {s(sT5)}, {s(sT2)}
        s_lshl_b32 {s(sT5)}, {s(sT5)}, 16
        v_mov_b32 v14, {fbits(LOG2E)}
        v_mul_f32 v15, {s(sT4)}, v14
        v_exp_f32 v15, v15
        v_cvt_pk_bf16_f32 v15, v15, v15
        v_and_b32 v15, 0xffff0000, v15
        s_waitcnt vmcnt(0)""")
        self.stamp(1)
        for i in range(6): a(f"v_lshlrev_b32 v{8+i}, 16, v{8+i}")
        Z1, Z2, Z4, Z8, Z256, CB, TMP = 18, 20, 22, 24, 26, 16, 28
        a(f"""v_mul_f32 v8, v15, v8
        v_mul_f32 v9, v15, v9
        v_mul_f32 v10, v15, v10
        v_mul_f32 v11, v15, v11
        v_mul_f32 v8, v14, v8
        v_mul_f32 v9, 0.15915494, v9""")
        self.cmul(CB, 10, 12, TMP)
        def cpow(d, mult):
            if mult != 1:
                a(f"v_mul_f32 v30, {fbits(mult)}, v8\nv_mul_f32 v31, {fbits(mult)}, v9")
                x, y = 30, 31
            else:
                x, y = 8, 9
            a(f"""v_exp_f32 v28, v{x}
            v_rndne_f32 v29, v{y}
            v_sub_f32 v29, v{y}, v29
            v_cos_f32 v{d}, v29
            v_sin_f32 v{d+1}, v29
            v_mul_f32 v{d}, v28, v{d}
            v_mul_f32 v{d+1}, v28, v{d+1}""")
        cpow(Z1, 1); cpow(Z256, 256)
        self.cmul(Z2, Z1, Z1, TMP); self.cmul(Z4, Z2, Z2, TMP); self.cmul(Z8, Z4, Z4, TMP)
        RE, IM = 32, 48
        FB = 64
        FA = 96
        ACC = 112
        X0, X1 = 128, 130
        def wr(src):
            for c in range(4): a(f"ds_write_b128 v{150+c}, {v(src+4*c,4)}")
        def rdtr(dst):
            for ks in range(4):
                a(f"ds_read_b64_tr_b16 {v(dst+4*ks,2)}, v154 offset:{1024*ks}")
                a(f"ds_read_b64_tr_b16 {v(dst+4*ks+2,2)}, v155 offset:{1024*ks+256}")
        a(f"v_mov_b32 v{X0}, 1.0\nv_mov_b32 v{X0+1}, 0")
        for j in range(0, 32, 2):
            if j > 0: self.cmul(X0, X1, Z8, TMP)
            self.cmul(X1, X0, Z8, TMP)
            a(f"v_cvt_pk_bf16_f32 v{RE+j//2}, v{X0}, v{X1}")
            a(f"v_cvt_pk_bf16_f32 v{IM+j//2}, -v{X0+1}, -v{X1+1}")
        wr(RE); rdtr(FB); wr(IM); rdtr(FB + 16)
        B = [CB] + [132 + 2 * m for m in range(7)]
        for m in range(1, 8): self.cmul(B[m], B[m - 1], Z256, TMP)
        Y0, Y1 = 146, 148
        def pack(row, x, y):
            a(f"v_cvt_pk_bf16_f32 v{RE+row//2}, v{x}, v{y}")
            a(f"v_cvt_pk_bf16_f32 v{IM+row//2}, v{x+1}, v{y+1}")
        a("s_waitcnt lgkmcnt(8)")
        self.cmul(X1, CB, Z1, TMP); pack(0, CB, X1)
        for row in (2, 4, 6):
            self.cmul(X0, X1, Z1, TMP); self.cmul(X1, X0, Z1, TMP); pack(row, X0, X1)
        self.cmul(X0, B[1], Z2, TMP); pack(8, B[1], X0)
        self.cmul(X1, X0, Z2, TMP); pack(10, X1, X1)
        self.cmul(X0, X1, Z2, TMP); pack(12, X1, X0)
        self.cmul(X1, X0, Z2, TMP); pack(14, X1, X1)
        for q, m in ((16, 2), (20, 3)):
            self.cmul(X0, B[m], Z4, TMP); pack(q, B[m], X0)
            self.cmul(X1, X0, Z4, TMP); pack(q + 2, X1, X1)
        for q, m in ((24, 4), (26, 6), (28, 5), (30, 7)):
            self.cmul(X0, B[m], Z8, TMP); pack(q, B[m], X0)
        wr(RE); rdtr(FA)
        a("s_waitcnt lgkmcnt(0)")
        for ks in range(4):
            a(f"v_mfma_f32_32x32x16_bf16 {v(ACC,16)}, {v(FA+4*ks,4)}, {v(FB+4*ks,4)}, {'0' if ks==0 else v(ACC,16)}")
        wr(IM); rdtr(RE)
        a("s_waitcnt lgkmcnt(0)")
        for ks in range(4):
            a(f"v_mfma_f32_32x32x16_bf16 {v(ACC,16)}, {v(RE+4*ks,4)}, {v(FB+16+4*ks,4)}, {v(ACC,16)}")
        self.stamp(2)
        if self.opt("abl_s"): a("s_branch L_end")
        UG = 156
        self.srd(rB, pU, 2097152)
        self.waitc(C_KV, 4, vZ, vT, slp=2)
        if self.opt("uwait", 2): self.waitc({1: C_WQB, 2: C_FL, 3: C_QL}[self.opt("uwait", 2)], 4, vZ, vT, slp=2)
        a(f"""ds_read_b32 v167, v1 offset:128
        s_and_b32 {s(sT0)}, {s(sP)}, 31
        s_lshr_b32 {s(sT4)}, {s(sP)}, 5
        s_lshl_b32 {s(sT1)}, {s(sT0)}, 16
        s_lshl_b32 {s(sT2)}, {s(sMH)}, 15
        s_add_u32 {s(sT1)}, {s(sT1)}, {s(sT2)}
        s_lshl_b32 {s(sT2)}, {s(sT4)}, 7
        s_add_u32 {s(sT1)}, {s(sT1)}, {s(sT2)}
        s_lshl_b32 {s(sT2)}, {s(sCH)}, 6
        s_add_u32 {s(sT1)}, {s(sT1)}, {s(sT2)}
        v_and_b32 v5, 7, v0
        v_lshrrev_b32 v6, 3, v0
        v_lshlrev_b32 v4, 12, v5
        v_lshl_add_u32 v4, v6, 2, v4""")
        for j in range(2):
            for i in range(4):
                a(f"buffer_load_dword v{UG+4*j+i}, v4, {s(rB,4)}, {s(sT1)} offen offset:{1024*i+32*j}")
        a(f"""s_lshl_b32 {s(sT1)}, {s(sT4)}, 18
        s_lshl_b32 {s(sT2)}, {s(sCH)}, 17
        s_add_u32 {s(sT1)}, {s(sT1)}, {s(sT2)}
        s_lshl_b32 {s(sT2)}, {s(sT0)}, 8
        s_add_u32 {s(sT1)}, {s(sT1)}, {s(sT2)}
        s_lshl_b32 {s(sT2)}, {s(sMH)}, 7
        s_add_u32 {s(sT1)}, {s(sT1)}, {s(sT2)}
        s_add_u32 {s(sT1)}, {s(sT1)}, {WS_UT}
        s_add_u32 {s(sT2)}, {s(sT1)}, 65536
        v_lshlrev_b32 v4, 13, v6
        v_lshl_add_u32 v4, v5, 4, v4
        s_waitcnt vmcnt(4)
        buffer_store_dwordx4 {v(UG,4)}, v4, {s(rWS,4)}, {s(sT1)} offen sc1
        s_waitcnt vmcnt(1)
        buffer_store_dwordx4 {v(UG+4,4)}, v4, {s(rWS,4)}, {s(sT2)} offen sc1
        s_waitcnt lgkmcnt(0)""")
        self.s_publish(C_UT, WS_FLAG3)
        a(f"""s_lshl_b32 {s(sT2)}, {s(sCH)}, 12
        s_add_u32 {s(sT2)}, {s(sT2)}, {GEN+8192}
        v_lshl_add_u32 v5, v0, 4, {s(sT2)}
        s_lshl_b32 {s(sT2)}, {s(sCH)}, 2
        v_add_u32 v6, {s(sT2)}, v1
        s_mul_i32 {s(sT3)}, {s(sCH)}, {KCH}
        s_add_u32 {s(sT3)}, {s(sT3)}, {XE}
        s_cmp_eq_u32 {s(sMH)}, 0
        s_cbranch_scc1 L_s_expand""")
        for c in range(4): a(f"ds_write_b128 v5, {v(ACC+4*c,4)} offset:{1024*c}")
        a("s_waitcnt lgkmcnt(0)")
        self.arrive(C_KT0, 6, vONE)
        a("s_branch L_s_ucopy")
        a.label("L_s_expand")
        self.waitc(C_KT0, 1, 6, vT)
        for c in range(4): a(f"ds_read_b128 {v(32+4*c,4)}, v5 offset:{1024*c}")
        self.waitc(C_QE, 4, vZ, vT)
        a(f"""v_lshl_add_u32 v7, v0, 4, {s(sT3)}
        v_mov_b32 v48, 0
        v_mov_b32 v49, 0
        v_mov_b32 v50, 0
        v_mov_b32 v51, 0""")
        for cp in range(2):
            for off in (0, 1024, 1136):
                a(f"ds_write_b128 v7, v[48:51] offset:{cp*KCOPY+off}")
        for k in range(16): a(f"v_add_f32 v{ACC+k}, v{ACC+k}, v{32+k}")
        a(f"""v_cmp_eq_u32 vcc, 0, v0
        v_mov_b32 v9, {s(sT5)}
        v_cndmask_b32 v9, 0, v9, vcc
        v_add_f32 v{ACC}, v{ACC}, v9
        v_bfe_u32 v8, v0, 3, 2
        v_mul_u32_u24 v8, 144, v8
        v_and_b32 v9, 7, v0
        v_lshl_add_u32 v8, v9, 4, v8
        v_add_u32 v8, {s(sT3)}, v8
        v_lshrrev_b32 v9, 5, v0
        v_lshlrev_b32 v10, 3, v9
        v_sub_u32 v10, v8, v10
        v_mul_u32_u24 v9, 576, v9
        v_add_u32 v9, v8, v9
        v_and_b32 v11, 1, v0
        v_cmp_eq_u32 vcc, 0, v11""")
        A = ACC
        a(f"""v_cvt_pk_bf16_f32 v32, v{A+3}, v{A+2}
        v_cvt_pk_bf16_f32 v33, v{A+1}, v{A}
        ds_write_b64 v10, v[32:33] offset:{144*15+8}
        v_cvt_pk_bf16_f32 v34, v{A+6}, v{A+5}
        v_cvt_pk_bf16_f32 v35, v{A+4}, v{A+4}
        ds_write_b64 v10, v[34:35] offset:{144*19+8}
        v_cvt_pk_bf16_f32 v36, v{A+10}, v{A+10}
        v_cvt_pk_bf16_f32 v37, v{A+9}, v{A+9}
        v_cvt_pk_bf16_f32 v38, v{A+9}, v{A+8}
        v_cvt_pk_bf16_f32 v39, v{A+8}, v{A+8}
        ds_write_b128 v9, v[36:39] offset:{144*23}""")
        for q, (ra, dst, blk) in enumerate(((A + 12, 40, 31), (A + 14, 44, 39))):
            a(f"""v_cndmask_b32 v11, v{ra+1}, v{ra}, vcc
            v_cvt_pk_bf16_f32 v{dst}, v{ra+1}, v{ra+1}
            v_cvt_pk_bf16_f32 v{dst+1}, v{ra+1}, v11
            v_cvt_pk_bf16_f32 v{dst+2}, v{ra}, v{ra}
            v_cvt_pk_bf16_f32 v{dst+3}, v{ra}, v{ra}
            ds_write_b128 v9, {v(dst,4)} offset:{144*blk}""")
        a(f"""v_lshrrev_b32 v8, 3, v0
        v_mul_u32_u24 v8, 144, v8
        v_and_b32 v9, 7, v0
        v_lshl_add_u32 v8, v9, 4, v8
        v_add_u32 v8, {s(sT3)}, v8
        v_cmp_eq_u32 vcc, 0, v9
        v_mov_b32 v10, 16
        v_cndmask_b32 v10, v10, 32, vcc
        v_sub_u32 v10, v8, v10""")
        for it in range(4):
            a(f"ds_read_b128 {v(64+8*it,4)}, v8 offset:{144*(15+8*it)}")
            a(f"ds_read_b32 v{68+8*it}, v10 offset:{144*(15+8*it)}")
        for it in range(4):
            b = 64 + 8 * it
            a(f"s_waitcnt lgkmcnt({6-2*it+it})")
            for k in range(4): a(f"v_alignbit_b32 v{32+4*it+k}, v{b+k+1}, v{b+k}, 16")
            a(f"ds_write_b128 v8, {v(32+4*it,4)} offset:{KCOPY+144*(15+8*it)}")
        a.label("L_s_ucopy")
        self.stamp(3)
        a(f"""s_lshr_b32 {s(sT4)}, {s(sP)}, 5
        s_lshl_b32 {s(sT4)}, {s(sT4)}, 12
        s_add_u32 {s(sT4)}, {s(sT4)}, {WS_FLAG3}""")
        self.s_poll(sT4, 31)
        a(f"""s_lshl_b32 {s(sT1)}, {s(sP)}, 13
        s_lshl_b32 {s(sT2)}, {s(sW4)}, 11
        s_add_u32 {s(sT1)}, {s(sT1)}, {s(sT2)}
        s_add_u32 {s(sT1)}, {s(sT1)}, {WS_UT}
        v_lshlrev_b32 v4, 5, v0
        buffer_load_dwordx4 {v(UG,4)}, v4, {s(rWS,4)}, {s(sT1)} offen sc1
        buffer_load_dwordx4 {v(UG+4,4)}, v4, {s(rWS,4)}, {s(sT1)} offen offset:16 sc1""")
        self.waitc(C_QL, 4, vZ, vT, slp=4)
        a(f"""s_cmp_eq_u32 {s(sW4)}, 0
        s_cbranch_scc0 L_s_nouz
        v_lshrrev_b32 v8, 3, v0
        v_mul_u32_u24 v8, {UCOPY}, v8
        v_and_b32 v9, 7, v0
        v_lshl_add_u32 v8, v9, 4, v8
        v_add_u32 v8, {W}, v8
        v_mov_b32 v48, 0
        v_mov_b32 v49, 0
        v_mov_b32 v50, 0
        v_mov_b32 v51, 0
        ds_write_b128 v8, v[48:51]""")
        a.label("L_s_nouz")
        a(f"""s_lshl_b32 {s(sT2)}, {s(sW4)}, 10
        s_add_u32 {s(sT2)}, {s(sT2)}, {W}
        v_lshl_add_u32 v8, v0, 4, {s(sT2)}
        s_mov_b32 {s(sT0)}, 0x05040100
        s_mov_b32 {s(sT1)}, 0x07060302
        s_waitcnt vmcnt(0)""")
        self.stamp(4)
        for k in range(4):
            a(f"v_perm_b32 v{32+k}, v{UG+2*k+1}, v{UG+2*k}, {s(sT0)}")
            a(f"v_perm_b32 v{36+k}, v{UG+2*k+1}, v{UG+2*k}, {s(sT1)}")
        for ch in range(2):
            d = 32 + 4 * ch
            for ph in range(4):
                off = ch * UCH + ph * UCOPY + 128 - 4 * (ph + 1)
                if ph == 3:
                    a(f"ds_write_b128 v8, {v(d,4)} offset:{off}")
                elif ph == 1:
                    a(f"ds_write_b64 v8, {v(d,2)} offset:{off}\nds_write_b64 v8, {v(d+2,2)} offset:{off+8}")
                else:
                    a(f"v_add_u32 v9, {off}, v8")
                    a(f"ds_write2_b32 v9, v{d}, v{d+1} offset0:0 offset1:1\nds_write2_b32 v9, v{d+2}, v{d+3} offset0:2 offset1:3")
        a("s_waitcnt lgkmcnt(0)")
        self.arrive(C_KU, vZ, vONE)
        a(f"""s_mul_i32 {s(sT2)}, {s(sMH)}, 1152
        s_sub_u32 {s(sT3)}, {s(sT3)}, {s(sT2)}
        v_and_b32 v10, 15, v0
        v_mul_u32_u24 v8, 144, v10
        v_bfe_u32 v10, v0, 4, 1
        v_mul_u32_u24 v10, {KCOPY}, v10
        v_add_u32 v8, v8, v10
        v_lshrrev_b32 v11, 5, v0
        v_lshlrev_b32 v11, 4, v11
        v_sub_u32 v8, v8, v11
        v_add_u32 v8, {s(sT3)}, v8
        s_mul_i32 {s(sT2)}, {s(sCH)}, {UCH}
        s_lshl_b32 {s(sT4)}, {s(sMH)}, 10
        s_add_u32 {s(sT2)}, {s(sT2)}, {s(sT4)}
        s_add_u32 {s(sT2)}, {s(sT2)}, {W}
        v_and_b32 v10, 3, v0
        v_mul_u32_u24 v9, {UCOPY}, v10
        v_bfe_u32 v10, v0, 2, 3
        v_lshl_add_u32 v9, v10, 4, v9
        v_add_u32 v9, v9, v11
        v_add_u32 v9, {s(sT2)}, v9""")
        T0, T1 = 64, 80
        for k in range(32): a(f"v_mov_b32 v{T0+k}, 0")
        self.waitc(C_KU, 4, vZ, vT)
        self.stamp(5)
        def crd(u, b):
            ao = 144 * 15 + 16 * (7 - 2 * u) if u < 4 else 144 * 14 + 16 * 7
            a(f"ds_read_b128 {v(b,4)}, v8 offset:{ao}")
            a(f"ds_read_b128 {v(b+8,4)}, v9 offset:{32*u}")
            a(f"ds_read_b128 {v(b+12,4)}, v9 offset:{32*u+2048}")
            a(f"ds_read_b128 {v(b+4,4)}, v8 offset:{ao+2304}")
        F = [32, 48]
        pace = self.opt("pace", 1)
        if pace == 0: crd(0, F[0])
        a(f"s_mov_b32 {s(sT4)}, 8")
        a.label("L_conv")
        for u in range(4):
            b = F[u & 1]
            m0 = f"v_mfma_f32_32x32x16_bf16 {v(T0,16)}, {v(b,4)}, {v(b+8,4)}, {v(T0,16)}"
            m1 = f"v_mfma_f32_32x32x16_bf16 {v(T1,16)}, {v(b,4)}, {v(b+12,4)}, {v(T1,16)}"
            m2 = f"v_mfma_f32_32x32x16_bf16 {v(T1,16)}, {v(b+4,4)}, {v(b+8,4)}, {v(T1,16)}"
            ao = 144 * 15 + 16 * (7 - 2 * u)
            if pace == 0:
                crd(u + 1, F[(u + 1) & 1])
                a("s_waitcnt lgkmcnt(4)"); a(m0); a(m1); a(m2)
            elif pace == 1:
                a(f"ds_read_b128 {v(b,4)}, v8 offset:{ao}\nds_read_b128 {v(b+8,4)}, v9 offset:{32*u}\ns_waitcnt lgkmcnt(0)"); a(m0)
                a(f"ds_read_b128 {v(b+12,4)}, v9 offset:{32*u+2048}\ns_waitcnt lgkmcnt(0)"); a(m1)
                a(f"ds_read_b128 {v(b+4,4)}, v8 offset:{ao+2304}\ns_waitcnt lgkmcnt(0)"); a(m2)
            elif pace == 2:
                crd(u, b)
                a("s_waitcnt lgkmcnt(0)"); a(m0); a(m1); a(m2)
        a(f"""v_subrev_u32 v8, 144, v8
        v_add_u32 v9, 128, v9
        s_sub_u32 {s(sT4)}, {s(sT4)}, 1
        s_cmp_lg_u32 {s(sT4)}, 0
        s_cbranch_scc1 L_conv""")
        self.stamp(6)
        def xchg_write(base, accs, ymode=False):
            a(f"""s_lshl_b32 {s(sT2)}, {s(sW4)}, 11
            s_add_u32 {s(sT2)}, {s(sT2)}, {base}
            v_lshl_add_u32 v10, v0, 4, {s(sT2)}
            s_lshl_b32 {s(sT2)}, {s(sW4)}, 13
            s_add_u32 {s(sT2)}, {s(sT2)}, {base}
            v_lshl_add_u32 v11, v0, 4, {s(sT2)}""")
            for q in range(4):
                r0, r1 = (accs+8*q, accs+8*q+4) if not ymode else (accs+16*(q>>1)+4*(q&1), accs+16*(q>>1)+8+4*(q&1))
                a(f"ds_write_b128 v10, {v(r0,4)} offset:{8192*q}")
                a(f"ds_write_b128 v10, {v(r1,4)} offset:{8192*q+1024}")
        def xchg_read(dst):
            for w in range(4):
                a(f"ds_read_b128 {v(dst+8*w,4)}, v11 offset:{2048*w}")
                a(f"ds_read_b128 {v(dst+8*w+4,4)}, v11 offset:{2048*w+1024}")
        a("s_waitcnt lgkmcnt(0)")
        xchg_write(YX, T0, True)
        a("s_waitcnt lgkmcnt(0)")
        self.arrive(C_Y, vZ, vONE)
        self.srd(rC, pOUT, 4194304)
        a(f"""s_lshl_b32 {s(sT1)}, {s(sP)}, 13
        s_lshl_b32 {s(sT2)}, {s(sW4)}, 11
        s_add_u32 {s(sT1)}, {s(sT1)}, {s(sT2)}
        s_add_u32 {s(sT1)}, {s(sT1)}, {WS_YT}
        v_and_b32 v12, 31, v0
        v_lshlrev_b32 v12, 3, v12
        v_lshrrev_b32 v13, 5, v0
        v_lshl_add_u32 v12, v13, 10, v12""")
        self.waitc(C_Y, 4, vZ, vT)
        xchg_read(32)
        self.srd(rB, pWO, 524288)
        a(f"""v_lshrrev_b32 v14, 3, v0
        v_and_b32 v15, 7, v0
        v_and_b32 v16, 2, v14
        v_lshlrev_b32 v16, 1, v16
        v_xor_b32 v15, v15, v16
        v_lshlrev_b32 v14, 10, v14
        v_lshl_add_u32 v14, v15, 4, v14
        s_lshl_b32 {s(sT3)}, {s(sW4)}, 17
        s_lshl_b32 {s(sT2)}, {s(sR)}, 7
        s_add_u32 {s(sT3)}, {s(sT3)}, {s(sT2)}
        s_lshl_b32 {s(sT4)}, {s(sW4)}, 13
        s_add_u32 {s(sT4)}, {s(sT4)}, {XE}""")
        def wo_dma():
            a(f"s_mov_b32 m0, {s(sT4)}")
            for i in range(8):
                a(f"buffer_load_dwordx4 v14, {s(rB,4)}, {s(sT3)} offen lds")
                if i < 7: a("s_add_u32 m0, m0, 1024")
                a(f"s_add_u32 {s(sT3)}, {s(sT3)}, 8192")
        wo_dma()
        a("s_waitcnt lgkmcnt(0)")
        for k in range(8):
            a(f"v_add_f32 v{32+k}, v{32+k}, v{48+k}\nv_add_f32 v{40+k}, v{40+k}, v{56+k}")
        for e in range(4):
            a(f"v_cvt_pk_bf16_f32 v{48+2*e}, v{36+e}, v{44+e}")
            a(f"v_cvt_pk_bf16_f32 v{49+2*e}, v{32+e}, v{40+e}")
        for e in range(4):
            a(f"buffer_store_dwordx2 {v(48+2*e,2)}, v12, {s(rWS,4)}, {s(sT1)} offen offset:{256*e} sc1")
        self.stamp(7)
        WOF = 96
        a(f"""v_bfe_u32 v15, v0, 2, 2
        v_lshrrev_b32 v16, 5, v0
        v_lshl_add_u32 v16, v16, 3, v15
        v_lshlrev_b32 v16, 7, v16
        v_and_b32 v15, 2, v15
        v_lshl_add_u32 v16, v15, 5, v16
        v_bfe_u32 v15, v0, 4, 1
        v_lshl_add_u32 v16, v15, 5, v16
        v_and_b32 v15, 1, v0
        v_lshl_add_u32 v16, v15, 4, v16
        v_bfe_u32 v15, v0, 1, 1
        v_lshl_add_u32 v16, v15, 3, v16
        v_add_u32 v16, {s(sT4)}, v16
        v_xor_b32 v17, 64, v16""")
        for rnd in range(2):
            a("s_waitcnt vmcnt(4)" if rnd == 0 else "s_waitcnt vmcnt(0)")
            for ks in range(4):
                for ct in range(2):
                    d = WOF + 32 * rnd + 8 * ks + 4 * ct
                    a(f"ds_read_b64_tr_b16 {v(d,2)}, v{16+ct} offset:{2048*ks}")
                    a(f"ds_read_b64_tr_b16 {v(d+2,2)}, v{16+ct} offset:{2048*ks+512}")
            if rnd == 0:
                a("s_waitcnt lgkmcnt(0)")
                self.s_publish(C_YT, WS_FLAG4)
                wo_dma()
        a("s_waitcnt lgkmcnt(0)")
        self.stamp(8)
        self.y_assemble()
        a(f"""s_lshl_b32 {s(sT3)}, {s(sG)}, 16
        s_lshl_b32 {s(sT2)}, {s(sW4)}, 13
        s_add_u32 {s(sT3)}, {s(sT3)}, {s(sT2)}
        s_add_u32 {s(sT3)}, {s(sT3)}, {WS_O}
        v_lshlrev_b32 v14, 4, v0
        s_lshl_b32 {s(sT1)}, {s(sG)}, 17
        s_lshl_b32 {s(sT2)}, {s(sR)}, 7
        s_add_u32 {s(sT1)}, {s(sT1)}, {s(sT2)}
        s_lshl_b32 {s(sT2)}, {s(sW4)}, 5
        s_add_u32 {s(sT1)}, {s(sT1)}, {s(sT2)}
        v_and_b32 v12, 31, v0
        v_lshlrev_b32 v12, 11, v12
        v_lshl_add_u32 v12, v13, 4, v12""")
        OF = 32; AC = 64
        for rnd in range(2):
            Lp = f"L_opoll{rnd}"; Lo = f"L_ook{rnd}"
            if rnd == 0:
                self.waitc(C_OE, 4, vZ, vT, slp=4)
                a(f"""s_lshl_b32 {s(sT2)}, {s(sG)}, 10
                s_add_u32 {s(sT2)}, {s(sT2)}, {WS_FLAG2}""")
                self.s_poll(sT2, 7)
                a(f"s_add_u32 {s(sT4)}, {s(sT3)}, 4096")
                for h in range(8):
                    a(f"buffer_load_dwordx4 {v(OF+4*h,4)}, v14, {s(rWS,4)}, {s(sT3 if h<4 else sT4)} offen offset:{1024*(h&3)} sc1")
                a("s_waitcnt vmcnt(0)")
            else:
                a(f"s_add_u32 {s(sT3)}, {s(sT3)}, 32768\ns_add_u32 {s(sT1)}, {s(sT1)}, 65536")
                a(f"s_add_u32 {s(sT4)}, {s(sT3)}, 4096")
                self.waitc(C_OL, 4, vZ, vT, slp=2)
                a.label(Lp)
                for h in range(8):
                    a(f"buffer_load_dwordx4 {v(OF+4*h,4)}, v14, {s(rWS,4)}, {s(sT3 if h<4 else sT4)} offen offset:{1024*(h&3)} sc1")
                for h in range(8):
                    a(f"s_waitcnt vmcnt({7-h})")
                    b = OF + 4 * h
                    if h == 0:
                        a(f"v_max_u32 v15, v{b}, v{b+1}")
                    else:
                        a(f"v_max3_u32 v15, v15, v{b}, v{b+1}")
                    a(f"v_max3_u32 v15, v15, v{b+2}, v{b+3}")
                a(f"""v_cmp_ne_u32 vcc, -1, v15
                s_cmp_eq_u64 vcc, exec
                s_cbranch_scc1 {Lo}
                s_sub_u32 {s(sBUD)}, {s(sBUD)}, 1
                s_cbranch_scc0 {Lp}
                s_mov_b32 {s(sBUD)}, 0""")
                a.label(Lo)
            self.stamp(9 + rnd)
            for h in range(8):
                for ct in range(2):
                    w = WOF + 8 * h + 4 * ct
                    a(f"v_mfma_f32_32x32x16_bf16 {v(AC+16*ct,16)}, {v(w,4)}, {v(OF+4*h,4)}, {'0' if h==0 else v(AC+16*ct,16)}")
            xchg_write(OX1 if rnd == 0 else OX2, AC)
            a("s_waitcnt lgkmcnt(0)")
            self.arrive(C_O1 + 4 * rnd, vZ, vONE)
            self.waitc(C_O1 + 4 * rnd, 4, vZ, vT)
            xchg_read(32)
            a("s_waitcnt lgkmcnt(4)")
            for k in range(8): a(f"v_add_f32 v{32+k}, v{32+k}, v{40+k}")
            a("s_waitcnt lgkmcnt(0)")
            for k in range(8): a(f"v_add_f32 v{48+k}, v{48+k}, v{56+k}")
            for k in range(8): a(f"v_add_f32 v{32+k}, v{32+k}, v{48+k}")
            for k in range(4): a(f"v_cvt_pk_bf16_f32 v{20+k}, v{32+2*k}, v{33+2*k}")
            a(f"buffer_store_dwordx4 v[20:23], v12, {s(rC,4)}, {s(sT1)} offen {self.opt_sc('osc', 1)}")

    def y_assemble(self):
        a = self.a
        a(f"""s_lshr_b32 {s(sT4)}, {s(sP)}, 5
        s_lshl_b32 {s(sT2)}, {s(sT4)}, 12
        s_add_u32 {s(sT2)}, {s(sT2)}, {WS_FLAG4}""")
        self.s_poll(sT2, 31)
        a(f"""s_and_b32 {s(sT0)}, {s(sP)}, 31
        s_lshl_b32 {s(sT1)}, {s(sT4)}, 18
        s_lshl_b32 {s(sT2)}, {s(sT0)}, 8
        s_add_u32 {s(sT1)}, {s(sT1)}, {s(sT2)}
        s_lshl_b32 {s(sT2)}, {s(sW4)}, 6
        s_add_u32 {s(sT1)}, {s(sT1)}, {s(sT2)}
        s_add_u32 {s(sT1)}, {s(sT1)}, {WS_YT}
        v_and_b32 v5, 7, v0
        v_lshrrev_b32 v6, 3, v0
        v_lshlrev_b32 v4, 15, v5
        v_lshl_add_u32 v4, v6, 2, v4""")
        for i in range(4):
            if i: a(f"s_add_u32 {s(sT1)}, {s(sT1)}, 8192")
            for j in range(2):
                a(f"buffer_load_dword v{32+4*j+i}, v4, {s(rWS,4)}, {s(sT1)} offen offset:{32*j} sc1")
        a(f"""s_lshl_b32 {s(sT1)}, {s(sT0)}, 17
        s_lshl_b32 {s(sT2)}, {s(sW4)}, 15
        s_add_u32 {s(sT1)}, {s(sT1)}, {s(sT2)}
        s_lshl_b32 {s(sT2)}, {s(sT4)}, 7
        s_add_u32 {s(sT1)}, {s(sT1)}, {s(sT2)}
        s_add_u32 {s(sT1)}, {s(sT1)}, 1024
        s_add_u32 {s(sT2)}, {s(sT1)}, 16384
        v_lshlrev_b32 v4, 11, v6
        v_lshl_add_u32 v4, v5, 4, v4
        s_waitcnt vmcnt(0)
        buffer_store_dwordx4 v[32:35], v4, {s(rC,4)}, {s(sT1)} offen {self.opt_sc('ysc', 1)}
        buffer_store_dwordx4 v[36:39], v4, {s(rC,4)}, {s(sT2)} offen {self.opt_sc('ysc', 1)}
        s_nop 1""")
    def opt_sc(self, k, d=0):
        return {0: "", 1: "sc1", 2: "nt", 3: "sc0 sc1"}[self.opt(k, d)]

    def finish(self):
        a = self.a
        a.label("L_end")
        if self.dbg:
            a("s_waitcnt vmcnt(0)")
            self.stamp(11)
            a(f"""s_waitcnt lgkmcnt(0)
            s_mul_i32 {s(sT0)}, {s(sWG)}, 12
            s_add_u32 {s(sT0)}, {s(sT0)}, {s(sWAVE)}
            s_lshl_b32 {s(sT0)}, {s(sT0)}, 6
            s_add_u32 {s(sT0)}, {s(sT0)}, {WS_STAMP}
            v_mov_b32 v4, 0""")
            for i in range(12): a(f"v_mov_b32 v{8+i}, {s(sSTAMP+2*i)}")
            a(f"v_mov_b32 v20, {s(sBUD)}")
            a("s_mov_b64 exec, 1")
            for i in range(3): a(f"buffer_store_dwordx4 {v(8+4*i,4)}, v4, {s(rWS,4)}, {s(sT0)} offen offset:{16*i}")
            a(f"buffer_store_dword v20, v4, {s(rWS,4)}, {s(sT0)} offen offset:48")
        a.label("L_exit")
        a("s_endpgm")

if __name__ == "__main__":
    ap = argparse.ArgumentParser()
    ap.add_argument("-o", default=f"cdna_kernels/{NAME}.s")
    ap.add_argument("--dbg", action="store_true")
    ap.add_argument("opts", nargs="*")
    args = ap.parse_args()
    opts = {}
    for kv in args.opts:
        k, _, val = kv.partition("=")
        opts[k] = int(val) if val else 1
    open(args.o, "w").write(Gen(args.dbg, opts).build())
```

```python
import sys, struct, argparse
from asmlib import Asm, v, s, hazard_pass

NAME = "concat_heads__grouped_kv_mqa__ssm_conv_s4__prompt"
def fbits(x): return "0x%08x" % struct.unpack("<I", struct.pack("<f", x))[0]
import math
LOG2E = math.log2(math.e)

R0   = 0
XE   = 32768
W    = 65536
GEN  = 131072
QB   = 147456
KVR  = 155648
CNT  = 159744
LDS_BYTES = 160000
KCOPY = 6912; KCH = 2 * KCOPY
UCOPY = 4416; UCH = 4 * UCOPY
YX   = W + 36864
OX1  = W
OX2  = YX
PSLOT = 2304
C_KV, C_WQA, C_WQB, C_XL, C_QE, C_QL, C_FL, C_KT0, C_KT1, C_KU, C_Y, C_PE, C_PED, C_PL, C_O1, C_O2, C_OE, C_OL, C_UT, C_YT = [4 * i for i in range(20)]

WS_FLAG = 4096
WS_FLAG2 = 4096 + 32768
WS_FLAG3 = 4096 + 2 * 32768
WS_FLAG4 = 4096 + 3 * 32768
WS_KV   = 147456
KVT     = 2304
WS_O    = 1 << 19
WS_UT = 6 << 20
WS_YT = 8 << 20
WS_STAMP = 4 << 20
WS_DBG  = 5 << 20
WS_SIZE = 16 << 20

sWG, sWAVE, sG, sR, sP, sW4 = 2, 3, 4, 5, 6, 7
sT0, sT1, sT2, sT3, sT4, sT5 = 8, 9, 10, 11, 12, 13
sCLS = 14; sROT = 15
pX, pWQ, pWK, pWV, pWO, pU, pARE, pAIM, pBRE, pBIM, pCRE, pCIM, pLDT, pDSK, pOUT, pDBG, pWS = [16 + 2 * i for i in range(17)]
sNONCE, sBUD = 50, 51
rA, rB, rC, rWS = 52, 56, 60, 64
sLOOP = 68; sSOF = 69
sSTAMP = 70
OOB = 0x7ff00000

class Gen:
    def __init__(self, dbg=False, opts=None):
        self.a = Asm(); self.dbg = dbg; self.o = opts or {}
    def opt(self, k, d=None): return self.o.get(k, d)

    def srd(self, r, p, nbytes):
        a = self.a
        a(f"s_mov_b32 {s(r)}, {s(p)}\ns_mov_b32 {s(r+1)}, {s(p+1)}\ns_mov_b32 {s(r+2)}, {nbytes}\ns_mov_b32 {s(r+3)}, 0x20000")
    def stamp(self, i):
        if self.dbg: self.a(f"{'s_memtime' if self.opt('cyc') else 's_memrealtime'} {s(sSTAMP+2*i,2)}")
    def arrive(self, c, vz, vone):
        self.a(f"s_mov_b64 exec, 1\nds_add_u32 {v(vz)}, {v(vone)} offset:{c}\ns_mov_b64 exec, -1")
    def waitc(self, c, n, vz, vt, slp=1):
        a = self.a; L = a.newlabel("Lw"); D = a.newlabel("Ld")
        a.label(L)
        a(f"""ds_read_b32 {v(vt)}, {v(vz)} offset:{c}
        s_waitcnt lgkmcnt(0)
        v_readfirstlane_b32 {s(sT0)}, {v(vt)}
        s_cmp_ge_u32 {s(sT0)}, {n}
        s_cbranch_scc1 {D}
        s_sleep {slp} ; nocount
        s_sub_u32 {s(sBUD)}, {s(sBUD)}, 1 ; nocount
        s_cbranch_scc0 {L} ; nocount
        s_mov_b32 {s(sBUD)}, 0 ; nocount""")
        a.label(D)
    def s_publish(self, cnt, base):
        a = self.a; L = a.newlabel("Lpub")
        a("s_waitcnt vmcnt(0)")
        self.arrive(cnt, self.vZ, self.vONE)
        a(f"s_cmp_eq_u32 {s(sW4)}, 0\ns_cbranch_scc0 {L}")
        self.waitc(cnt, 4, self.vZ, self.vT)
        a(f"""s_lshl_b32 {s(sT2)}, {s(sP)}, 7
        s_add_u32 {s(sT2)}, {s(sT2)}, {base}
        v_mov_b32 v18, 0
        s_mov_b64 exec, 1
        buffer_store_dword v167, v18, {s(rWS,4)}, {s(sT2)} offen sc1
        s_mov_b64 exec, -1""")
        a.label(L)
    def s_poll(self, sbase, mask, slp=4):
        a = self.a; Lp = a.newlabel("Lpoll"); Lo = a.newlabel("Lok")
        a(f"v_and_b32 v18, {mask}, v0\nv_lshlrev_b32 v18, 7, v18")
        a.label(Lp)
        a(f"""buffer_load_dword v19, v18, {s(rWS,4)}, {s(sbase)} offen sc1
        s_waitcnt vmcnt(0)
        v_cmp_eq_u32 vcc, v167, v19
        s_cmp_eq_u64 vcc, exec
        s_cbranch_scc1 {Lo}
        s_sleep {slp} ; nocount
        s_sub_u32 {s(sBUD)}, {s(sBUD)}, 1 ; nocount
        s_cbranch_scc0 {Lp} ; nocount
        s_mov_b32 {s(sBUD)}, 0 ; nocount""")
        a.label(Lo)
    def cmul(self, d, x, m, t):
        self.a(f"v_pk_mul_f32 {v(t,2)}, {v(x,2)}, {v(m,2)} op_sel_hi:[1,0]")
        self.a(f"v_pk_fma_f32 {v(d,2)}, {v(x,2)}, {v(m,2)}, {v(t,2)} op_sel:[1,1,0] op_sel_hi:[0,1,1] neg_lo:[0,1,0]")

    def build(self):
        a = self.a
        self.entry()
        self.role_late_start()
        self.role_early_start()
        self.qproj_and_attention()
        self.role_s()
        self.finish()
        lines, n = hazard_pass(a.lines, verbose=self.opt("vhz"))
        body = "\n".join(l if l.endswith(":") or l.startswith(".") else "    " + l for l in lines)
        head = f"""; fused MQA attention + S4 long convolution, one persistent launch (generated by gen/gen.py)
; @launch grid=(256,1,1) block=(768,1,1) lds={LDS_BYTES}
.amdgcn_target "amdgcn-amd-amdhsa--gfx950"
.text
.globl {NAME}_kernel
.p2align 8
.type {NAME}_kernel,@function
{NAME}_kernel:
"""
        tail = f"""
.section .rodata,"a"
.p2align 6
.amdhsa_kernel {NAME}_kernel
  .amdhsa_next_free_vgpr 168
  .amdhsa_next_free_sgpr 96
  .amdhsa_accum_offset 168
  .amdhsa_group_segment_fixed_size 0
  .amdhsa_kernarg_size 136
  .amdhsa_user_sgpr_count 2
  .amdhsa_user_sgpr_kernarg_segment_ptr 1
  .amdhsa_system_sgpr_workgroup_id_x 1
  .amdhsa_float_denorm_mode_32 3
.end_amdhsa_kernel
"""
        return head + body + tail

    vL, vZ, vONE, vT = 0, 1, 2, 3

    def entry(self):
        a = self.a
        if self.dbg:
            for i in range(12): a(f"s_mov_b64 {s(sSTAMP+2*i,2)}, 0")
        self.stamp(0)
        a(f"""s_cmp_ge_u32 s2, 256
        s_cbranch_scc1 L_exit
        s_load_dwordx16 s[16:31], s[0:1], 0
        s_load_dwordx16 s[32:47], s[0:1], 64
        s_load_dwordx2 s[48:49], s[0:1], 128
        v_lshrrev_b32 v3, 6, v0
        v_and_b32 v0, 63, v0
        v_readfirstlane_b32 {s(sWAVE)}, v3
        v_mov_b32 v1, {CNT}
        v_mov_b32 v2, 1
        s_and_b32 {s(sT0)}, s2, 7
        s_lshr_b32 {s(sT1)}, s2, 3
        s_lshl_b32 {s(sG)}, {s(sT0)}, 2
        s_lshr_b32 {s(sT2)}, {s(sT1)}, 3
        s_add_u32 {s(sG)}, {s(sG)}, {s(sT2)}
        s_and_b32 {s(sR)}, {s(sT1)}, 7
        s_lshl_b32 {s(sP)}, {s(sT0)}, 5
        s_add_u32 {s(sP)}, {s(sP)}, {s(sT1)}
        s_and_b32 {s(sROT)}, {s(sT1)}, 15
        s_mov_b32 {s(sBUD)}, 200000
        s_and_b32 {s(sW4)}, {s(sWAVE)}, 3
        s_lshr_b32 {s(sCLS)}, {s(sWAVE)}, 2
        v_lshl_add_u32 v4, v0, 2, v1
        v_mov_b32 v5, 0
        s_cmp_eq_u32 {s(sWAVE)}, 11
        s_cbranch_scc0 L_nozero
        ds_write_b32 v4, v5""")
        a.label("L_nozero")
        a(f"""s_waitcnt lgkmcnt(0)
        s_barrier""")
        self.srd(rWS, pWS, WS_SIZE)
        a(f"""s_cmp_eq_u32 {s(sCLS)}, 2
        s_cbranch_scc1 L_role_s""")
        self.srd(rA, pX, 2097152)
        a(f"""s_load_dword {s(sNONCE)}, {s(pWS,2)}, 0
        s_cmp_eq_u32 {s(sCLS)}, 0
        s_cbranch_scc1 L_role_early""")

    def role_late_start(self):
        a = self.a; vL, vZ, vONE, vT = self.vL, self.vZ, self.vONE, self.vT
        a("s_setprio 3")
        a(f"""s_and_b32 {s(sT0)}, {s(sR)}, 3
        s_lshl_b32 {s(sT1)}, {s(sG)}, 2
        s_add_u32 {s(sT1)}, {s(sT1)}, {s(sT0)}
        s_lshl_b32 {s(sT1)}, {s(sT1)}, 14
        s_lshl_b32 {s(sT2)}, {s(sW4)}, 8
        s_add_u32 {s(sT1)}, {s(sT1)}, {s(sT2)}
        v_and_b32 v4, 15, v0
        v_lshrrev_b32 v5, 4, v0
        v_lshlrev_b32 v6, 10, v4
        v_lshl_add_u32 v6, v5, 4, v6""")
        for k in range(4):
            a(f"buffer_load_dwordx4 {v(8+4*k,4)}, v6, {s(rA,4)}, {s(sT1)} offen offset:{64*k}")
        a(f"""s_cmp_ge_u32 {s(sR)}, 4
        s_cselect_b32 {s(rB)}, {s(pWV)}, {s(pWK)}
        s_cselect_b32 {s(rB+1)}, {s(pWV+1)}, {s(pWK+1)}
        s_mov_b32 {s(rB+2)}, 16384
        s_mov_b32 {s(rB+3)}, 0x20000
        s_lshl_b32 {s(sT2)}, {s(sW4)}, 12
        v_lshrrev_b32 v7, 4, v0
        v_and_b32 v7, 1, v7
        v_lshlrev_b32 v7, 7, v7
        v_lshlrev_b32 v24, 4, v0
        v_xor_b32 v7, v7, v24
        s_add_u32 m0, {s(sT2)}, {R0}""")
        for k in range(4):
            a(f"buffer_load_dwordx4 v7, {s(rB,4)}, {s(sT2)} offen offset:{1024*k} lds")
        a(f"""v_bfe_u32 v25, v0, 2, 2
        v_lshl_add_u32 v25, v5, 3, v25
        v_and_b32 v26, 1, v5
        v_lshl_add_u32 v25, v26, 2, v25
        v_lshlrev_b32 v25, 5, v25
        v_and_b32 v26, 3, v0
        v_lshl_add_u32 v25, v26, 3, v25
        v_add_u32 v25, {s(sT2)}, v25
        v_xor_b32 v26, 0x80, v25
        s_waitcnt vmcnt(0) lgkmcnt(0)""")
        self.stamp(1)
        for k in range(4):
            a(f"ds_read_b64_tr_b16 {v(32+4*k,2)}, v25 offset:{R0+1024*k}")
            a(f"ds_read_b64_tr_b16 {v(34+4*k,2)}, v26 offset:{R0+1024*k}")
        a(f"""s_cmp_ge_u32 {s(sR)}, 4
        s_cbranch_scc1 L_kv_v""")
        for k in range(4):
            a(f"s_waitcnt lgkmcnt({6-2*k})")
            a(f"v_mfma_f32_16x16x32_bf16 v[48:51], {v(32+4*k,4)}, {v(8+4*k,4)}, {'0' if k==0 else 'v[48:51]'}")
        a("s_branch L_kv_j")
        a.label("L_kv_v")
        for k in range(4):
            a(f"s_waitcnt lgkmcnt({6-2*k})")
            a(f"v_mfma_f32_16x16x32_bf16 v[48:51], {v(8+4*k,4)}, {v(32+4*k,4)}, {'0' if k==0 else 'v[48:51]'}")
        a.label("L_kv_j")
        a(f"""s_lshl_b32 {s(sT2)}, {s(sW4)}, 10
        s_add_u32 {s(sT2)}, {s(sT2)}, {KVR}
        v_add_u32 v27, {s(sT2)}, v24
        s_add_u32 {s(sT3)}, {s(sNONCE)}, 0x9e3779b9
        v_mov_b32 v28, {s(sT3)}
        ds_write_b32 v1, v28 offset:128
        s_nop 3
        ds_write_b128 v27, v[48:51]
        s_waitcnt lgkmcnt(0)""")
        self.arrive(C_KV, vZ, vONE)
        self.waitc(C_KV, 4, vZ, vT)
        a(f"""s_cmp_eq_u32 {s(sW4)}, 0
        s_cbranch_scc0 L_kv_done""")
        a(f"""ds_read_b128 v[52:55], v27 offset:1024
        ds_read_b128 v[56:59], v27 offset:2048
        ds_read_b128 v[60:63], v27 offset:3072
        s_cmp_ge_u32 {s(sR)}, 4
        s_cselect_b32 {s(sT2)}, 1.0, {fbits(0.25*LOG2E)}
        s_cselect_b32 {s(sT3)}, 1024, 0
        s_cselect_b32 {s(sT4)}, 5, 4
        s_lshl_b32 {s(sT4)}, {s(sT4)}, 7
        s_bitcmp1_b32 {s(sR)}, 0
        s_cselect_b32 {s(sT4)}, {s(sT4)}, 0
        s_add_u32 {s(sT3)}, {s(sT3)}, {s(sT4)}
        s_bfe_u32 {s(sT4)}, {s(sR)}, 0x10001
        s_lshl_b32 {s(sT5)}, {s(sG)}, 1
        s_add_u32 {s(sT4)}, {s(sT4)}, {s(sT5)}
        s_mul_i32 {s(sT4)}, {s(sT4)}, {KVT}
        s_add_u32 {s(sT3)}, {s(sT3)}, {s(sT4)}
        s_add_u32 {s(sT3)}, {s(sT3)}, {WS_KV}
        v_lshlrev_b32 v6, 5, v4
        v_lshl_add_u32 v6, v5, 3, v6
        s_waitcnt lgkmcnt(0)""")
        for i in range(4): a(f"v_add_f32 v{48+i}, v{48+i}, v{52+i}")
        for i in range(4): a(f"v_add_f32 v{56+i}, v{56+i}, v{60+i}")
        for i in range(4): a(f"v_add_f32 v{48+i}, v{48+i}, v{56+i}")
        for i in range(4): a(f"v_mul_f32 v{48+i}, {s(sT2)}, v{48+i}")
        a(f"""v_cvt_pk_bf16_f32 v52, v48, v49
        v_cvt_pk_bf16_f32 v53, v50, v51
        buffer_store_dwordx2 v[52:53], v6, {s(rWS,4)}, {s(sT3)} offen sc1
        s_cmp_ge_u32 {s(sR)}, 4
        s_cbranch_scc0 L_kv_noones
        v_mov_b32 v54, 0x3f803f80
        v_mov_b32 v55, 0x3f803f80
        v_lshlrev_b32 v7, 3, v0
        s_mov_b64 exec, 0xffff
        buffer_store_dwordx2 v[54:55], v7, {s(rWS,4)}, {s(sT3)} offen offset:512 sc1
        s_mov_b64 exec, -1""")
        a.label("L_kv_noones")
        a(f"""s_lshl_b32 {s(sT2)}, {s(sG)}, 3
        s_add_u32 {s(sT2)}, {s(sT2)}, {s(sR)}
        s_lshl_b32 {s(sT2)}, {s(sT2)}, 7
        s_add_u32 {s(sT2)}, {s(sT2)}, {WS_FLAG}
        s_add_u32 {s(sT3)}, {s(sNONCE)}, 0x9e3779b9
        v_mov_b32 v54, {s(sT3)}
        v_mov_b32 v7, 0
        s_waitcnt vmcnt(0)
        s_mov_b64 exec, 1
        buffer_store_dword v54, v7, {s(rWS,4)}, {s(sT2)} offen sc1
        s_mov_b64 exec, -1""")
        a.label("L_kv_done")
        self.stamp(2)
        self.x_dma(R0, 32)
        a("s_waitcnt vmcnt(0)")
        self.arrive(C_XL, vZ, vONE)
        self.waitc(C_XL, 4, vZ, vT)
        if self.opt("qlwait", 1): self.waitc(C_QE, 4, vZ, vT, slp=2)
        a(f"""s_mov_b32 {s(sT5)}, {R0}
        s_branch L_qproj""")

    def x_dma(self, lds, row0):
        a = self.a
        a(f"""s_lshl_b32 {s(sT1)}, {s(sG)}, 16
        s_lshl_b32 {s(sT2)}, {s(sW4)}, 13
        s_add_u32 {s(sT1)}, {s(sT1)}, {s(sT2)}
        s_add_u32 {s(sT1)}, {s(sT1)}, {row0*1024}
        s_add_u32 m0, {s(sT2)}, {lds}
        s_and_b32 {s(sT3)}, {s(sW4)}, 1
        s_lshl_b32 {s(sT3)}, {s(sT3)}, 7
        v_lshlrev_b32 v4, 4, v0
        v_xor_b32 v4, {s(sT3)}, v4""")
        for i in range(8):
            if i == 4:
                a(f"s_add_u32 {s(sT1)}, {s(sT1)}, 4096\ns_add_u32 m0, m0, 4096")
            if i == 0:
                a(f"buffer_load_dwordx4 v4, {s(rA,4)}, {s(sT1)} offen lds")
            else:
                a(f"v_xor_b32 v{5+(i&1)}, {16*i}, v4")
                a(f"buffer_load_dwordx4 v{5+(i&1)}, {s(rA,4)}, {s(sT1)} offen offset:{1024*(i&3)} lds")

    def role_early_start(self):
        a = self.a; vL, vZ, vONE, vT = self.vL, self.vZ, self.vONE, self.vT
        a.label("L_role_early")
        a("s_setprio 3")
        self.srd(rB, pWQ, 524288)
        self.x_dma(XE, 0)
        a(f"""v_lshrrev_b32 v7, 3, v0
        v_and_b32 v8, 7, v0
        v_and_b32 v9, 2, v7
        v_xor_b32 v8, v8, v9
        s_and_b32 {s(sT3)}, {s(sW4)}, 1
        s_lshl_b32 {s(sT3)}, {s(sT3)}, 2
        v_xor_b32 v8, {s(sT3)}, v8
        v_lshlrev_b32 v7, 10, v7
        v_lshl_add_u32 v7, v8, 4, v7
        s_lshl_b32 {s(sT1)}, {s(sW4)}, 13
        s_lshl_b32 {s(sT2)}, {s(sR)}, 7
        s_add_u32 {s(sT1)}, {s(sT1)}, {s(sT2)}
        s_lshl_b32 {s(sT2)}, {s(sW4)}, 10
        s_add_u32 m0, {s(sT2)}, {W}""")
        if self.opt("xwait", 1): a("s_waitcnt vmcnt(0)")
        for i in range(16):
            a(f"buffer_load_dwordx4 v7, {s(rB,4)}, {s(sT1)} offen lds")
            if i < 15: a(f"s_add_u32 m0, m0, 4096\ns_add_u32 {s(sT1)}, {s(sT1)}, 32768")
        a("s_waitcnt vmcnt(8)")
        self.stamp(1)
        self.arrive(C_WQA, vZ, vONE)
        a(f"s_mov_b32 {s(sT5)}, {XE}")

    Q0, O0, S0, KA = 8, 24, 88, 120
    vKO, vVO, vIDX = 4, 5, 6
    def qproj_and_attention(self):
        a = self.a; vL, vZ, vONE, vT = self.vL, self.vZ, self.vONE, self.vT
        a.label("L_qproj")
        a(f"""v_and_b32 v4, 15, v0
        v_lshrrev_b32 v5, 4, v0
        v_xor_b32 v6, v4, v5
        v_lshlrev_b32 v6, 4, v6
        v_lshl_add_u32 v6, v4, 10, v6
        v_add_u32 v144, {s(sT5)}, v6
        v_xor_b32 v145, 64, v144
        v_xor_b32 v146, 0x80, v144
        v_xor_b32 v147, 0xc0, v144
        v_bfe_u32 v6, v0, 2, 2
        v_lshl_add_u32 v7, v5, 3, v6
        v_lshlrev_b32 v7, 7, v7
        v_and_b32 v6, 2, v6
        v_and_b32 v8, 1, v5
        v_lshl_add_u32 v6, v8, 2, v6
        s_lshl_b32 {s(sT1)}, {s(sW4)}, 1
        v_xor_b32 v6, {s(sT1)}, v6
        v_lshl_add_u32 v7, v6, 4, v7
        v_and_b32 v6, 3, v0
        v_lshl_add_u32 v7, v6, 3, v7
        v_add_u32 v148, {W}, v7""")
        self.waitc(C_WQA, 4, vZ, vT)
        def rd(sx):
            b = 24 + 12 * (sx % 3)
            a(f"ds_read_b64_tr_b16 {v(b+8,2)}, v148 offset:{4096*sx}")
            a(f"ds_read_b64_tr_b16 {v(b+10,2)}, v148 offset:{4096*sx+512}")
            a(f"ds_read_b128 {v(b,4)}, v{144+(sx&3)} offset:{256*(sx>>2)}")
            a(f"ds_read_b128 {v(b+4,4)}, v{144+(sx&3)} offset:{256*(sx>>2)+16384}")
        def mm(sx):
            b = 24 + 12 * (sx % 3)
            a(f"v_mfma_f32_16x16x32_bf16 v[64:67], {v(b+8,4)}, {v(b,4)}, {'0' if sx==0 else 'v[64:67]'}")
            a(f"v_mfma_f32_16x16x32_bf16 v[68:71], {v(b+8,4)}, {v(b+4,4)}, {'0' if sx==0 else 'v[68:71]'}")
        for half in range(2):
            s0 = 8 * half
            if half == 1:
                a(f"""s_cmp_eq_u32 {s(sCLS)}, 0
                s_cbranch_scc0 L_q_nob
                s_waitcnt vmcnt(0)""")
                self.arrive(C_WQB, vZ, vONE)
                a.label("L_q_nob")
                self.waitc(C_WQB, 4, vZ, vT)
            rd(s0); rd(s0 + 1)
            for sx in range(s0, s0 + 8):
                if sx + 2 < s0 + 8:
                    rd(sx + 2); a("s_waitcnt lgkmcnt(8)")
                else:
                    a(f"s_waitcnt lgkmcnt({4*(s0+7-sx)})")
                mm(sx)
        self.stamp(3)
        a(f"""s_lshl_b32 {s(sT1)}, {s(sW4)}, 13
        s_add_u32 {s(sT1)}, {s(sT1)}, {WS_FLAG}
        v_lshlrev_b32 v93, 7, v0
        s_cmp_eq_u32 {s(sCLS)}, 0
        s_cbranch_scc0 L_q_nopoll0
        buffer_load_dword v94, v93, {s(rWS,4)}, {s(sT1)} offen sc1""")
        a.label("L_q_nopoll0")
        a(f"""v_lshrrev_b32 v6, 1, v5
        v_lshlrev_b32 v6, 9, v6
        v_lshl_add_u32 v6, v4, 4, v6
        v_and_b32 v7, 1, v5
        v_lshl_add_u32 v6, v7, 3, v6
        s_lshl_b32 {s(sT2)}, {s(sWAVE)}, 10
        s_add_u32 {s(sT2)}, {s(sT2)}, {QB}
        v_add_u32 v6, {s(sT2)}, v6
        v_cvt_pk_bf16_f32 v72, v64, v65
        v_cvt_pk_bf16_f32 v73, v66, v67
        v_cvt_pk_bf16_f32 v74, v68, v69
        v_cvt_pk_bf16_f32 v75, v70, v71
        ds_write_b64 v6, v[72:73]
        ds_write_b64 v6, v[74:75] offset:256
        s_lshl_b32 {s(sT2)}, {s(sCLS)}, 2
        v_add_u32 v92, {s(sT2)}, v1
        s_waitcnt lgkmcnt(0)""")
        self.arrive(C_QE, 92, vONE)
        Q0, O0, S0, KA = self.Q0, self.O0, self.S0, self.KA
        vKO, vVO, vIDX = self.vKO, self.vVO, self.vIDX
        a(f"""s_mul_i32 {s(sT2)}, {s(sW4)}, {16*KVT}
        s_add_u32 {s(sT2)}, {s(sT2)}, {WS_KV}
        v_and_b32 v7, 31, v0
        v_lshrrev_b32 v8, 5, v0
        v_lshlrev_b32 v4, 5, v7
        v_lshl_add_u32 v4, v8, 4, v4
        v_add_u32 v4, {s(sT2)}, v4
        v_and_b32 v9, 3, v7
        v_bfe_u32 v10, v7, 2, 1
        v_lshl_add_u32 v9, v10, 3, v9
        v_bfe_u32 v10, v7, 3, 1
        v_lshl_add_u32 v9, v10, 2, v9
        v_lshlrev_b32 v9, 5, v9
        v_cmp_gt_u32 vcc, 16, v7
        v_mov_b32 v10, {OOB}
        v_cndmask_b32 v9, v10, v9, vcc
        v_and_b32 v10, 27, v7
        v_cmp_eq_u32 vcc, 16, v10
        v_mov_b32 v10, 512
        v_cndmask_b32 v9, v9, v10, vcc
        v_lshl_add_u32 v9, v8, 4, v9
        v_add_u32 v5, {s(sT2)}, v9
        v_mov_b32 v6, 0xdddddddd""")
        for i in range(64): a(f"v_mov_b32 v{O0+i}, 0")
        for i in range(8): a(f"v_mov_b32 v{S0+24+i}, 0")
        for i in range(4): a(f"v_mov_b32 v{KA+12*self.opt('nbuf',4)-4+i}, 0")
        a(f"""s_cmp_eq_u32 {s(sCLS)}, 0
        s_cbranch_scc0 L_late_flags
        s_add_u32 {s(sT3)}, {s(sNONCE)}, 0x9e3779b9""")
        a.label("L_poll")
        a(f"""s_waitcnt vmcnt(0)
        v_cmp_eq_u32 vcc, {s(sT3)}, v94
        s_cmp_eq_u64 vcc, exec
        s_cbranch_scc1 L_poll_ok
        buffer_load_dword v94, v93, {s(rWS,4)}, {s(sT1)} offen sc1
        s_sub_u32 {s(sBUD)}, {s(sBUD)}, 1
        s_cbranch_scc0 L_poll
        s_mov_b32 {s(sBUD)}, 0
        s_waitcnt vmcnt(0)""")
        a.label("L_poll_ok")
        self.arrive(C_FL, vZ, vONE)
        a("s_branch L_flags_done")
        a.label("L_late_flags")
        self.waitc(C_FL, 4, vZ, vT)
        a.label("L_flags_done")
        self.stamp(4)
        NB = self.opt("nbuf", 4)
        BUF = [KA + 12 * i for i in range(NB)]
        sN = sT4
        def sof_next():
            a(f"""s_add_u32 {s(sROT)}, {s(sROT)}, 1
            s_and_b32 {s(sROT)}, {s(sROT)}, 15
            s_mul_i32 {s(sSOF)}, {s(sROT)}, {KVT}""")
            if self.inloop:
                a(f"""s_cmp_eq_u32 {s(sLOOP)}, 1
                s_cselect_b32 {s(sSOF)}, {OOB}, {s(sSOF)}""")
        SC = {0: "sc1", 1: "", 2: "sc0", 3: "nt", 4: "sc0 sc1"}[self.opt("kvsc", 0)]
        self.inloop = False
        def ldK(b):
            if not (self.inloop and self.opt("nold")): a(f"buffer_load_dwordx4 {v(b,4)}, v{vKO}, {s(rWS,4)}, {s(sSOF)} offen {SC}")
        def ldV0(b):
            if not (self.inloop and self.opt("nold")): a(f"buffer_load_dwordx4 {v(b+4,4)}, v{vVO}, {s(rWS,4)}, {s(sSOF)} offen offset:1024 {SC}")
        def ldV1(b):
            if not (self.inloop and self.opt("nold")): a(f"buffer_load_dwordx4 {v(b+8,4)}, v{vVO}, {s(rWS,4)}, {s(sSOF)} offen offset:1664 {SC}")
        a(f"s_mul_i32 {s(sSOF)}, {s(sROT)}, {KVT}")
        for b in range(NB):
            if b: sof_next()
            ldK(BUF[b]); ldV0(BUF[b])
            if b < NB - 1: ldV1(BUF[b])
        self.waitc(C_QE, 4, 92, vT)
        a(f"""s_lshl_b32 {s(sT2)}, {s(sCLS)}, 12
        s_add_u32 {s(sT2)}, {s(sT2)}, {QB}
        v_lshl_add_u32 v7, v0, 4, {s(sT2)}""")
        for i in range(4):
            a(f"""s_add_u32 {s(sT3)}, {s(sW4)}, {i}
            s_and_b32 {s(sT3)}, {s(sT3)}, 3
            s_lshl_b32 {s(sT3)}, {s(sT3)}, 10
            v_add_u32 v{S0+i}, {s(sT3)}, v7
            ds_read_b128 {v(Q0+4*i,4)}, v{S0+i}""")
        a(f"""s_mov_b32 {s(sLOOP)}, {16//NB}
        s_waitcnt vmcnt({3*NB-4}) lgkmcnt(0)
        v_mfma_f32_32x32x16_bf16 {v(S0,16)}, {v(KA,4)}, {v(Q0,4)}, 0
        s_nop 11""")
        self.stamp(5)
        a(f"""s_setprio {self.opt('eprio', 1)}
        s_cmp_eq_u32 {s(sCLS)}, 0
        s_cbranch_scc1 L_att0
        s_setprio {self.opt('lprio', 0)}""")
        a.label("L_att0")
        a(".p2align 6")
        a.label("L_att")
        self.inloop = True
        for t in range(NB):
            cur = BUF[t]; prv = BUF[(t - 1) % NB]; nxt = BUF[(t + 1) % NB]
            for i in range(4):
                S = S0 + 16 * (i & 1); Sn = S0 + 16 * ((i + 1) & 1)
                def ex(a0, a1):
                    for k in range(a0, a1): a(f"v_exp_f32 v{S+k}, v{S+k}")
                ex(0, 2)
                if i == 1 and NB == 2 and not self.opt("nowait"): a("s_waitcnt vmcnt(3)")
                pv = prv if i == 0 else cur
                a(f"v_smfmac_f32_32x32x32_bf16 {v(O0+16*((i-1)&3),16)}, {v(pv+8,4)}, {v(Sn+8,8)}, v{vIDX}")
                if i == 0: ldV1(prv)
                if i == 1 and not self.opt("nosof"): sof_next()
                ex(2, 5)
                if i == 3 and not self.opt("nowait"): a(f"s_waitcnt vmcnt({2 if NB == 2 else 3*NB-5})")
                kk = nxt if i == 3 else cur
                a(f"v_mfma_f32_32x32x16_bf16 {v(Sn,16)}, {v(kk,4)}, {v(Q0+4*((i+1)&3),4)}, 0")
                if i == 2: ldK(cur)
                ex(5, 10)
                a(f"v_smfmac_f32_32x32x32_bf16 {v(O0+16*i,16)}, {v(cur+4,4)}, {v(S,8)}, v{vIDX}")
                if i == 3: ldV0(cur)
                if t == NB - 1 and i == 3:
                    ex(10, 13)
                    a(f"s_sub_u32 {s(sLOOP)}, {s(sLOOP)}, 1\ns_cmp_lg_u32 {s(sLOOP)}, 0")
                    ex(13, 16)
                else:
                    ex(10, 16)
        a("s_cbranch_scc1 L_att")
        a(f"s_nop 1")
        a(f"v_smfmac_f32_32x32x32_bf16 {v(O0+48,16)}, {v(BUF[-1]+8,4)}, {v(S0+24,8)}, v{vIDX}")
        self.stamp(6)
        self.att_tail()

    def att_tail(self):
        a = self.a; vL, vZ, vONE, vT = self.vL, self.vZ, self.vONE, self.vT
        Q0, O0, S0, KA = self.Q0, self.O0, self.S0, self.KA
        a("s_waitcnt vmcnt(0)")
        a(f"""s_cmp_eq_u32 {s(sCLS)}, 0
        s_cselect_b32 {s(sT2)}, {C_QL}, {C_PED}
        s_cselect_b32 {s(sT3)}, {C_PE}, {C_PL}
        v_add_u32 v144, {s(sT2)}, v1
        v_add_u32 v145, {s(sT3)}, v1""")
        self.waitc(0, 4, 144, vT)
        a("v_lshlrev_b32 v146, 4, v0\nv_lshlrev_b32 v147, 2, v0")
        for i in range(1, 4):
            a(f"""s_add_u32 {s(sT2)}, {s(sW4)}, {i}
            s_and_b32 {s(sT2)}, {s(sT2)}, 3
            s_mul_i32 {s(sT2)}, {s(sT2)}, {3*PSLOT}
            v_add_u32 v148, {s(sT2)}, v146
            v_add_u32 v149, {s(sT2)}, v147
            ds_write_b128 v148, {v(O0+16*i,4)} offset:{R0+(i-1)*PSLOT}
            ds_write_b128 v148, {v(O0+16*i+4,4)} offset:{R0+(i-1)*PSLOT+1024}
            ds_write_b32 v149, v{O0+16*i+8} offset:{R0+(i-1)*PSLOT+2048}""")
        a(f"""s_mul_i32 {s(sT2)}, {s(sW4)}, {3*PSLOT}
        v_add_u32 v148, {s(sT2)}, v146
        v_add_u32 v149, {s(sT2)}, v147
        s_waitcnt vmcnt(0) lgkmcnt(0)""")
        self.arrive(0, 145, vONE)
        self.waitc(0, 4, 145, vT)
        for i in range(1, 4):
            a(f"""ds_read_b128 {v(O0+16*i,4)}, v148 offset:{R0+(i-1)*PSLOT}
            ds_read_b128 {v(O0+16*i+4,4)}, v148 offset:{R0+(i-1)*PSLOT+1024}
            ds_read_b32 v{O0+16*i+8}, v149 offset:{R0+(i-1)*PSLOT+2048}""")
        a(f"""s_lshl_b32 {s(sT3)}, {s(sG)}, 1
        s_add_u32 {s(sT3)}, {s(sT3)}, {s(sCLS)}
        s_lshl_b32 {s(sT3)}, {s(sT3)}, 5
        s_lshl_b32 {s(sT4)}, {s(sR)}, 2
        s_add_u32 {s(sT3)}, {s(sT3)}, {s(sT4)}
        s_add_u32 {s(sT3)}, {s(sT3)}, {s(sW4)}
        s_lshl_b32 {s(sT3)}, {s(sT3)}, 10
        s_add_u32 {s(sT5)}, {s(sT3)}, {WS_O}
        s_waitcnt lgkmcnt(3)""")
        for k in range(9): a(f"v_add_f32 v{O0+16+k}, v{O0+16+k}, v{O0+32+k}")
        a("s_waitcnt lgkmcnt(0)")
        for k in range(9): a(f"v_add_f32 v{O0+k}, v{O0+k}, v{O0+48+k}")
        a(f"s_cmp_eq_u32 {s(sCLS)}, 0\ns_cbranch_scc0 L_no_ped")
        self.arrive(C_PED, vZ, vONE)
        a.label("L_no_ped")
        for k in range(9): a(f"v_add_f32 v{O0+k}, v{O0+k}, v{O0+16+k}")
        a(f"""v_add_f32 v150, v{O0}, v{O0+1}
        v_add_f32 v151, v{O0+2}, v{O0+3}
        v_add_f32 v152, v{O0+4}, v{O0+5}
        v_add_f32 v153, v{O0+6}, v{O0+7}
        v_add_f32 v150, v150, v151
        v_add_f32 v152, v152, v153
        v_add_f32 v150, v150, v152
        v_mov_b32 v151, 0x7f800000
        v_cmp_lt_f32 {s(sT2,2)}, |v150|, v151
        v_cmp_le_f32 vcc, {fbits(2.0**-60)}, v{O0+8}
        s_and_b64 {s(sT2,2)}, {s(sT2,2)}, vcc
        v_cmp_ge_f32 vcc, {fbits(2.0**60)}, v{O0+8}
        s_and_b64 vcc, {s(sT2,2)}, vcc""")
        if self.opt("force_fallback"): a("s_mov_b64 vcc, 0")
        a(f"""s_cmp_eq_u64 vcc, exec
        s_cbranch_scc0 L_fallback""")
        a.label("L_att_fin")
        a(f"v_rcp_f32 v150, v{O0+8}")
        for k in range(8): a(f"v_mul_f32 v{O0+k}, v150, v{O0+k}")
        for k in range(4): a(f"v_cvt_pk_bf16_f32 v{152+k}, v{O0+2*k}, v{O0+2*k+1}")
        for k in range(4): a(f"v_min_u32 v{152+k}, -2, v{152+k}")
        a(f"""s_cmp_eq_u32 {s(sCLS)}, 0
        s_cbranch_scc1 L_pub_early""")
        self.waitc(C_OE, 4, vZ, vT)
        a(f"buffer_store_dwordx4 v[152:155], v146, {s(rWS,4)}, {s(sT5)} offen sc1")
        self.arrive(C_OL, vZ, vONE)
        a("s_branch L_end")
        a.label("L_pub_early")
        a(f"""buffer_store_dwordx4 v[152:155], v146, {s(rWS,4)}, {s(sT5)} offen sc1
        v_mov_b32 v156, -1
        v_mov_b32 v157, -1
        v_mov_b32 v158, -1
        v_mov_b32 v159, -1
        s_add_u32 {s(sT5)}, {s(sT5)}, 32768
        buffer_store_dwordx4 v[156:159], v146, {s(rWS,4)}, {s(sT5)} offen sc1
        s_waitcnt vmcnt(0)""")
        self.arrive(C_OE, vZ, vONE)
        a(f"""s_cmp_eq_u32 {s(sWAVE)}, 0
        s_cbranch_scc0 L_end""")
        self.waitc(C_OE, 4, vZ, vT)
        a(f"""s_lshl_b32 {s(sT2)}, {s(sG)}, 3
        s_add_u32 {s(sT2)}, {s(sT2)}, {s(sR)}
        s_lshl_b32 {s(sT2)}, {s(sT2)}, 7
        s_add_u32 {s(sT2)}, {s(sT2)}, {WS_FLAG2}
        s_add_u32 {s(sT3)}, {s(sNONCE)}, 0x9e3779b9
        v_mov_b32 v150, {s(sT3)}
        v_mov_b32 v151, 0
        s_mov_b64 exec, 1
        buffer_store_dword v150, v151, {s(rWS,4)}, {s(sT2)} offen sc1
        s_cmp_eq_u32 {s(sWG)}, 0
        s_cbranch_scc0 L_noepoch
        buffer_store_dword v150, v151, {s(rWS,4)}, 0 offen sc1""")
        a.label("L_noepoch")
        a("s_mov_b64 exec, -1\ns_branch L_end")
        self.fallback()

    def fallback(self):
        a = self.a
        Q0, O0, S0, KA = self.Q0, self.O0, self.S0, self.KA
        vKO, vVO, vIDX = self.vKO, self.vVO, self.vIDX
        C0 = O0 + 16
        a.label("L_fallback")
        a(f"""s_mul_i32 {s(sT2)}, {s(sW4)}, {16*KVT}
        v_subrev_u32 v7, {s(sT2)}, v{vKO}
        v_subrev_u32 v151, {s(sT2)}, v{vVO}
        v_mov_b32 v150, 0xff800000
        s_mov_b32 {s(sSOF)}, 0""")
        a.label("L_fb1")
        a(f"""buffer_load_dwordx4 {v(KA,4)}, v7, {s(rWS,4)}, {s(sSOF)} offen sc1
        s_waitcnt vmcnt(0)
        v_mfma_f32_32x32x16_bf16 {v(S0,16)}, {v(KA,4)}, {v(Q0,4)}, 0""")
        for k in range(8): a(f"v_max3_f32 v150, v150, v{S0+2*k}, v{S0+2*k+1}")
        a(f"""s_add_u32 {s(sSOF)}, {s(sSOF)}, {KVT}
        s_cmp_lt_u32 {s(sSOF)}, {64*KVT}
        s_cbranch_scc1 L_fb1
        v_mov_b32 v152, v150
        v_permlane32_swap_b32 v150, v152
        v_max_f32 v150, v150, v152""")
        for k in range(16): a(f"v_sub_f32 v{C0+k}, 0, v150")
        for k in range(16): a(f"v_mov_b32 v{O0+k}, 0")
        a(f"s_mov_b32 {s(sSOF)}, 0")
        a.label("L_fb2")
        a(f"""buffer_load_dwordx4 {v(KA,4)}, v7, {s(rWS,4)}, {s(sSOF)} offen sc1
        buffer_load_dwordx4 {v(KA+4,4)}, v151, {s(rWS,4)}, {s(sSOF)} offen offset:1024 sc1
        buffer_load_dwordx4 {v(KA+8,4)}, v151, {s(rWS,4)}, {s(sSOF)} offen offset:1664 sc1
        s_waitcnt vmcnt(0)
        v_mfma_f32_32x32x16_bf16 {v(S0,16)}, {v(KA,4)}, {v(Q0,4)}, {v(C0,16)}""")
        for k in range(16): a(f"v_exp_f32 v{S0+k}, v{S0+k}")
        a(f"""v_smfmac_f32_32x32x32_bf16 {v(O0,16)}, {v(KA+4,4)}, {v(S0,8)}, v{vIDX}
        v_smfmac_f32_32x32x32_bf16 {v(O0,16)}, {v(KA+8,4)}, {v(S0+8,8)}, v{vIDX}
        s_add_u32 {s(sSOF)}, {s(sSOF)}, {KVT}
        s_cmp_lt_u32 {s(sSOF)}, {64*KVT}
        s_nop 9
        s_cbranch_scc1 L_fb2
        s_nop 3
        s_branch L_att_fin""")

    def role_s(self):
        a = self.a; vL, vZ, vONE, vT = self.vL, self.vZ, self.vONE, self.vT
        a.label("L_role_s")
        a(f"s_setprio {self.opt('sprio', 2)}")
        sCH, sMH = sLOOP, sSOF
        a(f"""s_and_b32 {s(sCH)}, {s(sW4)}, 1
        s_lshr_b32 {s(sMH)}, {s(sW4)}, 1
        s_lshl_b32 {s(sT0)}, {s(sP)}, 2
        s_load_dword {s(sT4)}, {s(pLDT,2)}, {s(sT0)}
        s_load_dword {s(sT5)}, {s(pDSK,2)}, {s(sT0)}
        s_lshl_b32 {s(sT1)}, {s(sP)}, 9
        s_lshl_b32 {s(sT2)}, {s(sCH)}, 8
        s_add_u32 {s(sT1)}, {s(sT1)}, {s(sT2)}
        s_lshl_b32 {s(sT2)}, {s(sMH)}, 7
        s_add_u32 {s(sT1)}, {s(sT1)}, {s(sT2)}
        v_lshlrev_b32 v4, 1, v0
        s_mov_b32 {s(rA+2)}, 131072
        s_mov_b32 {s(rA+3)}, 0x20000""")
        for i, p in enumerate([pARE, pAIM, pBRE, pBIM, pCRE, pCIM]):
            a(f"s_mov_b32 {s(rA)}, {s(p)}\ns_mov_b32 {s(rA+1)}, {s(p+1)}")
            a(f"buffer_load_ushort v{8+i}, v4, {s(rA,4)}, {s(sT1)} offen")
        a(f"""s_lshl_b32 {s(sT2)}, {s(sW4)}, 12
        s_add_u32 {s(sT2)}, {s(sT2)}, {GEN}
        v_bfe_u32 v5, v0, 1, 2
        v_lshlrev_b32 v5, 4, v5
        v_lshl_add_u32 v5, v0, 6, v5
        v_add_u32 v150, {s(sT2)}, v5
        v_xor_b32 v151, 16, v150
        v_xor_b32 v152, 32, v150
        v_xor_b32 v153, 48, v150
        v_bfe_u32 v5, v0, 2, 2
        v_lshrrev_b32 v6, 5, v0
        v_lshl_add_u32 v6, v6, 3, v5
        v_lshlrev_b32 v6, 6, v6
        v_bfe_u32 v7, v0, 4, 1
        v_lshlrev_b32 v7, 1, v7
        v_bfe_u32 v14, v0, 1, 1
        v_add_u32 v7, v7, v14
        v_lshrrev_b32 v5, 1, v5
        v_xor_b32 v7, v7, v5
        v_lshl_add_u32 v6, v7, 4, v6
        v_and_b32 v7, 1, v0
        v_lshl_add_u32 v6, v7, 3, v6
        v_add_u32 v154, {s(sT2)}, v6
        v_xor_b32 v155, 32, v154
        s_waitcnt lgkmcnt(0)
        s_lshl_b32 {s(sT2)}, {s(sCH)}, 4
        s_lshr_b32 {s(sT4)}, {s(sT4)}, {s(sT2)}
        s_lshl_b32 {s(sT4)}, {s(sT4)}, 16
        s_lshr_b32 {s(sT5)}, {s(sT5)}, {s(sT2)}
        s_lshl_b32 {s(sT5)}, {s(sT5)}, 16
        v_mov_b32 v14, {fbits(LOG2E)}
        v_mul_f32 v15, {s(sT4)}, v14
        v_exp_f32 v15, v15
        v_cvt_pk_bf16_f32 v15, v15, v15
        v_and_b32 v15, 0xffff0000, v15
        s_waitcnt vmcnt(0)""")
        self.stamp(1)
        for i in range(6): a(f"v_lshlrev_b32 v{8+i}, 16, v{8+i}")
        Z1, Z2, Z4, Z8, Z256, CB, TMP = 18, 20, 22, 24, 26, 16, 28
        a(f"""v_mul_f32 v8, v15, v8
        v_mul_f32 v9, v15, v9
        v_mul_f32 v10, v15, v10
        v_mul_f32 v11, v15, v11
        v_mul_f32 v8, v14, v8
        v_mul_f32 v9, 0.15915494, v9""")
        self.cmul(CB, 10, 12, TMP)
        def cpow(d, mult):
            if mult != 1:
                a(f"v_mul_f32 v30, {fbits(mult)}, v8\nv_mul_f32 v31, {fbits(mult)}, v9")
                x, y = 30, 31
            else:
                x, y = 8, 9
            a(f"""v_exp_f32 v28, v{x}
            v_rndne_f32 v29, v{y}
            v_sub_f32 v29, v{y}, v29
            v_cos_f32 v{d}, v29
            v_sin_f32 v{d+1}, v29
            v_mul_f32 v{d}, v28, v{d}
            v_mul_f32 v{d+1}, v28, v{d+1}""")
        cpow(Z1, 1); cpow(Z256, 256)
        self.cmul(Z2, Z1, Z1, TMP); self.cmul(Z4, Z2, Z2, TMP); self.cmul(Z8, Z4, Z4, TMP)
        RE, IM = 32, 48
        FB = 64
        FA = 96
        ACC = 112
        X0, X1 = 128, 130
        def wr(src):
            for c in range(4): a(f"ds_write_b128 v{150+c}, {v(src+4*c,4)}")
        def rdtr(dst):
            for ks in range(4):
                a(f"ds_read_b64_tr_b16 {v(dst+4*ks,2)}, v154 offset:{1024*ks}")
                a(f"ds_read_b64_tr_b16 {v(dst+4*ks+2,2)}, v155 offset:{1024*ks+256}")
        a(f"v_mov_b32 v{X0}, 1.0\nv_mov_b32 v{X0+1}, 0")
        for j in range(0, 32, 2):
            if j > 0: self.cmul(X0, X1, Z8, TMP)
            self.cmul(X1, X0, Z8, TMP)
            a(f"v_cvt_pk_bf16_f32 v{RE+j//2}, v{X0}, v{X1}")
            a(f"v_cvt_pk_bf16_f32 v{IM+j//2}, -v{X0+1}, -v{X1+1}")
        wr(RE); rdtr(FB); wr(IM); rdtr(FB + 16)
        B = [CB] + [132 + 2 * m for m in range(7)]
        for m in range(1, 8): self.cmul(B[m], B[m - 1], Z256, TMP)
        Y0, Y1 = 146, 148
        def pack(row, x, y):
            a(f"v_cvt_pk_bf16_f32 v{RE+row//2}, v{x}, v{y}")
            a(f"v_cvt_pk_bf16_f32 v{IM+row//2}, v{x+1}, v{y+1}")
        a("s_waitcnt lgkmcnt(8)")
        self.cmul(X1, CB, Z1, TMP); pack(0, CB, X1)
        for row in (2, 4, 6):
            self.cmul(X0, X1, Z1, TMP); self.cmul(X1, X0, Z1, TMP); pack(row, X0, X1)
        self.cmul(X0, B[1], Z2, TMP); pack(8, B[1], X0)
        self.cmul(X1, X0, Z2, TMP); pack(10, X1, X1)
        self.cmul(X0, X1, Z2, TMP); pack(12, X1, X0)
        self.cmul(X1, X0, Z2, TMP); pack(14, X1, X1)
        for q, m in ((16, 2), (20, 3)):
            self.cmul(X0, B[m], Z4, TMP); pack(q, B[m], X0)
            self.cmul(X1, X0, Z4, TMP); pack(q + 2, X1, X1)
        for q, m in ((24, 4), (26, 6), (28, 5), (30, 7)):
            self.cmul(X0, B[m], Z8, TMP); pack(q, B[m], X0)
        wr(RE); rdtr(FA)
        a("s_waitcnt lgkmcnt(0)")
        for ks in range(4):
            a(f"v_mfma_f32_32x32x16_bf16 {v(ACC,16)}, {v(FA+4*ks,4)}, {v(FB+4*ks,4)}, {'0' if ks==0 else v(ACC,16)}")
        wr(IM); rdtr(RE)
        a("s_waitcnt lgkmcnt(0)")
        for ks in range(4):
            a(f"v_mfma_f32_32x32x16_bf16 {v(ACC,16)}, {v(RE+4*ks,4)}, {v(FB+16+4*ks,4)}, {v(ACC,16)}")
        self.stamp(2)
        if self.opt("abl_s"): a("s_branch L_end")
        UG = 156
        self.srd(rB, pU, 2097152)
        self.waitc(C_KV, 4, vZ, vT, slp=2)
        if self.opt("uwait", 2): self.waitc({1: C_WQB, 2: C_FL, 3: C_QL}[self.opt("uwait", 2)], 4, vZ, vT, slp=2)
        a(f"""ds_read_b32 v167, v1 offset:128
        s_and_b32 {s(sT0)}, {s(sP)}, 31
        s_lshr_b32 {s(sT4)}, {s(sP)}, 5
        s_lshl_b32 {s(sT1)}, {s(sT0)}, 16
        s_lshl_b32 {s(sT2)}, {s(sMH)}, 15
        s_add_u32 {s(sT1)}, {s(sT1)}, {s(sT2)}
        s_lshl_b32 {s(sT2)}, {s(sT4)}, 7
        s_add_u32 {s(sT1)}, {s(sT1)}, {s(sT2)}
        s_lshl_b32 {s(sT2)}, {s(sCH)}, 6
        s_add_u32 {s(sT1)}, {s(sT1)}, {s(sT2)}
        v_and_b32 v5, 7, v0
        v_lshrrev_b32 v6, 3, v0
        v_lshlrev_b32 v4, 12, v5
        v_lshl_add_u32 v4, v6, 2, v4""")
        for j in range(2):
            for i in range(4):
                a(f"buffer_load_dword v{UG+4*j+i}, v4, {s(rB,4)}, {s(sT1)} offen offset:{1024*i+32*j}")
        a(f"""s_lshl_b32 {s(sT1)}, {s(sT4)}, 18
        s_lshl_b32 {s(sT2)}, {s(sCH)}, 17
        s_add_u32 {s(sT1)}, {s(sT1)}, {s(sT2)}
        s_lshl_b32 {s(sT2)}, {s(sT0)}, 8
        s_add_u32 {s(sT1)}, {s(sT1)}, {s(sT2)}
        s_lshl_b32 {s(sT2)}, {s(sMH)}, 7
        s_add_u32 {s(sT1)}, {s(sT1)}, {s(sT2)}
        s_add_u32 {s(sT1)}, {s(sT1)}, {WS_UT}
        s_add_u32 {s(sT2)}, {s(sT1)}, 65536
        v_lshlrev_b32 v4, 13, v6
        v_lshl_add_u32 v4, v5, 4, v4
        s_waitcnt vmcnt(4)
        buffer_store_dwordx4 {v(UG,4)}, v4, {s(rWS,4)}, {s(sT1)} offen sc1
        s_waitcnt vmcnt(1)
        buffer_store_dwordx4 {v(UG+4,4)}, v4, {s(rWS,4)}, {s(sT2)} offen sc1
        s_waitcnt lgkmcnt(0)""")
        self.s_publish(C_UT, WS_FLAG3)
        a(f"""s_lshl_b32 {s(sT2)}, {s(sCH)}, 12
        s_add_u32 {s(sT2)}, {s(sT2)}, {GEN+8192}
        v_lshl_add_u32 v5, v0, 4, {s(sT2)}
        s_lshl_b32 {s(sT2)}, {s(sCH)}, 2
        v_add_u32 v6, {s(sT2)}, v1
        s_mul_i32 {s(sT3)}, {s(sCH)}, {KCH}
        s_add_u32 {s(sT3)}, {s(sT3)}, {XE}
        s_cmp_eq_u32 {s(sMH)}, 0
        s_cbranch_scc1 L_s_expand""")
        for c in range(4): a(f"ds_write_b128 v5, {v(ACC+4*c,4)} offset:{1024*c}")
        a("s_waitcnt lgkmcnt(0)")
        self.arrive(C_KT0, 6, vONE)
        a("s_branch L_s_ucopy")
        a.label("L_s_expand")
        self.waitc(C_KT0, 1, 6, vT)
        for c in range(4): a(f"ds_read_b128 {v(32+4*c,4)}, v5 offset:{1024*c}")
        self.waitc(C_QE, 4, vZ, vT)
        a(f"""v_lshl_add_u32 v7, v0, 4, {s(sT3)}
        v_mov_b32 v48, 0
        v_mov_b32 v49, 0
        v_mov_b32 v50, 0
        v_mov_b32 v51, 0""")
        for cp in range(2):
            for off in (0, 1024, 1136):
                a(f"ds_write_b128 v7, v[48:51] offset:{cp*KCOPY+off}")
        for k in range(16): a(f"v_add_f32 v{ACC+k}, v{ACC+k}, v{32+k}")
        a(f"""v_cmp_eq_u32 vcc, 0, v0
        v_mov_b32 v9, {s(sT5)}
        v_cndmask_b32 v9, 0, v9, vcc
        v_add_f32 v{ACC}, v{ACC}, v9
        v_bfe_u32 v8, v0, 3, 2
        v_mul_u32_u24 v8, 144, v8
        v_and_b32 v9, 7, v0
        v_lshl_add_u32 v8, v9, 4, v8
        v_add_u32 v8, {s(sT3)}, v8
        v_lshrrev_b32 v9, 5, v0
        v_lshlrev_b32 v10, 3, v9
        v_sub_u32 v10, v8, v10
        v_mul_u32_u24 v9, 576, v9
        v_add_u32 v9, v8, v9
        v_and_b32 v11, 1, v0
        v_cmp_eq_u32 vcc, 0, v11""")
        A = ACC
        a(f"""v_cvt_pk_bf16_f32 v32, v{A+3}, v{A+2}
        v_cvt_pk_bf16_f32 v33, v{A+1}, v{A}
        ds_write_b64 v10, v[32:33] offset:{144*15+8}
        v_cvt_pk_bf16_f32 v34, v{A+6}, v{A+5}
        v_cvt_pk_bf16_f32 v35, v{A+4}, v{A+4}
        ds_write_b64 v10, v[34:35] offset:{144*19+8}
        v_cvt_pk_bf16_f32 v36, v{A+10}, v{A+10}
        v_cvt_pk_bf16_f32 v37, v{A+9}, v{A+9}
        v_cvt_pk_bf16_f32 v38, v{A+9}, v{A+8}
        v_cvt_pk_bf16_f32 v39, v{A+8}, v{A+8}
        ds_write_b128 v9, v[36:39] offset:{144*23}""")
        for q, (ra, dst, blk) in enumerate(((A + 12, 40, 31), (A + 14, 44, 39))):
            a(f"""v_cndmask_b32 v11, v{ra+1}, v{ra}, vcc
            v_cvt_pk_bf16_f32 v{dst}, v{ra+1}, v{ra+1}
            v_cvt_pk_bf16_f32 v{dst+1}, v{ra+1}, v11
            v_cvt_pk_bf16_f32 v{dst+2}, v{ra}, v{ra}
            v_cvt_pk_bf16_f32 v{dst+3}, v{ra}, v{ra}
            ds_write_b128 v9, {v(dst,4)} offset:{144*blk}""")
        a(f"""v_lshrrev_b32 v8, 3, v0
        v_mul_u32_u24 v8, 144, v8
        v_and_b32 v9, 7, v0
        v_lshl_add_u32 v8, v9, 4, v8
        v_add_u32 v8, {s(sT3)}, v8
        v_cmp_eq_u32 vcc, 0, v9
        v_mov_b32 v10, 16
        v_cndmask_b32 v10, v10, 32, vcc
        v_sub_u32 v10, v8, v10""")
        for it in range(4):
            a(f"ds_read_b128 {v(64+8*it,4)}, v8 offset:{144*(15+8*it)}")
            a(f"ds_read_b32 v{68+8*it}, v10 offset:{144*(15+8*it)}")
        for it in range(4):
            b = 64 + 8 * it
            a(f"s_waitcnt lgkmcnt({6-2*it+it})")
            for k in range(4): a(f"v_alignbit_b32 v{32+4*it+k}, v{b+k+1}, v{b+k}, 16")
            a(f"ds_write_b128 v8, {v(32+4*it,4)} offset:{KCOPY+144*(15+8*it)}")
        a.label("L_s_ucopy")
        self.stamp(3)
        a(f"""s_lshr_b32 {s(sT4)}, {s(sP)}, 5
        s_lshl_b32 {s(sT4)}, {s(sT4)}, 12
        s_add_u32 {s(sT4)}, {s(sT4)}, {WS_FLAG3}""")
        self.s_poll(sT4, 31)
        a(f"""s_lshl_b32 {s(sT1)}, {s(sP)}, 13
        s_lshl_b32 {s(sT2)}, {s(sW4)}, 11
        s_add_u32 {s(sT1)}, {s(sT1)}, {s(sT2)}
        s_add_u32 {s(sT1)}, {s(sT1)}, {WS_UT}
        v_lshlrev_b32 v4, 5, v0
        buffer_load_dwordx4 {v(UG,4)}, v4, {s(rWS,4)}, {s(sT1)} offen sc1
        buffer_load_dwordx4 {v(UG+4,4)}, v4, {s(rWS,4)}, {s(sT1)} offen offset:16 sc1""")
        self.waitc(C_QL, 4, vZ, vT, slp=4)
        a(f"""s_cmp_eq_u32 {s(sW4)}, 0
        s_cbranch_scc0 L_s_nouz
        v_lshrrev_b32 v8, 3, v0
        v_mul_u32_u24 v8, {UCOPY}, v8
        v_and_b32 v9, 7, v0
        v_lshl_add_u32 v8, v9, 4, v8
        v_add_u32 v8, {W}, v8
        v_mov_b32 v48, 0
        v_mov_b32 v49, 0
        v_mov_b32 v50, 0
        v_mov_b32 v51, 0
        ds_write_b128 v8, v[48:51]""")
        a.label("L_s_nouz")
        a(f"""s_lshl_b32 {s(sT2)}, {s(sW4)}, 10
        s_add_u32 {s(sT2)}, {s(sT2)}, {W}
        v_lshl_add_u32 v8, v0, 4, {s(sT2)}
        s_mov_b32 {s(sT0)}, 0x05040100
        s_mov_b32 {s(sT1)}, 0x07060302
        s_waitcnt vmcnt(0)""")
        self.stamp(4)
        for k in range(4):
            a(f"v_perm_b32 v{32+k}, v{UG+2*k+1}, v{UG+2*k}, {s(sT0)}")
            a(f"v_perm_b32 v{36+k}, v{UG+2*k+1}, v{UG+2*k}, {s(sT1)}")
        for ch in range(2):
            d = 32 + 4 * ch
            for ph in range(4):
                off = ch * UCH + ph * UCOPY + 128 - 4 * (ph + 1)
                if ph == 3:
                    a(f"ds_write_b128 v8, {v(d,4)} offset:{off}")
                elif ph == 1:
                    a(f"ds_write_b64 v8, {v(d,2)} offset:{off}\nds_write_b64 v8, {v(d+2,2)} offset:{off+8}")
                else:
                    a(f"v_add_u32 v9, {off}, v8")
                    a(f"ds_write2_b32 v9, v{d}, v{d+1} offset0:0 offset1:1\nds_write2_b32 v9, v{d+2}, v{d+3} offset0:2 offset1:3")
        a("s_waitcnt lgkmcnt(0)")
        self.arrive(C_KU, vZ, vONE)
        a(f"""s_mul_i32 {s(sT2)}, {s(sMH)}, 1152
        s_sub_u32 {s(sT3)}, {s(sT3)}, {s(sT2)}
        v_and_b32 v10, 15, v0
        v_mul_u32_u24 v8, 144, v10
        v_bfe_u32 v10, v0, 4, 1
        v_mul_u32_u24 v10, {KCOPY}, v10
        v_add_u32 v8, v8, v10
        v_lshrrev_b32 v11, 5, v0
        v_lshlrev_b32 v11, 4, v11
        v_sub_u32 v8, v8, v11
        v_add_u32 v8, {s(sT3)}, v8
        s_mul_i32 {s(sT2)}, {s(sCH)}, {UCH}
        s_lshl_b32 {s(sT4)}, {s(sMH)}, 10
        s_add_u32 {s(sT2)}, {s(sT2)}, {s(sT4)}
        s_add_u32 {s(sT2)}, {s(sT2)}, {W}
        v_and_b32 v10, 3, v0
        v_mul_u32_u24 v9, {UCOPY}, v10
        v_bfe_u32 v10, v0, 2, 3
        v_lshl_add_u32 v9, v10, 4, v9
        v_add_u32 v9, v9, v11
        v_add_u32 v9, {s(sT2)}, v9""")
        T0, T1 = 64, 80
        for k in range(32): a(f"v_mov_b32 v{T0+k}, 0")
        self.waitc(C_KU, 4, vZ, vT)
        self.stamp(5)
        def crd(u, b):
            ao = 144 * 15 + 16 * (7 - 2 * u) if u < 4 else 144 * 14 + 16 * 7
            a(f"ds_read_b128 {v(b,4)}, v8 offset:{ao}")
            a(f"ds_read_b128 {v(b+8,4)}, v9 offset:{32*u}")
            a(f"ds_read_b128 {v(b+12,4)}, v9 offset:{32*u+2048}")
            a(f"ds_read_b128 {v(b+4,4)}, v8 offset:{ao+2304}")
        F = [32, 48]
        pace = self.opt("pace", 1)
        if pace == 0: crd(0, F[0])
        a(f"s_mov_b32 {s(sT4)}, 8")
        a.label("L_conv")
        for u in range(4):
            b = F[u & 1]
            m0 = f"v_mfma_f32_32x32x16_bf16 {v(T0,16)}, {v(b,4)}, {v(b+8,4)}, {v(T0,16)}"
            m1 = f"v_mfma_f32_32x32x16_bf16 {v(T1,16)}, {v(b,4)}, {v(b+12,4)}, {v(T1,16)}"
            m2 = f"v_mfma_f32_32x32x16_bf16 {v(T1,16)}, {v(b+4,4)}, {v(b+8,4)}, {v(T1,16)}"
            ao = 144 * 15 + 16 * (7 - 2 * u)
            if pace == 0:
                crd(u + 1, F[(u + 1) & 1])
                a("s_waitcnt lgkmcnt(4)"); a(m0); a(m1); a(m2)
            elif pace == 1:
                a(f"ds_read_b128 {v(b,4)}, v8 offset:{ao}\nds_read_b128 {v(b+8,4)}, v9 offset:{32*u}\ns_waitcnt lgkmcnt(0)"); a(m0)
                a(f"ds_read_b128 {v(b+12,4)}, v9 offset:{32*u+2048}\ns_waitcnt lgkmcnt(0)"); a(m1)
                a(f"ds_read_b128 {v(b+4,4)}, v8 offset:{ao+2304}\ns_waitcnt lgkmcnt(0)"); a(m2)
            elif pace == 2:
                crd(u, b)
                a("s_waitcnt lgkmcnt(0)"); a(m0); a(m1); a(m2)
        a(f"""v_subrev_u32 v8, 144, v8
        v_add_u32 v9, 128, v9
        s_sub_u32 {s(sT4)}, {s(sT4)}, 1
        s_cmp_lg_u32 {s(sT4)}, 0
        s_cbranch_scc1 L_conv""")
        self.stamp(6)
        def xchg_write(base, accs, ymode=False):
            a(f"""s_lshl_b32 {s(sT2)}, {s(sW4)}, 11
            s_add_u32 {s(sT2)}, {s(sT2)}, {base}
            v_lshl_add_u32 v10, v0, 4, {s(sT2)}
            s_lshl_b32 {s(sT2)}, {s(sW4)}, 13
            s_add_u32 {s(sT2)}, {s(sT2)}, {base}
            v_lshl_add_u32 v11, v0, 4, {s(sT2)}""")
            for q in range(4):
                r0, r1 = (accs+8*q, accs+8*q+4) if not ymode else (accs+16*(q>>1)+4*(q&1), accs+16*(q>>1)+8+4*(q&1))
                a(f"ds_write_b128 v10, {v(r0,4)} offset:{8192*q}")
                a(f"ds_write_b128 v10, {v(r1,4)} offset:{8192*q+1024}")
        def xchg_read(dst):
            for w in range(4):
                a(f"ds_read_b128 {v(dst+8*w,4)}, v11 offset:{2048*w}")
                a(f"ds_read_b128 {v(dst+8*w+4,4)}, v11 offset:{2048*w+1024}")
        a("s_waitcnt lgkmcnt(0)")
        xchg_write(YX, T0, True)
        a("s_waitcnt lgkmcnt(0)")
        self.arrive(C_Y, vZ, vONE)
        self.srd(rC, pOUT, 4194304)
        a(f"""s_lshl_b32 {s(sT1)}, {s(sP)}, 13
        s_lshl_b32 {s(sT2)}, {s(sW4)}, 11
        s_add_u32 {s(sT1)}, {s(sT1)}, {s(sT2)}
        s_add_u32 {s(sT1)}, {s(sT1)}, {WS_YT}
        v_and_b32 v12, 31, v0
        v_lshlrev_b32 v12, 3, v12
        v_lshrrev_b32 v13, 5, v0
        v_lshl_add_u32 v12, v13, 10, v12""")
        self.waitc(C_Y, 4, vZ, vT)
        xchg_read(32)
        self.srd(rB, pWO, 524288)
        a(f"""v_lshrrev_b32 v14, 3, v0
        v_and_b32 v15, 7, v0
        v_and_b32 v16, 2, v14
        v_lshlrev_b32 v16, 1, v16
        v_xor_b32 v15, v15, v16
        v_lshlrev_b32 v14, 10, v14
        v_lshl_add_u32 v14, v15, 4, v14
        s_lshl_b32 {s(sT3)}, {s(sW4)}, 17
        s_lshl_b32 {s(sT2)}, {s(sR)}, 7
        s_add_u32 {s(sT3)}, {s(sT3)}, {s(sT2)}
        s_lshl_b32 {s(sT4)}, {s(sW4)}, 13
        s_add_u32 {s(sT4)}, {s(sT4)}, {XE}""")
        def wo_dma():
            a(f"s_mov_b32 m0, {s(sT4)}")
            for i in range(8):
                a(f"buffer_load_dwordx4 v14, {s(rB,4)}, {s(sT3)} offen lds")
                if i < 7: a("s_add_u32 m0, m0, 1024")
                a(f"s_add_u32 {s(sT3)}, {s(sT3)}, 8192")
        wo_dma()
        a("s_waitcnt lgkmcnt(0)")
        for k in range(8):
            a(f"v_add_f32 v{32+k}, v{32+k}, v{48+k}\nv_add_f32 v{40+k}, v{40+k}, v{56+k}")
        for e in range(4):
            a(f"v_cvt_pk_bf16_f32 v{48+2*e}, v{36+e}, v{44+e}")
            a(f"v_cvt_pk_bf16_f32 v{49+2*e}, v{32+e}, v{40+e}")
        for e in range(4):
            a(f"buffer_store_dwordx2 {v(48+2*e,2)}, v12, {s(rWS,4)}, {s(sT1)} offen offset:{256*e} sc1")
        self.stamp(7)
        WOF = 96
        a(f"""v_bfe_u32 v15, v0, 2, 2
        v_lshrrev_b32 v16, 5, v0
        v_lshl_add_u32 v16, v16, 3, v15
        v_lshlrev_b32 v16, 7, v16
        v_and_b32 v15, 2, v15
        v_lshl_add_u32 v16, v15, 5, v16
        v_bfe_u32 v15, v0, 4, 1
        v_lshl_add_u32 v16, v15, 5, v16
        v_and_b32 v15, 1, v0
        v_lshl_add_u32 v16, v15, 4, v16
        v_bfe_u32 v15, v0, 1, 1
        v_lshl_add_u32 v16, v15, 3, v16
        v_add_u32 v16, {s(sT4)}, v16
        v_xor_b32 v17, 64, v16""")
        for rnd in range(2):
            a("s_waitcnt vmcnt(4)" if rnd == 0 else "s_waitcnt vmcnt(0)")
            for ks in range(4):
                for ct in range(2):
                    d = WOF + 32 * rnd + 8 * ks + 4 * ct
                    a(f"ds_read_b64_tr_b16 {v(d,2)}, v{16+ct} offset:{2048*ks}")
                    a(f"ds_read_b64_tr_b16 {v(d+2,2)}, v{16+ct} offset:{2048*ks+512}")
            if rnd == 0:
                a("s_waitcnt lgkmcnt(0)")
                self.s_publish(C_YT, WS_FLAG4)
                wo_dma()
        a("s_waitcnt lgkmcnt(0)")
        self.stamp(8)
        self.y_assemble()
        a(f"""s_lshl_b32 {s(sT3)}, {s(sG)}, 16
        s_lshl_b32 {s(sT2)}, {s(sW4)}, 13
        s_add_u32 {s(sT3)}, {s(sT3)}, {s(sT2)}
        s_add_u32 {s(sT3)}, {s(sT3)}, {WS_O}
        v_lshlrev_b32 v14, 4, v0
        s_lshl_b32 {s(sT1)}, {s(sG)}, 17
        s_lshl_b32 {s(sT2)}, {s(sR)}, 7
        s_add_u32 {s(sT1)}, {s(sT1)}, {s(sT2)}
        s_lshl_b32 {s(sT2)}, {s(sW4)}, 5
        s_add_u32 {s(sT1)}, {s(sT1)}, {s(sT2)}
        v_and_b32 v12, 31, v0
        v_lshlrev_b32 v12, 11, v12
        v_lshl_add_u32 v12, v13, 4, v12""")
        OF = 32; AC = 64
        for rnd in range(2):
            Lp = f"L_opoll{rnd}"; Lo = f"L_ook{rnd}"
            if rnd == 0:
                self.waitc(C_OE, 4, vZ, vT, slp=4)
                a(f"""s_lshl_b32 {s(sT2)}, {s(sG)}, 10
                s_add_u32 {s(sT2)}, {s(sT2)}, {WS_FLAG2}""")
                self.s_poll(sT2, 7)
                a(f"s_add_u32 {s(sT4)}, {s(sT3)}, 4096")
                for h in range(8):
                    a(f"buffer_load_dwordx4 {v(OF+4*h,4)}, v14, {s(rWS,4)}, {s(sT3 if h<4 else sT4)} offen offset:{1024*(h&3)} sc1")
                a("s_waitcnt vmcnt(0)")
            else:
                a(f"s_add_u32 {s(sT3)}, {s(sT3)}, 32768\ns_add_u32 {s(sT1)}, {s(sT1)}, 65536")
                a(f"s_add_u32 {s(sT4)}, {s(sT3)}, 4096")
                self.waitc(C_OL, 4, vZ, vT, slp=2)
                a.label(Lp)
                for h in range(8):
                    a(f"buffer_load_dwordx4 {v(OF+4*h,4)}, v14, {s(rWS,4)}, {s(sT3 if h<4 else sT4)} offen offset:{1024*(h&3)} sc1")
                for h in range(8):
                    a(f"s_waitcnt vmcnt({7-h})")
                    b = OF + 4 * h
                    if h == 0:
                        a(f"v_max_u32 v15, v{b}, v{b+1}")
                    else:
                        a(f"v_max3_u32 v15, v15, v{b}, v{b+1}")
                    a(f"v_max3_u32 v15, v15, v{b+2}, v{b+3}")
                a(f"""v_cmp_ne_u32 vcc, -1, v15
                s_cmp_eq_u64 vcc, exec
                s_cbranch_scc1 {Lo}
                s_sub_u32 {s(sBUD)}, {s(sBUD)}, 1
                s_cbranch_scc0 {Lp}
                s_mov_b32 {s(sBUD)}, 0""")
                a.label(Lo)
            self.stamp(9 + rnd)
            for h in range(8):
                for ct in range(2):
                    w = WOF + 8 * h + 4 * ct
                    a(f"v_mfma_f32_32x32x16_bf16 {v(AC+16*ct,16)}, {v(w,4)}, {v(OF+4*h,4)}, {'0' if h==0 else v(AC+16*ct,16)}")
            xchg_write(OX1 if rnd == 0 else OX2, AC)
            a("s_waitcnt lgkmcnt(0)")
            self.arrive(C_O1 + 4 * rnd, vZ, vONE)
            self.waitc(C_O1 + 4 * rnd, 4, vZ, vT)
            xchg_read(32)
            a("s_waitcnt lgkmcnt(4)")
            for k in range(8): a(f"v_add_f32 v{32+k}, v{32+k}, v{40+k}")
            a("s_waitcnt lgkmcnt(0)")
            for k in range(8): a(f"v_add_f32 v{48+k}, v{48+k}, v{56+k}")
            for k in range(8): a(f"v_add_f32 v{32+k}, v{32+k}, v{48+k}")
            for k in range(4): a(f"v_cvt_pk_bf16_f32 v{20+k}, v{32+2*k}, v{33+2*k}")
            a(f"buffer_store_dwordx4 v[20:23], v12, {s(rC,4)}, {s(sT1)} offen {self.opt_sc('osc', 1)}")

    def y_assemble(self):
        a = self.a
        a(f"""s_lshr_b32 {s(sT4)}, {s(sP)}, 5
        s_lshl_b32 {s(sT2)}, {s(sT4)}, 12
        s_add_u32 {s(sT2)}, {s(sT2)}, {WS_FLAG4}""")
        self.s_poll(sT2, 31)
        a(f"""s_and_b32 {s(sT0)}, {s(sP)}, 31
        s_lshl_b32 {s(sT1)}, {s(sT4)}, 18
        s_lshl_b32 {s(sT2)}, {s(sT0)}, 8
        s_add_u32 {s(sT1)}, {s(sT1)}, {s(sT2)}
        s_lshl_b32 {s(sT2)}, {s(sW4)}, 6
        s_add_u32 {s(sT1)}, {s(sT1)}, {s(sT2)}
        s_add_u32 {s(sT1)}, {s(sT1)}, {WS_YT}
        v_and_b32 v5, 7, v0
        v_lshrrev_b32 v6, 3, v0
        v_lshlrev_b32 v4, 15, v5
        v_lshl_add_u32 v4, v6, 2, v4""")
        for i in range(4):
            if i: a(f"s_add_u32 {s(sT1)}, {s(sT1)}, 8192")
            for j in range(2):
                a(f"buffer_load_dword v{32+4*j+i}, v4, {s(rWS,4)}, {s(sT1)} offen offset:{32*j} sc1")
        a(f"""s_lshl_b32 {s(sT1)}, {s(sT0)}, 17
        s_lshl_b32 {s(sT2)}, {s(sW4)}, 15
        s_add_u32 {s(sT1)}, {s(sT1)}, {s(sT2)}
        s_lshl_b32 {s(sT2)}, {s(sT4)}, 7
        s_add_u32 {s(sT1)}, {s(sT1)}, {s(sT2)}
        s_add_u32 {s(sT1)}, {s(sT1)}, 1024
        s_add_u32 {s(sT2)}, {s(sT1)}, 16384
        v_lshlrev_b32 v4, 11, v6
        v_lshl_add_u32 v4, v5, 4, v4
        s_waitcnt vmcnt(0)
        buffer_store_dwordx4 v[32:35], v4, {s(rC,4)}, {s(sT1)} offen {self.opt_sc('ysc', 1)}
        buffer_store_dwordx4 v[36:39], v4, {s(rC,4)}, {s(sT2)} offen {self.opt_sc('ysc', 1)}
        s_nop 1""")
    def opt_sc(self, k, d=0):
        return {0: "", 1: "sc1", 2: "nt", 3: "sc0 sc1"}[self.opt(k, d)]

    def finish(self):
        a = self.a
        a.label("L_end")
        if self.opt("diagm"):
            i = self.opt("diagi", 11)
            a("s_waitcnt vmcnt(0)")
            self.stamp(11)
            a(f"""s_waitcnt lgkmcnt(0)
            s_cmp_eq_u32 {s(sWG)}, {self.opt("diagwg", 100)}
            s_cbranch_scc0 L_exit
            s_cmp_eq_u32 {s(sWAVE)}, {4*self.opt("diagc", 2)}
            s_cbranch_scc0 L_exit
            s_sub_u32 {s(sT0)}, {s(sSTAMP+2*i)}, {s(sSTAMP)}
            s_mul_i32 {s(sT0)}, {s(sT0)}, {self.opt("diagm")}
            s_min_u32 {s(sT0)}, {s(sT0)}, 100000""")
            a.label("L_diag")
            a(f"""s_memrealtime {s(sT2,2)}
            s_waitcnt lgkmcnt(0)
            s_sub_u32 {s(sT1)}, {s(sT2)}, {s(sSTAMP)}
            s_cmp_lt_u32 {s(sT1)}, {s(sT0)}
            s_cbranch_scc1 L_diag""")
        elif self.dbg:
            a("s_waitcnt vmcnt(0)")
            self.stamp(11)
            a(f"""s_waitcnt lgkmcnt(0)
            s_mul_i32 {s(sT0)}, {s(sWG)}, 12
            s_add_u32 {s(sT0)}, {s(sT0)}, {s(sWAVE)}
            s_lshl_b32 {s(sT0)}, {s(sT0)}, 6
            s_add_u32 {s(sT0)}, {s(sT0)}, {WS_STAMP}
            v_mov_b32 v4, 0""")
            for i in range(12): a(f"v_mov_b32 v{8+i}, {s(sSTAMP+2*i)}")
            a(f"v_mov_b32 v20, {s(sBUD)}")
            a("s_mov_b64 exec, 1")
            for i in range(3): a(f"buffer_store_dwordx4 {v(8+4*i,4)}, v4, {s(rWS,4)}, {s(sT0)} offen offset:{16*i}")
            a(f"buffer_store_dword v20, v4, {s(rWS,4)}, {s(sT0)} offen offset:48")
        a.label("L_exit")
        a("s_endpgm")

if __name__ == "__main__":
    ap = argparse.ArgumentParser()
    ap.add_argument("-o", default=f"cdna_kernels/{NAME}.s")
    ap.add_argument("--dbg", action="store_true")
    ap.add_argument("opts", nargs="*")
    args = ap.parse_args()
    opts = {}
    for kv in args.opts:
        k, _, val = kv.partition("=")
        opts[k] = int(val) if val else 1
    open(args.o, "w").write(Gen(args.dbg, opts).build())
```

```python
import sys, struct, argparse
from asmlib import Asm, v, s, hazard_pass

NAME = "concat_heads__grouped_kv_mqa__ssm_conv_s4__prompt"
def fbits(x): return "0x%08x" % struct.unpack("<I", struct.pack("<f", x))[0]
import math
LOG2E = math.log2(math.e)

R0   = 0
XE   = 32768
W    = 65536
GEN  = 131072
QB   = 147456
KVR  = 155648
CNT  = 159744
LDS_BYTES = 160000
KCOPY = 6912; KCH = 2 * KCOPY
UCOPY = 4416; UCH = 4 * UCOPY
YX   = W + 37888
OX1  = W
OX2  = YX
PSLOT = 2304
C_KV, C_WQA, C_WQB, C_XL, C_QE, C_QL, C_FL, C_KT0, C_KT1, C_KU, C_Y, C_PE, C_PED, C_PL, C_O1, C_O2, C_OE, C_OL, C_UT, C_YT, C_WQC, C_WQD, C_Y4 = [4 * i for i in range(23)]

WS_FLAG = 4096
WS_FLAG2 = 4096 + 32768
WS_FLAG3 = 4096 + 2 * 32768
WS_FLAG4 = 4096 + 3 * 32768
WS_KV   = 147456
KVT     = 2304
WS_O    = 1 << 19
WS_UT = 6 << 20
WS_YT = 8 << 20
WS_STAMP = 4 << 20
WS_DBG  = 5 << 20
WS_SIZE = 16 << 20

sWG, sWAVE, sG, sR, sP, sW4 = 2, 3, 4, 5, 6, 7
sT0, sT1, sT2, sT3, sT4, sT5 = 8, 9, 10, 11, 12, 13
sCLS = 14; sROT = 15
pX, pWQ, pWK, pWV, pWO, pU, pARE, pAIM, pBRE, pBIM, pCRE, pCIM, pLDT, pDSK, pOUT, pDBG, pWS = [16 + 2 * i for i in range(17)]
sNONCE, sBUD = 50, 51
rA, rB, rC, rWS = 52, 56, 60, 64
sLOOP = 68; sSOF = 69
sSTAMP = 70
OOB = 0x7ff00000

class Gen:
    def __init__(self, dbg=False, opts=None):
        self.a = Asm(); self.dbg = dbg; self.o = opts or {}
    def opt(self, k, d=None): return self.o.get(k, d)

    def srd(self, r, p, nbytes):
        a = self.a
        a(f"s_mov_b32 {s(r)}, {s(p)}\ns_mov_b32 {s(r+1)}, {s(p+1)}\ns_mov_b32 {s(r+2)}, {nbytes}\ns_mov_b32 {s(r+3)}, 0x20000")
    def stamp(self, i):
        if self.dbg: self.a(f"{'s_memtime' if self.opt('cyc') else 's_memrealtime'} {s(sSTAMP+2*i,2)}")
    def arrive(self, c, vz, vone):
        self.a(f"s_mov_b64 exec, 1\nds_add_u32 {v(vz)}, {v(vone)} offset:{c}\ns_mov_b64 exec, -1")
    def arrive_rtn(self, c, vz, vone, vt):
        self.a(f"""s_mov_b64 exec, 1
        ds_add_rtn_u32 {v(vt)}, {v(vz)}, {v(vone)} offset:{c}
        s_mov_b64 exec, -1
        s_waitcnt lgkmcnt(0)
        v_readfirstlane_b32 {s(sT0)}, {v(vt)}
        s_cmp_eq_u32 {s(sT0)}, 3""")
    def sync4(self, c, vz, vone, vt, slp=0):
        D = self.a.newlabel("Ls")
        self.arrive_rtn(c, vz, vone, vt)
        self.a(f"s_cbranch_scc1 {D}")
        n0 = len(self.a.lines)
        self.waitc(c, 4, vz, vt, slp)
        for i in range(n0, len(self.a.lines)):
            l = self.a.lines[i]
            if not l.endswith(":") and "nocount" not in l and not l.startswith(("v_readfirst", "s_cmp")): self.a.lines[i] = l + " ; nocount"
        self.a.label(D)
    def waitc(self, c, n, vz, vt, slp=1):
        a = self.a; L = a.newlabel("Lw"); D = a.newlabel("Ld")
        a.label(L)
        a(f"""ds_read_b32 {v(vt)}, {v(vz)} offset:{c}
        s_waitcnt lgkmcnt(0)
        v_readfirstlane_b32 {s(sT0)}, {v(vt)}
        s_cmp_ge_u32 {s(sT0)}, {n}
        s_cbranch_scc1 {D}
        s_sleep {slp} ; nocount
        s_sub_u32 {s(sBUD)}, {s(sBUD)}, 1 ; nocount
        s_cbranch_scc0 {L} ; nocount
        s_mov_b32 {s(sBUD)}, 0 ; nocount""")
        a.label(D)
    def s_publish(self, cnt, base):
        a = self.a; L = a.newlabel("Lpub")
        a("s_waitcnt vmcnt(0)")
        self.arrive_rtn(cnt, self.vZ, self.vONE, self.vT)
        a(f"s_cbranch_scc0 {L}")
        a(f"""s_lshl_b32 {s(sT2)}, {s(sP)}, 7
        s_add_u32 {s(sT2)}, {s(sT2)}, {base}
        v_mov_b32 v18, 0
        s_mov_b64 exec, 1
        buffer_store_dword v167, v18, {s(rWS,4)}, {s(sT2)} offen sc1
        s_mov_b64 exec, -1""")
        a.label(L)
    def s_poll(self, sbase, mask, slp=4):
        a = self.a; Lp = a.newlabel("Lpoll"); Lo = a.newlabel("Lok")
        a(f"v_lshlrev_b32 v18, 7, v0\ns_mov_b64 exec, {hex((1 << (mask + 1)) - 1)}")
        a.label(Lp)
        a(f"""buffer_load_dword v19, v18, {s(rWS,4)}, {s(sbase)} offen sc1
        s_waitcnt vmcnt(0)
        v_cmp_ne_u32 vcc, v167, v19
        s_and_b64 exec, exec, vcc
        s_cbranch_execz {Lo}
        s_sleep {slp} ; nocount
        s_sub_u32 {s(sBUD)}, {s(sBUD)}, 1 ; nocount
        s_cbranch_scc0 {Lp} ; nocount
        s_mov_b32 {s(sBUD)}, 0 ; nocount""")
        a.label(Lo)
        a("s_mov_b64 exec, -1")
    def cmul(self, d, x, m, t):
        self.a(f"v_pk_mul_f32 {v(t,2)}, {v(x,2)}, {v(m,2)} op_sel_hi:[1,0]")
        self.a(f"v_pk_fma_f32 {v(d,2)}, {v(x,2)}, {v(m,2)}, {v(t,2)} op_sel:[1,1,0] op_sel_hi:[0,1,1] neg_lo:[0,1,0]")

    def build(self):
        a = self.a
        self.entry()
        self.role_late_start()
        self.role_early_start()
        self.qproj_and_attention()
        self.role_s()
        self.finish()
        lines, n = hazard_pass(a.lines, verbose=self.opt("vhz"))
        body = "\n".join(l if l.endswith(":") or l.startswith(".") else "    " + l for l in lines)
        head = f"""; fused MQA attention + S4 long convolution, one persistent launch (generated by gen/gen.py)
; @launch grid=(256,1,1) block=(768,1,1) lds={LDS_BYTES}
.amdgcn_target "amdgcn-amd-amdhsa--gfx950"
.text
.globl {NAME}_kernel
.p2align 8
.type {NAME}_kernel,@function
{NAME}_kernel:
"""
        tail = f"""
.section .rodata,"a"
.p2align 6
.amdhsa_kernel {NAME}_kernel
  .amdhsa_next_free_vgpr 168
  .amdhsa_next_free_sgpr 96
  .amdhsa_accum_offset 168
  .amdhsa_group_segment_fixed_size 0
  .amdhsa_kernarg_size 136
  .amdhsa_user_sgpr_count 2
  .amdhsa_user_sgpr_kernarg_segment_ptr 1
  .amdhsa_system_sgpr_workgroup_id_x 1
  .amdhsa_float_denorm_mode_32 3
.end_amdhsa_kernel
"""
        return head + body + tail

    vL, vZ, vONE, vT = 0, 1, 2, 3

    def entry(self):
        a = self.a
        if self.dbg:
            for i in range(12): a(f"s_mov_b64 {s(sSTAMP+2*i,2)}, 0")
        self.stamp(0)
        a(f"""s_cmp_ge_u32 s2, 256
        s_cbranch_scc1 L_exit
        s_load_dwordx16 s[16:31], s[0:1], 0
        s_load_dwordx16 s[32:47], s[0:1], 64
        s_load_dwordx2 s[48:49], s[0:1], 128
        v_lshrrev_b32 v3, 6, v0
        v_and_b32 v0, 63, v0
        v_readfirstlane_b32 {s(sWAVE)}, v3
        v_mov_b32 v1, {CNT}
        v_mov_b32 v2, 1
        s_and_b32 {s(sT0)}, s2, 7
        s_lshr_b32 {s(sT1)}, s2, 3
        s_lshl_b32 {s(sG)}, {s(sT0)}, 2
        s_lshr_b32 {s(sT2)}, {s(sT1)}, 3
        s_add_u32 {s(sG)}, {s(sG)}, {s(sT2)}
        s_and_b32 {s(sR)}, {s(sT1)}, 7
        s_lshl_b32 {s(sP)}, {s(sT0)}, 5
        s_add_u32 {s(sP)}, {s(sP)}, {s(sT1)}
        s_and_b32 {s(sROT)}, {s(sT1)}, 15
        s_mov_b32 {s(sBUD)}, 200000
        s_and_b32 {s(sW4)}, {s(sWAVE)}, 3
        s_lshr_b32 {s(sCLS)}, {s(sWAVE)}, 2
        s_lshl_b32 {s(sCLS)}, {s(sCLS)}, 2
        s_lshr_b32 {s(sCLS)}, {self.opt('order', 0x201)}, {s(sCLS)}
        s_and_b32 {s(sCLS)}, {s(sCLS)}, 3
        s_mov_b32 {s(rWS+2)}, {WS_SIZE}
        s_mov_b32 {s(rWS+3)}, 0x20000
        s_mov_b32 {s(rA+3)}, 0x20000
        s_mov_b32 {s(rB+3)}, 0x20000
        s_cmp_eq_u32 {s(sCLS)}, 2
        s_cbranch_scc1 L_role_s
        s_mov_b32 {s(rA+2)}, 2097152
        s_cmp_eq_u32 {s(sCLS)}, 0
        s_cbranch_scc1 L_role_early""")
    def ptrs_ready(self, x=True):
        a = self.a
        a(f"""s_waitcnt lgkmcnt(0)
        s_mov_b32 {s(rWS)}, {s(pWS)}
        s_mov_b32 {s(rWS+1)}, {s(pWS+1)}""")
        if x: a(f"""s_mov_b32 {s(rA)}, {s(pX)}
        s_mov_b32 {s(rA+1)}, {s(pX+1)}
        s_load_dword {s(sNONCE)}, {s(pWS,2)}, 0""")

    def role_late_start(self):
        a = self.a; vL, vZ, vONE, vT = self.vL, self.vZ, self.vONE, self.vT
        a("s_setprio 3")
        a(f"""s_and_b32 {s(sT0)}, {s(sR)}, 3
        s_lshl_b32 {s(sT1)}, {s(sG)}, 2
        s_add_u32 {s(sT1)}, {s(sT1)}, {s(sT0)}
        s_lshl_b32 {s(sT1)}, {s(sT1)}, 14
        s_lshl_b32 {s(sT2)}, {s(sW4)}, 8
        s_add_u32 {s(sT1)}, {s(sT1)}, {s(sT2)}
        v_and_b32 v4, 15, v0
        v_lshrrev_b32 v5, 4, v0
        v_lshlrev_b32 v6, 10, v4
        v_lshl_add_u32 v6, v5, 4, v6
        s_lshl_b32 {s(sT2)}, {s(sW4)}, 12
        v_lshrrev_b32 v7, 4, v0
        v_and_b32 v7, 1, v7
        v_lshlrev_b32 v7, 7, v7
        v_lshlrev_b32 v24, 4, v0
        v_xor_b32 v7, v7, v24
        s_add_u32 m0, {s(sT2)}, {R0}
        s_mov_b32 {s(rB+2)}, 16384""")
        self.ptrs_ready()
        for k in range(4):
            a(f"buffer_load_dwordx4 {v(8+4*k,4)}, v6, {s(rA,4)}, {s(sT1)} offen offset:{64*k}")
        a(f"""s_cmp_ge_u32 {s(sR)}, 4
        s_cselect_b32 {s(rB)}, {s(pWV)}, {s(pWK)}
        s_cselect_b32 {s(rB+1)}, {s(pWV+1)}, {s(pWK+1)}""")
        for k in range(4):
            a(f"buffer_load_dwordx4 v7, {s(rB,4)}, {s(sT2)} offen offset:{1024*k} lds")
        a(f"""v_bfe_u32 v25, v0, 2, 2
        v_lshl_add_u32 v25, v5, 3, v25
        v_and_b32 v26, 1, v5
        v_lshl_add_u32 v25, v26, 2, v25
        v_lshlrev_b32 v25, 5, v25
        v_and_b32 v26, 3, v0
        v_lshl_add_u32 v25, v26, 3, v25
        v_add_u32 v25, {s(sT2)}, v25
        v_xor_b32 v26, 0x80, v25
        s_barrier
        s_waitcnt vmcnt(0) lgkmcnt(0)""")
        self.stamp(1)
        for k in range(4):
            a(f"ds_read_b64_tr_b16 {v(32+4*k,2)}, v25 offset:{R0+1024*k}")
            a(f"ds_read_b64_tr_b16 {v(34+4*k,2)}, v26 offset:{R0+1024*k}")
        a(f"""s_cmp_ge_u32 {s(sR)}, 4
        s_cbranch_scc1 L_kv_v""")
        for k in range(4):
            a(f"s_waitcnt lgkmcnt({6-2*k})")
            a(f"v_mfma_f32_16x16x32_bf16 v[48:51], {v(32+4*k,4)}, {v(8+4*k,4)}, {'0' if k==0 else 'v[48:51]'}")
        a("s_branch L_kv_j")
        a.label("L_kv_v")
        for k in range(4):
            a(f"s_waitcnt lgkmcnt({6-2*k})")
            a(f"v_mfma_f32_16x16x32_bf16 v[48:51], {v(8+4*k,4)}, {v(32+4*k,4)}, {'0' if k==0 else 'v[48:51]'}")
        a.label("L_kv_j")
        a(f"""s_lshl_b32 {s(sT2)}, {s(sW4)}, 10
        s_add_u32 {s(sT2)}, {s(sT2)}, {KVR}
        v_add_u32 v27, {s(sT2)}, v24
        s_add_u32 {s(sT3)}, {s(sNONCE)}, 0x9e3779b9
        v_mov_b32 v28, {s(sT3)}
        ds_write_b32 v1, v28 offset:128
        s_nop 3
        ds_write_b128 v27, v[48:51]
        s_waitcnt lgkmcnt(0)""")
        self.arrive_rtn(C_KV, vZ, vONE, vT)
        self.stamp(7)
        a("s_cbranch_scc0 L_kv_done")
        a(f"""v_add_u32 v27, {KVR}, v24
        ds_read_b128 v[48:51], v27
        ds_read_b128 v[52:55], v27 offset:1024
        ds_read_b128 v[56:59], v27 offset:2048
        ds_read_b128 v[60:63], v27 offset:3072
        s_cmp_ge_u32 {s(sR)}, 4
        s_cselect_b32 {s(sT2)}, 1.0, {fbits(0.25*LOG2E)}
        s_cselect_b32 {s(sT3)}, 1024, 0
        s_cselect_b32 {s(sT4)}, 5, 4
        s_lshl_b32 {s(sT4)}, {s(sT4)}, 7
        s_bitcmp1_b32 {s(sR)}, 0
        s_cselect_b32 {s(sT4)}, {s(sT4)}, 0
        s_add_u32 {s(sT3)}, {s(sT3)}, {s(sT4)}
        s_bfe_u32 {s(sT4)}, {s(sR)}, 0x10001
        s_lshl_b32 {s(sT5)}, {s(sG)}, 1
        s_add_u32 {s(sT4)}, {s(sT4)}, {s(sT5)}
        s_mul_i32 {s(sT4)}, {s(sT4)}, {KVT}
        s_add_u32 {s(sT3)}, {s(sT3)}, {s(sT4)}
        s_add_u32 {s(sT3)}, {s(sT3)}, {WS_KV}
        v_lshlrev_b32 v6, 5, v4
        v_lshl_add_u32 v6, v5, 3, v6
        s_waitcnt lgkmcnt(0)""")
        for i in range(4): a(f"v_add_f32 v{48+i}, v{48+i}, v{52+i}")
        for i in range(4): a(f"v_add_f32 v{56+i}, v{56+i}, v{60+i}")
        for i in range(4): a(f"v_add_f32 v{48+i}, v{48+i}, v{56+i}")
        for i in range(4): a(f"v_mul_f32 v{48+i}, {s(sT2)}, v{48+i}")
        a(f"""v_cvt_pk_bf16_f32 v52, v48, v49
        v_cvt_pk_bf16_f32 v53, v50, v51
        buffer_store_dwordx2 v[52:53], v6, {s(rWS,4)}, {s(sT3)} offen sc1
        s_cmp_ge_u32 {s(sR)}, 4
        s_cbranch_scc0 L_kv_noones
        v_mov_b32 v54, 0x3f803f80
        v_mov_b32 v55, 0x3f803f80
        v_lshlrev_b32 v7, 3, v0
        s_mov_b64 exec, 0xffff
        buffer_store_dwordx2 v[54:55], v7, {s(rWS,4)}, {s(sT3)} offen offset:512 sc1
        s_mov_b64 exec, -1""")
        a.label("L_kv_noones")
        self.stamp(8)
        a(f"""s_lshl_b32 {s(sT2)}, {s(sG)}, 3
        s_add_u32 {s(sT2)}, {s(sT2)}, {s(sR)}
        s_lshl_b32 {s(sT2)}, {s(sT2)}, {self.opt('fsh', 5)}
        s_add_u32 {s(sT2)}, {s(sT2)}, {WS_FLAG}
        s_add_u32 {s(sT3)}, {s(sNONCE)}, 0x9e3779b9
        v_mov_b32 v54, {s(sT3)}
        v_mov_b32 v7, 0
        s_waitcnt vmcnt(0)
        s_mov_b64 exec, 1
        buffer_store_dword v54, v7, {s(rWS,4)}, {s(sT2)} offen sc1
        s_mov_b64 exec, -1""")
        a.label("L_kv_done")
        self.stamp(2)
        self.qproj()
        a("s_branch L_att_setup")

    def x_dma(self, lds, row0):
        a = self.a
        a(f"""s_lshl_b32 {s(sT1)}, {s(sG)}, 16
        s_lshl_b32 {s(sT2)}, {s(sW4)}, 13
        s_add_u32 {s(sT1)}, {s(sT1)}, {s(sT2)}
        s_add_u32 {s(sT1)}, {s(sT1)}, {row0*1024}
        s_add_u32 m0, {s(sT2)}, {lds}
        s_and_b32 {s(sT3)}, {s(sW4)}, 1
        s_lshl_b32 {s(sT3)}, {s(sT3)}, 7
        v_lshlrev_b32 v4, 4, v0
        v_xor_b32 v4, {s(sT3)}, v4""")
        for i in range(8):
            if i == 4:
                a(f"s_add_u32 {s(sT1)}, {s(sT1)}, 4096\ns_add_u32 m0, m0, 4096")
            if i == 0:
                a(f"buffer_load_dwordx4 v4, {s(rA,4)}, {s(sT1)} offen lds")
            else:
                a(f"v_xor_b32 v{5+(i&1)}, {16*i}, v4")
                a(f"buffer_load_dwordx4 v{5+(i&1)}, {s(rA,4)}, {s(sT1)} offen offset:{1024*(i&3)} lds")

    def role_early_start(self):
        a = self.a; vL, vZ, vONE, vT = self.vL, self.vZ, self.vONE, self.vT
        a.label("L_role_early")
        a(f"""s_setprio 3
        v_lshl_add_u32 v4, v0, 2, v1
        v_mov_b32 v5, 0
        ds_write_b32 v4, v5""")
        self.ptrs_ready()
        if self.opt("ipf", 1):
            a(f"""s_getpc_b64 {s(sT2,2)}""")
            a.label("L_pc")
            a(f"""s_and_b32 {s(sT0)}, {s(sP)}, 31
            s_lshl_b32 {s(sT0)}, {s(sT0)}, 2
            s_add_u32 {s(sT0)}, {s(sT0)}, {s(sW4)}
            s_lshl_b32 {s(sT0)}, {s(sT0)}, 7
            s_min_u32 {s(sT0)}, {s(sT0)}, L_exit-L_pc-128
            s_and_b32 {s(sT0)}, {s(sT0)}, -4
            s_add_u32 {s(sT2)}, {s(sT2)}, {s(sT0)}
            s_addc_u32 {s(sT3)}, {s(sT3)}, 0
            s_load_dword s94, {s(sT2,2)}, 0
            s_load_dword s95, {s(sT2,2)}, 64""")
        if not self.opt("barx", 1): a("s_barrier")
        a(f"""s_mov_b32 {s(rB)}, {s(pWQ)}
        s_mov_b32 {s(rB+1)}, {s(pWQ+1)}
        s_mov_b32 {s(rB+2)}, 524288""")
        self.x_dma(XE, 0)
        a(f"""v_lshrrev_b32 v7, 3, v0
        v_and_b32 v8, 7, v0
        v_and_b32 v9, 2, v7
        v_xor_b32 v8, v8, v9
        s_and_b32 {s(sT3)}, {s(sW4)}, 1
        s_lshl_b32 {s(sT3)}, {s(sT3)}, 2
        v_xor_b32 v8, {s(sT3)}, v8
        v_lshlrev_b32 v7, 10, v7
        v_lshl_add_u32 v7, v8, 4, v7
        s_lshl_b32 {s(sT1)}, {s(sW4)}, 13
        s_lshl_b32 {s(sT2)}, {s(sR)}, 7
        s_add_u32 {s(sT1)}, {s(sT1)}, {s(sT2)}
        s_lshl_b32 {s(sT2)}, {s(sW4)}, 10
        s_add_u32 m0, {s(sT2)}, {W}""")
        self.stamp(7)
        if self.opt("barx", 1): a("s_barrier")
        if self.opt("xwait", 0): a("s_waitcnt vmcnt(0)")
        self.stamp(8)
        for i in range(16):
            a(f"buffer_load_dwordx4 v7, {s(rB,4)}, {s(sT1)} offen lds")
            if i < 15: a(f"s_add_u32 m0, m0, 4096\ns_add_u32 {s(sT1)}, {s(sT1)}, 32768")
        self.stamp(1)
        a("s_waitcnt vmcnt(8)")
        self.arrive(C_WQA, vZ, vONE)
        a("s_waitcnt vmcnt(0)")
        self.arrive(C_WQB, vZ, vONE)
        self.stamp(10)
        if self.opt("pollat", 1) == 0: self.first_poll()
        a("s_waitcnt lgkmcnt(0)")

    Q0, O0, S0, KA = 8, 24, 88, 120
    vKO, vVO, vIDX = 4, 5, 6
    def qproj(self):
        a = self.a; vL, vZ, vONE, vT = self.vL, self.vZ, self.vONE, self.vT
        WF = 76
        a(f"""v_xor_b32 v6, v4, v5
        v_lshlrev_b32 v6, 4, v6
        v_lshl_add_u32 v6, v4, 10, v6
        v_add_u32 v144, {XE}, v6
        v_xor_b32 v145, 64, v144
        v_xor_b32 v146, 0x80, v144
        v_xor_b32 v147, 0xc0, v144
        v_bfe_u32 v6, v0, 2, 2
        v_lshl_add_u32 v7, v5, 3, v6
        v_lshlrev_b32 v7, 7, v7
        v_and_b32 v6, 2, v6
        v_and_b32 v8, 1, v5
        v_lshl_add_u32 v6, v8, 2, v6
        s_lshl_b32 {s(sT1)}, {s(sW4)}, 1
        v_xor_b32 v6, {s(sT1)}, v6
        v_lshl_add_u32 v7, v6, 4, v7
        v_and_b32 v6, 3, v0
        v_lshl_add_u32 v7, v6, 3, v7
        v_add_u32 v148, {W}, v7
        v_lshrrev_b32 v6, 1, v5
        v_lshlrev_b32 v6, 9, v6
        v_lshl_add_u32 v6, v4, 4, v6
        v_and_b32 v7, 1, v5
        v_lshl_add_u32 v6, v7, 3, v6
        s_lshl_b32 {s(sT2)}, {s(sW4)}, 10
        s_add_u32 {s(sT2)}, {s(sT2)}, {QB}
        v_add_u32 v149, {s(sT2)}, v6""")
        def rdw(sx):
            a(f"ds_read_b64_tr_b16 {v(WF+4*sx,2)}, v148 offset:{4096*sx}")
            a(f"ds_read_b64_tr_b16 {v(WF+4*sx+2,2)}, v148 offset:{4096*sx+512}")
        def rdx(sx):
            b = 24 + 8 * (sx % 4)
            a(f"ds_read_b128 {v(b,4)}, v{144+(sx&3)} offset:{256*(sx>>2)}")
            a(f"ds_read_b128 {v(b+4,4)}, v{144+(sx&3)} offset:{256*(sx>>2)+16384}")
        def mm(sx):
            b = 24 + 8 * (sx % 4)
            a(f"v_mfma_f32_16x16x32_bf16 v[64:67], {v(WF+4*sx,4)}, {v(b,4)}, {'0' if sx==0 else 'v[64:67]'}")
            a(f"v_mfma_f32_16x16x32_bf16 v[68:71], {v(WF+4*sx,4)}, {v(b+4,4)}, {'0' if sx==0 else 'v[68:71]'}")
        def qout(off, cnt):
            a(f"""v_cvt_pk_bf16_f32 v72, v64, v65
            v_cvt_pk_bf16_f32 v73, v66, v67
            v_cvt_pk_bf16_f32 v74, v68, v69
            v_cvt_pk_bf16_f32 v75, v70, v71
            ds_write_b64 v149, v[72:73] offset:{off}
            ds_write_b64 v149, v[74:75] offset:{off+256}
            s_waitcnt lgkmcnt(0)""")
        for half in range(2):
            s0 = 8 * half
            self.waitc([C_WQA, C_WQB][half], 4, vZ, vT, slp=0)
            if half: self.stamp(10)
            for k in range(2): rdw(s0 + k); rdx(s0 + k)
            for sx in range(s0, s0 + 8):
                if sx + 2 < s0 + 8:
                    rdw(sx + 2); rdx(sx + 2); a("s_waitcnt lgkmcnt(8)")
                else:
                    a(f"s_waitcnt lgkmcnt({4*(s0+7-sx)})")
                mm(sx)
        qout(0, C_QE)
        self.sync4(C_QE, vZ, vONE, vT, slp=1)
        self.stamp(3)
        if self.opt("xlwait", 0): self.waitc(C_FL, 4, vZ, vT, slp=2)
        self.x_dma(XE, 32)
        a("s_waitcnt vmcnt(0)")
        self.sync4(C_XL, vZ, vONE, vT, slp=1)
        for k in range(3): rdx(k)
        for sx in range(16):
            if sx + 3 < 16:
                rdx(sx + 3); a("s_waitcnt lgkmcnt(6)")
            else:
                a(f"s_waitcnt lgkmcnt({2*(15-sx)})")
            mm(sx)
        qout(4096, C_QL)
        self.arrive(C_QL, vZ, vONE)

    def qproj_and_attention(self):
        a = self.a; vL, vZ, vONE, vT = self.vL, self.vZ, self.vONE, self.vT
        a.label("L_att_setup")
        a(f"""s_lshl_b32 {s(sT2)}, {s(sCLS)}, 2
        v_add_u32 v92, {s(sT2)}, v1""")
        Q0, O0, S0, KA = self.Q0, self.O0, self.S0, self.KA
        vKO, vVO, vIDX = self.vKO, self.vVO, self.vIDX
        a(f"""s_mul_i32 {s(sT2)}, {s(sW4)}, {16*KVT}
        s_add_u32 {s(sT2)}, {s(sT2)}, {WS_KV}
        v_and_b32 v7, 31, v0
        v_lshrrev_b32 v8, 5, v0
        v_lshlrev_b32 v4, 5, v7
        v_lshl_add_u32 v4, v8, 4, v4
        v_add_u32 v4, {s(sT2)}, v4
        v_and_b32 v9, 3, v7
        v_bfe_u32 v10, v7, 2, 1
        v_lshl_add_u32 v9, v10, 3, v9
        v_bfe_u32 v10, v7, 3, 1
        v_lshl_add_u32 v9, v10, 2, v9
        v_lshlrev_b32 v9, 5, v9
        v_cmp_gt_u32 vcc, 16, v7
        v_mov_b32 v10, {OOB}
        v_cndmask_b32 v9, v10, v9, vcc
        v_and_b32 v10, 27, v7
        v_cmp_eq_u32 vcc, 16, v10
        v_mov_b32 v10, 512
        v_cndmask_b32 v9, v9, v10, vcc
        v_lshl_add_u32 v9, v8, 4, v9
        v_add_u32 v5, {s(sT2)}, v9
        v_mov_b32 v6, 0xdddddddd""")
        for h in range(4):
            for i in range(0, 10, 2): a(f"v_mov_b64 {v(O0+16*h+i,2)}, 0")
        for i in range(0, 8, 2): a(f"v_mov_b64 {v(S0+24+i,2)}, 0")
        for i in range(0, 4, 2): a(f"v_mov_b64 {v(KA+12*self.opt('nbuf',4)-4+i,2)}, 0")
        self.tail_setup()
        if self.opt("chunk", 1):
            a(f"""s_cmp_eq_u32 {s(sCLS)}, 0
            s_cselect_b32 s35, {self.opt('ce', 4) + 1}, {self.opt('cl', 6) + 1}
            s_lshl_b32 s35, 1, s35""")
        a(f"""s_cmp_eq_u32 {s(sCLS)}, 0
        s_cbranch_scc0 L_late_flags
        s_add_u32 {s(sT3)}, {s(sNONCE)}, 0x9e3779b9""")
        if self.opt("pollat", 1) == 1: self.first_poll()
        if self.opt("pollat", 1) == 2:
            self.waitc(C_QE, 1, vZ, vT, slp=1); self.first_poll()
        a.label("L_poll")
        a(f"""s_waitcnt vmcnt(0)
        v_cmp_ne_u32 vcc, {s(sT3)}, v94
        s_and_b64 exec, exec, vcc
        s_cbranch_execz L_poll_ok
        s_sleep {self.opt('pslp', 1)}
        buffer_load_dword v94, v93, {s(rWS,4)}, {s(sT1)} offen sc1
        s_sub_u32 {s(sBUD)}, {s(sBUD)}, 1
        s_cbranch_scc0 L_poll
        s_mov_b32 {s(sBUD)}, 0
        s_waitcnt vmcnt(0)""")
        a.label("L_poll_ok")
        a("s_mov_b64 exec, -1")
        a("s_branch L_flags_done")
        a.label("L_late_flags")
        self.waitc(C_FL, 4, vZ, vT)
        a.label("L_flags_done")
        self.stamp(4)
        NB = self.opt("nbuf", 4)
        BUF = [KA + 12 * i for i in range(NB)]
        sN = sT4
        def sof_next():
            a(f"""s_add_u32 {s(sROT)}, {s(sROT)}, 1
            s_and_b32 {s(sROT)}, {s(sROT)}, 15
            s_mul_i32 {s(sSOF)}, {s(sROT)}, {KVT}""")
            if self.inloop:
                a(f"""s_cmp_eq_u32 {s(sLOOP)}, 1
                s_cselect_b32 {s(sSOF)}, {OOB}, {s(sSOF)}""")
        SC = {0: "sc1", 1: "", 2: "sc0", 3: "nt", 4: "sc0 sc1"}[self.opt("kvsc", 0)]
        self.inloop = False
        def ldK(b):
            if not (self.inloop and self.opt("nold")): a(f"buffer_load_dwordx4 {v(b,4)}, v{vKO}, {s(rWS,4)}, {s(sSOF)} offen {SC}")
        def ldV0(b):
            if not (self.inloop and self.opt("nold")): a(f"buffer_load_dwordx4 {v(b+4,4)}, v{vVO}, {s(rWS,4)}, {s(sSOF)} offen offset:1024 {SC}")
        def ldV1(b):
            if not (self.inloop and self.opt("nold")): a(f"buffer_load_dwordx4 {v(b+8,4)}, v{vVO}, {s(rWS,4)}, {s(sSOF)} offen offset:1664 {SC}")
        a(f"s_mul_i32 {s(sSOF)}, {s(sROT)}, {KVT}")
        for b in range(NB):
            if b: sof_next()
            ldK(BUF[b]); ldV0(BUF[b])
            if b < NB - 1: ldV1(BUF[b])
        a(f"s_cmp_eq_u32 {s(sCLS)}, 0\ns_cbranch_scc0 L_nofl")
        if self.opt("p16", 0):
            a.label("L_poll2")
            a(f"""buffer_load_dword v94, v93, {s(rWS,4)}, {s(sT1)} offen sc1
            s_waitcnt vmcnt(0)
            v_cmp_ne_u32 vcc, {s(sT3)}, v94
            s_and_b64 exec, exec, vcc
            s_cbranch_execz L_poll2_ok
            s_sub_u32 {s(sBUD)}, {s(sBUD)}, 1
            s_cbranch_scc0 L_poll2
            s_mov_b32 {s(sBUD)}, 0""")
            a.label("L_poll2_ok")
            a("s_mov_b64 exec, -1")
        self.arrive(C_FL, vZ, vONE)
        a.label("L_nofl")
        self.waitc(C_QE, 4, 92, vT, slp=0)
        a(f"""s_lshl_b32 {s(sT2)}, {s(sCLS)}, 12
        s_add_u32 {s(sT2)}, {s(sT2)}, {QB}
        v_lshl_add_u32 v7, v0, 4, {s(sT2)}""")
        for i in range(4):
            a(f"""s_add_u32 {s(sT3)}, {s(sW4)}, {i}
            s_and_b32 {s(sT3)}, {s(sT3)}, 3
            s_lshl_b32 {s(sT3)}, {s(sT3)}, 10
            v_add_u32 v{S0+i}, {s(sT3)}, v7
            ds_read_b128 {v(Q0+4*i,4)}, v{S0+i}""")
        a(f"""s_mov_b32 {s(sLOOP)}, {16//NB}
        s_waitcnt vmcnt({3*NB-4}) lgkmcnt(0)
        v_mfma_f32_32x32x16_bf16 {v(S0,16)}, {v(KA,4)}, {v(Q0,4)}, 0
        s_nop 11""")
        self.stamp(5)
        a(f"""s_setprio {self.opt('eprio', 2)}
        s_cmp_eq_u32 {s(sCLS)}, 0
        s_cbranch_scc1 L_att0
        s_setprio {self.opt('lprio', 1)}""")
        a.label("L_att0")
        a(".p2align 6")
        a.label("L_att")
        self.inloop = True
        CHK = self.opt("chunk", 1)
        for t in range(NB):
            cur = BUF[t]; prv = BUF[(t - 1) % NB]; nxt = BUF[(t + 1) % NB]
            for i in range(4):
                S = S0 + 16 * (i & 1); Sn = S0 + 16 * ((i + 1) & 1)
                def ex(a0, a1):
                    for k in range(a0, a1): a(f"v_exp_f32 v{S+k}, v{S+k}")
                ex(0, 2)
                if i == 1 and NB == 2 and not self.opt("nowait"): a("s_waitcnt vmcnt(3)")
                pv = prv if i == 0 else cur
                a(f"v_smfmac_f32_32x32x32_bf16 {v(O0+16*((i-1)&3),16)}, {v(pv+8,4)}, {v(Sn+8,8)}, v{vIDX}")
                if i == 0: ldV1(prv)
                if i == 1 and not self.opt("nosof"): sof_next()
                if CHK and t % 2 == 0 and i == 2:
                    L = a.newlabel("Lp")
                    a(f"""s_lshr_b32 s35, s35, 1
                    s_bitcmp1_b32 s35, 0
                    s_cbranch_scc0 {L}
                    s_setprio {self.opt('lprio', 1) - 1}
                    s_cmp_eq_u32 {s(sCLS)}, 0
                    s_cbranch_scc0 {L}
                    s_setprio {self.opt('eprio', 2) - 1}""")
                    a.label(L)
                ex(2, 5)
                if i == 3 and not self.opt("nowait"): a(f"s_waitcnt vmcnt({2 if NB == 2 else 3*NB-5})")
                kk = nxt if i == 3 else cur
                a(f"v_mfma_f32_32x32x16_bf16 {v(Sn,16)}, {v(kk,4)}, {v(Q0+4*((i+1)&3),4)}, 0")
                if i == 2: ldK(cur)
                ex(5, 10)
                a(f"v_smfmac_f32_32x32x32_bf16 {v(O0+16*i,16)}, {v(cur+4,4)}, {v(S,8)}, v{vIDX}")
                if i == 3: ldV0(cur)
                if t == NB - 1 and i == 3:
                    ex(10, 13)
                    a(f"s_sub_u32 {s(sLOOP)}, {s(sLOOP)}, 1\ns_cmp_lg_u32 {s(sLOOP)}, 0")
                    ex(13, 16)
                else:
                    ex(10, 16)
        a("s_cbranch_scc1 L_att")
        a(f"s_nop 1")
        a(f"v_smfmac_f32_32x32x32_bf16 {v(O0+48,16)}, {v(BUF[-1]+8,4)}, {v(S0+24,8)}, v{vIDX}")
        self.stamp(6)
        if self.opt("r0late", 0) == 2:
            a(f"s_cmp_eq_u32 {s(sCLS)}, 0\ns_cbranch_scc1 L_nole")
            self.arrive(C_WQC, vZ, vONE)
            a.label("L_nole")
        self.att_tail()

    def first_poll(self):
        self.a(f"""s_lshl_b32 {s(sT1)}, {s(sW4)}, {6 + self.opt('fsh', 5)}
        s_add_u32 {s(sT1)}, {s(sT1)}, {WS_FLAG}
        v_lshlrev_b32 v93, {self.opt('fsh', 5)}, v0""")
        if self.opt("p16", 0):
            self.a(f"""v_lshrrev_b32 v95, 3, v0
            v_bfe_u32 v96, v0, 1, 1
            v_lshl_add_u32 v95, v95, 1, v96
            v_subrev_u32 v95, {s(sROT)}, v95
            v_and_b32 v95, 15, v95
            v_cmp_gt_u32 vcc, {self.opt('nbuf', 4)}, v95
            s_mov_b64 exec, vcc""")
        self.a(f"buffer_load_dword v94, v93, {s(rWS,4)}, {s(sT1)} offen sc1")

    sP1, sP2, sP3, sP0, sOS = 70, 71, 72, 73, 74
    def tail_regs(self):
        b = 40 if True else 70
        return dict(p=[28, 29, 30, 31], os=32, cw=33, cp=34)
    def tail_setup(self):
        a = self.a; R = self.tail_regs()
        for i in range(4):
            a(f"""s_add_u32 {s(sT2)}, {s(sW4)}, {i}
            s_and_b32 {s(sT2)}, {s(sT2)}, 3
            s_mul_i32 {s(R['p'][i])}, {s(sT2)}, {3*PSLOT}""")
        a(f"""s_lshl_b32 {s(sT3)}, {s(sG)}, 1
        s_add_u32 {s(sT3)}, {s(sT3)}, {s(sCLS)}
        s_lshl_b32 {s(sT3)}, {s(sT3)}, 5
        s_lshl_b32 {s(sT4)}, {s(sR)}, 2
        s_add_u32 {s(sT3)}, {s(sT3)}, {s(sT4)}
        s_add_u32 {s(sT3)}, {s(sT3)}, {s(sW4)}
        s_lshl_b32 {s(sT3)}, {s(sT3)}, 10
        s_add_u32 {s(R['os'])}, {s(sT3)}, {WS_O}
        s_cmp_eq_u32 {s(sCLS)}, 0
        s_cselect_b32 {s(R['cw'])}, {C_QL}, {C_OE}
        s_cselect_b32 {s(R['cp'])}, {C_PE}, {C_PL}
        s_add_u32 {s(R['cw'])}, {s(R['cw'])}, {CNT}
        s_add_u32 {s(R['cp'])}, {s(R['cp'])}, {CNT}""")
    def att_tail(self):
        a = self.a; vL, vZ, vONE, vT = self.vL, self.vZ, self.vONE, self.vT
        Q0, O0, S0, KA = self.Q0, self.O0, self.S0, self.KA
        R = self.tail_regs()
        T = Q0 + 4
        if self.opt("tprio", 0) == 1:
            a(f"s_cmp_eq_u32 {s(sCLS)}, 0\ns_cbranch_scc1 L_notp\ns_setprio 3")
            a.label("L_notp")
        if self.opt("tprio", 0) == 2: a("s_setprio 3")
        a(f"""v_mov_b32 v{T}, {s(R['cw'])}
        v_mov_b32 v{T+1}, {s(R['cp'])}
        v_lshlrev_b32 v{T+2}, 4, v0
        v_lshlrev_b32 v{T+3}, 2, v0""")
        self.waitc(0, 4, T, vT)
        a(f"s_cmp_eq_u32 {s(sCLS)}, 0\ns_cbranch_scc0 L_noyt")
        self.waitc(C_YT, 4, vZ, vT)
        a.label("L_noyt")
        for i in range(1, 4):
            a(f"""v_add_u32 v{T+4}, {s(R['p'][i])}, v{T+2}
            v_add_u32 v{T+5}, {s(R['p'][i])}, v{T+3}
            ds_write_b128 v{T+4}, {v(O0+16*i,4)} offset:{XE+(i-1)*PSLOT}
            ds_write_b128 v{T+4}, {v(O0+16*i+4,4)} offset:{XE+(i-1)*PSLOT+1024}
            ds_write_b32 v{T+5}, v{O0+16*i+8} offset:{XE+(i-1)*PSLOT+2048}""")
        a(f"""v_add_u32 v{T+4}, {s(R['p'][0])}, v{T+2}
        v_add_u32 v{T+5}, {s(R['p'][0])}, v{T+3}
        s_waitcnt lgkmcnt(0)""")
        self.sync4(0, T + 1, vONE, vT)
        for i in range(1, 4):
            a(f"""ds_read_b128 {v(O0+16*i,4)}, v{T+4} offset:{XE+(i-1)*PSLOT}
            ds_read_b128 {v(O0+16*i+4,4)}, v{T+4} offset:{XE+(i-1)*PSLOT+1024}
            ds_read_b32 v{O0+16*i+8}, v{T+5} offset:{XE+(i-1)*PSLOT+2048}""")
        a(f"""s_mov_b32 {s(sT5)}, {s(R['os'])}
        s_waitcnt vmcnt(0)
        v_mov_b32 v146, v{T+2}
        s_waitcnt lgkmcnt(3)""")
        for k in range(9): a(f"v_add_f32 v{O0+16+k}, v{O0+16+k}, v{O0+32+k}")
        a("s_waitcnt lgkmcnt(0)")
        for k in range(9): a(f"v_add_f32 v{O0+k}, v{O0+k}, v{O0+48+k}")
        for k in range(9): a(f"v_add_f32 v{O0+k}, v{O0+k}, v{O0+16+k}")
        a(f"""v_add_f32 v150, v{O0}, v{O0+1}
        v_add_f32 v151, v{O0+2}, v{O0+3}
        v_add_f32 v152, v{O0+4}, v{O0+5}
        v_add_f32 v153, v{O0+6}, v{O0+7}
        v_add_f32 v150, v150, v151
        v_add_f32 v152, v152, v153
        v_add_f32 v150, v150, v152
        v_mov_b32 v151, 0x7f800000
        v_cmp_lt_f32 {s(sT2,2)}, |v150|, v151
        v_cmp_le_f32 vcc, {fbits(2.0**-60)}, v{O0+8}
        s_and_b64 {s(sT2,2)}, {s(sT2,2)}, vcc
        v_cmp_ge_f32 vcc, {fbits(2.0**60)}, v{O0+8}
        s_and_b64 vcc, {s(sT2,2)}, vcc""")
        if self.opt("force_fallback"): a("s_mov_b64 vcc, 0")
        a(f"""s_cmp_eq_u64 vcc, exec
        s_cbranch_scc0 L_fallback""")
        a.label("L_att_fin")
        self.stamp(9)
        a(f"v_rcp_f32 v150, v{O0+8}")
        for k in range(8): a(f"v_mul_f32 v{O0+k}, v150, v{O0+k}")
        for k in range(4): a(f"v_cvt_pk_bf16_f32 v{152+k}, v{O0+2*k}, v{O0+2*k+1}")
        for k in range(4): a(f"v_min_u32 v{152+k}, -2, v{152+k}")
        a(f"""s_lshl_b32 {s(sT2)}, {s(sCLS)}, 2
        v_add_u32 v151, {s(sT2)}, v1
        buffer_store_dwordx4 v[152:155], v146, {s(rWS,4)}, {s(sT5)} offen sc1
        s_waitcnt vmcnt(0)""")
        self.arrive(C_OE, 151, vONE)
        a(f"""s_or_b32 {s(sT2)}, {s(sWG)}, {s(sW4)}
        s_or_b32 {s(sT2)}, {s(sT2)}, {s(sCLS)}
        s_cmp_eq_u32 {s(sT2)}, 0
        s_cbranch_scc0 L_end
        s_add_u32 {s(sT3)}, {s(sNONCE)}, 0x9e3779b9
        v_mov_b32 v150, {s(sT3)}
        v_mov_b32 v151, 0
        s_mov_b64 exec, 1
        buffer_store_dword v150, v151, {s(rWS,4)}, 0 offen sc1
        s_mov_b64 exec, -1
        s_branch L_end""")
        self.fallback()

    def fallback(self):
        a = self.a
        Q0, O0, S0, KA = self.Q0, self.O0, self.S0, self.KA
        vKO, vVO, vIDX = self.vKO, self.vVO, self.vIDX
        C0 = O0 + 16
        a.label("L_fallback")
        a(f"""s_mul_i32 {s(sT2)}, {s(sW4)}, {16*KVT}
        v_subrev_u32 v7, {s(sT2)}, v{vKO}
        v_subrev_u32 v151, {s(sT2)}, v{vVO}
        v_mov_b32 v150, 0xff800000
        s_mov_b32 {s(sSOF)}, 0""")
        a.label("L_fb1")
        a(f"""buffer_load_dwordx4 {v(KA,4)}, v7, {s(rWS,4)}, {s(sSOF)} offen sc1
        s_waitcnt vmcnt(0)
        v_mfma_f32_32x32x16_bf16 {v(S0,16)}, {v(KA,4)}, {v(Q0,4)}, 0""")
        for k in range(8): a(f"v_max3_f32 v150, v150, v{S0+2*k}, v{S0+2*k+1}")
        a(f"""s_add_u32 {s(sSOF)}, {s(sSOF)}, {KVT}
        s_cmp_lt_u32 {s(sSOF)}, {64*KVT}
        s_cbranch_scc1 L_fb1
        v_mov_b32 v152, v150
        v_permlane32_swap_b32 v150, v152
        v_max_f32 v150, v150, v152""")
        for k in range(16): a(f"v_sub_f32 v{C0+k}, 0, v150")
        for k in range(16): a(f"v_mov_b32 v{O0+k}, 0")
        a(f"s_mov_b32 {s(sSOF)}, 0")
        a.label("L_fb2")
        a(f"""buffer_load_dwordx4 {v(KA,4)}, v7, {s(rWS,4)}, {s(sSOF)} offen sc1
        buffer_load_dwordx4 {v(KA+4,4)}, v151, {s(rWS,4)}, {s(sSOF)} offen offset:1024 sc1
        buffer_load_dwordx4 {v(KA+8,4)}, v151, {s(rWS,4)}, {s(sSOF)} offen offset:1664 sc1
        s_waitcnt vmcnt(0)
        v_mfma_f32_32x32x16_bf16 {v(S0,16)}, {v(KA,4)}, {v(Q0,4)}, {v(C0,16)}""")
        for k in range(16): a(f"v_exp_f32 v{S0+k}, v{S0+k}")
        a(f"""v_smfmac_f32_32x32x32_bf16 {v(O0,16)}, {v(KA+4,4)}, {v(S0,8)}, v{vIDX}
        v_smfmac_f32_32x32x32_bf16 {v(O0,16)}, {v(KA+8,4)}, {v(S0+8,8)}, v{vIDX}
        s_add_u32 {s(sSOF)}, {s(sSOF)}, {KVT}
        s_cmp_lt_u32 {s(sSOF)}, {64*KVT}
        s_nop 9
        s_cbranch_scc1 L_fb2
        s_nop 3
        s_branch L_att_fin""")

    def role_s(self):
        a = self.a; vL, vZ, vONE, vT = self.vL, self.vZ, self.vONE, self.vT
        a.label("L_role_s")
        a(f"s_setprio {self.opt('sprio', 3)}")
        sCH, sMH = sLOOP, sSOF
        a(f"""s_and_b32 {s(sCH)}, {s(sW4)}, 1
        s_lshr_b32 {s(sMH)}, {s(sW4)}, 1
        s_lshl_b32 {s(sT0)}, {s(sP)}, 2
        s_lshl_b32 {s(sT1)}, {s(sP)}, 9
        s_lshl_b32 {s(sT2)}, {s(sCH)}, 8
        s_add_u32 {s(sT1)}, {s(sT1)}, {s(sT2)}
        s_lshl_b32 {s(sT2)}, {s(sMH)}, 7
        s_add_u32 {s(sT1)}, {s(sT1)}, {s(sT2)}
        v_lshlrev_b32 v4, 1, v0
        s_mov_b32 {s(rA+2)}, 131072""")
        self.ptrs_ready(False)
        a(f"""s_load_dword {s(sT4)}, {s(pLDT,2)}, {s(sT0)}
        s_load_dword {s(sT5)}, {s(pDSK,2)}, {s(sT0)}""")
        for i, p in enumerate([pARE, pAIM, pBRE, pBIM, pCRE, pCIM]):
            a(f"s_mov_b32 {s(rA)}, {s(p)}\ns_mov_b32 {s(rA+1)}, {s(p+1)}")
            a(f"buffer_load_ushort v{8+i}, v4, {s(rA,4)}, {s(sT1)} offen")
        UE = self.opt("uearly", 0)
        if UE: self.u_load()
        a("s_barrier")
        a(f"""s_lshl_b32 {s(sT2)}, {s(sW4)}, 12
        s_add_u32 {s(sT2)}, {s(sT2)}, {GEN}
        v_bfe_u32 v5, v0, 1, 2
        v_lshlrev_b32 v5, 4, v5
        v_lshl_add_u32 v5, v0, 6, v5
        v_add_u32 v150, {s(sT2)}, v5
        v_xor_b32 v151, 16, v150
        v_xor_b32 v152, 32, v150
        v_xor_b32 v153, 48, v150
        v_bfe_u32 v5, v0, 2, 2
        v_lshrrev_b32 v6, 5, v0
        v_lshl_add_u32 v6, v6, 3, v5
        v_lshlrev_b32 v6, 6, v6
        v_bfe_u32 v7, v0, 4, 1
        v_lshlrev_b32 v7, 1, v7
        v_bfe_u32 v14, v0, 1, 1
        v_add_u32 v7, v7, v14
        v_lshrrev_b32 v5, 1, v5
        v_xor_b32 v7, v7, v5
        v_lshl_add_u32 v6, v7, 4, v6
        v_and_b32 v7, 1, v0
        v_lshl_add_u32 v6, v7, 3, v6
        v_add_u32 v154, {s(sT2)}, v6
        v_xor_b32 v155, 32, v154
        s_waitcnt lgkmcnt(0)
        s_lshl_b32 {s(sT2)}, {s(sCH)}, 4
        s_lshr_b32 {s(sT4)}, {s(sT4)}, {s(sT2)}
        s_lshl_b32 {s(sT4)}, {s(sT4)}, 16
        s_lshr_b32 {s(sT5)}, {s(sT5)}, {s(sT2)}
        s_lshl_b32 {s(sT5)}, {s(sT5)}, 16
        v_mov_b32 v14, {fbits(LOG2E)}
        v_mul_f32 v15, {s(sT4)}, v14
        v_exp_f32 v15, v15
        v_cvt_pk_bf16_f32 v15, v15, v15
        v_and_b32 v15, 0xffff0000, v15
        s_waitcnt vmcnt({8 if UE else 0})""")
        self.stamp(1)
        for i in range(6): a(f"v_lshlrev_b32 v{8+i}, 16, v{8+i}")
        Z1, Z2, Z4, Z8, Z256, CB, TMP = 18, 20, 22, 24, 26, 16, 28
        a(f"""v_mul_f32 v8, v15, v8
        v_mul_f32 v9, v15, v9
        v_mul_f32 v10, v15, v10
        v_mul_f32 v11, v15, v11
        v_mul_f32 v8, v14, v8
        v_mul_f32 v9, 0.15915494, v9""")
        self.cmul(CB, 10, 12, TMP)
        def cpow(d, mult):
            if mult != 1:
                a(f"v_mul_f32 v30, {fbits(mult)}, v8\nv_mul_f32 v31, {fbits(mult)}, v9")
                x, y = 30, 31
            else:
                x, y = 8, 9
            a(f"""v_exp_f32 v28, v{x}
            v_rndne_f32 v29, v{y}
            v_sub_f32 v29, v{y}, v29
            v_cos_f32 v{d}, v29
            v_sin_f32 v{d+1}, v29
            v_mul_f32 v{d}, v28, v{d}
            v_mul_f32 v{d+1}, v28, v{d+1}""")
        cpow(Z1, 1); cpow(Z256, 256)
        self.cmul(Z2, Z1, Z1, TMP); self.cmul(Z4, Z2, Z2, TMP); self.cmul(Z8, Z4, Z4, TMP)
        if UE: self.u_store()
        RE, IM = 32, 48
        FB = 64
        FA = 96
        ACC = 112
        X0, X1 = 128, 130
        def wr(src):
            for c in range(4): a(f"ds_write_b128 v{150+c}, {v(src+4*c,4)}")
        def rdtr(dst):
            for ks in range(4):
                a(f"ds_read_b64_tr_b16 {v(dst+4*ks,2)}, v154 offset:{1024*ks}")
                a(f"ds_read_b64_tr_b16 {v(dst+4*ks+2,2)}, v155 offset:{1024*ks+256}")
        if self.opt("gst"): self.stamp(3)
        a(f"v_mov_b32 v{X0}, 1.0\nv_mov_b32 v{X0+1}, 0")
        for j in range(0, 32, 2):
            if j > 0: self.cmul(X0, X1, Z8, TMP)
            self.cmul(X1, X0, Z8, TMP)
            a(f"v_cvt_pk_bf16_f32 v{RE+j//2}, v{X0}, v{X1}")
            a(f"v_cvt_pk_bf16_f32 v{IM+j//2}, -v{X0+1}, -v{X1+1}")
        if self.opt("gst"): self.stamp(4)
        wr(RE); rdtr(FB); wr(IM); rdtr(FB + 16)
        if self.opt("gst"): self.stamp(5)
        B = [CB] + [132 + 2 * m for m in range(7)]
        for m in range(1, 8): self.cmul(B[m], B[m - 1], Z256, TMP)
        Y0, Y1 = 146, 148
        def pack(row, x, y):
            a(f"v_cvt_pk_bf16_f32 v{RE+row//2}, v{x}, v{y}")
            a(f"v_cvt_pk_bf16_f32 v{IM+row//2}, v{x+1}, v{y+1}")
        a("s_waitcnt lgkmcnt(8)")
        self.cmul(X1, CB, Z1, TMP); pack(0, CB, X1)
        for row in (2, 4, 6):
            self.cmul(X0, X1, Z1, TMP); self.cmul(X1, X0, Z1, TMP); pack(row, X0, X1)
        self.cmul(X0, B[1], Z2, TMP); pack(8, B[1], X0)
        self.cmul(X1, X0, Z2, TMP); pack(10, X1, X1)
        self.cmul(X0, X1, Z2, TMP); pack(12, X1, X0)
        self.cmul(X1, X0, Z2, TMP); pack(14, X1, X1)
        for q, m in ((16, 2), (20, 3)):
            self.cmul(X0, B[m], Z4, TMP); pack(q, B[m], X0)
            self.cmul(X1, X0, Z4, TMP); pack(q + 2, X1, X1)
        for q, m in ((24, 4), (26, 6), (28, 5), (30, 7)):
            self.cmul(X0, B[m], Z8, TMP); pack(q, B[m], X0)
        if self.opt("gst"): self.stamp(6)
        wr(RE); rdtr(FA)
        a("s_waitcnt lgkmcnt(0)")
        if self.opt("gst"): self.stamp(7)
        for ks in range(4):
            a(f"v_mfma_f32_32x32x16_bf16 {v(ACC,16)}, {v(FA+4*ks,4)}, {v(FB+4*ks,4)}, {'0' if ks==0 else v(ACC,16)}")
        wr(IM); rdtr(RE)
        a("s_waitcnt lgkmcnt(0)")
        for ks in range(4):
            a(f"v_mfma_f32_32x32x16_bf16 {v(ACC,16)}, {v(RE+4*ks,4)}, {v(FB+16+4*ks,4)}, {v(ACC,16)}")
        self.stamp(2)
        if self.opt("abl_s") == 1: a("s_branch L_end")
        UG = self.UG
        self.waitc(C_KV, 4, vZ, vT, slp=1)
        a("ds_read_b32 v167, v1 offset:128")
        if not UE:
            if self.opt("uwait", 2): self.waitc({1: C_WQB, 2: C_FL, 3: C_QL}[self.opt("uwait", 2)], 4, vZ, vT, slp=2)
            self.u_load(); self.u_store()
        a("s_waitcnt lgkmcnt(0)")
        self.s_publish(C_UT, WS_FLAG3)
        a(f"""s_lshl_b32 {s(sT2)}, {s(sCH)}, 12
        s_add_u32 {s(sT2)}, {s(sT2)}, {GEN+8192}
        v_lshl_add_u32 v5, v0, 4, {s(sT2)}
        s_lshl_b32 {s(sT2)}, {s(sCH)}, 2
        v_add_u32 v6, {s(sT2)}, v1
        s_mul_i32 {s(sT3)}, {s(sCH)}, {KCH}
        s_add_u32 {s(sT3)}, {s(sT3)}, {R0+256}
        s_cmp_eq_u32 {s(sMH)}, 0
        s_cbranch_scc1 L_s_expand""")
        for c in range(4): a(f"ds_write_b128 v5, {v(ACC+4*c,4)} offset:{1024*c}")
        a("s_waitcnt lgkmcnt(0)")
        self.arrive(C_KT0, 6, vONE)
        a("s_branch L_s_ucopy")
        a.label("L_s_expand")
        self.waitc(C_KT0, 1, 6, vT)
        for c in range(4): a(f"ds_read_b128 {v(32+4*c,4)}, v5 offset:{1024*c}")
        a(f"""v_lshl_add_u32 v7, v0, 4, {s(sT3)}
        v_mov_b32 v48, 0
        v_mov_b32 v49, 0
        v_mov_b32 v50, 0
        v_mov_b32 v51, 0""")
        for cp in range(2):
            for off in (0, 1024, 1136):
                a(f"ds_write_b128 v7, v[48:51] offset:{cp*KCOPY+off}")
        for k in range(16): a(f"v_add_f32 v{ACC+k}, v{ACC+k}, v{32+k}")
        a(f"""v_cmp_eq_u32 vcc, 0, v0
        v_mov_b32 v9, {s(sT5)}
        v_cndmask_b32 v9, 0, v9, vcc
        v_add_f32 v{ACC}, v{ACC}, v9
        v_bfe_u32 v8, v0, 3, 2
        v_mul_u32_u24 v8, 144, v8
        v_and_b32 v9, 7, v0
        v_lshl_add_u32 v8, v9, 4, v8
        v_add_u32 v8, {s(sT3)}, v8
        v_lshrrev_b32 v9, 5, v0
        v_lshlrev_b32 v10, 3, v9
        v_sub_u32 v10, v8, v10
        v_mul_u32_u24 v9, 576, v9
        v_add_u32 v9, v8, v9
        v_and_b32 v11, 1, v0
        v_cmp_eq_u32 vcc, 0, v11""")
        A = ACC
        a(f"""v_cvt_pk_bf16_f32 v32, v{A+3}, v{A+2}
        v_cvt_pk_bf16_f32 v33, v{A+1}, v{A}
        ds_write_b64 v10, v[32:33] offset:{144*15+8}
        v_cvt_pk_bf16_f32 v34, v{A+6}, v{A+5}
        v_cvt_pk_bf16_f32 v35, v{A+4}, v{A+4}
        ds_write_b64 v10, v[34:35] offset:{144*19+8}
        v_cvt_pk_bf16_f32 v36, v{A+10}, v{A+10}
        v_cvt_pk_bf16_f32 v37, v{A+9}, v{A+9}
        v_cvt_pk_bf16_f32 v38, v{A+9}, v{A+8}
        v_cvt_pk_bf16_f32 v39, v{A+8}, v{A+8}
        ds_write_b128 v9, v[36:39] offset:{144*23}""")
        for q, (ra, dst, blk) in enumerate(((A + 12, 40, 31), (A + 14, 44, 39))):
            a(f"""v_cndmask_b32 v11, v{ra+1}, v{ra}, vcc
            v_cvt_pk_bf16_f32 v{dst}, v{ra+1}, v{ra+1}
            v_cvt_pk_bf16_f32 v{dst+1}, v{ra+1}, v11
            v_cvt_pk_bf16_f32 v{dst+2}, v{ra}, v{ra}
            v_cvt_pk_bf16_f32 v{dst+3}, v{ra}, v{ra}
            ds_write_b128 v9, {v(dst,4)} offset:{144*blk}""")
        a(f"""v_lshrrev_b32 v8, 3, v0
        v_mul_u32_u24 v8, 144, v8
        v_and_b32 v9, 7, v0
        v_lshl_add_u32 v8, v9, 4, v8
        v_add_u32 v8, {s(sT3)}, v8
        v_cmp_eq_u32 vcc, 0, v9
        v_mov_b32 v10, 16
        v_cndmask_b32 v10, v10, 32, vcc
        v_sub_u32 v10, v8, v10""")
        for it in range(4):
            a(f"ds_read_b128 {v(64+8*it,4)}, v8 offset:{144*(15+8*it)}")
            a(f"ds_read_b32 v{68+8*it}, v10 offset:{144*(15+8*it)}")
        for it in range(4):
            b = 64 + 8 * it
            a(f"s_waitcnt lgkmcnt({6-2*it+it})")
            for k in range(4): a(f"v_alignbit_b32 v{32+4*it+k}, v{b+k+1}, v{b+k}, 16")
            a(f"ds_write_b128 v8, {v(32+4*it,4)} offset:{KCOPY+144*(15+8*it)}")
        a.label("L_s_ucopy")
        self.stamp(3)
        a(f"""s_lshr_b32 {s(sT4)}, {s(sP)}, 5
        s_lshl_b32 {s(sT4)}, {s(sT4)}, 12
        s_add_u32 {s(sT4)}, {s(sT4)}, {WS_FLAG3}""")
        self.s_poll(sT4, 31)
        a(f"""s_lshl_b32 {s(sT1)}, {s(sP)}, 13
        s_lshl_b32 {s(sT2)}, {s(sW4)}, 11
        s_add_u32 {s(sT1)}, {s(sT1)}, {s(sT2)}
        s_add_u32 {s(sT1)}, {s(sT1)}, {WS_UT}
        v_lshlrev_b32 v4, 5, v0
        buffer_load_dwordx4 {v(UG,4)}, v4, {s(rWS,4)}, {s(sT1)} offen sc1
        buffer_load_dwordx4 {v(UG+4,4)}, v4, {s(rWS,4)}, {s(sT1)} offen offset:16 sc1""")
        self.waitc(C_QE, 4, vZ, vT, slp=4)
        a(f"""s_cmp_eq_u32 {s(sW4)}, 0
        s_cbranch_scc0 L_s_nouz
        v_lshrrev_b32 v8, 3, v0
        v_mul_u32_u24 v8, {UCOPY}, v8
        v_and_b32 v9, 7, v0
        v_lshl_add_u32 v8, v9, 4, v8
        v_add_u32 v8, {W}, v8
        v_mov_b32 v48, 0
        v_mov_b32 v49, 0
        v_mov_b32 v50, 0
        v_mov_b32 v51, 0
        ds_write_b128 v8, v[48:51]""")
        a.label("L_s_nouz")
        a(f"""s_lshl_b32 {s(sT2)}, {s(sW4)}, 10
        s_add_u32 {s(sT2)}, {s(sT2)}, {W}
        v_lshl_add_u32 v8, v0, 4, {s(sT2)}
        s_mov_b32 {s(sT0)}, 0x05040100
        s_mov_b32 {s(sT1)}, 0x07060302
        s_waitcnt vmcnt(0)""")
        self.stamp(4)
        for k in range(4):
            a(f"v_perm_b32 v{32+k}, v{UG+2*k+1}, v{UG+2*k}, {s(sT0)}")
            a(f"v_perm_b32 v{36+k}, v{UG+2*k+1}, v{UG+2*k}, {s(sT1)}")
        for ch in range(2):
            d = 32 + 4 * ch
            for ph in range(4):
                off = ch * UCH + ph * UCOPY + 128 - 4 * (ph + 1)
                if ph == 3:
                    a(f"ds_write_b128 v8, {v(d,4)} offset:{off}")
                elif ph == 1:
                    a(f"ds_write_b64 v8, {v(d,2)} offset:{off}\nds_write_b64 v8, {v(d+2,2)} offset:{off+8}")
                else:
                    a(f"v_add_u32 v9, {off}, v8")
                    a(f"ds_write2_b32 v9, v{d}, v{d+1} offset0:0 offset1:1\nds_write2_b32 v9, v{d+2}, v{d+3} offset0:2 offset1:3")
        a("s_waitcnt lgkmcnt(0)")
        self.arrive(C_KU, vZ, vONE)
        a(f"""s_mul_i32 {s(sT2)}, {s(sMH)}, 1152
        s_sub_u32 {s(sT3)}, {s(sT3)}, {s(sT2)}
        v_and_b32 v10, 15, v0
        v_mul_u32_u24 v8, 144, v10
        v_bfe_u32 v10, v0, 4, 1
        v_mul_u32_u24 v10, {KCOPY}, v10
        v_add_u32 v8, v8, v10
        v_lshrrev_b32 v11, 5, v0
        v_lshlrev_b32 v11, 4, v11
        v_sub_u32 v8, v8, v11
        v_add_u32 v8, {s(sT3)}, v8
        s_mul_i32 {s(sT2)}, {s(sCH)}, {UCH}
        s_lshl_b32 {s(sT4)}, {s(sMH)}, 10
        s_add_u32 {s(sT2)}, {s(sT2)}, {s(sT4)}
        s_add_u32 {s(sT2)}, {s(sT2)}, {W}
        v_and_b32 v10, 3, v0
        v_mul_u32_u24 v9, {UCOPY}, v10
        v_bfe_u32 v10, v0, 2, 3
        v_lshl_add_u32 v9, v10, 4, v9
        v_add_u32 v9, v9, v11
        v_add_u32 v9, {s(sT2)}, v9""")
        T0, T1 = 64, 80
        for k in range(0, 32, 2): a(f"v_mov_b64 {v(T0+k,2)}, 0")
        self.waitc(C_KU, 4, vZ, vT)
        self.stamp(5)
        if self.opt("abl_s") == 5: a("s_branch L_end")
        def crd(u, b):
            ao = 144 * 15 + 16 * (7 - 2 * u) if u < 4 else 144 * 14 + 16 * 7
            a(f"ds_read_b128 {v(b,4)}, v8 offset:{ao}")
            a(f"ds_read_b128 {v(b+8,4)}, v9 offset:{32*u}")
            a(f"ds_read_b128 {v(b+12,4)}, v9 offset:{32*u+2048}")
            a(f"ds_read_b128 {v(b+4,4)}, v8 offset:{ao+2304}")
        F = [32, 48]
        pace = self.opt("pace", 1)
        if pace == 0: crd(0, F[0])
        a(f"s_mov_b32 {s(sT4)}, {self.opt('convit', 8)}")
        a.label("L_conv")
        for u in range(4):
            b = F[u & 1]
            m0 = f"v_mfma_f32_32x32x16_bf16 {v(T0,16)}, {v(b,4)}, {v(b+8,4)}, {v(T0,16)}"
            m1 = f"v_mfma_f32_32x32x16_bf16 {v(T1,16)}, {v(b,4)}, {v(b+12,4)}, {v(T1,16)}"
            m2 = f"v_mfma_f32_32x32x16_bf16 {v(T1,16)}, {v(b+4,4)}, {v(b+8,4)}, {v(T1,16)}"
            ao = 144 * 15 + 16 * (7 - 2 * u)
            if pace == 0:
                crd(u + 1, F[(u + 1) & 1])
                a("s_waitcnt lgkmcnt(4)"); a(m0); a(m1); a(m2)
            elif pace == 1:
                a(f"ds_read_b128 {v(b,4)}, v8 offset:{ao}\nds_read_b128 {v(b+8,4)}, v9 offset:{32*u}\ns_waitcnt lgkmcnt(0)"); a(m0)
                a(f"ds_read_b128 {v(b+12,4)}, v9 offset:{32*u+2048}\ns_waitcnt lgkmcnt(0)"); a(m1)
                a(f"ds_read_b128 {v(b+4,4)}, v8 offset:{ao+2304}\ns_waitcnt lgkmcnt(0)"); a(m2)
            elif pace == 2:
                crd(u, b)
                a("s_waitcnt lgkmcnt(0)"); a(m0); a(m1); a(m2)
        a(f"""v_subrev_u32 v8, 144, v8
        v_add_u32 v9, 128, v9
        s_sub_u32 {s(sT4)}, {s(sT4)}, 1
        s_cmp_lg_u32 {s(sT4)}, 0
        s_cbranch_scc1 L_conv""")
        self.stamp(6)
        if self.opt("abl_s") == 6: a("s_branch L_end")
        def xchg_write(base, accs, ymode=False):
            a(f"""s_lshl_b32 {s(sT2)}, {s(sW4)}, 11
            s_add_u32 {s(sT2)}, {s(sT2)}, {base}
            v_lshl_add_u32 v10, v0, 4, {s(sT2)}
            s_lshl_b32 {s(sT2)}, {s(sW4)}, 13
            s_add_u32 {s(sT2)}, {s(sT2)}, {base}
            v_lshl_add_u32 v11, v0, 4, {s(sT2)}""")
            for q in range(4):
                r0, r1 = (accs+8*q, accs+8*q+4) if not ymode else (accs+16*(q>>1)+4*(q&1), accs+16*(q>>1)+8+4*(q&1))
                a(f"ds_write_b128 v10, {v(r0,4)} offset:{8192*q}")
                a(f"ds_write_b128 v10, {v(r1,4)} offset:{8192*q+1024}")
        def xchg_read(dst):
            for w in range(4):
                a(f"ds_read_b128 {v(dst+8*w,4)}, v11 offset:{2048*w}")
                a(f"ds_read_b128 {v(dst+8*w+4,4)}, v11 offset:{2048*w+1024}")
        a("s_waitcnt lgkmcnt(0)")
        xchg_write(YX, T0, True)
        a("s_waitcnt lgkmcnt(0)")
        self.arrive(C_Y, vZ, vONE)
        self.srd(rC, pOUT, 4194304)
        a(f"""s_lshl_b32 {s(sT1)}, {s(sP)}, 13
        s_lshl_b32 {s(sT2)}, {s(sW4)}, 11
        s_add_u32 {s(sT1)}, {s(sT1)}, {s(sT2)}
        s_add_u32 {s(sT1)}, {s(sT1)}, {WS_YT}
        v_and_b32 v12, 31, v0
        v_lshlrev_b32 v12, 3, v12
        v_lshrrev_b32 v13, 5, v0
        v_lshl_add_u32 v12, v13, 10, v12""")
        self.waitc(C_Y, 4, vZ, vT)
        xchg_read(32)
        self.srd(rB, pWO, 524288)
        a(f"""v_lshrrev_b32 v14, 3, v0
        v_and_b32 v15, 7, v0
        v_and_b32 v16, 2, v14
        v_lshlrev_b32 v16, 1, v16
        v_xor_b32 v15, v15, v16
        v_lshlrev_b32 v14, 10, v14
        v_lshl_add_u32 v14, v15, 4, v14
        s_lshl_b32 {s(sT3)}, {s(sW4)}, 17
        s_lshl_b32 {s(sT2)}, {s(sR)}, 7
        s_add_u32 {s(sT3)}, {s(sT3)}, {s(sT2)}
        s_lshl_b32 {s(sT4)}, {s(sW4)}, 13
        s_add_u32 {s(sT4)}, {s(sT4)}, {R0}""")
        def wo_dma():
            a(f"s_mov_b32 m0, {s(sT4)}")
            for i in range(8):
                a(f"buffer_load_dwordx4 v14, {s(rB,4)}, {s(sT3)} offen lds")
                if i < 7: a("s_add_u32 m0, m0, 1024")
                a(f"s_add_u32 {s(sT3)}, {s(sT3)}, 8192")
        wo_dma()
        a("s_waitcnt lgkmcnt(0)")
        for k in range(8):
            a(f"v_add_f32 v{32+k}, v{32+k}, v{48+k}\nv_add_f32 v{40+k}, v{40+k}, v{56+k}")
        for e in range(4):
            a(f"v_cvt_pk_bf16_f32 v{48+2*e}, v{36+e}, v{44+e}")
            a(f"v_cvt_pk_bf16_f32 v{49+2*e}, v{32+e}, v{40+e}")
        for e in range(4):
            a(f"buffer_store_dwordx2 {v(48+2*e,2)}, v12, {s(rWS,4)}, {s(sT1)} offen offset:{256*e} sc1")
        a(f"""s_lshl_b32 {s(sT1)}, {s(sG)}, 6
        s_lshl_b32 {s(sT2)}, {s(sR)}, 2
        s_add_u32 {s(sT1)}, {s(sT1)}, {s(sT2)}
        s_add_u32 {s(sT1)}, {s(sT1)}, {s(sW4)}
        s_lshl_b32 {s(sT1)}, {s(sT1)}, 10
        s_add_u32 {s(sT1)}, {s(sT1)}, {WS_O}
        s_add_u32 {s(sT2)}, {s(sT1)}, 32768
        v_mov_b64 v[20:21], -1
        v_mov_b64 v[22:23], -1
        v_lshlrev_b32 v15, 4, v0
        buffer_store_dwordx4 v[20:23], v15, {s(rWS,4)}, {s(sT1)} offen sc1
        buffer_store_dwordx4 v[20:23], v15, {s(rWS,4)}, {s(sT2)} offen sc1""")
        self.stamp(7)
        WOF = 96
        a(f"""v_bfe_u32 v15, v0, 2, 2
        v_lshrrev_b32 v16, 5, v0
        v_lshl_add_u32 v16, v16, 3, v15
        v_lshlrev_b32 v16, 7, v16
        v_and_b32 v15, 2, v15
        v_lshl_add_u32 v16, v15, 5, v16
        v_bfe_u32 v15, v0, 4, 1
        v_lshl_add_u32 v16, v15, 5, v16
        v_and_b32 v15, 1, v0
        v_lshl_add_u32 v16, v15, 4, v16
        v_bfe_u32 v15, v0, 1, 1
        v_lshl_add_u32 v16, v15, 3, v16
        v_add_u32 v16, {s(sT4)}, v16
        v_xor_b32 v17, 64, v16""")
        for rnd in range(2):
            a("s_waitcnt vmcnt(6)" if rnd == 0 else "s_waitcnt vmcnt(0)")
            for ks in range(4):
                for ct in range(2):
                    d = WOF + 32 * rnd + 8 * ks + 4 * ct
                    a(f"ds_read_b64_tr_b16 {v(d,2)}, v{16+ct} offset:{2048*ks}")
                    a(f"ds_read_b64_tr_b16 {v(d+2,2)}, v{16+ct} offset:{2048*ks+512}")
            if rnd == 0:
                a("s_waitcnt lgkmcnt(0)")
                self.s_publish(C_YT, WS_FLAG4)
                wo_dma()
        a("s_waitcnt lgkmcnt(0)")
        self.stamp(8)
        if self.opt("abl_s") == 8: a("s_branch L_end")
        self.y_poll()
        self.y_guard(self.y_assemble)
        a(f"""s_lshl_b32 {s(sT3)}, {s(sG)}, 16
        s_lshl_b32 {s(sT2)}, {s(sW4)}, 13
        s_add_u32 {s(sT3)}, {s(sT3)}, {s(sT2)}
        s_add_u32 {s(sT3)}, {s(sT3)}, {WS_O}
        v_lshlrev_b32 v14, 4, v0
        s_lshl_b32 {s(sT1)}, {s(sG)}, 17
        s_lshl_b32 {s(sT2)}, {s(sR)}, 7
        s_add_u32 {s(sT1)}, {s(sT1)}, {s(sT2)}
        s_lshl_b32 {s(sT2)}, {s(sW4)}, 14
        s_add_u32 {s(sT1)}, {s(sT1)}, {s(sT2)}
        v_lshrrev_b32 v12, 3, v0
        v_lshlrev_b32 v12, 11, v12
        v_and_b32 v15, 7, v0
        v_lshl_add_u32 v12, v15, 4, v12""")
        OF = 32; AC = 64
        a(f"""v_and_b32 v10, 31, v0
        v_lshlrev_b32 v10, 4, v10
        v_mul_u32_u24 v11, 576, v13
        v_add_u32 v10, v10, v11
        s_mul_i32 {s(sT2)}, {s(sW4)}, 2304
        s_add_u32 {s(sT2)}, {s(sT2)}, {W}
        v_add_u32 v10, {s(sT2)}, v10
        v_lshrrev_b32 v11, 3, v0
        v_lshlrev_b32 v11, 4, v11
        v_and_b32 v15, 1, v0
        v_mul_u32_u24 v15, 576, v15
        v_add_u32 v11, v11, v15
        v_bfe_u32 v15, v0, 1, 2
        v_mul_u32_u24 v15, 9344, v15
        v_add_u32 v11, v11, v15
        s_lshl_b32 {s(sT2)}, {s(sW4)}, 7
        s_add_u32 {s(sT2)}, {s(sT2)}, {W}
        v_add_u32 v11, {s(sT2)}, v11""")
        def oxw():
            for q in range(4):
                a(f"ds_write_b128 v10, {v(AC+8*q,4)} offset:{9344*q}")
                a(f"ds_write_b128 v10, {v(AC+8*q+4,4)} offset:{9344*q+1152}")
        def oxr():
            for w in range(4):
                a(f"ds_read_b128 {v(32+8*w,4)}, v11 offset:{2304*w}")
                a(f"ds_read_b128 {v(36+8*w,4)}, v11 offset:{2304*w+1152}")
        def omm(h):
            for ct in range(2):
                w = WOF + 8 * h + 4 * ct
                a(f"v_mfma_f32_32x32x16_bf16 {v(AC+16*ct,16)}, {v(w,4)}, {v(OF+4*h,4)}, {'0' if h==0 else v(AC+16*ct,16)}")
        a(f"""s_mov_b32 {s(sT5)}, 0
        v_mov_b32 v16, v1""")
        a.label("L_round")
        a(f"s_add_u32 {s(sT4)}, {s(sT3)}, 4096")
        self.waitc(C_OE, 4, 16, vT, slp=1)
        LP = self.opt("lightp", 1)
        if LP:
            if LP == 1: a(f"s_cmp_eq_u32 {s(sT5)}, 0\ns_cbranch_scc0 L_opoll")
            a(f"""v_lshlrev_b32 v18, 10, v0
            s_mov_b64 exec, 0xff""")
            a.label("L_lpoll")
            a(f"""buffer_load_dword v19, v18, {s(rWS,4)}, {s(sT3)} offen offset:1020 sc1
            s_waitcnt vmcnt(0)
            v_cmp_eq_u32 vcc, -1, v19
            s_and_b64 exec, exec, vcc
            s_cbranch_execz L_lok
            s_sleep {self.opt('lslp', 2)}
            s_sub_u32 {s(sBUD)}, {s(sBUD)}, 1
            s_cbranch_scc0 L_lpoll
            s_mov_b32 {s(sBUD)}, 0""")
            a.label("L_lok")
            a("s_mov_b64 exec, -1")
        a.label("L_opoll")
        for h in range(8): a(f"buffer_load_dwordx4 {v(OF+4*h,4)}, v14, {s(rWS,4)}, {s(sT3 if h<4 else sT4)} offen offset:{1024*(h&3)} sc1")
        for h in range(8):
            a(f"s_waitcnt vmcnt({7-h})")
            b = OF + 4 * h
            a(f"v_max_u32 v15, v{b}, v{b+1}" if h == 0 else f"v_max3_u32 v15, v15, v{b}, v{b+1}")
            if self.opt("ospec", 1): omm(h)
            a(f"v_max3_u32 v15, v15, v{b+2}, v{b+3}")
        a(f"""v_cmp_ne_u32 vcc, -1, v15
        s_cmp_eq_u64 vcc, exec
        s_cbranch_scc1 L_ook
        s_sub_u32 {s(sBUD)}, {s(sBUD)}, 1 ; nocount
        s_cbranch_scc0 L_opoll ; nocount
        s_mov_b32 {s(sBUD)}, 0 ; nocount""")
        a.label("L_ook")
        if self.dbg:
            a(f"s_cmp_eq_u32 {s(sT5)}, 0\ns_cbranch_scc0 L_st10")
            self.stamp(9)
            a.label("L_st10")
            self.stamp(10)
        if not self.opt("ospec", 1):
            for h in range(8): omm(h)
        oxw()
        a("s_waitcnt lgkmcnt(0)")
        self.sync4(C_O1, 16, vONE, vT, slp=0)
        oxr()
        a("s_waitcnt lgkmcnt(4)")
        for k in range(8): a(f"v_add_f32 v{32+k}, v{32+k}, v{40+k}")
        a("s_waitcnt lgkmcnt(0)")
        for k in range(8): a(f"v_add_f32 v{48+k}, v{48+k}, v{56+k}")
        for k in range(8): a(f"v_add_f32 v{32+k}, v{32+k}, v{48+k}")
        for k in range(4): a(f"v_cvt_pk_bf16_f32 v{20+k}, v{32+2*k}, v{33+2*k}")
        a(f"""buffer_store_dwordx4 v[20:23], v12, {s(rC,4)}, {s(sT1)} offen {self.opt_sc('osc', 0)}
        s_cmp_eq_u32 {s(sT5)}, 0
        s_cbranch_scc0 L_end
        s_mov_b32 {s(sT5)}, 1
        s_add_u32 {s(sT3)}, {s(sT3)}, 32768
        s_add_u32 {s(sT1)}, {s(sT1)}, 65536
        v_add_u32 v16, 4, v16
        v_add_u32 v10, {OX2-OX1}, v10
        v_add_u32 v11, {OX2-OX1}, v11
        s_branch L_round""")

    UG = 156
    def u_load(self):
        a = self.a; UG = self.UG; sCH, sMH = sLOOP, sSOF
        a(f"""s_mov_b32 {s(rB)}, {s(pU)}
        s_mov_b32 {s(rB+1)}, {s(pU+1)}
        s_mov_b32 {s(rB+2)}, 2097152
        s_and_b32 {s(sT0)}, {s(sP)}, 31
        s_lshr_b32 {s(sT3)}, {s(sP)}, 5
        s_lshl_b32 {s(sT1)}, {s(sT0)}, 16
        s_lshl_b32 {s(sT2)}, {s(sMH)}, 15
        s_add_u32 {s(sT1)}, {s(sT1)}, {s(sT2)}
        s_lshl_b32 {s(sT2)}, {s(sT3)}, 7
        s_add_u32 {s(sT1)}, {s(sT1)}, {s(sT2)}
        s_lshl_b32 {s(sT2)}, {s(sCH)}, 6
        s_add_u32 {s(sT1)}, {s(sT1)}, {s(sT2)}
        v_and_b32 v164, 7, v0
        v_lshrrev_b32 v165, 3, v0
        v_lshlrev_b32 v166, 12, v164
        v_lshl_add_u32 v166, v165, 2, v166""")
        for j in range(2):
            for i in range(4):
                a(f"buffer_load_dword v{UG+4*j+i}, v166, {s(rB,4)}, {s(sT1)} offen offset:{1024*i+32*j}")
    def u_store(self):
        a = self.a; UG = self.UG; sCH, sMH = sLOOP, sSOF
        a(f"""s_and_b32 {s(sT0)}, {s(sP)}, 31
        s_lshr_b32 {s(sT3)}, {s(sP)}, 5
        s_lshl_b32 {s(sT1)}, {s(sT3)}, 18
        s_lshl_b32 {s(sT2)}, {s(sCH)}, 17
        s_add_u32 {s(sT1)}, {s(sT1)}, {s(sT2)}
        s_lshl_b32 {s(sT2)}, {s(sT0)}, 8
        s_add_u32 {s(sT1)}, {s(sT1)}, {s(sT2)}
        s_lshl_b32 {s(sT2)}, {s(sMH)}, 7
        s_add_u32 {s(sT1)}, {s(sT1)}, {s(sT2)}
        s_add_u32 {s(sT1)}, {s(sT1)}, {WS_UT}
        s_add_u32 {s(sT2)}, {s(sT1)}, 65536
        v_lshlrev_b32 v166, 13, v165
        v_lshl_add_u32 v166, v164, 4, v166
        s_waitcnt vmcnt(4)
        buffer_store_dwordx4 {v(UG,4)}, v166, {s(rWS,4)}, {s(sT1)} offen sc1
        s_waitcnt vmcnt(1)
        buffer_store_dwordx4 {v(UG+4,4)}, v166, {s(rWS,4)}, {s(sT2)} offen sc1""")
    def y_poll(self):
        a = self.a
        a(f"""s_lshr_b32 {s(sT4)}, {s(sP)}, 5
        s_lshl_b32 {s(sT2)}, {s(sT4)}, 12
        s_add_u32 {s(sT2)}, {s(sT2)}, {WS_FLAG4}""")
        self.s_poll(sT2, 31, slp=8)
    def y_assemble(self):
        a = self.a
        self.srd(rC, pOUT, 4194304)
        a(f"""s_lshr_b32 {s(sT4)}, {s(sP)}, 5
        s_and_b32 {s(sT0)}, {s(sP)}, 31
        s_lshl_b32 {s(sT0)}, {s(sT0)}, 1
        s_and_b32 {s(sT2)}, {s(sW4)}, 1
        s_add_u32 {s(sT0)}, {s(sT0)}, {s(sT2)}
        s_lshl_b32 {s(sT1)}, {s(sT4)}, 18
        s_lshl_b32 {s(sT2)}, {s(sT0)}, 7
        s_add_u32 {s(sT1)}, {s(sT1)}, {s(sT2)}
        s_add_u32 {s(sT1)}, {s(sT1)}, {WS_YT}
        v_and_b32 v5, 7, v0
        v_lshrrev_b32 v6, 3, v0
        v_lshlrev_b32 v4, 15, v6
        v_lshl_add_u32 v4, v5, 4, v4""")
        for i in range(4):
            if i: a(f"s_add_u32 {s(sT1)}, {s(sT1)}, 8192")
            a(f"buffer_load_dwordx4 {v(32+4*i,4)}, v4, {s(rWS,4)}, {s(sT1)} offen sc1")
        a(f"""s_lshl_b32 {s(sT1)}, {s(sT0)}, 16
        s_lshl_b32 {s(sT2)}, {s(sT4)}, 7
        s_add_u32 {s(sT1)}, {s(sT1)}, {s(sT2)}
        s_add_u32 {s(sT1)}, {s(sT1)}, 1024
        s_add_u32 {s(sT2)}, {s(sT1)}, 4096
        v_lshlrev_b32 v4, 13, v5
        v_lshl_add_u32 v4, v6, 4, v4
        s_waitcnt vmcnt(0)""")
        for i in range(4):
            for j in range(i + 1, 4): a(f"v_swap_b32 v{32+4*i+j}, v{32+4*j+i}")
        for t in range(4):
            a(f"buffer_store_dwordx4 {v(32+4*t,4)}, v4, {s(rC,4)}, {s(sT1 if t < 2 else sT2)} offen offset:{2048*(t&1)} {self.opt_sc('ysc', 1)}")
        a("s_nop 1")
    def y_guard(self, f):
        L = self.a.newlabel("Ly")
        self.a(f"s_cmp_ge_u32 {s(sW4)}, 2\ns_cbranch_scc0 {L}")
        f()
        self.a.label(L)
    def opt_sc(self, k, d=0):
        return {0: "", 1: "sc1", 2: "nt", 3: "sc0 sc1"}[self.opt(k, d)]

    def finish(self):
        a = self.a
        a.label("L_end")
        if self.opt("diagm"):
            i = self.opt("diagi", 11)
            a("s_waitcnt vmcnt(0)")
            self.stamp(11)
            a(f"""s_waitcnt lgkmcnt(0)
            s_cmp_eq_u32 {s(sWG)}, {self.opt("diagwg", 100)}
            s_cbranch_scc0 L_exit
            s_cmp_eq_u32 {s(sWAVE)}, {8-4*self.opt("diagc", 2)}
            s_cbranch_scc0 L_exit
            s_sub_u32 {s(sT0)}, {s(sSTAMP+2*i)}, {s(sSTAMP)}
            s_mul_i32 {s(sT0)}, {s(sT0)}, {self.opt("diagm")}
            s_min_u32 {s(sT0)}, {s(sT0)}, 100000""")
            a.label("L_diag")
            a(f"""s_memrealtime {s(sT2,2)}
            s_waitcnt lgkmcnt(0)
            s_sub_u32 {s(sT1)}, {s(sT2)}, {s(sSTAMP)}
            s_cmp_lt_u32 {s(sT1)}, {s(sT0)}
            s_cbranch_scc1 L_diag""")
        elif self.dbg:
            a("s_waitcnt vmcnt(0)")
            self.stamp(11)
            a(f"""s_waitcnt lgkmcnt(0)
            s_mul_i32 {s(sT0)}, {s(sWG)}, 12
            s_add_u32 {s(sT0)}, {s(sT0)}, {s(sWAVE)}
            s_lshl_b32 {s(sT0)}, {s(sT0)}, 6
            s_add_u32 {s(sT0)}, {s(sT0)}, {WS_STAMP}
            v_mov_b32 v4, 0""")
            for i in range(12): a(f"v_mov_b32 v{8+i}, {s(sSTAMP+2*i)}")
            a(f"v_mov_b32 v20, {s(sBUD)}")
            a("s_mov_b64 exec, 1")
            for i in range(3): a(f"buffer_store_dwordx4 {v(8+4*i,4)}, v4, {s(rWS,4)}, {s(sT0)} offen offset:{16*i}")
            a(f"buffer_store_dword v20, v4, {s(rWS,4)}, {s(sT0)} offen offset:48")
        a.label("L_exit")
        a("s_endpgm")

if __name__ == "__main__":
    ap = argparse.ArgumentParser()
    ap.add_argument("-o", default=f"cdna_kernels/{NAME}.s")
    ap.add_argument("--dbg", action="store_true")
    ap.add_argument("opts", nargs="*")
    args = ap.parse_args()
    opts = {}
    for kv in args.opts:
        k, _, val = kv.partition("=")
        opts[k] = int(val, 0) if val else 1
    open(args.o, "w").write(Gen(args.dbg, opts).build())
```

```python
import sys, struct, argparse
from asmlib import Asm, v, s, hazard_pass

NAME = "concat_heads__grouped_kv_mqa__ssm_conv_s4__prompt"
def fbits(x): return "0x%08x" % struct.unpack("<I", struct.pack("<f", x))[0]
import math
LOG2E = math.log2(math.e)

R0   = 0
XE   = 32768
W    = 65536
GEN  = 131072
QB   = 147456
KVR  = 155648
CNT  = 159744
LDS_BYTES = 160000
KCOPY = 6912; KCH = 2 * KCOPY
UCOPY = 4416; UCH = 4 * UCOPY
YX   = W + 37888
OX1  = W
OX2  = YX
PSLOT = 2304
C_KV, C_WQA, C_WQB, C_XL, C_QE, C_QL, C_FL, C_KT0, C_KT1, C_KU, C_Y, C_PE, C_PED, C_PL, C_O1, C_O2, C_OE, C_OL, C_UT, C_YT, C_WQC, C_WQD, C_Y4 = [4 * i for i in range(23)]

WS_FLAG = 4096
WS_FLAG2 = 4096 + 32768
WS_FLAG3 = 4096 + 2 * 32768
WS_FLAG4 = 4096 + 3 * 32768
WS_KV   = 147456
KVT     = 2304
WS_O    = 1 << 19
WS_UT = 6 << 20
WS_YT = 8 << 20
WS_STAMP = 4 << 20
WS_DBG  = 5 << 20
WS_SIZE = 16 << 20

sWG, sWAVE, sG, sR, sP, sW4 = 2, 3, 4, 5, 6, 7
sT0, sT1, sT2, sT3, sT4, sT5 = 8, 9, 10, 11, 12, 13
sCLS = 14; sROT = 15
pX, pWQ, pWK, pWV, pWO, pU, pARE, pAIM, pBRE, pBIM, pCRE, pCIM, pLDT, pDSK, pOUT, pDBG, pWS = [16 + 2 * i for i in range(17)]
sNONCE, sBUD = 50, 51
rA, rB, rC, rWS = 52, 56, 60, 64
sLOOP = 68; sSOF = 69
sSTAMP = 70
OOB = 0x7ff00000

class Gen:
    def __init__(self, dbg=False, opts=None):
        self.a = Asm(); self.dbg = dbg; self.o = opts or {}
    def opt(self, k, d=None): return self.o.get(k, d)

    def srd(self, r, p, nbytes):
        a = self.a
        a(f"s_mov_b32 {s(r)}, {s(p)}\ns_mov_b32 {s(r+1)}, {s(p+1)}\ns_mov_b32 {s(r+2)}, {nbytes}\ns_mov_b32 {s(r+3)}, 0x20000")
    def stamp(self, i):
        if self.dbg: self.a(f"{'s_memtime' if self.opt('cyc') else 's_memrealtime'} {s(sSTAMP+2*i,2)}")
    def arrive(self, c, vz, vone):
        self.a(f"s_mov_b64 exec, 1\nds_add_u32 {v(vz)}, {v(vone)} offset:{c}\ns_mov_b64 exec, -1")
    def arrive_rtn(self, c, vz, vone, vt):
        self.a(f"""s_mov_b64 exec, 1
        ds_add_rtn_u32 {v(vt)}, {v(vz)}, {v(vone)} offset:{c}
        s_mov_b64 exec, -1
        s_waitcnt lgkmcnt(0)
        v_readfirstlane_b32 {s(sT0)}, {v(vt)}
        s_cmp_eq_u32 {s(sT0)}, 3""")
    def sync4(self, c, vz, vone, vt, slp=0):
        D = self.a.newlabel("Ls")
        self.arrive_rtn(c, vz, vone, vt)
        self.a(f"s_cbranch_scc1 {D}")
        n0 = len(self.a.lines)
        self.waitc(c, 4, vz, vt, slp)
        for i in range(n0, len(self.a.lines)):
            l = self.a.lines[i]
            if not l.endswith(":") and "nocount" not in l and not l.startswith(("v_readfirst", "s_cmp")): self.a.lines[i] = l + " ; nocount"
        self.a.label(D)
    def waitc(self, c, n, vz, vt, slp=1):
        a = self.a; L = a.newlabel("Lw"); D = a.newlabel("Ld")
        a.label(L)
        a(f"""ds_read_b32 {v(vt)}, {v(vz)} offset:{c}
        s_waitcnt lgkmcnt(0)
        v_readfirstlane_b32 {s(sT0)}, {v(vt)}
        s_cmp_ge_u32 {s(sT0)}, {n}
        s_cbranch_scc1 {D}
        s_sleep {slp} ; nocount
        s_sub_u32 {s(sBUD)}, {s(sBUD)}, 1 ; nocount
        s_cbranch_scc0 {L} ; nocount
        s_mov_b32 {s(sBUD)}, 0 ; nocount""")
        a.label(D)
    def s_publish(self, cnt, base):
        a = self.a; L = a.newlabel("Lpub")
        a("s_waitcnt vmcnt(0)")
        self.arrive_rtn(cnt, self.vZ, self.vONE, self.vT)
        a(f"s_cbranch_scc0 {L}")
        a(f"""s_lshl_b32 {s(sT2)}, {s(sP)}, 7
        s_add_u32 {s(sT2)}, {s(sT2)}, {base}
        v_mov_b32 v18, 0
        s_mov_b64 exec, 1
        buffer_store_dword v167, v18, {s(rWS,4)}, {s(sT2)} offen sc1
        s_mov_b64 exec, -1""")
        a.label(L)
    def s_poll(self, sbase, mask, slp=4):
        a = self.a; Lp = a.newlabel("Lpoll"); Lo = a.newlabel("Lok")
        a(f"v_lshlrev_b32 v18, 7, v0\ns_mov_b64 exec, {hex((1 << (mask + 1)) - 1)}")
        a.label(Lp)
        a(f"""buffer_load_dword v19, v18, {s(rWS,4)}, {s(sbase)} offen sc1
        s_waitcnt vmcnt(0)
        v_cmp_ne_u32 vcc, v167, v19
        s_and_b64 exec, exec, vcc
        s_cbranch_execz {Lo}
        s_sleep {slp} ; nocount
        s_sub_u32 {s(sBUD)}, {s(sBUD)}, 1 ; nocount
        s_cbranch_scc0 {Lp} ; nocount
        s_mov_b32 {s(sBUD)}, 0 ; nocount""")
        a.label(Lo)
        a("s_mov_b64 exec, -1")
    def cmul(self, d, x, m, t):
        self.a(f"v_pk_mul_f32 {v(t,2)}, {v(x,2)}, {v(m,2)} op_sel_hi:[1,0]")
        self.a(f"v_pk_fma_f32 {v(d,2)}, {v(x,2)}, {v(m,2)}, {v(t,2)} op_sel:[1,1,0] op_sel_hi:[0,1,1] neg_lo:[0,1,0]")

    def build(self):
        a = self.a
        self.entry()
        self.role_late_start()
        self.role_early_start()
        self.qproj_and_attention()
        self.role_s()
        self.finish()
        lines, n = hazard_pass(a.lines, verbose=self.opt("vhz"))
        body = "\n".join(l if l.endswith(":") or l.startswith(".") else "    " + l for l in lines)
        head = f"""; fused MQA attention + S4 long convolution, one persistent launch (generated by gen/gen.py)
; @launch grid=(256,1,1) block=(768,1,1) lds={LDS_BYTES}
.amdgcn_target "amdgcn-amd-amdhsa--gfx950"
.text
.globl {NAME}_kernel
.p2align 8
.type {NAME}_kernel,@function
{NAME}_kernel:
"""
        tail = f"""
.section .rodata,"a"
.p2align 6
.amdhsa_kernel {NAME}_kernel
  .amdhsa_next_free_vgpr 168
  .amdhsa_next_free_sgpr 96
  .amdhsa_accum_offset 168
  .amdhsa_group_segment_fixed_size 0
  .amdhsa_kernarg_size 136
  .amdhsa_user_sgpr_count 2
  .amdhsa_user_sgpr_kernarg_segment_ptr 1
  .amdhsa_system_sgpr_workgroup_id_x 1
  .amdhsa_float_denorm_mode_32 3
.end_amdhsa_kernel
"""
        return head + body + tail

    vL, vZ, vONE, vT = 0, 1, 2, 3

    def entry(self):
        a = self.a
        if self.dbg:
            for i in range(12): a(f"s_mov_b64 {s(sSTAMP+2*i,2)}, 0")
        self.stamp(0)
        a(f"""s_cmp_ge_u32 s2, 256
        s_cbranch_scc1 L_exit
        s_load_dwordx16 s[16:31], s[0:1], 0
        s_load_dwordx16 s[32:47], s[0:1], 64
        s_load_dwordx2 s[48:49], s[0:1], 128
        v_lshrrev_b32 v3, 6, v0
        v_and_b32 v0, 63, v0
        v_readfirstlane_b32 {s(sWAVE)}, v3
        v_mov_b32 v1, {CNT}
        v_mov_b32 v2, 1
        s_and_b32 {s(sT0)}, s2, 7
        s_lshr_b32 {s(sT1)}, s2, 3
        s_lshl_b32 {s(sG)}, {s(sT0)}, 2
        s_lshr_b32 {s(sT2)}, {s(sT1)}, 3
        s_add_u32 {s(sG)}, {s(sG)}, {s(sT2)}
        s_and_b32 {s(sR)}, {s(sT1)}, 7
        s_lshl_b32 {s(sP)}, {s(sT0)}, 5
        s_add_u32 {s(sP)}, {s(sP)}, {s(sT1)}
        s_and_b32 {s(sROT)}, {s(sT1)}, 15
        s_mov_b32 {s(sBUD)}, 200000
        s_and_b32 {s(sW4)}, {s(sWAVE)}, 3
        s_lshr_b32 {s(sCLS)}, {s(sWAVE)}, 2
        s_lshl_b32 {s(sCLS)}, {s(sCLS)}, 2
        s_lshr_b32 {s(sCLS)}, {self.opt('order', 0x201)}, {s(sCLS)}
        s_and_b32 {s(sCLS)}, {s(sCLS)}, 3
        s_mov_b32 {s(rWS+2)}, {WS_SIZE}
        s_mov_b32 {s(rWS+3)}, 0x20000
        s_mov_b32 {s(rA+3)}, 0x20000
        s_mov_b32 {s(rB+3)}, 0x20000
        s_cmp_eq_u32 {s(sCLS)}, 2
        s_cbranch_scc1 L_role_s
        s_mov_b32 {s(rA+2)}, 2097152
        s_cmp_eq_u32 {s(sCLS)}, 0
        s_cbranch_scc1 L_role_early""")
    def ptrs_ready(self, x=True):
        a = self.a
        a(f"""s_waitcnt lgkmcnt(0)
        s_mov_b32 {s(rWS)}, {s(pWS)}
        s_mov_b32 {s(rWS+1)}, {s(pWS+1)}""")
        if x: a(f"""s_mov_b32 {s(rA)}, {s(pX)}
        s_mov_b32 {s(rA+1)}, {s(pX+1)}
        s_load_dword {s(sNONCE)}, {s(pWS,2)}, 0""")

    def role_late_start(self):
        a = self.a; vL, vZ, vONE, vT = self.vL, self.vZ, self.vONE, self.vT
        a("s_setprio 3")
        a(f"""s_and_b32 {s(sT0)}, {s(sR)}, 3
        s_lshl_b32 {s(sT1)}, {s(sG)}, 2
        s_add_u32 {s(sT1)}, {s(sT1)}, {s(sT0)}
        s_lshl_b32 {s(sT1)}, {s(sT1)}, 14
        s_lshl_b32 {s(sT2)}, {s(sW4)}, 8
        s_add_u32 {s(sT1)}, {s(sT1)}, {s(sT2)}
        v_and_b32 v4, 15, v0
        v_lshrrev_b32 v5, 4, v0
        v_lshlrev_b32 v6, 10, v4
        v_lshl_add_u32 v6, v5, 4, v6
        s_lshl_b32 {s(sT2)}, {s(sW4)}, 12
        v_lshrrev_b32 v7, 4, v0
        v_and_b32 v7, 1, v7
        v_lshlrev_b32 v7, 7, v7
        v_lshlrev_b32 v24, 4, v0
        v_xor_b32 v7, v7, v24
        s_add_u32 m0, {s(sT2)}, {R0}
        s_mov_b32 {s(rB+2)}, 16384""")
        self.ptrs_ready()
        for k in range(4):
            a(f"buffer_load_dwordx4 {v(8+4*k,4)}, v6, {s(rA,4)}, {s(sT1)} offen offset:{64*k}")
        a(f"""s_cmp_ge_u32 {s(sR)}, 4
        s_cselect_b32 {s(rB)}, {s(pWV)}, {s(pWK)}
        s_cselect_b32 {s(rB+1)}, {s(pWV+1)}, {s(pWK+1)}""")
        for k in range(4):
            a(f"buffer_load_dwordx4 v7, {s(rB,4)}, {s(sT2)} offen offset:{1024*k} lds")
        a(f"""v_bfe_u32 v25, v0, 2, 2
        v_lshl_add_u32 v25, v5, 3, v25
        v_and_b32 v26, 1, v5
        v_lshl_add_u32 v25, v26, 2, v25
        v_lshlrev_b32 v25, 5, v25
        v_and_b32 v26, 3, v0
        v_lshl_add_u32 v25, v26, 3, v25
        v_add_u32 v25, {s(sT2)}, v25
        v_xor_b32 v26, 0x80, v25
        s_barrier
        s_waitcnt vmcnt(0) lgkmcnt(0)""")
        self.stamp(1)
        for k in range(4):
            a(f"ds_read_b64_tr_b16 {v(32+4*k,2)}, v25 offset:{R0+1024*k}")
            a(f"ds_read_b64_tr_b16 {v(34+4*k,2)}, v26 offset:{R0+1024*k}")
        a(f"""s_cmp_ge_u32 {s(sR)}, 4
        s_cbranch_scc1 L_kv_v""")
        for k in range(4):
            a(f"s_waitcnt lgkmcnt({6-2*k})")
            a(f"v_mfma_f32_16x16x32_bf16 v[48:51], {v(32+4*k,4)}, {v(8+4*k,4)}, {'0' if k==0 else 'v[48:51]'}")
        a("s_branch L_kv_j")
        a.label("L_kv_v")
        for k in range(4):
            a(f"s_waitcnt lgkmcnt({6-2*k})")
            a(f"v_mfma_f32_16x16x32_bf16 v[48:51], {v(8+4*k,4)}, {v(32+4*k,4)}, {'0' if k==0 else 'v[48:51]'}")
        a.label("L_kv_j")
        a(f"""s_lshl_b32 {s(sT2)}, {s(sW4)}, 10
        s_add_u32 {s(sT2)}, {s(sT2)}, {KVR}
        v_add_u32 v27, {s(sT2)}, v24
        s_add_u32 {s(sT3)}, {s(sNONCE)}, 0x9e3779b9
        v_mov_b32 v28, {s(sT3)}
        ds_write_b32 v1, v28 offset:128
        s_nop 3
        ds_write_b128 v27, v[48:51]
        s_waitcnt lgkmcnt(0)""")
        self.arrive_rtn(C_KV, vZ, vONE, vT)
        self.stamp(7)
        a("s_cbranch_scc0 L_kv_done")
        a(f"""v_add_u32 v27, {KVR}, v24
        ds_read_b128 v[48:51], v27
        ds_read_b128 v[52:55], v27 offset:1024
        ds_read_b128 v[56:59], v27 offset:2048
        ds_read_b128 v[60:63], v27 offset:3072
        s_cmp_ge_u32 {s(sR)}, 4
        s_cselect_b32 {s(sT2)}, 1.0, {fbits(0.25*LOG2E)}
        s_cselect_b32 {s(sT3)}, 1024, 0
        s_cselect_b32 {s(sT4)}, 5, 4
        s_lshl_b32 {s(sT4)}, {s(sT4)}, 7
        s_bitcmp1_b32 {s(sR)}, 0
        s_cselect_b32 {s(sT4)}, {s(sT4)}, 0
        s_add_u32 {s(sT3)}, {s(sT3)}, {s(sT4)}
        s_bfe_u32 {s(sT4)}, {s(sR)}, 0x10001
        s_lshl_b32 {s(sT5)}, {s(sG)}, 1
        s_add_u32 {s(sT4)}, {s(sT4)}, {s(sT5)}
        s_mul_i32 {s(sT4)}, {s(sT4)}, {KVT}
        s_add_u32 {s(sT3)}, {s(sT3)}, {s(sT4)}
        s_add_u32 {s(sT3)}, {s(sT3)}, {WS_KV}
        v_lshlrev_b32 v6, 5, v4
        v_lshl_add_u32 v6, v5, 3, v6
        s_waitcnt lgkmcnt(0)""")
        for i in range(4): a(f"v_add_f32 v{48+i}, v{48+i}, v{52+i}")
        for i in range(4): a(f"v_add_f32 v{56+i}, v{56+i}, v{60+i}")
        for i in range(4): a(f"v_add_f32 v{48+i}, v{48+i}, v{56+i}")
        for i in range(4): a(f"v_mul_f32 v{48+i}, {s(sT2)}, v{48+i}")
        a(f"""v_cvt_pk_bf16_f32 v52, v48, v49
        v_cvt_pk_bf16_f32 v53, v50, v51
        buffer_store_dwordx2 v[52:53], v6, {s(rWS,4)}, {s(sT3)} offen sc1
        s_cmp_ge_u32 {s(sR)}, 4
        s_cbranch_scc0 L_kv_noones
        v_mov_b32 v54, 0x3f803f80
        v_mov_b32 v55, 0x3f803f80
        v_lshlrev_b32 v7, 3, v0
        s_mov_b64 exec, 0xffff
        buffer_store_dwordx2 v[54:55], v7, {s(rWS,4)}, {s(sT3)} offen offset:512 sc1
        s_mov_b64 exec, -1""")
        a.label("L_kv_noones")
        self.stamp(8)
        a(f"""s_lshl_b32 {s(sT2)}, {s(sG)}, 3
        s_add_u32 {s(sT2)}, {s(sT2)}, {s(sR)}
        s_lshl_b32 {s(sT2)}, {s(sT2)}, {self.opt('fsh', 5)}
        s_add_u32 {s(sT2)}, {s(sT2)}, {WS_FLAG}
        s_add_u32 {s(sT3)}, {s(sNONCE)}, 0x9e3779b9
        v_mov_b32 v54, {s(sT3)}
        v_mov_b32 v7, 0
        s_waitcnt vmcnt(0)
        s_mov_b64 exec, 1
        buffer_store_dword v54, v7, {s(rWS,4)}, {s(sT2)} offen sc1
        s_mov_b64 exec, -1""")
        a.label("L_kv_done")
        self.stamp(2)
        self.qproj()
        a("s_branch L_att_setup")

    def x_dma(self, lds, row0):
        a = self.a
        a(f"""s_lshl_b32 {s(sT1)}, {s(sG)}, 16
        s_lshl_b32 {s(sT2)}, {s(sW4)}, 13
        s_add_u32 {s(sT1)}, {s(sT1)}, {s(sT2)}
        s_add_u32 {s(sT1)}, {s(sT1)}, {row0*1024}
        s_add_u32 m0, {s(sT2)}, {lds}
        s_and_b32 {s(sT3)}, {s(sW4)}, 1
        s_lshl_b32 {s(sT3)}, {s(sT3)}, 7
        v_lshlrev_b32 v4, 4, v0
        v_xor_b32 v4, {s(sT3)}, v4""")
        for i in range(8):
            if i == 4:
                a(f"s_add_u32 {s(sT1)}, {s(sT1)}, 4096\ns_add_u32 m0, m0, 4096")
            if i == 0:
                a(f"buffer_load_dwordx4 v4, {s(rA,4)}, {s(sT1)} offen lds")
            else:
                a(f"v_xor_b32 v{5+(i&1)}, {16*i}, v4")
                a(f"buffer_load_dwordx4 v{5+(i&1)}, {s(rA,4)}, {s(sT1)} offen offset:{1024*(i&3)} lds")

    def role_early_start(self):
        a = self.a; vL, vZ, vONE, vT = self.vL, self.vZ, self.vONE, self.vT
        a.label("L_role_early")
        a(f"""s_setprio 3
        v_lshl_add_u32 v4, v0, 2, v1
        v_mov_b32 v5, 0
        ds_write_b32 v4, v5""")
        self.ptrs_ready()
        if self.opt("ipf", 1):
            a(f"""s_getpc_b64 {s(sT2,2)}""")
            a.label("L_pc")
            a(f"""s_and_b32 {s(sT0)}, {s(sP)}, 31
            s_lshl_b32 {s(sT0)}, {s(sT0)}, 2
            s_add_u32 {s(sT0)}, {s(sT0)}, {s(sW4)}
            s_lshl_b32 {s(sT0)}, {s(sT0)}, 7
            s_min_u32 {s(sT0)}, {s(sT0)}, L_exit-L_pc-128
            s_and_b32 {s(sT0)}, {s(sT0)}, -4
            s_add_u32 {s(sT2)}, {s(sT2)}, {s(sT0)}
            s_addc_u32 {s(sT3)}, {s(sT3)}, 0
            s_load_dword s94, {s(sT2,2)}, 0
            s_load_dword s95, {s(sT2,2)}, 64""")
        if not self.opt("barx", 1): a("s_barrier")
        a(f"""s_mov_b32 {s(rB)}, {s(pWQ)}
        s_mov_b32 {s(rB+1)}, {s(pWQ+1)}
        s_mov_b32 {s(rB+2)}, 524288""")
        self.x_dma(XE, 0)
        a(f"""v_lshrrev_b32 v7, 3, v0
        v_and_b32 v8, 7, v0
        v_and_b32 v9, 2, v7
        v_xor_b32 v8, v8, v9
        s_and_b32 {s(sT3)}, {s(sW4)}, 1
        s_lshl_b32 {s(sT3)}, {s(sT3)}, 2
        v_xor_b32 v8, {s(sT3)}, v8
        v_lshlrev_b32 v7, 10, v7
        v_lshl_add_u32 v7, v8, 4, v7
        s_lshl_b32 {s(sT1)}, {s(sW4)}, 13
        s_lshl_b32 {s(sT2)}, {s(sR)}, 7
        s_add_u32 {s(sT1)}, {s(sT1)}, {s(sT2)}
        s_lshl_b32 {s(sT2)}, {s(sW4)}, 10
        s_add_u32 m0, {s(sT2)}, {W}""")
        self.stamp(7)
        if self.opt("barx", 1): a("s_barrier")
        if self.opt("xwait", 0): a("s_waitcnt vmcnt(0)")
        self.stamp(8)
        for i in range(16):
            a(f"buffer_load_dwordx4 v7, {s(rB,4)}, {s(sT1)} offen lds")
            if i < 15: a(f"s_add_u32 m0, m0, 4096\ns_add_u32 {s(sT1)}, {s(sT1)}, 32768")
        self.stamp(1)
        a("s_waitcnt vmcnt(8)")
        self.arrive(C_WQA, vZ, vONE)
        a("s_waitcnt vmcnt(0)")
        self.arrive(C_WQB, vZ, vONE)
        self.stamp(10)
        if self.opt("pollat", 1) == 0: self.first_poll()
        a("s_waitcnt lgkmcnt(0)")

    Q0, O0, S0, KA = 8, 24, 88, 120
    vKO, vVO, vIDX = 4, 5, 6
    def qproj(self):
        a = self.a; vL, vZ, vONE, vT = self.vL, self.vZ, self.vONE, self.vT
        WF = 76
        a(f"""v_xor_b32 v6, v4, v5
        v_lshlrev_b32 v6, 4, v6
        v_lshl_add_u32 v6, v4, 10, v6
        v_add_u32 v144, {XE}, v6
        v_xor_b32 v145, 64, v144
        v_xor_b32 v146, 0x80, v144
        v_xor_b32 v147, 0xc0, v144
        v_bfe_u32 v6, v0, 2, 2
        v_lshl_add_u32 v7, v5, 3, v6
        v_lshlrev_b32 v7, 7, v7
        v_and_b32 v6, 2, v6
        v_and_b32 v8, 1, v5
        v_lshl_add_u32 v6, v8, 2, v6
        s_lshl_b32 {s(sT1)}, {s(sW4)}, 1
        v_xor_b32 v6, {s(sT1)}, v6
        v_lshl_add_u32 v7, v6, 4, v7
        v_and_b32 v6, 3, v0
        v_lshl_add_u32 v7, v6, 3, v7
        v_add_u32 v148, {W}, v7
        v_lshrrev_b32 v6, 1, v5
        v_lshlrev_b32 v6, 9, v6
        v_lshl_add_u32 v6, v4, 4, v6
        v_and_b32 v7, 1, v5
        v_lshl_add_u32 v6, v7, 3, v6
        s_lshl_b32 {s(sT2)}, {s(sW4)}, 10
        s_add_u32 {s(sT2)}, {s(sT2)}, {QB}
        v_add_u32 v149, {s(sT2)}, v6""")
        def rdw(sx):
            a(f"ds_read_b64_tr_b16 {v(WF+4*sx,2)}, v148 offset:{4096*sx}")
            a(f"ds_read_b64_tr_b16 {v(WF+4*sx+2,2)}, v148 offset:{4096*sx+512}")
        def rdx(sx):
            b = 24 + 8 * (sx % 4)
            a(f"ds_read_b128 {v(b,4)}, v{144+(sx&3)} offset:{256*(sx>>2)}")
            a(f"ds_read_b128 {v(b+4,4)}, v{144+(sx&3)} offset:{256*(sx>>2)+16384}")
        def mm(sx):
            b = 24 + 8 * (sx % 4)
            a(f"v_mfma_f32_16x16x32_bf16 v[64:67], {v(WF+4*sx,4)}, {v(b,4)}, {'0' if sx==0 else 'v[64:67]'}")
            a(f"v_mfma_f32_16x16x32_bf16 v[68:71], {v(WF+4*sx,4)}, {v(b+4,4)}, {'0' if sx==0 else 'v[68:71]'}")
        def qout(off, cnt):
            a(f"""v_cvt_pk_bf16_f32 v72, v64, v65
            v_cvt_pk_bf16_f32 v73, v66, v67
            v_cvt_pk_bf16_f32 v74, v68, v69
            v_cvt_pk_bf16_f32 v75, v70, v71
            ds_write_b64 v149, v[72:73] offset:{off}
            ds_write_b64 v149, v[74:75] offset:{off+256}
            s_waitcnt lgkmcnt(0)""")
        for half in range(2):
            s0 = 8 * half
            self.waitc([C_WQA, C_WQB][half], 4, vZ, vT, slp=0)
            if half: self.stamp(10)
            for k in range(2): rdw(s0 + k); rdx(s0 + k)
            for sx in range(s0, s0 + 8):
                if sx + 2 < s0 + 8:
                    rdw(sx + 2); rdx(sx + 2); a("s_waitcnt lgkmcnt(8)")
                else:
                    a(f"s_waitcnt lgkmcnt({4*(s0+7-sx)})")
                mm(sx)
        qout(0, C_QE)
        self.sync4(C_QE, vZ, vONE, vT, slp=1)
        self.stamp(3)
        if self.opt("xlwait", 0): self.waitc(C_FL, 4, vZ, vT, slp=2)
        self.x_dma(XE, 32)
        a("s_waitcnt vmcnt(0)")
        self.sync4(C_XL, vZ, vONE, vT, slp=1)
        for k in range(3): rdx(k)
        for sx in range(16):
            if sx + 3 < 16:
                rdx(sx + 3); a("s_waitcnt lgkmcnt(6)")
            else:
                a(f"s_waitcnt lgkmcnt({2*(15-sx)})")
            mm(sx)
        qout(4096, C_QL)
        self.arrive(C_QL, vZ, vONE)

    def qproj_and_attention(self):
        a = self.a; vL, vZ, vONE, vT = self.vL, self.vZ, self.vONE, self.vT
        a.label("L_att_setup")
        a(f"""s_lshl_b32 {s(sT2)}, {s(sCLS)}, 2
        v_add_u32 v92, {s(sT2)}, v1""")
        Q0, O0, S0, KA = self.Q0, self.O0, self.S0, self.KA
        vKO, vVO, vIDX = self.vKO, self.vVO, self.vIDX
        a(f"""s_mul_i32 {s(sT2)}, {s(sW4)}, {16*KVT}
        s_add_u32 {s(sT2)}, {s(sT2)}, {WS_KV}
        v_and_b32 v7, 31, v0
        v_lshrrev_b32 v8, 5, v0
        v_lshlrev_b32 v4, 5, v7
        v_lshl_add_u32 v4, v8, 4, v4
        v_add_u32 v4, {s(sT2)}, v4
        v_and_b32 v9, 3, v7
        v_bfe_u32 v10, v7, 2, 1
        v_lshl_add_u32 v9, v10, 3, v9
        v_bfe_u32 v10, v7, 3, 1
        v_lshl_add_u32 v9, v10, 2, v9
        v_lshlrev_b32 v9, 5, v9
        v_cmp_gt_u32 vcc, 16, v7
        v_mov_b32 v10, {OOB}
        v_cndmask_b32 v9, v10, v9, vcc
        v_and_b32 v10, 27, v7
        v_cmp_eq_u32 vcc, 16, v10
        v_mov_b32 v10, 512
        v_cndmask_b32 v9, v9, v10, vcc
        v_lshl_add_u32 v9, v8, 4, v9
        v_add_u32 v5, {s(sT2)}, v9
        v_mov_b32 v6, 0xdddddddd""")
        for h in range(4):
            for i in range(0, 10, 2): a(f"v_mov_b64 {v(O0+16*h+i,2)}, 0")
        for i in range(0, 8, 2): a(f"v_mov_b64 {v(S0+24+i,2)}, 0")
        for i in range(0, 4, 2): a(f"v_mov_b64 {v(KA+12*self.opt('nbuf',4)-4+i,2)}, 0")
        self.tail_setup()
        if self.opt("chunk", 1):
            a(f"""s_cmp_eq_u32 {s(sCLS)}, 0
            s_cselect_b32 s35, {self.opt('ce', 4) + 1}, {self.opt('cl', 6) + 1}
            s_lshl_b32 s35, 1, s35""")
        a(f"""s_cmp_eq_u32 {s(sCLS)}, 0
        s_cbranch_scc0 L_late_flags
        s_add_u32 {s(sT3)}, {s(sNONCE)}, 0x9e3779b9""")
        if self.opt("pollat", 1) == 1: self.first_poll()
        if self.opt("pollat", 1) == 2:
            self.waitc(C_QE, 1, vZ, vT, slp=1); self.first_poll()
        a.label("L_poll")
        a(f"""s_waitcnt vmcnt(0)
        v_cmp_ne_u32 vcc, {s(sT3)}, v94
        s_and_b64 exec, exec, vcc
        s_cbranch_execz L_poll_ok
        s_sleep {self.opt('pslp', 1)}
        buffer_load_dword v94, v93, {s(rWS,4)}, {s(sT1)} offen sc1
        s_sub_u32 {s(sBUD)}, {s(sBUD)}, 1
        s_cbranch_scc0 L_poll
        s_mov_b32 {s(sBUD)}, 0
        s_waitcnt vmcnt(0)""")
        a.label("L_poll_ok")
        a("s_mov_b64 exec, -1")
        a("s_branch L_flags_done")
        a.label("L_late_flags")
        self.waitc(C_FL, 4, vZ, vT)
        a.label("L_flags_done")
        self.stamp(4)
        NB = self.opt("nbuf", 4)
        BUF = [KA + 12 * i for i in range(NB)]
        sN = sT4
        def sof_next():
            a(f"""s_add_u32 {s(sROT)}, {s(sROT)}, 1
            s_and_b32 {s(sROT)}, {s(sROT)}, 15
            s_mul_i32 {s(sSOF)}, {s(sROT)}, {KVT}""")
            if self.inloop:
                a(f"""s_cmp_eq_u32 {s(sLOOP)}, 1
                s_cselect_b32 {s(sSOF)}, {OOB}, {s(sSOF)}""")
        SC = {0: "sc1", 1: "", 2: "sc0", 3: "nt", 4: "sc0 sc1"}[self.opt("kvsc", 0)]
        self.inloop = False
        def ldK(b):
            if not (self.inloop and self.opt("nold")): a(f"buffer_load_dwordx4 {v(b,4)}, v{vKO}, {s(rWS,4)}, {s(sSOF)} offen {SC}")
        def ldV0(b):
            if not (self.inloop and self.opt("nold")): a(f"buffer_load_dwordx4 {v(b+4,4)}, v{vVO}, {s(rWS,4)}, {s(sSOF)} offen offset:1024 {SC}")
        def ldV1(b):
            if not (self.inloop and self.opt("nold")): a(f"buffer_load_dwordx4 {v(b+8,4)}, v{vVO}, {s(rWS,4)}, {s(sSOF)} offen offset:1664 {SC}")
        a(f"s_mul_i32 {s(sSOF)}, {s(sROT)}, {KVT}")
        for b in range(NB):
            if b: sof_next()
            ldK(BUF[b]); ldV0(BUF[b])
            if b < NB - 1: ldV1(BUF[b])
        a(f"s_cmp_eq_u32 {s(sCLS)}, 0\ns_cbranch_scc0 L_nofl")
        if self.opt("p16", 0):
            a.label("L_poll2")
            a(f"""buffer_load_dword v94, v93, {s(rWS,4)}, {s(sT1)} offen sc1
            s_waitcnt vmcnt(0)
            v_cmp_ne_u32 vcc, {s(sT3)}, v94
            s_and_b64 exec, exec, vcc
            s_cbranch_execz L_poll2_ok
            s_sub_u32 {s(sBUD)}, {s(sBUD)}, 1
            s_cbranch_scc0 L_poll2
            s_mov_b32 {s(sBUD)}, 0""")
            a.label("L_poll2_ok")
            a("s_mov_b64 exec, -1")
        self.arrive(C_FL, vZ, vONE)
        a.label("L_nofl")
        self.waitc(C_QE, 4, 92, vT, slp=0)
        a(f"""s_lshl_b32 {s(sT2)}, {s(sCLS)}, 12
        s_add_u32 {s(sT2)}, {s(sT2)}, {QB}
        v_lshl_add_u32 v7, v0, 4, {s(sT2)}""")
        for i in range(4):
            a(f"""s_add_u32 {s(sT3)}, {s(sW4)}, {i}
            s_and_b32 {s(sT3)}, {s(sT3)}, 3
            s_lshl_b32 {s(sT3)}, {s(sT3)}, 10
            v_add_u32 v{S0+i}, {s(sT3)}, v7
            ds_read_b128 {v(Q0+4*i,4)}, v{S0+i}""")
        a(f"""s_mov_b32 {s(sLOOP)}, {16//NB}
        s_waitcnt vmcnt({3*NB-4}) lgkmcnt(0)
        v_mfma_f32_32x32x16_bf16 {v(S0,16)}, {v(KA,4)}, {v(Q0,4)}, 0
        s_nop 11""")
        self.stamp(5)
        a(f"""s_setprio {self.opt('eprio', 2)}
        s_cmp_eq_u32 {s(sCLS)}, 0
        s_cbranch_scc1 L_att0
        s_setprio {self.opt('lprio', 1)}""")
        a.label("L_att0")
        a(".p2align 6")
        a.label("L_att")
        self.inloop = True
        CHK = self.opt("chunk", 1)
        for t in range(NB):
            cur = BUF[t]; prv = BUF[(t - 1) % NB]; nxt = BUF[(t + 1) % NB]
            for i in range(4):
                S = S0 + 16 * (i & 1); Sn = S0 + 16 * ((i + 1) & 1)
                def ex(a0, a1):
                    for k in range(a0, a1): a(f"v_exp_f32 v{S+k}, v{S+k}")
                ex(0, 2)
                if i == 1 and NB == 2 and not self.opt("nowait"): a("s_waitcnt vmcnt(3)")
                pv = prv if i == 0 else cur
                a(f"v_smfmac_f32_32x32x32_bf16 {v(O0+16*((i-1)&3),16)}, {v(pv+8,4)}, {v(Sn+8,8)}, v{vIDX}")
                if i == 0: ldV1(prv)
                if i == 1 and not self.opt("nosof"): sof_next()
                if CHK and t % 2 == 0 and i == 2:
                    L = a.newlabel("Lp")
                    a(f"""s_lshr_b32 s35, s35, 1
                    s_bitcmp1_b32 s35, 0
                    s_cbranch_scc0 {L}
                    s_setprio {self.opt('lprio', 1) - 1}
                    s_cmp_eq_u32 {s(sCLS)}, 0
                    s_cbranch_scc0 {L}
                    s_setprio {self.opt('eprio', 2) - 1}""")
                    a.label(L)
                ex(2, 5)
                if i == 3 and not self.opt("nowait"): a(f"s_waitcnt vmcnt({2 if NB == 2 else 3*NB-5})")
                kk = nxt if i == 3 else cur
                a(f"v_mfma_f32_32x32x16_bf16 {v(Sn,16)}, {v(kk,4)}, {v(Q0+4*((i+1)&3),4)}, 0")
                if i == 2: ldK(cur)
                ex(5, 10)
                a(f"v_smfmac_f32_32x32x32_bf16 {v(O0+16*i,16)}, {v(cur+4,4)}, {v(S,8)}, v{vIDX}")
                if i == 3: ldV0(cur)
                if t == NB - 1 and i == 3:
                    ex(10, 13)
                    a(f"s_sub_u32 {s(sLOOP)}, {s(sLOOP)}, 1\ns_cmp_lg_u32 {s(sLOOP)}, 0")
                    ex(13, 16)
                else:
                    ex(10, 16)
        a("s_cbranch_scc1 L_att")
        a(f"s_nop 1")
        a(f"v_smfmac_f32_32x32x32_bf16 {v(O0+48,16)}, {v(BUF[-1]+8,4)}, {v(S0+24,8)}, v{vIDX}")
        self.stamp(6)
        if self.opt("r0late", 0) == 2:
            a(f"s_cmp_eq_u32 {s(sCLS)}, 0\ns_cbranch_scc1 L_nole")
            self.arrive(C_WQC, vZ, vONE)
            a.label("L_nole")
        self.att_tail()

    def first_poll(self):
        self.a(f"""s_lshl_b32 {s(sT1)}, {s(sW4)}, {6 + self.opt('fsh', 5)}
        s_add_u32 {s(sT1)}, {s(sT1)}, {WS_FLAG}
        v_lshlrev_b32 v93, {self.opt('fsh', 5)}, v0""")
        if self.opt("p16", 0):
            self.a(f"""v_lshrrev_b32 v95, 3, v0
            v_bfe_u32 v96, v0, 1, 1
            v_lshl_add_u32 v95, v95, 1, v96
            v_subrev_u32 v95, {s(sROT)}, v95
            v_and_b32 v95, 15, v95
            v_cmp_gt_u32 vcc, {self.opt('nbuf', 4)}, v95
            s_mov_b64 exec, vcc""")
        self.a(f"buffer_load_dword v94, v93, {s(rWS,4)}, {s(sT1)} offen sc1")

    sP1, sP2, sP3, sP0, sOS = 70, 71, 72, 73, 74
    def tail_regs(self):
        b = 40 if True else 70
        return dict(p=[28, 29, 30, 31], os=32, cw=33, cp=34)
    def tail_setup(self):
        a = self.a; R = self.tail_regs()
        for i in range(4):
            a(f"""s_add_u32 {s(sT2)}, {s(sW4)}, {i}
            s_and_b32 {s(sT2)}, {s(sT2)}, 3
            s_mul_i32 {s(R['p'][i])}, {s(sT2)}, {3*PSLOT}""")
        a(f"""s_lshl_b32 {s(sT3)}, {s(sG)}, 1
        s_add_u32 {s(sT3)}, {s(sT3)}, {s(sCLS)}
        s_lshl_b32 {s(sT3)}, {s(sT3)}, 5
        s_lshl_b32 {s(sT4)}, {s(sR)}, 2
        s_add_u32 {s(sT3)}, {s(sT3)}, {s(sT4)}
        s_add_u32 {s(sT3)}, {s(sT3)}, {s(sW4)}
        s_lshl_b32 {s(sT3)}, {s(sT3)}, 10
        s_add_u32 {s(R['os'])}, {s(sT3)}, {WS_O}
        s_cmp_eq_u32 {s(sCLS)}, 0
        s_cselect_b32 {s(R['cw'])}, {C_QL}, {C_OE}
        s_cselect_b32 {s(R['cp'])}, {C_PE}, {C_PL}
        s_add_u32 {s(R['cw'])}, {s(R['cw'])}, {CNT}
        s_add_u32 {s(R['cp'])}, {s(R['cp'])}, {CNT}""")
    def att_tail(self):
        a = self.a; vL, vZ, vONE, vT = self.vL, self.vZ, self.vONE, self.vT
        Q0, O0, S0, KA = self.Q0, self.O0, self.S0, self.KA
        R = self.tail_regs()
        T = Q0 + 4
        if self.opt("tprio", 0) == 1:
            a(f"s_cmp_eq_u32 {s(sCLS)}, 0\ns_cbranch_scc1 L_notp\ns_setprio 3")
            a.label("L_notp")
        if self.opt("tprio", 0) == 2: a("s_setprio 3")
        a(f"""v_mov_b32 v{T}, {s(R['cw'])}
        v_mov_b32 v{T+1}, {s(R['cp'])}
        v_lshlrev_b32 v{T+2}, 4, v0
        v_lshlrev_b32 v{T+3}, 2, v0""")
        self.waitc(0, 4, T, vT)
        a(f"s_cmp_eq_u32 {s(sCLS)}, 0\ns_cbranch_scc0 L_noyt")
        self.waitc(C_YT, 4, vZ, vT)
        a.label("L_noyt")
        for i in range(1, 4):
            a(f"""v_add_u32 v{T+4}, {s(R['p'][i])}, v{T+2}
            v_add_u32 v{T+5}, {s(R['p'][i])}, v{T+3}
            ds_write_b128 v{T+4}, {v(O0+16*i,4)} offset:{XE+(i-1)*PSLOT}
            ds_write_b128 v{T+4}, {v(O0+16*i+4,4)} offset:{XE+(i-1)*PSLOT+1024}
            ds_write_b32 v{T+5}, v{O0+16*i+8} offset:{XE+(i-1)*PSLOT+2048}""")
        a(f"""v_add_u32 v{T+4}, {s(R['p'][0])}, v{T+2}
        v_add_u32 v{T+5}, {s(R['p'][0])}, v{T+3}
        s_waitcnt lgkmcnt(0)""")
        self.sync4(0, T + 1, vONE, vT)
        for i in range(1, 4):
            a(f"""ds_read_b128 {v(O0+16*i,4)}, v{T+4} offset:{XE+(i-1)*PSLOT}
            ds_read_b128 {v(O0+16*i+4,4)}, v{T+4} offset:{XE+(i-1)*PSLOT+1024}
            ds_read_b32 v{O0+16*i+8}, v{T+5} offset:{XE+(i-1)*PSLOT+2048}""")
        a(f"""s_mov_b32 {s(sT5)}, {s(R['os'])}
        s_waitcnt vmcnt(0)
        v_mov_b32 v146, v{T+2}
        s_waitcnt lgkmcnt(3)""")
        for k in range(9): a(f"v_add_f32 v{O0+16+k}, v{O0+16+k}, v{O0+32+k}")
        a("s_waitcnt lgkmcnt(0)")
        for k in range(9): a(f"v_add_f32 v{O0+k}, v{O0+k}, v{O0+48+k}")
        for k in range(9): a(f"v_add_f32 v{O0+k}, v{O0+k}, v{O0+16+k}")
        a(f"""v_add_f32 v150, v{O0}, v{O0+1}
        v_add_f32 v151, v{O0+2}, v{O0+3}
        v_add_f32 v152, v{O0+4}, v{O0+5}
        v_add_f32 v153, v{O0+6}, v{O0+7}
        v_add_f32 v150, v150, v151
        v_add_f32 v152, v152, v153
        v_add_f32 v150, v150, v152
        v_mov_b32 v151, 0x7f800000
        v_cmp_lt_f32 {s(sT2,2)}, |v150|, v151
        v_cmp_le_f32 vcc, {fbits(2.0**-60)}, v{O0+8}
        s_and_b64 {s(sT2,2)}, {s(sT2,2)}, vcc
        v_cmp_ge_f32 vcc, {fbits(2.0**60)}, v{O0+8}
        s_and_b64 vcc, {s(sT2,2)}, vcc""")
        if self.opt("force_fallback"): a("s_mov_b64 vcc, 0")
        a(f"""s_cmp_eq_u64 vcc, exec
        s_cbranch_scc0 L_fallback""")
        a.label("L_att_fin")
        self.stamp(9)
        a(f"v_rcp_f32 v150, v{O0+8}")
        for k in range(8): a(f"v_mul_f32 v{O0+k}, v150, v{O0+k}")
        for k in range(4): a(f"v_cvt_pk_bf16_f32 v{152+k}, v{O0+2*k}, v{O0+2*k+1}")
        for k in range(4): a(f"v_min_u32 v{152+k}, -2, v{152+k}")
        a(f"""s_lshl_b32 {s(sT2)}, {s(sCLS)}, 2
        v_add_u32 v151, {s(sT2)}, v1
        buffer_store_dwordx4 v[152:155], v146, {s(rWS,4)}, {s(sT5)} offen sc1
        s_waitcnt vmcnt(0)""")
        self.arrive(C_OE, 151, vONE)
        a(f"""s_or_b32 {s(sT2)}, {s(sWG)}, {s(sW4)}
        s_or_b32 {s(sT2)}, {s(sT2)}, {s(sCLS)}
        s_cmp_eq_u32 {s(sT2)}, 0
        s_cbranch_scc0 L_end
        s_add_u32 {s(sT3)}, {s(sNONCE)}, 0x9e3779b9
        v_mov_b32 v150, {s(sT3)}
        v_mov_b32 v151, 0
        s_mov_b64 exec, 1
        buffer_store_dword v150, v151, {s(rWS,4)}, 0 offen sc1
        s_mov_b64 exec, -1
        s_branch L_end""")
        self.fallback()

    def fallback(self):
        a = self.a
        Q0, O0, S0, KA = self.Q0, self.O0, self.S0, self.KA
        vKO, vVO, vIDX = self.vKO, self.vVO, self.vIDX
        C0 = O0 + 16
        a.label("L_fallback")
        a(f"""s_mul_i32 {s(sT2)}, {s(sW4)}, {16*KVT}
        v_subrev_u32 v7, {s(sT2)}, v{vKO}
        v_subrev_u32 v151, {s(sT2)}, v{vVO}
        v_mov_b32 v150, 0xff800000
        s_mov_b32 {s(sSOF)}, 0""")
        a.label("L_fb1")
        a(f"""buffer_load_dwordx4 {v(KA,4)}, v7, {s(rWS,4)}, {s(sSOF)} offen sc1
        s_waitcnt vmcnt(0)
        v_mfma_f32_32x32x16_bf16 {v(S0,16)}, {v(KA,4)}, {v(Q0,4)}, 0""")
        for k in range(8): a(f"v_max3_f32 v150, v150, v{S0+2*k}, v{S0+2*k+1}")
        a(f"""s_add_u32 {s(sSOF)}, {s(sSOF)}, {KVT}
        s_cmp_lt_u32 {s(sSOF)}, {64*KVT}
        s_cbranch_scc1 L_fb1
        v_mov_b32 v152, v150
        v_permlane32_swap_b32 v150, v152
        v_max_f32 v150, v150, v152""")
        for k in range(16): a(f"v_sub_f32 v{C0+k}, 0, v150")
        for k in range(16): a(f"v_mov_b32 v{O0+k}, 0")
        a(f"s_mov_b32 {s(sSOF)}, 0")
        a.label("L_fb2")
        a(f"""buffer_load_dwordx4 {v(KA,4)}, v7, {s(rWS,4)}, {s(sSOF)} offen sc1
        buffer_load_dwordx4 {v(KA+4,4)}, v151, {s(rWS,4)}, {s(sSOF)} offen offset:1024 sc1
        buffer_load_dwordx4 {v(KA+8,4)}, v151, {s(rWS,4)}, {s(sSOF)} offen offset:1664 sc1
        s_waitcnt vmcnt(0)
        v_mfma_f32_32x32x16_bf16 {v(S0,16)}, {v(KA,4)}, {v(Q0,4)}, {v(C0,16)}""")
        for k in range(16): a(f"v_exp_f32 v{S0+k}, v{S0+k}")
        a(f"""v_smfmac_f32_32x32x32_bf16 {v(O0,16)}, {v(KA+4,4)}, {v(S0,8)}, v{vIDX}
        v_smfmac_f32_32x32x32_bf16 {v(O0,16)}, {v(KA+8,4)}, {v(S0+8,8)}, v{vIDX}
        s_add_u32 {s(sSOF)}, {s(sSOF)}, {KVT}
        s_cmp_lt_u32 {s(sSOF)}, {64*KVT}
        s_nop 9
        s_cbranch_scc1 L_fb2
        s_nop 3
        s_branch L_att_fin""")

    def role_s(self):
        a = self.a; vL, vZ, vONE, vT = self.vL, self.vZ, self.vONE, self.vT
        a.label("L_role_s")
        a(f"s_setprio {self.opt('sprio', 3)}")
        sCH, sMH = sLOOP, sSOF
        a(f"""s_and_b32 {s(sCH)}, {s(sW4)}, 1
        s_lshr_b32 {s(sMH)}, {s(sW4)}, 1
        s_lshl_b32 {s(sT0)}, {s(sP)}, 2
        s_lshl_b32 {s(sT1)}, {s(sP)}, 9
        s_lshl_b32 {s(sT2)}, {s(sCH)}, 8
        s_add_u32 {s(sT1)}, {s(sT1)}, {s(sT2)}
        s_lshl_b32 {s(sT2)}, {s(sMH)}, 7
        s_add_u32 {s(sT1)}, {s(sT1)}, {s(sT2)}
        v_lshlrev_b32 v4, 1, v0
        s_mov_b32 {s(rA+2)}, 131072""")
        self.ptrs_ready(False)
        a(f"""s_load_dword {s(sT4)}, {s(pLDT,2)}, {s(sT0)}
        s_load_dword {s(sT5)}, {s(pDSK,2)}, {s(sT0)}""")
        for i, p in enumerate([pARE, pAIM, pBRE, pBIM, pCRE, pCIM]):
            a(f"s_mov_b32 {s(rA)}, {s(p)}\ns_mov_b32 {s(rA+1)}, {s(p+1)}")
            a(f"buffer_load_ushort v{8+i}, v4, {s(rA,4)}, {s(sT1)} offen")
        UE = self.opt("uearly", 0)
        if UE: self.u_load()
        a("s_barrier")
        a(f"""s_lshl_b32 {s(sT2)}, {s(sW4)}, 12
        s_add_u32 {s(sT2)}, {s(sT2)}, {GEN}
        v_bfe_u32 v5, v0, 1, 2
        v_lshlrev_b32 v5, 4, v5
        v_lshl_add_u32 v5, v0, 6, v5
        v_add_u32 v150, {s(sT2)}, v5
        v_xor_b32 v151, 16, v150
        v_xor_b32 v152, 32, v150
        v_xor_b32 v153, 48, v150
        v_bfe_u32 v5, v0, 2, 2
        v_lshrrev_b32 v6, 5, v0
        v_lshl_add_u32 v6, v6, 3, v5
        v_lshlrev_b32 v6, 6, v6
        v_bfe_u32 v7, v0, 4, 1
        v_lshlrev_b32 v7, 1, v7
        v_bfe_u32 v14, v0, 1, 1
        v_add_u32 v7, v7, v14
        v_lshrrev_b32 v5, 1, v5
        v_xor_b32 v7, v7, v5
        v_lshl_add_u32 v6, v7, 4, v6
        v_and_b32 v7, 1, v0
        v_lshl_add_u32 v6, v7, 3, v6
        v_add_u32 v154, {s(sT2)}, v6
        v_xor_b32 v155, 32, v154
        s_waitcnt lgkmcnt(0)
        s_lshl_b32 {s(sT2)}, {s(sCH)}, 4
        s_lshr_b32 {s(sT4)}, {s(sT4)}, {s(sT2)}
        s_lshl_b32 {s(sT4)}, {s(sT4)}, 16
        s_lshr_b32 {s(sT5)}, {s(sT5)}, {s(sT2)}
        s_lshl_b32 {s(sT5)}, {s(sT5)}, 16
        v_mov_b32 v14, {fbits(LOG2E)}
        v_mul_f32 v15, {s(sT4)}, v14
        v_exp_f32 v15, v15
        v_cvt_pk_bf16_f32 v15, v15, v15
        v_and_b32 v15, 0xffff0000, v15
        s_waitcnt vmcnt({8 if UE else 0})""")
        self.stamp(1)
        for i in range(6): a(f"v_lshlrev_b32 v{8+i}, 16, v{8+i}")
        Z1, Z2, Z4, Z8, Z256, CB, TMP = 18, 20, 22, 24, 26, 16, 28
        a(f"""v_mul_f32 v8, v15, v8
        v_mul_f32 v9, v15, v9
        v_mul_f32 v10, v15, v10
        v_mul_f32 v11, v15, v11
        v_mul_f32 v8, v14, v8
        v_mul_f32 v9, 0.15915494, v9""")
        self.cmul(CB, 10, 12, TMP)
        def cpow(d, mult):
            if mult != 1:
                a(f"v_mul_f32 v30, {fbits(mult)}, v8\nv_mul_f32 v31, {fbits(mult)}, v9")
                x, y = 30, 31
            else:
                x, y = 8, 9
            a(f"""v_exp_f32 v28, v{x}
            v_rndne_f32 v29, v{y}
            v_sub_f32 v29, v{y}, v29
            v_cos_f32 v{d}, v29
            v_sin_f32 v{d+1}, v29
            v_mul_f32 v{d}, v28, v{d}
            v_mul_f32 v{d+1}, v28, v{d+1}""")
        cpow(Z1, 1); cpow(Z256, 256)
        self.cmul(Z2, Z1, Z1, TMP); self.cmul(Z4, Z2, Z2, TMP); self.cmul(Z8, Z4, Z4, TMP)
        if UE: self.u_store()
        RE, IM = 32, 48
        FB = 64
        FA = 96
        ACC = 112
        X0, X1 = 128, 130
        def wr(src):
            for c in range(4): a(f"ds_write_b128 v{150+c}, {v(src+4*c,4)}")
        def rdtr(dst):
            for ks in range(4):
                a(f"ds_read_b64_tr_b16 {v(dst+4*ks,2)}, v154 offset:{1024*ks}")
                a(f"ds_read_b64_tr_b16 {v(dst+4*ks+2,2)}, v155 offset:{1024*ks+256}")
        if self.opt("gst"): self.stamp(3)
        a(f"v_mov_b32 v{X0}, 1.0\nv_mov_b32 v{X0+1}, 0")
        for j in range(0, 32, 2):
            if j > 0: self.cmul(X0, X1, Z8, TMP)
            self.cmul(X1, X0, Z8, TMP)
            a(f"v_cvt_pk_bf16_f32 v{RE+j//2}, v{X0}, v{X1}")
            a(f"v_cvt_pk_bf16_f32 v{IM+j//2}, -v{X0+1}, -v{X1+1}")
        if self.opt("gst"): self.stamp(4)
        wr(RE); rdtr(FB); wr(IM); rdtr(FB + 16)
        if self.opt("gst"): self.stamp(5)
        B = [CB] + [132 + 2 * m for m in range(7)]
        for m in range(1, 8): self.cmul(B[m], B[m - 1], Z256, TMP)
        Y0, Y1 = 146, 148
        def pack(row, x, y):
            a(f"v_cvt_pk_bf16_f32 v{RE+row//2}, v{x}, v{y}")
            a(f"v_cvt_pk_bf16_f32 v{IM+row//2}, v{x+1}, v{y+1}")
        a("s_waitcnt lgkmcnt(8)")
        self.cmul(X1, CB, Z1, TMP); pack(0, CB, X1)
        for row in (2, 4, 6):
            self.cmul(X0, X1, Z1, TMP); self.cmul(X1, X0, Z1, TMP); pack(row, X0, X1)
        self.cmul(X0, B[1], Z2, TMP); pack(8, B[1], X0)
        self.cmul(X1, X0, Z2, TMP); pack(10, X1, X1)
        self.cmul(X0, X1, Z2, TMP); pack(12, X1, X0)
        self.cmul(X1, X0, Z2, TMP); pack(14, X1, X1)
        for q, m in ((16, 2), (20, 3)):
            self.cmul(X0, B[m], Z4, TMP); pack(q, B[m], X0)
            self.cmul(X1, X0, Z4, TMP); pack(q + 2, X1, X1)
        for q, m in ((24, 4), (26, 6), (28, 5), (30, 7)):
            self.cmul(X0, B[m], Z8, TMP); pack(q, B[m], X0)
        if self.opt("gst"): self.stamp(6)
        wr(RE); rdtr(FA)
        a("s_waitcnt lgkmcnt(0)")
        if self.opt("gst"): self.stamp(7)
        for ks in range(4):
            a(f"v_mfma_f32_32x32x16_bf16 {v(ACC,16)}, {v(FA+4*ks,4)}, {v(FB+4*ks,4)}, {'0' if ks==0 else v(ACC,16)}")
        wr(IM); rdtr(RE)
        a("s_waitcnt lgkmcnt(0)")
        for ks in range(4):
            a(f"v_mfma_f32_32x32x16_bf16 {v(ACC,16)}, {v(RE+4*ks,4)}, {v(FB+16+4*ks,4)}, {v(ACC,16)}")
        self.stamp(2)
        if self.opt("abl_s") == 1: a("s_branch L_end")
        UG = self.UG
        self.waitc(C_KV, 4, vZ, vT, slp=1)
        a("ds_read_b32 v167, v1 offset:128")
        if not UE:
            if self.opt("uwait", 2): self.waitc({1: C_WQB, 2: C_FL, 3: C_QL}[self.opt("uwait", 2)], 4, vZ, vT, slp=2)
            self.u_load(); self.u_store()
        a("s_waitcnt lgkmcnt(0)")
        self.s_publish(C_UT, WS_FLAG3)
        a(f"""s_lshl_b32 {s(sT2)}, {s(sCH)}, 12
        s_add_u32 {s(sT2)}, {s(sT2)}, {GEN+8192}
        v_lshl_add_u32 v5, v0, 4, {s(sT2)}
        s_lshl_b32 {s(sT2)}, {s(sCH)}, 2
        v_add_u32 v6, {s(sT2)}, v1
        s_mul_i32 {s(sT3)}, {s(sCH)}, {KCH}
        s_add_u32 {s(sT3)}, {s(sT3)}, {R0+256}
        s_cmp_eq_u32 {s(sMH)}, 0
        s_cbranch_scc1 L_s_expand""")
        for c in range(4): a(f"ds_write_b128 v5, {v(ACC+4*c,4)} offset:{1024*c}")
        a("s_waitcnt lgkmcnt(0)")
        self.arrive(C_KT0, 6, vONE)
        a("s_branch L_s_ucopy")
        a.label("L_s_expand")
        self.waitc(C_KT0, 1, 6, vT)
        for c in range(4): a(f"ds_read_b128 {v(32+4*c,4)}, v5 offset:{1024*c}")
        a(f"""v_lshl_add_u32 v7, v0, 4, {s(sT3)}
        v_mov_b32 v48, 0
        v_mov_b32 v49, 0
        v_mov_b32 v50, 0
        v_mov_b32 v51, 0""")
        for cp in range(2):
            for off in (0, 1024, 1136):
                a(f"ds_write_b128 v7, v[48:51] offset:{cp*KCOPY+off}")
        for k in range(16): a(f"v_add_f32 v{ACC+k}, v{ACC+k}, v{32+k}")
        a(f"""v_cmp_eq_u32 vcc, 0, v0
        v_mov_b32 v9, {s(sT5)}
        v_cndmask_b32 v9, 0, v9, vcc
        v_add_f32 v{ACC}, v{ACC}, v9
        v_bfe_u32 v8, v0, 3, 2
        v_mul_u32_u24 v8, 144, v8
        v_and_b32 v9, 7, v0
        v_lshl_add_u32 v8, v9, 4, v8
        v_add_u32 v8, {s(sT3)}, v8
        v_lshrrev_b32 v9, 5, v0
        v_lshlrev_b32 v10, 3, v9
        v_sub_u32 v10, v8, v10
        v_mul_u32_u24 v9, 576, v9
        v_add_u32 v9, v8, v9
        v_and_b32 v11, 1, v0
        v_cmp_eq_u32 vcc, 0, v11""")
        A = ACC
        a(f"""v_cvt_pk_bf16_f32 v32, v{A+3}, v{A+2}
        v_cvt_pk_bf16_f32 v33, v{A+1}, v{A}
        ds_write_b64 v10, v[32:33] offset:{144*15+8}
        v_cvt_pk_bf16_f32 v34, v{A+6}, v{A+5}
        v_cvt_pk_bf16_f32 v35, v{A+4}, v{A+4}
        ds_write_b64 v10, v[34:35] offset:{144*19+8}
        v_cvt_pk_bf16_f32 v36, v{A+10}, v{A+10}
        v_cvt_pk_bf16_f32 v37, v{A+9}, v{A+9}
        v_cvt_pk_bf16_f32 v38, v{A+9}, v{A+8}
        v_cvt_pk_bf16_f32 v39, v{A+8}, v{A+8}
        ds_write_b128 v9, v[36:39] offset:{144*23}""")
        for q, (ra, dst, blk) in enumerate(((A + 12, 40, 31), (A + 14, 44, 39))):
            a(f"""v_cndmask_b32 v11, v{ra+1}, v{ra}, vcc
            v_cvt_pk_bf16_f32 v{dst}, v{ra+1}, v{ra+1}
            v_cvt_pk_bf16_f32 v{dst+1}, v{ra+1}, v11
            v_cvt_pk_bf16_f32 v{dst+2}, v{ra}, v{ra}
            v_cvt_pk_bf16_f32 v{dst+3}, v{ra}, v{ra}
            ds_write_b128 v9, {v(dst,4)} offset:{144*blk}""")
        a(f"""v_lshrrev_b32 v8, 3, v0
        v_mul_u32_u24 v8, 144, v8
        v_and_b32 v9, 7, v0
        v_lshl_add_u32 v8, v9, 4, v8
        v_add_u32 v8, {s(sT3)}, v8
        v_cmp_eq_u32 vcc, 0, v9
        v_mov_b32 v10, 16
        v_cndmask_b32 v10, v10, 32, vcc
        v_sub_u32 v10, v8, v10""")
        for it in range(4):
            a(f"ds_read_b128 {v(64+8*it,4)}, v8 offset:{144*(15+8*it)}")
            a(f"ds_read_b32 v{68+8*it}, v10 offset:{144*(15+8*it)}")
        for it in range(4):
            b = 64 + 8 * it
            a(f"s_waitcnt lgkmcnt({6-2*it+it})")
            for k in range(4): a(f"v_alignbit_b32 v{32+4*it+k}, v{b+k+1}, v{b+k}, 16")
            a(f"ds_write_b128 v8, {v(32+4*it,4)} offset:{KCOPY+144*(15+8*it)}")
        a.label("L_s_ucopy")
        self.stamp(3)
        a(f"""s_lshr_b32 {s(sT4)}, {s(sP)}, 5
        s_lshl_b32 {s(sT4)}, {s(sT4)}, 12
        s_add_u32 {s(sT4)}, {s(sT4)}, {WS_FLAG3}""")
        self.s_poll(sT4, 31)
        a(f"""s_lshl_b32 {s(sT1)}, {s(sP)}, 13
        s_lshl_b32 {s(sT2)}, {s(sW4)}, 11
        s_add_u32 {s(sT1)}, {s(sT1)}, {s(sT2)}
        s_add_u32 {s(sT1)}, {s(sT1)}, {WS_UT}
        v_lshlrev_b32 v4, 5, v0
        buffer_load_dwordx4 {v(UG,4)}, v4, {s(rWS,4)}, {s(sT1)} offen sc1
        buffer_load_dwordx4 {v(UG+4,4)}, v4, {s(rWS,4)}, {s(sT1)} offen offset:16 sc1""")
        self.waitc(C_QE, 4, vZ, vT, slp=4)
        a(f"""s_cmp_eq_u32 {s(sW4)}, 0
        s_cbranch_scc0 L_s_nouz
        v_lshrrev_b32 v8, 3, v0
        v_mul_u32_u24 v8, {UCOPY}, v8
        v_and_b32 v9, 7, v0
        v_lshl_add_u32 v8, v9, 4, v8
        v_add_u32 v8, {W}, v8
        v_mov_b32 v48, 0
        v_mov_b32 v49, 0
        v_mov_b32 v50, 0
        v_mov_b32 v51, 0
        ds_write_b128 v8, v[48:51]""")
        a.label("L_s_nouz")
        a(f"""s_lshl_b32 {s(sT2)}, {s(sW4)}, 10
        s_add_u32 {s(sT2)}, {s(sT2)}, {W}
        v_lshl_add_u32 v8, v0, 4, {s(sT2)}
        s_mov_b32 {s(sT0)}, 0x05040100
        s_mov_b32 {s(sT1)}, 0x07060302
        s_waitcnt vmcnt(0)""")
        self.stamp(4)
        for k in range(4):
            a(f"v_perm_b32 v{32+k}, v{UG+2*k+1}, v{UG+2*k}, {s(sT0)}")
            a(f"v_perm_b32 v{36+k}, v{UG+2*k+1}, v{UG+2*k}, {s(sT1)}")
        for ch in range(2):
            d = 32 + 4 * ch
            for ph in range(4):
                off = ch * UCH + ph * UCOPY + 128 - 4 * (ph + 1)
                if ph == 3:
                    a(f"ds_write_b128 v8, {v(d,4)} offset:{off}")
                elif ph == 1:
                    a(f"ds_write_b64 v8, {v(d,2)} offset:{off}\nds_write_b64 v8, {v(d+2,2)} offset:{off+8}")
                else:
                    a(f"v_add_u32 v9, {off}, v8")
                    a(f"ds_write2_b32 v9, v{d}, v{d+1} offset0:0 offset1:1\nds_write2_b32 v9, v{d+2}, v{d+3} offset0:2 offset1:3")
        a("s_waitcnt lgkmcnt(0)")
        self.arrive(C_KU, vZ, vONE)
        a(f"""s_mul_i32 {s(sT2)}, {s(sMH)}, 1152
        s_sub_u32 {s(sT3)}, {s(sT3)}, {s(sT2)}
        v_and_b32 v10, 15, v0
        v_mul_u32_u24 v8, 144, v10
        v_bfe_u32 v10, v0, 4, 1
        v_mul_u32_u24 v10, {KCOPY}, v10
        v_add_u32 v8, v8, v10
        v_lshrrev_b32 v11, 5, v0
        v_lshlrev_b32 v11, 4, v11
        v_sub_u32 v8, v8, v11
        v_add_u32 v8, {s(sT3)}, v8
        s_mul_i32 {s(sT2)}, {s(sCH)}, {UCH}
        s_lshl_b32 {s(sT4)}, {s(sMH)}, 10
        s_add_u32 {s(sT2)}, {s(sT2)}, {s(sT4)}
        s_add_u32 {s(sT2)}, {s(sT2)}, {W}
        v_and_b32 v10, 3, v0
        v_mul_u32_u24 v9, {UCOPY}, v10
        v_bfe_u32 v10, v0, 2, 3
        v_lshl_add_u32 v9, v10, 4, v9
        v_add_u32 v9, v9, v11
        v_add_u32 v9, {s(sT2)}, v9""")
        T0, T1 = 64, 80
        for k in range(0, 32, 2): a(f"v_mov_b64 {v(T0+k,2)}, 0")
        self.waitc(C_KU, 4, vZ, vT)
        self.stamp(5)
        if self.opt("abl_s") == 5: a("s_branch L_end")
        def crd(u, b):
            ao = 144 * 15 + 16 * (7 - 2 * u) if u < 4 else 144 * 14 + 16 * 7
            a(f"ds_read_b128 {v(b,4)}, v8 offset:{ao}")
            a(f"ds_read_b128 {v(b+8,4)}, v9 offset:{32*u}")
            a(f"ds_read_b128 {v(b+12,4)}, v9 offset:{32*u+2048}")
            a(f"ds_read_b128 {v(b+4,4)}, v8 offset:{ao+2304}")
        F = [32, 48]
        pace = self.opt("pace", 1)
        if pace == 0: crd(0, F[0])
        a(f"s_mov_b32 {s(sT4)}, {self.opt('convit', 8)}")
        a.label("L_conv")
        for u in range(4):
            b = F[u & 1]
            m0 = f"v_mfma_f32_32x32x16_bf16 {v(T0,16)}, {v(b,4)}, {v(b+8,4)}, {v(T0,16)}"
            m1 = f"v_mfma_f32_32x32x16_bf16 {v(T1,16)}, {v(b,4)}, {v(b+12,4)}, {v(T1,16)}"
            m2 = f"v_mfma_f32_32x32x16_bf16 {v(T1,16)}, {v(b+4,4)}, {v(b+8,4)}, {v(T1,16)}"
            ao = 144 * 15 + 16 * (7 - 2 * u)
            if pace == 0:
                crd(u + 1, F[(u + 1) & 1])
                a("s_waitcnt lgkmcnt(4)"); a(m0); a(m1); a(m2)
            elif pace == 1:
                a(f"ds_read_b128 {v(b,4)}, v8 offset:{ao}\nds_read_b128 {v(b+8,4)}, v9 offset:{32*u}\ns_waitcnt lgkmcnt(0)"); a(m0)
                a(f"ds_read_b128 {v(b+12,4)}, v9 offset:{32*u+2048}\ns_waitcnt lgkmcnt(0)"); a(m1)
                a(f"ds_read_b128 {v(b+4,4)}, v8 offset:{ao+2304}\ns_waitcnt lgkmcnt(0)"); a(m2)
            elif pace == 2:
                crd(u, b)
                a("s_waitcnt lgkmcnt(0)"); a(m0); a(m1); a(m2)
        a(f"""v_subrev_u32 v8, 144, v8
        v_add_u32 v9, 128, v9
        s_sub_u32 {s(sT4)}, {s(sT4)}, 1
        s_cmp_lg_u32 {s(sT4)}, 0
        s_cbranch_scc1 L_conv""")
        self.stamp(6)
        if self.opt("abl_s") == 6: a("s_branch L_end")
        def xchg_write(base, accs, ymode=False):
            a(f"""s_lshl_b32 {s(sT2)}, {s(sW4)}, 11
            s_add_u32 {s(sT2)}, {s(sT2)}, {base}
            v_lshl_add_u32 v10, v0, 4, {s(sT2)}
            s_lshl_b32 {s(sT2)}, {s(sW4)}, 13
            s_add_u32 {s(sT2)}, {s(sT2)}, {base}
            v_lshl_add_u32 v11, v0, 4, {s(sT2)}""")
            for q in range(4):
                r0, r1 = (accs+8*q, accs+8*q+4) if not ymode else (accs+16*(q>>1)+4*(q&1), accs+16*(q>>1)+8+4*(q&1))
                a(f"ds_write_b128 v10, {v(r0,4)} offset:{8192*q}")
                a(f"ds_write_b128 v10, {v(r1,4)} offset:{8192*q+1024}")
        def xchg_read(dst):
            for w in range(4):
                a(f"ds_read_b128 {v(dst+8*w,4)}, v11 offset:{2048*w}")
                a(f"ds_read_b128 {v(dst+8*w+4,4)}, v11 offset:{2048*w+1024}")
        a("s_waitcnt lgkmcnt(0)")
        xchg_write(YX, T0, True)
        a("s_waitcnt lgkmcnt(0)")
        self.arrive(C_Y, vZ, vONE)
        self.srd(rC, pOUT, 4194304)
        a(f"""s_lshl_b32 {s(sT1)}, {s(sP)}, 13
        s_lshl_b32 {s(sT2)}, {s(sW4)}, 11
        s_add_u32 {s(sT1)}, {s(sT1)}, {s(sT2)}
        s_add_u32 {s(sT1)}, {s(sT1)}, {WS_YT}
        v_and_b32 v12, 31, v0
        v_lshlrev_b32 v12, 3, v12
        v_lshrrev_b32 v13, 5, v0
        v_lshl_add_u32 v12, v13, 10, v12""")
        self.waitc(C_Y, 4, vZ, vT)
        xchg_read(32)
        self.srd(rB, pWO, 524288)
        a(f"""v_lshrrev_b32 v14, 3, v0
        v_and_b32 v15, 7, v0
        v_and_b32 v16, 2, v14
        v_lshlrev_b32 v16, 1, v16
        v_xor_b32 v15, v15, v16
        v_lshlrev_b32 v14, 10, v14
        v_lshl_add_u32 v14, v15, 4, v14
        s_lshl_b32 {s(sT3)}, {s(sW4)}, 17
        s_lshl_b32 {s(sT2)}, {s(sR)}, 7
        s_add_u32 {s(sT3)}, {s(sT3)}, {s(sT2)}
        s_lshl_b32 {s(sT4)}, {s(sW4)}, 13
        s_add_u32 {s(sT4)}, {s(sT4)}, {R0}""")
        def wo_dma():
            a(f"s_mov_b32 m0, {s(sT4)}")
            for i in range(8):
                a(f"buffer_load_dwordx4 v14, {s(rB,4)}, {s(sT3)} offen lds")
                if i < 7: a("s_add_u32 m0, m0, 1024")
                a(f"s_add_u32 {s(sT3)}, {s(sT3)}, 8192")
        wo_dma()
        a("s_waitcnt lgkmcnt(0)")
        for k in range(8):
            a(f"v_add_f32 v{32+k}, v{32+k}, v{48+k}\nv_add_f32 v{40+k}, v{40+k}, v{56+k}")
        for e in range(4):
            a(f"v_cvt_pk_bf16_f32 v{48+2*e}, v{36+e}, v{44+e}")
            a(f"v_cvt_pk_bf16_f32 v{49+2*e}, v{32+e}, v{40+e}")
        for e in range(4):
            a(f"buffer_store_dwordx2 {v(48+2*e,2)}, v12, {s(rWS,4)}, {s(sT1)} offen offset:{256*e} sc1")
        a(f"""s_lshl_b32 {s(sT1)}, {s(sG)}, 6
        s_lshl_b32 {s(sT2)}, {s(sR)}, 2
        s_add_u32 {s(sT1)}, {s(sT1)}, {s(sT2)}
        s_add_u32 {s(sT1)}, {s(sT1)}, {s(sW4)}
        s_lshl_b32 {s(sT1)}, {s(sT1)}, 10
        s_add_u32 {s(sT1)}, {s(sT1)}, {WS_O}
        s_add_u32 {s(sT2)}, {s(sT1)}, 32768
        v_mov_b64 v[20:21], -1
        v_mov_b64 v[22:23], -1
        v_lshlrev_b32 v15, 4, v0
        buffer_store_dwordx4 v[20:23], v15, {s(rWS,4)}, {s(sT1)} offen sc1
        buffer_store_dwordx4 v[20:23], v15, {s(rWS,4)}, {s(sT2)} offen sc1""")
        self.stamp(7)
        WOF = 96
        a(f"""v_bfe_u32 v15, v0, 2, 2
        v_lshrrev_b32 v16, 5, v0
        v_lshl_add_u32 v16, v16, 3, v15
        v_lshlrev_b32 v16, 7, v16
        v_and_b32 v15, 2, v15
        v_lshl_add_u32 v16, v15, 5, v16
        v_bfe_u32 v15, v0, 4, 1
        v_lshl_add_u32 v16, v15, 5, v16
        v_and_b32 v15, 1, v0
        v_lshl_add_u32 v16, v15, 4, v16
        v_bfe_u32 v15, v0, 1, 1
        v_lshl_add_u32 v16, v15, 3, v16
        v_add_u32 v16, {s(sT4)}, v16
        v_xor_b32 v17, 64, v16""")
        for rnd in range(2):
            a("s_waitcnt vmcnt(6)" if rnd == 0 else "s_waitcnt vmcnt(0)")
            for ks in range(4):
                for ct in range(2):
                    d = WOF + 32 * rnd + 8 * ks + 4 * ct
                    a(f"ds_read_b64_tr_b16 {v(d,2)}, v{16+ct} offset:{2048*ks}")
                    a(f"ds_read_b64_tr_b16 {v(d+2,2)}, v{16+ct} offset:{2048*ks+512}")
            if rnd == 0:
                a("s_waitcnt lgkmcnt(0)")
                self.s_publish(C_YT, WS_FLAG4)
                wo_dma()
        a("s_waitcnt lgkmcnt(0)")
        self.stamp(8)
        if self.opt("abl_s") == 8: a("s_branch L_end")
        self.y_poll()
        self.y_guard(self.y_assemble)
        a(f"""s_lshl_b32 {s(sT3)}, {s(sG)}, 16
        s_lshl_b32 {s(sT2)}, {s(sW4)}, 13
        s_add_u32 {s(sT3)}, {s(sT3)}, {s(sT2)}
        s_add_u32 {s(sT3)}, {s(sT3)}, {WS_O}
        v_lshlrev_b32 v14, 4, v0
        s_lshl_b32 {s(sT1)}, {s(sG)}, 17
        s_lshl_b32 {s(sT2)}, {s(sR)}, 7
        s_add_u32 {s(sT1)}, {s(sT1)}, {s(sT2)}
        s_lshl_b32 {s(sT2)}, {s(sW4)}, 14
        s_add_u32 {s(sT1)}, {s(sT1)}, {s(sT2)}
        v_lshrrev_b32 v12, 3, v0
        v_lshlrev_b32 v12, 11, v12
        v_and_b32 v15, 7, v0
        v_lshl_add_u32 v12, v15, 4, v12""")
        OF = 32; AC = 64
        a(f"""v_and_b32 v10, 31, v0
        v_lshlrev_b32 v10, 4, v10
        v_mul_u32_u24 v11, 576, v13
        v_add_u32 v10, v10, v11
        s_mul_i32 {s(sT2)}, {s(sW4)}, 2304
        s_add_u32 {s(sT2)}, {s(sT2)}, {W}
        v_add_u32 v10, {s(sT2)}, v10
        v_lshrrev_b32 v11, 3, v0
        v_lshlrev_b32 v11, 4, v11
        v_and_b32 v15, 1, v0
        v_mul_u32_u24 v15, 576, v15
        v_add_u32 v11, v11, v15
        v_bfe_u32 v15, v0, 1, 2
        v_mul_u32_u24 v15, 9344, v15
        v_add_u32 v11, v11, v15
        s_lshl_b32 {s(sT2)}, {s(sW4)}, 7
        s_add_u32 {s(sT2)}, {s(sT2)}, {W}
        v_add_u32 v11, {s(sT2)}, v11""")
        def oxw():
            for q in range(4):
                a(f"ds_write_b128 v10, {v(AC+8*q,4)} offset:{9344*q}")
                a(f"ds_write_b128 v10, {v(AC+8*q+4,4)} offset:{9344*q+1152}")
        def oxr():
            for w in range(4):
                a(f"ds_read_b128 {v(32+8*w,4)}, v11 offset:{2304*w}")
                a(f"ds_read_b128 {v(36+8*w,4)}, v11 offset:{2304*w+1152}")
        def omm(h):
            for ct in range(2):
                w = WOF + 8 * h + 4 * ct
                a(f"v_mfma_f32_32x32x16_bf16 {v(AC+16*ct,16)}, {v(w,4)}, {v(OF+4*h,4)}, {'0' if h==0 else v(AC+16*ct,16)}")
        a(f"""s_mov_b32 {s(sT5)}, 0
        v_mov_b32 v16, v1""")
        a.label("L_round")
        a(f"s_add_u32 {s(sT4)}, {s(sT3)}, 4096")
        self.waitc(C_OE, 4, 16, vT, slp=1)
        LP = self.opt("lightp", 1)
        if LP:
            if LP == 1: a(f"s_cmp_eq_u32 {s(sT5)}, 0\ns_cbranch_scc0 L_opoll")
            a(f"""v_lshlrev_b32 v18, 10, v0
            s_mov_b64 exec, 0xff""")
            a.label("L_lpoll")
            a(f"""buffer_load_dword v19, v18, {s(rWS,4)}, {s(sT3)} offen offset:1020 sc1
            s_waitcnt vmcnt(0)
            v_cmp_eq_u32 vcc, -1, v19
            s_and_b64 exec, exec, vcc
            s_cbranch_execz L_lok
            s_sleep {self.opt('lslp', 2)}
            s_sub_u32 {s(sBUD)}, {s(sBUD)}, 1
            s_cbranch_scc0 L_lpoll
            s_mov_b32 {s(sBUD)}, 0""")
            a.label("L_lok")
            a("s_mov_b64 exec, -1")
        a.label("L_opoll")
        for h in range(8): a(f"buffer_load_dwordx4 {v(OF+4*h,4)}, v14, {s(rWS,4)}, {s(sT3 if h<4 else sT4)} offen offset:{1024*(h&3)} sc1")
        for h in range(8):
            a(f"s_waitcnt vmcnt({7-h})")
            b = OF + 4 * h
            a(f"v_max_u32 v15, v{b}, v{b+1}" if h == 0 else f"v_max3_u32 v15, v15, v{b}, v{b+1}")
            if self.opt("ospec", 1): omm(h)
            a(f"v_max3_u32 v15, v15, v{b+2}, v{b+3}")
        a(f"""v_cmp_ne_u32 vcc, -1, v15
        s_cmp_eq_u64 vcc, exec
        s_cbranch_scc1 L_ook
        s_sub_u32 {s(sBUD)}, {s(sBUD)}, 1 ; nocount
        s_cbranch_scc0 L_opoll ; nocount
        s_mov_b32 {s(sBUD)}, 0 ; nocount""")
        a.label("L_ook")
        if self.dbg:
            a(f"s_cmp_eq_u32 {s(sT5)}, 0\ns_cbranch_scc0 L_st10")
            self.stamp(9)
            a.label("L_st10")
            self.stamp(10)
        if not self.opt("ospec", 1):
            for h in range(8): omm(h)
        oxw()
        a("s_waitcnt lgkmcnt(0)")
        self.sync4(C_O1, 16, vONE, vT, slp=0)
        oxr()
        a("s_waitcnt lgkmcnt(4)")
        for k in range(8): a(f"v_add_f32 v{32+k}, v{32+k}, v{40+k}")
        a("s_waitcnt lgkmcnt(0)")
        for k in range(8): a(f"v_add_f32 v{48+k}, v{48+k}, v{56+k}")
        for k in range(8): a(f"v_add_f32 v{32+k}, v{32+k}, v{48+k}")
        for k in range(4): a(f"v_cvt_pk_bf16_f32 v{20+k}, v{32+2*k}, v{33+2*k}")
        a(f"""buffer_store_dwordx4 v[20:23], v12, {s(rC,4)}, {s(sT1)} offen {self.opt_sc('osc', 0)}
        s_cmp_eq_u32 {s(sT5)}, 0
        s_cbranch_scc0 L_end
        s_mov_b32 {s(sT5)}, 1
        s_add_u32 {s(sT3)}, {s(sT3)}, 32768
        s_add_u32 {s(sT1)}, {s(sT1)}, 65536
        v_add_u32 v16, 4, v16
        v_add_u32 v10, {OX2-OX1}, v10
        v_add_u32 v11, {OX2-OX1}, v11
        s_branch L_round""")

    UG = 156
    def u_load(self):
        a = self.a; UG = self.UG; sCH, sMH = sLOOP, sSOF
        a(f"""s_mov_b32 {s(rB)}, {s(pU)}
        s_mov_b32 {s(rB+1)}, {s(pU+1)}
        s_mov_b32 {s(rB+2)}, 2097152
        s_and_b32 {s(sT0)}, {s(sP)}, 31
        s_lshr_b32 {s(sT3)}, {s(sP)}, 5
        s_lshl_b32 {s(sT1)}, {s(sT0)}, 16
        s_lshl_b32 {s(sT2)}, {s(sMH)}, 15
        s_add_u32 {s(sT1)}, {s(sT1)}, {s(sT2)}
        s_lshl_b32 {s(sT2)}, {s(sT3)}, 7
        s_add_u32 {s(sT1)}, {s(sT1)}, {s(sT2)}
        s_lshl_b32 {s(sT2)}, {s(sCH)}, 6
        s_add_u32 {s(sT1)}, {s(sT1)}, {s(sT2)}
        v_and_b32 v164, 7, v0
        v_lshrrev_b32 v165, 3, v0
        v_lshlrev_b32 v166, 12, v164
        v_lshl_add_u32 v166, v165, 2, v166""")
        for j in range(2):
            for i in range(4):
                a(f"buffer_load_dword v{UG+4*j+i}, v166, {s(rB,4)}, {s(sT1)} offen offset:{1024*i+32*j}")
    def u_store(self):
        a = self.a; UG = self.UG; sCH, sMH = sLOOP, sSOF
        a(f"""s_and_b32 {s(sT0)}, {s(sP)}, 31
        s_lshr_b32 {s(sT3)}, {s(sP)}, 5
        s_lshl_b32 {s(sT1)}, {s(sT3)}, 18
        s_lshl_b32 {s(sT2)}, {s(sCH)}, 17
        s_add_u32 {s(sT1)}, {s(sT1)}, {s(sT2)}
        s_lshl_b32 {s(sT2)}, {s(sT0)}, 8
        s_add_u32 {s(sT1)}, {s(sT1)}, {s(sT2)}
        s_lshl_b32 {s(sT2)}, {s(sMH)}, 7
        s_add_u32 {s(sT1)}, {s(sT1)}, {s(sT2)}
        s_add_u32 {s(sT1)}, {s(sT1)}, {WS_UT}
        s_add_u32 {s(sT2)}, {s(sT1)}, 65536
        v_lshlrev_b32 v166, 13, v165
        v_lshl_add_u32 v166, v164, 4, v166
        s_waitcnt vmcnt(4)
        buffer_store_dwordx4 {v(UG,4)}, v166, {s(rWS,4)}, {s(sT1)} offen sc1
        s_waitcnt vmcnt(1)
        buffer_store_dwordx4 {v(UG+4,4)}, v166, {s(rWS,4)}, {s(sT2)} offen sc1""")
    def y_poll(self):
        a = self.a
        a(f"""s_lshr_b32 {s(sT4)}, {s(sP)}, 5
        s_lshl_b32 {s(sT2)}, {s(sT4)}, 12
        s_add_u32 {s(sT2)}, {s(sT2)}, {WS_FLAG4}""")
        self.s_poll(sT2, 31, slp=8)
    def y_assemble(self):
        a = self.a
        self.srd(rC, pOUT, 4194304)
        a(f"""s_lshr_b32 {s(sT4)}, {s(sP)}, 5
        s_and_b32 {s(sT0)}, {s(sP)}, 31
        s_lshl_b32 {s(sT0)}, {s(sT0)}, 1
        s_and_b32 {s(sT2)}, {s(sW4)}, 1
        s_add_u32 {s(sT0)}, {s(sT0)}, {s(sT2)}
        s_lshl_b32 {s(sT1)}, {s(sT4)}, 18
        s_lshl_b32 {s(sT2)}, {s(sT0)}, 7
        s_add_u32 {s(sT1)}, {s(sT1)}, {s(sT2)}
        s_add_u32 {s(sT1)}, {s(sT1)}, {WS_YT}
        v_and_b32 v5, 7, v0
        v_lshrrev_b32 v6, 3, v0
        v_lshlrev_b32 v4, 15, v6
        v_lshl_add_u32 v4, v5, 4, v4""")
        for i in range(4):
            if i: a(f"s_add_u32 {s(sT1)}, {s(sT1)}, 8192")
            a(f"buffer_load_dwordx4 {v(32+4*i,4)}, v4, {s(rWS,4)}, {s(sT1)} offen sc1")
        a(f"""s_lshl_b32 {s(sT1)}, {s(sT0)}, 16
        s_lshl_b32 {s(sT2)}, {s(sT4)}, 7
        s_add_u32 {s(sT1)}, {s(sT1)}, {s(sT2)}
        s_add_u32 {s(sT1)}, {s(sT1)}, 1024
        s_add_u32 {s(sT2)}, {s(sT1)}, 4096
        v_lshlrev_b32 v4, 13, v5
        v_lshl_add_u32 v4, v6, 4, v4
        s_waitcnt vmcnt(0)""")
        for i in range(4):
            for j in range(i + 1, 4): a(f"v_swap_b32 v{32+4*i+j}, v{32+4*j+i}")
        for t in range(4):
            a(f"buffer_store_dwordx4 {v(32+4*t,4)}, v4, {s(rC,4)}, {s(sT1 if t < 2 else sT2)} offen offset:{2048*(t&1)} {self.opt_sc('ysc', 1)}")
        a("s_nop 1")
    def y_guard(self, f):
        L = self.a.newlabel("Ly")
        self.a(f"s_cmp_ge_u32 {s(sW4)}, 2\ns_cbranch_scc0 {L}")
        f()
        self.a.label(L)
    def opt_sc(self, k, d=0):
        return {0: "", 1: "sc1", 2: "nt", 3: "sc0 sc1"}[self.opt(k, d)]

    def finish(self):
        a = self.a
        a.label("L_end")
        if self.opt("diagm"):
            i = self.opt("diagi", 11)
            a("s_waitcnt vmcnt(0)")
            self.stamp(11)
            a(f"""s_waitcnt lgkmcnt(0)
            s_cmp_eq_u32 {s(sWG)}, {self.opt("diagwg", 100)}
            s_cbranch_scc0 L_exit
            s_cmp_eq_u32 {s(sWAVE)}, {4*[((self.opt('order', 0x201) >> (4*c)) & 3) for c in range(3)].index(self.opt('diagc', 2))}
            s_cbranch_scc0 L_exit
            s_sub_u32 {s(sT0)}, {s(sSTAMP+2*i)}, {s(sSTAMP)}
            s_mul_i32 {s(sT0)}, {s(sT0)}, {self.opt("diagm")}
            s_lshr_b32 {s(sT0)}, {s(sT0)}, {self.opt("diags", 0)}
            s_min_u32 {s(sT0)}, {s(sT0)}, 100000""")
            if self.opt("diagfix"): a(f"s_mov_b32 {s(sT0)}, {self.opt('diagfix')}")
            a.label("L_diag")
            a(f"""s_memrealtime {s(sT2,2)}
            s_waitcnt lgkmcnt(0)
            s_sub_u32 {s(sT1)}, {s(sT2)}, {s(sSTAMP)}
            s_cmp_lt_u32 {s(sT1)}, {s(sT0)}
            s_cbranch_scc1 L_diag""")
        elif self.dbg:
            a("s_waitcnt vmcnt(0)")
            self.stamp(11)
            a(f"""s_waitcnt lgkmcnt(0)
            s_mul_i32 {s(sT0)}, {s(sWG)}, 12
            s_add_u32 {s(sT0)}, {s(sT0)}, {s(sWAVE)}
            s_lshl_b32 {s(sT0)}, {s(sT0)}, 6
            s_add_u32 {s(sT0)}, {s(sT0)}, {WS_STAMP}
            v_mov_b32 v4, 0""")
            for i in range(12): a(f"v_mov_b32 v{8+i}, {s(sSTAMP+2*i)}")
            a(f"v_mov_b32 v20, {s(sBUD)}")
            a("s_mov_b64 exec, 1")
            for i in range(3): a(f"buffer_store_dwordx4 {v(8+4*i,4)}, v4, {s(rWS,4)}, {s(sT0)} offen offset:{16*i}")
            a(f"buffer_store_dword v20, v4, {s(rWS,4)}, {s(sT0)} offen offset:48")
        a.label("L_exit")
        a("s_endpgm")

if __name__ == "__main__":
    ap = argparse.ArgumentParser()
    ap.add_argument("-o", default=f"cdna_kernels/{NAME}.s")
    ap.add_argument("--dbg", action="store_true")
    ap.add_argument("opts", nargs="*")
    args = ap.parse_args()
    opts = {}
    for kv in args.opts:
        k, _, val = kv.partition("=")
        opts[k] = int(val, 0) if val else 1
    open(args.o, "w").write(Gen(args.dbg, opts).build())
```

```python
import sys, struct, argparse
from asmlib import Asm, v, s, hazard_pass

NAME = "concat_heads__grouped_kv_mqa__ssm_conv_s4__prompt"
def fbits(x): return "0x%08x" % struct.unpack("<I", struct.pack("<f", x))[0]
import math
LOG2E = math.log2(math.e)

R0   = 0
XE   = 32768
W    = 65536
GEN  = 131072
QB   = 147456
KVR  = 155648
CNT  = 159744
LDS_BYTES = 160000
KCOPY = 6912; KCH = 2 * KCOPY
UCOPY = 4416; UCH = 4 * UCOPY
YX   = W + 37888
OX1  = W
OX2  = YX
PSLOT = 2304
C_KV, C_WQA, C_WQB, C_XL, C_QE, C_QL, C_FL, C_KT0, C_KT1, C_KU, C_Y, C_PE, C_PED, C_PL, C_O1, C_O2, C_OE, C_OL, C_UT, C_YT, C_WQC, C_WQD, C_Y4, C_WO = [4 * i for i in range(24)]

WS_FLAG = 4096
WS_FLAG2 = 4096 + 32768
WS_FLAG3 = 4096 + 2 * 32768
WS_FLAG4 = 4096 + 3 * 32768
WS_KV   = 147456
KVT     = 2304
WS_O    = 1 << 19
WS_UT = 6 << 20
WS_YT = 8 << 20
WS_STAMP = 4 << 20
WS_DBG  = 5 << 20
WS_SIZE = 16 << 20

sWG, sWAVE, sG, sR, sP, sW4 = 2, 3, 4, 5, 6, 7
sT0, sT1, sT2, sT3, sT4, sT5 = 8, 9, 10, 11, 12, 13
sCLS = 14; sROT = 15
pX, pWQ, pWK, pWV, pWO, pU, pARE, pAIM, pBRE, pBIM, pCRE, pCIM, pLDT, pDSK, pOUT, pDBG, pWS = [16 + 2 * i for i in range(17)]
sNONCE, sBUD = 50, 51
rA, rB, rC, rWS = 52, 56, 60, 64
sLOOP = 68; sSOF = 69
sSTAMP = 70
OOB = 0x7ff00000

class Gen:
    def __init__(self, dbg=False, opts=None):
        self.a = Asm(); self.dbg = dbg; self.o = opts or {}
    def opt(self, k, d=None): return self.o.get(k, d)

    def srd(self, r, p, nbytes):
        a = self.a
        a(f"s_mov_b32 {s(r)}, {s(p)}\ns_mov_b32 {s(r+1)}, {s(p+1)}\ns_mov_b32 {s(r+2)}, {nbytes}\ns_mov_b32 {s(r+3)}, 0x20000")
    def stamp(self, i):
        if self.dbg: self.a(f"{'s_memtime' if self.opt('cyc') else 's_memrealtime'} {s(sSTAMP+2*i,2)}")
    def arrive(self, c, vz, vone):
        self.a(f"s_mov_b64 exec, 1\nds_add_u32 {v(vz)}, {v(vone)} offset:{c}\ns_mov_b64 exec, -1")
    def arrive_rtn(self, c, vz, vone, vt):
        self.a(f"""s_mov_b64 exec, 1
        ds_add_rtn_u32 {v(vt)}, {v(vz)}, {v(vone)} offset:{c}
        s_mov_b64 exec, -1
        s_waitcnt lgkmcnt(0)
        v_readfirstlane_b32 {s(sT0)}, {v(vt)}
        s_cmp_eq_u32 {s(sT0)}, 3""")
    def sync4(self, c, vz, vone, vt, slp=0):
        D = self.a.newlabel("Ls")
        self.arrive_rtn(c, vz, vone, vt)
        self.a(f"s_cbranch_scc1 {D}")
        n0 = len(self.a.lines)
        self.waitc(c, 4, vz, vt, slp)
        for i in range(n0, len(self.a.lines)):
            l = self.a.lines[i]
            if not l.endswith(":") and "nocount" not in l and not l.startswith(("v_readfirst", "s_cmp")): self.a.lines[i] = l + " ; nocount"
        self.a.label(D)
    def waitc(self, c, n, vz, vt, slp=1):
        a = self.a; L = a.newlabel("Lw"); D = a.newlabel("Ld")
        a.label(L)
        a(f"""ds_read_b32 {v(vt)}, {v(vz)} offset:{c}
        s_waitcnt lgkmcnt(0)
        v_readfirstlane_b32 {s(sT0)}, {v(vt)}
        s_cmp_ge_u32 {s(sT0)}, {n}
        s_cbranch_scc1 {D}
        s_sleep {slp} ; nocount
        s_sub_u32 {s(sBUD)}, {s(sBUD)}, 1 ; nocount
        s_cbranch_scc0 {L} ; nocount
        s_mov_b32 {s(sBUD)}, 0 ; nocount""")
        a.label(D)
    def s_publish(self, cnt, base):
        a = self.a; L = a.newlabel("Lpub")
        a("s_waitcnt vmcnt(0)")
        self.arrive_rtn(cnt, self.vZ, self.vONE, self.vT)
        a(f"s_cbranch_scc0 {L}")
        a(f"""s_lshl_b32 {s(sT2)}, {s(sP)}, 7
        s_add_u32 {s(sT2)}, {s(sT2)}, {base}
        v_mov_b32 v18, 0
        s_mov_b64 exec, 1
        buffer_store_dword v167, v18, {s(rWS,4)}, {s(sT2)} offen sc1
        s_mov_b64 exec, -1""")
        a.label(L)
    def s_poll(self, sbase, mask, slp=4):
        a = self.a; Lp = a.newlabel("Lpoll"); Lo = a.newlabel("Lok")
        a(f"v_lshlrev_b32 v18, 7, v0\ns_mov_b64 exec, {hex((1 << (mask + 1)) - 1) if mask < 63 else -1}")
        a.label(Lp)
        a(f"""buffer_load_dword v19, v18, {s(rWS,4)}, {s(sbase)} offen sc1
        s_waitcnt vmcnt(0)
        v_cmp_ne_u32 vcc, v167, v19
        s_and_b64 exec, exec, vcc
        s_cbranch_execz {Lo}
        s_sleep {slp} ; nocount
        s_sub_u32 {s(sBUD)}, {s(sBUD)}, 1 ; nocount
        s_cbranch_scc0 {Lp} ; nocount
        s_mov_b32 {s(sBUD)}, 0 ; nocount""")
        a.label(Lo)
        a("s_mov_b64 exec, -1")
    def cmul(self, d, x, m, t):
        self.a(f"v_pk_mul_f32 {v(t,2)}, {v(x,2)}, {v(m,2)} op_sel_hi:[1,0]")
        self.a(f"v_pk_fma_f32 {v(d,2)}, {v(x,2)}, {v(m,2)}, {v(t,2)} op_sel:[1,1,0] op_sel_hi:[0,1,1] neg_lo:[0,1,0]")

    def build(self):
        a = self.a
        self.entry()
        self.role_late_start()
        self.role_early_start()
        self.qproj_and_attention()
        self.role_s()
        self.finish()
        lines, n = hazard_pass(a.lines, verbose=self.opt("vhz"))
        body = "\n".join(l if l.endswith(":") or l.startswith(".") else "    " + l for l in lines)
        head = f"""; fused MQA attention + S4 long convolution, one persistent launch (generated by gen/gen.py)
; @launch grid=(256,1,1) block=(768,1,1) lds={LDS_BYTES}
.amdgcn_target "amdgcn-amd-amdhsa--gfx950"
.text
.globl {NAME}_kernel
.p2align 8
.type {NAME}_kernel,@function
{NAME}_kernel:
"""
        tail = f"""
.section .rodata,"a"
.p2align 6
.amdhsa_kernel {NAME}_kernel
  .amdhsa_next_free_vgpr 168
  .amdhsa_next_free_sgpr 98
  .amdhsa_accum_offset 168
  .amdhsa_group_segment_fixed_size 0
  .amdhsa_kernarg_size 136
  .amdhsa_user_sgpr_count 2
  .amdhsa_user_sgpr_kernarg_segment_ptr 1
  .amdhsa_system_sgpr_workgroup_id_x 1
  .amdhsa_float_denorm_mode_32 3
.end_amdhsa_kernel
"""
        return head + body + tail

    vL, vZ, vONE, vT = 0, 1, 2, 3

    def entry(self):
        a = self.a
        if self.dbg:
            for i in range(12): a(f"s_mov_b64 {s(sSTAMP+2*i,2)}, 0")
        self.stamp(0)
        a(f"""s_cmp_ge_u32 s2, 256
        s_cbranch_scc1 L_exit
        s_xor_b32 s2, s2, {self.opt('wgxor', 0)}
        s_load_dwordx16 s[16:31], s[0:1], 0
        s_load_dwordx16 s[32:47], s[0:1], 64
        s_load_dwordx2 s[48:49], s[0:1], 128
        v_lshrrev_b32 v3, 6, v0
        v_and_b32 v0, 63, v0
        v_readfirstlane_b32 {s(sWAVE)}, v3
        v_mov_b32 v1, {CNT}
        v_mov_b32 v2, 1
        s_and_b32 {s(sT0)}, s2, 7
        s_lshr_b32 {s(sT1)}, s2, 3
        s_lshl_b32 {s(sG)}, {s(sT0)}, 2
        s_lshr_b32 {s(sT2)}, {s(sT1)}, 3
        s_add_u32 {s(sG)}, {s(sG)}, {s(sT2)}
        s_and_b32 {s(sR)}, {s(sT1)}, 7
        s_xor_b32 {s(sR)}, {s(sR)}, {self.opt('rxor', 0)}
        s_lshl_b32 {s(sP)}, {s(sT0)}, 5
        s_add_u32 {s(sP)}, {s(sP)}, {s(sT1)}
        s_and_b32 {s(sROT)}, {s(sT1)}, 15
        s_mov_b32 {s(sBUD)}, 200000
        s_and_b32 {s(sW4)}, {s(sWAVE)}, 3
        s_lshr_b32 {s(sCLS)}, {s(sWAVE)}, 2
        s_lshl_b32 {s(sCLS)}, {s(sCLS)}, 2
        s_lshr_b32 {s(sCLS)}, {self.opt('order', 0x201)}, {s(sCLS)}
        s_and_b32 {s(sCLS)}, {s(sCLS)}, 3
        s_mov_b32 {s(rWS+2)}, {WS_SIZE}
        s_mov_b32 {s(rWS+3)}, 0x20000
        s_mov_b32 {s(rA+3)}, 0x20000
        s_mov_b32 {s(rB+3)}, 0x20000
        s_cmp_eq_u32 {s(sCLS)}, 2
        s_cbranch_scc1 L_role_s
        s_mov_b32 {s(rA+2)}, 2097152
        s_cmp_eq_u32 {s(sCLS)}, 0
        s_cbranch_scc1 L_role_early""")
    def ptrs_ready(self, x=True, nonce=False):
        a = self.a
        a(f"""s_waitcnt lgkmcnt(0)
        s_mov_b32 {s(rWS)}, {s(pWS)}
        s_mov_b32 {s(rWS+1)}, {s(pWS+1)}""")
        if x: a(f"""s_mov_b32 {s(rA)}, {s(pX)}
        s_mov_b32 {s(rA+1)}, {s(pX+1)}""")
        if nonce: a(f"s_load_dword {s(sNONCE)}, {s(pWS,2)}, 0")

    def role_late_start(self):
        a = self.a; vL, vZ, vONE, vT = self.vL, self.vZ, self.vONE, self.vT
        a("s_setprio 3")
        a(f"""s_and_b32 {s(sT0)}, {s(sR)}, 3
        s_lshl_b32 {s(sT1)}, {s(sG)}, 2
        s_add_u32 {s(sT1)}, {s(sT1)}, {s(sT0)}
        s_lshl_b32 {s(sT1)}, {s(sT1)}, 14
        s_lshl_b32 {s(sT2)}, {s(sW4)}, 8
        s_add_u32 {s(sT1)}, {s(sT1)}, {s(sT2)}
        v_and_b32 v4, 15, v0
        v_lshrrev_b32 v5, 4, v0
        v_lshlrev_b32 v6, 10, v4
        v_lshl_add_u32 v6, v5, 4, v6
        s_lshl_b32 {s(sT2)}, {s(sW4)}, 12
        v_lshrrev_b32 v7, 4, v0
        v_and_b32 v7, 1, v7
        v_lshlrev_b32 v7, 7, v7
        v_lshlrev_b32 v24, 4, v0
        v_xor_b32 v7, v7, v24
        s_add_u32 m0, {s(sT2)}, {R0}
        s_mov_b32 {s(rB+2)}, 16384""")
        self.ptrs_ready(nonce=True)
        for k in range(4):
            a(f"buffer_load_dwordx4 {v(8+4*k,4)}, v6, {s(rA,4)}, {s(sT1)} offen offset:{64*k}")
        a(f"""s_cmp_ge_u32 {s(sR)}, 4
        s_cselect_b32 {s(rB)}, {s(pWV)}, {s(pWK)}
        s_cselect_b32 {s(rB+1)}, {s(pWV+1)}, {s(pWK+1)}""")
        for k in range(4):
            a(f"buffer_load_dwordx4 v7, {s(rB,4)}, {s(sT2)} offen offset:{1024*k} lds")
        TOUCH = self.opt("touch", 0)
        if TOUCH == 1:
            a(f"""s_lshl_b32 {s(sT3)}, {s(sG)}, 3
            s_add_u32 {s(sT3)}, {s(sT3)}, {s(sR)}
            s_lshl_b32 {s(sT3)}, {s(sT3)}, {self.opt('fsh', 5)}
            v_mov_b32 v29, {WS_FLAG}
            s_mov_b64 exec, 1
            buffer_load_dword v30, v29, {s(rWS,4)}, {s(sT3)} offen sc1
            s_mov_b64 exec, -1""")
        if TOUCH == 2:
            a(f"""s_lshl_b32 {s(sT3)}, {s(sG)}, 3
            s_add_u32 {s(sT3)}, {s(sT3)}, {s(sR)}
            s_lshl_b32 {s(sT3)}, {s(sT3)}, {self.opt('fsh', 5)}
            s_add_u32 {s(sT3)}, {s(sT3)}, {WS_FLAG}
            s_bfe_u32 {s(sT4)}, {s(sR)}, 0x10001
            s_lshl_b32 {s(sT5)}, {s(sG)}, 1
            s_add_u32 {s(sT4)}, {s(sT4)}, {s(sT5)}
            s_mul_i32 {s(sT4)}, {s(sT4)}, {KVT}
            s_add_u32 {s(sT4)}, {s(sT4)}, {WS_KV}
            v_lshlrev_b32 v29, 7, v0
            v_add_u32 v29, {s(sT4)}, v29
            v_writelane_b32 v29, {s(sT3)}, 18
            s_mov_b64 exec, 0x7ffff
            buffer_load_dword v30, v29, {s(rWS,4)}, 0 offen sc1
            s_mov_b64 exec, -1""")
        a(f"""v_bfe_u32 v25, v0, 2, 2
        v_lshl_add_u32 v25, v5, 3, v25
        v_and_b32 v26, 1, v5
        v_lshl_add_u32 v25, v26, 2, v25
        v_lshlrev_b32 v25, 5, v25
        v_and_b32 v26, 3, v0
        v_lshl_add_u32 v25, v26, 3, v25
        v_add_u32 v25, {s(sT2)}, v25
        v_xor_b32 v26, 0x80, v25
        s_barrier
        s_waitcnt vmcnt({1 if TOUCH else 0}) lgkmcnt(0)""")
        self.stamp(1)
        for k in range(4):
            a(f"ds_read_b64_tr_b16 {v(32+4*k,2)}, v25 offset:{R0+1024*k}")
            a(f"ds_read_b64_tr_b16 {v(34+4*k,2)}, v26 offset:{R0+1024*k}")
        a(f"""s_cmp_ge_u32 {s(sR)}, 4
        s_cbranch_scc1 L_kv_v""")
        for k in range(4):
            a(f"s_waitcnt lgkmcnt({6-2*k})")
            a(f"v_mfma_f32_16x16x32_bf16 v[48:51], {v(32+4*k,4)}, {v(8+4*k,4)}, {'0' if k==0 else 'v[48:51]'}")
        a("s_branch L_kv_j")
        a.label("L_kv_v")
        for k in range(4):
            a(f"s_waitcnt lgkmcnt({6-2*k})")
            a(f"v_mfma_f32_16x16x32_bf16 v[48:51], {v(8+4*k,4)}, {v(32+4*k,4)}, {'0' if k==0 else 'v[48:51]'}")
        a.label("L_kv_j")
        a(f"""s_lshl_b32 {s(sT2)}, {s(sW4)}, 10
        s_add_u32 {s(sT2)}, {s(sT2)}, {KVR}
        v_add_u32 v27, {s(sT2)}, v24
        s_add_u32 {s(sT3)}, {s(sNONCE)}, 0x9e3779b9
        v_mov_b32 v28, {s(sT3)}
        ds_write_b32 v1, v28 offset:128
        s_nop 3
        ds_write_b128 v27, v[48:51]
        s_waitcnt lgkmcnt(0)""")
        self.arrive_rtn(C_KV, vZ, vONE, vT)
        self.stamp(7)
        a("s_cbranch_scc0 L_kv_done")
        a(f"""v_add_u32 v27, {KVR}, v24
        ds_read_b128 v[48:51], v27
        ds_read_b128 v[52:55], v27 offset:1024
        ds_read_b128 v[56:59], v27 offset:2048
        ds_read_b128 v[60:63], v27 offset:3072
        s_cmp_ge_u32 {s(sR)}, 4
        s_cselect_b32 {s(sT2)}, 1.0, {fbits(0.25*LOG2E)}
        s_cselect_b32 {s(sT3)}, 1024, 0
        s_cselect_b32 {s(sT4)}, 5, 4
        s_lshl_b32 {s(sT4)}, {s(sT4)}, 7
        s_bitcmp1_b32 {s(sR)}, 0
        s_cselect_b32 {s(sT4)}, {s(sT4)}, 0
        s_add_u32 {s(sT3)}, {s(sT3)}, {s(sT4)}
        s_bfe_u32 {s(sT4)}, {s(sR)}, 0x10001
        s_lshl_b32 {s(sT5)}, {s(sG)}, 1
        s_add_u32 {s(sT4)}, {s(sT4)}, {s(sT5)}
        s_mul_i32 {s(sT4)}, {s(sT4)}, {KVT}
        s_add_u32 {s(sT3)}, {s(sT3)}, {s(sT4)}
        s_add_u32 {s(sT3)}, {s(sT3)}, {WS_KV}
        v_lshlrev_b32 v6, 5, v4
        v_lshl_add_u32 v6, v5, 3, v6
        s_waitcnt lgkmcnt(0)""")
        for i in range(4): a(f"v_add_f32 v{48+i}, v{48+i}, v{52+i}")
        for i in range(4): a(f"v_add_f32 v{56+i}, v{56+i}, v{60+i}")
        for i in range(4): a(f"v_add_f32 v{48+i}, v{48+i}, v{56+i}")
        for i in range(4): a(f"v_mul_f32 v{48+i}, {s(sT2)}, v{48+i}")
        a(f"""v_cvt_pk_bf16_f32 v52, v48, v49
        v_cvt_pk_bf16_f32 v53, v50, v51
        buffer_store_dwordx2 v[52:53], v6, {s(rWS,4)}, {s(sT3)} offen sc1
        s_cmp_ge_u32 {s(sR)}, 4
        s_cbranch_scc0 L_kv_noones
        v_mov_b32 v54, 0x3f803f80
        v_mov_b32 v55, 0x3f803f80
        v_lshlrev_b32 v7, 3, v0
        s_mov_b64 exec, 0xffff
        buffer_store_dwordx2 v[54:55], v7, {s(rWS,4)}, {s(sT3)} offen offset:512 sc1
        s_mov_b64 exec, -1""")
        a.label("L_kv_noones")
        self.stamp(8)
        if self.opt("wq1", 8) < 16: self.arrive(C_WQD, vZ, vONE)
        a(f"""s_lshl_b32 {s(sT2)}, {s(sG)}, 3
        s_add_u32 {s(sT2)}, {s(sT2)}, {s(sR)}
        s_lshl_b32 {s(sT2)}, {s(sT2)}, {self.opt('fsh', 5)}
        s_add_u32 {s(sT2)}, {s(sT2)}, {WS_FLAG}
        s_add_u32 {s(sT3)}, {s(sNONCE)}, 0x9e3779b9
        v_mov_b32 v54, {s(sT3)}
        v_lshlrev_b32 v7, 2, v0
        s_waitcnt vmcnt(0)
        s_mov_b64 exec, {hex((1 << (1 << (self.opt('fsh', 5) - 2))) - 1) if self.opt('ffull') else 1}
        buffer_store_dword v54, v7, {s(rWS,4)}, {s(sT2)} offen sc1
        s_mov_b64 exec, -1""")
        if self.opt("wq1", 8) < 16: self.arrive(C_WQD, vZ, vONE)
        a.label("L_kv_done")
        self.stamp(2)
        self.qproj()
        a("s_branch L_att_setup")

    def l2_prefetch(self, srd, mode, vt, vd, st):
        a = self.a
        a(f"s_and_b32 {s(st)}, {s(sP)}, 31")
        if mode == 1:
            a(f"""s_lshl_b32 {s(st)}, {s(st)}, 2
            s_add_u32 {s(st)}, {s(st)}, {s(sW4)}
            s_lshl_b32 {s(st)}, {s(st)}, 12
            v_lshlrev_b32 v{vt}, 10, v0
            s_mov_b64 exec, 0xf
            buffer_load_dword v{vd}, v{vt}, {s(srd,4)}, {s(st)} offen offset:384
            s_mov_b64 exec, -1""")
        else:
            a(f"""s_lshl_b32 {s(st)}, {s(st)}, 2
            s_add_u32 {s(st)}, {s(st)}, {s(sW4)}
            s_lshl_b32 {s(st)}, {s(st)}, 12
            v_lshlrev_b32 v{vt}, 7, v0
            s_mov_b64 exec, 0xffffffff
            buffer_load_dword v{vd}, v{vt}, {s(srd,4)}, {s(st)} offen
            s_mov_b64 exec, -1""")
    def s_prefetch(self, p, soff, n, stride):
        a = self.a
        a(f"s_add_u32 s96, {s(p)}, {s(soff)}\ns_addc_u32 s97, {s(p+1)}, 0")
        for i in range(n): a(f"s_load_dword s{94 + (i & 1)}, s[96:97], {i*stride}")
    def x_dma(self, lds, row0):
        a = self.a
        a(f"""s_lshl_b32 {s(sT1)}, {s(sG)}, 16
        s_lshl_b32 {s(sT2)}, {s(sW4)}, 13
        s_add_u32 {s(sT1)}, {s(sT1)}, {s(sT2)}
        s_add_u32 {s(sT1)}, {s(sT1)}, {row0*1024}
        s_add_u32 m0, {s(sT2)}, {lds}
        s_and_b32 {s(sT3)}, {s(sW4)}, 1
        s_lshl_b32 {s(sT3)}, {s(sT3)}, 7
        v_lshlrev_b32 v4, 4, v0
        v_xor_b32 v4, {s(sT3)}, v4""")
        for i in range(8):
            if i == 4:
                a(f"s_add_u32 {s(sT1)}, {s(sT1)}, 4096\ns_add_u32 m0, m0, 4096")
            if i == 0:
                a(f"buffer_load_dwordx4 v4, {s(rA,4)}, {s(sT1)} offen lds")
            else:
                a(f"v_xor_b32 v{5+(i&1)}, {16*i}, v4")
                a(f"buffer_load_dwordx4 v{5+(i&1)}, {s(rA,4)}, {s(sT1)} offen offset:{1024*(i&3)} lds")

    def role_early_start(self):
        a = self.a; vL, vZ, vONE, vT = self.vL, self.vZ, self.vONE, self.vT
        a.label("L_role_early")
        a(f"""s_setprio 3
        v_lshl_add_u32 v4, v0, 2, v1
        v_mov_b32 v5, 0
        ds_write_b32 v4, v5""")
        self.ptrs_ready()
        if self.opt("ipf", 1):
            a(f"""s_getpc_b64 {s(sT2,2)}""")
            a.label("L_pc")
            a(f"""s_and_b32 {s(sT0)}, {s(sP)}, 31
            s_lshl_b32 {s(sT0)}, {s(sT0)}, 2
            s_add_u32 {s(sT0)}, {s(sT0)}, {s(sW4)}
            s_lshl_b32 {s(sT0)}, {s(sT0)}, 7
            s_min_u32 {s(sT0)}, {s(sT0)}, L_exit-L_pc-128
            s_and_b32 {s(sT0)}, {s(sT0)}, -4
            s_add_u32 {s(sT2)}, {s(sT2)}, {s(sT0)}
            s_addc_u32 {s(sT3)}, {s(sT3)}, 0
            s_load_dword s94, {s(sT2,2)}, 0
            s_load_dword s95, {s(sT2,2)}, 64""")
        if not self.opt("barx", 1): a("s_barrier")
        a(f"""s_mov_b32 {s(rB)}, {s(pWQ)}
        s_mov_b32 {s(rB+1)}, {s(pWQ+1)}
        s_mov_b32 {s(rB+2)}, 524288""")
        if self.opt("wqpf", 3) in (1, 2): self.l2_prefetch(rB, self.opt("wqpf", 3), 10, 11, sT4)
        self.x_dma(XE, 0)
        if self.opt("wqpf", 3) in (3, 4): self.l2_prefetch(rB, self.opt("wqpf", 3) - 2, 10, 11, sT4)
        a(f"""v_lshrrev_b32 v7, 3, v0
        v_and_b32 v8, 7, v0
        v_and_b32 v9, 2, v7
        v_xor_b32 v8, v8, v9
        s_and_b32 {s(sT3)}, {s(sW4)}, 1
        s_lshl_b32 {s(sT3)}, {s(sT3)}, 2
        v_xor_b32 v8, {s(sT3)}, v8
        v_lshlrev_b32 v7, 10, v7
        v_lshl_add_u32 v7, v8, 4, v7
        s_lshl_b32 {s(sT1)}, {s(sW4)}, 13
        s_lshl_b32 {s(sT2)}, {s(sR)}, 7
        s_add_u32 {s(sT1)}, {s(sT1)}, {s(sT2)}
        s_lshl_b32 {s(sT2)}, {s(sW4)}, 10
        s_add_u32 m0, {s(sT2)}, {W}""")
        self.stamp(7)
        if self.opt("barx", 1): a("s_barrier")
        if self.opt("xwait", 0): a("s_waitcnt vmcnt(0)")
        self.stamp(8)
        for i in range(16):
            if i == self.opt("wq1", 8): self.waitc(C_WQD, self.opt("wqn", 1), vZ, vT, slp=1)
            a(f"buffer_load_dwordx4 v7, {s(rB,4)}, {s(sT1)} offen lds")
            if i < 15: a(f"s_add_u32 m0, m0, 4096\ns_add_u32 {s(sT1)}, {s(sT1)}, 32768")
        self.stamp(1)
        a("s_waitcnt vmcnt(8)")
        self.arrive(C_WQA, vZ, vONE)
        a("s_waitcnt vmcnt(0)")
        self.arrive(C_WQB, vZ, vONE)
        self.stamp(10)
        self.waitc(C_KV, 4, vZ, vT, slp=1)
        a(f"""ds_read_b32 v3, v1 offset:128
        s_waitcnt lgkmcnt(0)
        v_readfirstlane_b32 {s(sNONCE)}, v3""")
        if self.opt("pollat", 1) == 0: self.first_poll()

    Q0, O0, S0, KA = 8, 24, 88, 120
    vKO, vVO, vIDX = 4, 5, 6
    def qproj(self):
        a = self.a; vL, vZ, vONE, vT = self.vL, self.vZ, self.vONE, self.vT
        WF = 76
        a(f"""v_xor_b32 v6, v4, v5
        v_lshlrev_b32 v6, 4, v6
        v_lshl_add_u32 v6, v4, 10, v6
        v_add_u32 v144, {XE}, v6
        v_xor_b32 v145, 64, v144
        v_xor_b32 v146, 0x80, v144
        v_xor_b32 v147, 0xc0, v144
        v_bfe_u32 v6, v0, 2, 2
        v_lshl_add_u32 v7, v5, 3, v6
        v_lshlrev_b32 v7, 7, v7
        v_and_b32 v6, 2, v6
        v_and_b32 v8, 1, v5
        v_lshl_add_u32 v6, v8, 2, v6
        s_lshl_b32 {s(sT1)}, {s(sW4)}, 1
        v_xor_b32 v6, {s(sT1)}, v6
        v_lshl_add_u32 v7, v6, 4, v7
        v_and_b32 v6, 3, v0
        v_lshl_add_u32 v7, v6, 3, v7
        v_add_u32 v148, {W}, v7
        v_lshrrev_b32 v6, 1, v5
        v_lshlrev_b32 v6, 9, v6
        v_lshl_add_u32 v6, v4, 4, v6
        v_and_b32 v7, 1, v5
        v_lshl_add_u32 v6, v7, 3, v6
        s_lshl_b32 {s(sT2)}, {s(sW4)}, 10
        s_add_u32 {s(sT2)}, {s(sT2)}, {QB}
        v_add_u32 v149, {s(sT2)}, v6""")
        def rdw(sx):
            a(f"ds_read_b64_tr_b16 {v(WF+4*sx,2)}, v148 offset:{4096*sx}")
            a(f"ds_read_b64_tr_b16 {v(WF+4*sx+2,2)}, v148 offset:{4096*sx+512}")
        def rdx(sx):
            b = 24 + 8 * (sx % 4)
            a(f"ds_read_b128 {v(b,4)}, v{144+(sx&3)} offset:{256*(sx>>2)}")
            a(f"ds_read_b128 {v(b+4,4)}, v{144+(sx&3)} offset:{256*(sx>>2)+16384}")
        def mm(sx):
            b = 24 + 8 * (sx % 4)
            a(f"v_mfma_f32_16x16x32_bf16 v[64:67], {v(WF+4*sx,4)}, {v(b,4)}, {'0' if sx==0 else 'v[64:67]'}")
            a(f"v_mfma_f32_16x16x32_bf16 v[68:71], {v(WF+4*sx,4)}, {v(b+4,4)}, {'0' if sx==0 else 'v[68:71]'}")
        def qout(off, cnt):
            a(f"""v_cvt_pk_bf16_f32 v72, v64, v65
            v_cvt_pk_bf16_f32 v73, v66, v67
            v_cvt_pk_bf16_f32 v74, v68, v69
            v_cvt_pk_bf16_f32 v75, v70, v71
            ds_write_b64 v149, v[72:73] offset:{off}
            ds_write_b64 v149, v[74:75] offset:{off+256}
            s_waitcnt lgkmcnt(0)""")
        for half in range(2):
            s0 = 8 * half
            self.waitc([C_WQA, C_WQB][half], 4, vZ, vT, slp=0)
            if half: self.stamp(10)
            for k in range(2): rdw(s0 + k); rdx(s0 + k)
            for sx in range(s0, s0 + 8):
                if sx + 2 < s0 + 8:
                    rdw(sx + 2); rdx(sx + 2); a("s_waitcnt lgkmcnt(8)")
                else:
                    a(f"s_waitcnt lgkmcnt({4*(s0+7-sx)})")
                mm(sx)
        qout(0, C_QE)
        self.sync4(C_QE, vZ, vONE, vT, slp=1)
        self.stamp(3)
        if self.opt("xlwait", 0): self.waitc(C_FL, 4, vZ, vT, slp=2)
        self.x_dma(XE, 32)
        a("s_waitcnt vmcnt(0)")
        self.sync4(C_XL, vZ, vONE, vT, slp=1)
        for k in range(3): rdx(k)
        for sx in range(16):
            if sx + 3 < 16:
                rdx(sx + 3); a("s_waitcnt lgkmcnt(6)")
            else:
                a(f"s_waitcnt lgkmcnt({2*(15-sx)})")
            mm(sx)
        qout(4096, C_QL)
        self.arrive(C_QL, vZ, vONE)

    def qproj_and_attention(self):
        a = self.a; vL, vZ, vONE, vT = self.vL, self.vZ, self.vONE, self.vT
        a.label("L_att_setup")
        a(f"""s_lshl_b32 {s(sT2)}, {s(sCLS)}, 2
        v_add_u32 v92, {s(sT2)}, v1""")
        Q0, O0, S0, KA = self.Q0, self.O0, self.S0, self.KA
        vKO, vVO, vIDX = self.vKO, self.vVO, self.vIDX
        a(f"""s_mul_i32 {s(sT2)}, {s(sW4)}, {16*KVT}
        s_add_u32 {s(sT2)}, {s(sT2)}, {WS_KV}
        v_and_b32 v7, 31, v0
        v_lshrrev_b32 v8, 5, v0
        v_lshlrev_b32 v4, 5, v7
        v_lshl_add_u32 v4, v8, 4, v4
        v_add_u32 v4, {s(sT2)}, v4
        v_and_b32 v9, 3, v7
        v_bfe_u32 v10, v7, 2, 1
        v_lshl_add_u32 v9, v10, 3, v9
        v_bfe_u32 v10, v7, 3, 1
        v_lshl_add_u32 v9, v10, 2, v9
        v_lshlrev_b32 v9, 5, v9
        v_cmp_gt_u32 vcc, 16, v7
        v_mov_b32 v10, {OOB}
        v_cndmask_b32 v9, v10, v9, vcc
        v_and_b32 v10, 27, v7
        v_cmp_eq_u32 vcc, 16, v10
        v_mov_b32 v10, 512
        v_cndmask_b32 v9, v9, v10, vcc
        v_lshl_add_u32 v9, v8, 4, v9
        v_add_u32 v5, {s(sT2)}, v9
        v_mov_b32 v6, 0xdddddddd""")
        for h in range(4):
            for i in range(0, 10, 2): a(f"v_mov_b64 {v(O0+16*h+i,2)}, 0")
        for i in range(0, 8, 2): a(f"v_mov_b64 {v(S0+24+i,2)}, 0")
        for i in range(0, 4, 2): a(f"v_mov_b64 {v(KA+12*self.opt('nbuf',4)-4+i,2)}, 0")
        self.tail_setup()
        if self.opt("chunk", 1):
            a(f"""s_cmp_eq_u32 {s(sCLS)}, 0
            s_cselect_b32 s35, {self.opt('ce', 4) + 1}, {self.opt('cl', 6) + 1}
            s_lshl_b32 s35, 1, s35""")
        a(f"""s_cmp_eq_u32 {s(sCLS)}, 0
        s_cbranch_scc0 L_late_flags
        s_mov_b32 {s(sT3)}, {s(sNONCE)}""")
        if self.opt("pollat", 1) == 1:
            self.stamp(2); self.first_poll()
            if self.opt("pst"):
                a("s_waitcnt vmcnt(0)"); self.stamp(3)
        if self.opt("pollat", 1) == 2:
            self.waitc(C_QE, 1, vZ, vT, slp=1); self.first_poll()
        a.label("L_poll")
        a(f"""s_waitcnt vmcnt(0)
        v_cmp_ne_u32 vcc, {s(sT3)}, v94
        s_and_b64 exec, exec, vcc
        s_cbranch_execz L_poll_ok
        s_sleep {self.opt('pslp', 1)}
        buffer_load_dword v94, v93, {s(rWS,4)}, {s(sT1)} offen sc1
        s_sub_u32 {s(sBUD)}, {s(sBUD)}, 1
        s_cbranch_scc0 L_poll
        s_mov_b32 {s(sBUD)}, 0
        s_waitcnt vmcnt(0)""")
        a.label("L_poll_ok")
        a("s_mov_b64 exec, -1")
        a("s_branch L_flags_done")
        a.label("L_late_flags")
        self.waitc(C_FL, 4, vZ, vT)
        a.label("L_flags_done")
        self.stamp(4)
        NB = self.opt("nbuf", 4)
        BUF = [KA + 12 * i for i in range(NB)]
        sN = sT4
        def sof_next():
            a(f"""s_add_u32 {s(sROT)}, {s(sROT)}, 1
            s_and_b32 {s(sROT)}, {s(sROT)}, 15
            s_mul_i32 {s(sSOF)}, {s(sROT)}, {KVT}""")
            if self.inloop:
                a(f"""s_cmp_eq_u32 {s(sLOOP)}, 1
                s_cselect_b32 {s(sSOF)}, {OOB}, {s(sSOF)}""")
        SC = {0: "sc1", 1: "", 2: "sc0", 3: "nt", 4: "sc0 sc1"}[self.opt("kvsc", 0)]
        self.inloop = False
        def ldK(b):
            if not (self.inloop and self.opt("nold")): a(f"buffer_load_dwordx4 {v(b,4)}, v{vKO}, {s(rWS,4)}, {s(sSOF)} offen {SC}")
        def ldV0(b):
            if not (self.inloop and self.opt("nold")): a(f"buffer_load_dwordx4 {v(b+4,4)}, v{vVO}, {s(rWS,4)}, {s(sSOF)} offen offset:1024 {SC}")
        def ldV1(b):
            if not (self.inloop and self.opt("nold")): a(f"buffer_load_dwordx4 {v(b+8,4)}, v{vVO}, {s(rWS,4)}, {s(sSOF)} offen offset:1664 {SC}")
        a(f"s_mul_i32 {s(sSOF)}, {s(sROT)}, {KVT}")
        for b in range(NB):
            if b: sof_next()
            ldK(BUF[b]); ldV0(BUF[b])
            if b < NB - 1: ldV1(BUF[b])
        a(f"s_cmp_eq_u32 {s(sCLS)}, 0\ns_cbranch_scc0 L_nofl")
        if self.opt("p16", 0):
            a.label("L_poll2")
            a(f"""buffer_load_dword v94, v93, {s(rWS,4)}, {s(sT1)} offen sc1
            s_waitcnt vmcnt(0)
            v_cmp_ne_u32 vcc, {s(sT3)}, v94
            s_and_b64 exec, exec, vcc
            s_cbranch_execz L_poll2_ok
            s_sub_u32 {s(sBUD)}, {s(sBUD)}, 1
            s_cbranch_scc0 L_poll2
            s_mov_b32 {s(sBUD)}, 0""")
            a.label("L_poll2_ok")
            a("s_mov_b64 exec, -1")
        self.arrive(C_FL, vZ, vONE)
        a.label("L_nofl")
        self.waitc(C_QE, 4, 92, vT, slp=0)
        a(f"""s_lshl_b32 {s(sT2)}, {s(sCLS)}, 12
        s_add_u32 {s(sT2)}, {s(sT2)}, {QB}
        v_lshl_add_u32 v7, v0, 4, {s(sT2)}""")
        for i in range(4):
            a(f"""s_add_u32 {s(sT3)}, {s(sW4)}, {i}
            s_and_b32 {s(sT3)}, {s(sT3)}, 3
            s_lshl_b32 {s(sT3)}, {s(sT3)}, 10
            v_add_u32 v{S0+i}, {s(sT3)}, v7
            ds_read_b128 {v(Q0+4*i,4)}, v{S0+i}""")
        a(f"""s_mov_b32 {s(sLOOP)}, {16//NB}
        v_mov_b32 v7, {s(self.tail_regs()['cw'])}
        s_waitcnt vmcnt({3*NB-4}) lgkmcnt(0)
        v_mfma_f32_32x32x16_bf16 {v(S0,16)}, {v(KA,4)}, {v(Q0,4)}, 0
        s_nop 11""")
        self.stamp(5)
        a(f"""s_setprio {self.opt('eprio', 2)}
        s_cmp_eq_u32 {s(sCLS)}, 0
        s_cbranch_scc1 L_att0
        s_setprio {self.opt('lprio', 1)}""")
        a.label("L_att0")
        a(".p2align 6")
        a.label("L_att")
        self.inloop = True
        CHK = self.opt("chunk", 1)
        for t in range(NB):
            cur = BUF[t]; prv = BUF[(t - 1) % NB]; nxt = BUF[(t + 1) % NB]
            for i in range(4):
                S = S0 + 16 * (i & 1); Sn = S0 + 16 * ((i + 1) & 1)
                def ex(a0, a1):
                    for k in range(a0, a1): a(f"v_exp_f32 v{S+k}, v{S+k}")
                ex(0, 2)
                if i == 1 and NB == 2 and not self.opt("nowait"): a("s_waitcnt vmcnt(3)")
                pv = prv if i == 0 else cur
                a(f"v_smfmac_f32_32x32x32_bf16 {v(O0+16*((i-1)&3),16)}, {v(pv+8,4)}, {v(Sn+8,8)}, v{vIDX}")
                if i == 0: ldV1(prv)
                if i == 1 and not self.opt("nosof"): sof_next()
                if CHK and t % 2 == 0 and i == 2:
                    L = a.newlabel("Lp")
                    a(f"""s_lshr_b32 s35, s35, 1
                    s_bitcmp1_b32 s35, 0
                    s_cbranch_scc0 {L}
                    s_setprio {self.opt('lprio', 1) - 1}
                    s_cmp_eq_u32 {s(sCLS)}, 0
                    s_cbranch_scc0 {L}
                    s_setprio {self.opt('eprio', 2) - 1}""")
                    a.label(L)
                ex(2, 5)
                if i == 3 and not self.opt("nowait"): a(f"s_waitcnt vmcnt({2 if NB == 2 else 3*NB-5})")
                kk = nxt if i == 3 else cur
                a(f"v_mfma_f32_32x32x16_bf16 {v(Sn,16)}, {v(kk,4)}, {v(Q0+4*((i+1)&3),4)}, 0")
                if i == 2: ldK(cur)
                ex(5, 10)
                a(f"v_smfmac_f32_32x32x32_bf16 {v(O0+16*i,16)}, {v(cur+4,4)}, {v(S,8)}, v{vIDX}")
                if i == 3: ldV0(cur)
                if i == 2 and t == NB - 1: a("ds_read_b32 v3, v7")
                if t == NB - 1 and i == 3:
                    ex(10, 13)
                    a(f"s_sub_u32 {s(sLOOP)}, {s(sLOOP)}, 1\ns_cmp_lg_u32 {s(sLOOP)}, 0")
                    ex(13, 16)
                else:
                    ex(10, 16)
        a("s_cbranch_scc1 L_att")
        a(f"s_nop 1")
        a(f"v_smfmac_f32_32x32x32_bf16 {v(O0+48,16)}, {v(BUF[-1]+8,4)}, {v(S0+24,8)}, v{vIDX}")
        self.stamp(6)
        if self.opt("r0late", 0) == 2:
            a(f"s_cmp_eq_u32 {s(sCLS)}, 0\ns_cbranch_scc1 L_nole")
            self.arrive(C_WQC, vZ, vONE)
            a.label("L_nole")
        self.att_tail()

    def first_poll(self):
        self.a(f"""s_lshl_b32 {s(sT1)}, {s(sW4)}, {6 + self.opt('fsh', 5)}
        s_add_u32 {s(sT1)}, {s(sT1)}, {WS_FLAG}
        v_lshlrev_b32 v93, {self.opt('fsh', 5)}, v0""")
        if self.opt("p16", 0):
            self.a(f"""v_lshrrev_b32 v95, 3, v0
            v_bfe_u32 v96, v0, 1, 1
            v_lshl_add_u32 v95, v95, 1, v96
            v_subrev_u32 v95, {s(sROT)}, v95
            v_and_b32 v95, 15, v95
            v_cmp_gt_u32 vcc, {self.opt('nbuf', 4)}, v95
            s_mov_b64 exec, vcc""")
        self.a(f"buffer_load_dword v94, v93, {s(rWS,4)}, {s(sT1)} offen sc1")

    sP1, sP2, sP3, sP0, sOS = 70, 71, 72, 73, 74
    def tail_regs(self):
        b = 40 if True else 70
        return dict(p=[28, 29, 30, 31], os=32, cw=33, cp=34)
    def tail_setup(self):
        a = self.a; R = self.tail_regs()
        for i in range(4):
            a(f"""s_add_u32 {s(sT2)}, {s(sW4)}, {i}
            s_and_b32 {s(sT2)}, {s(sT2)}, 3
            s_mul_i32 {s(R['p'][i])}, {s(sT2)}, {3*PSLOT}""")
        a(f"""s_cmp_eq_u32 {s(sCLS)}, 0
        s_cselect_b32 {s(sT2)}, {XE}, {R0}""")
        for i in range(4): a(f"s_add_u32 {s(R['p'][i])}, {s(R['p'][i])}, {s(sT2)}")
        a(f"""s_lshl_b32 {s(sT3)}, {s(sG)}, 1
        s_add_u32 {s(sT3)}, {s(sT3)}, {s(sCLS)}
        s_lshl_b32 {s(sT3)}, {s(sT3)}, 5
        s_lshl_b32 {s(sT4)}, {s(sR)}, 2
        s_add_u32 {s(sT3)}, {s(sT3)}, {s(sT4)}
        s_add_u32 {s(sT3)}, {s(sT3)}, {s(sW4)}
        s_lshl_b32 {s(sT3)}, {s(sT3)}, 10
        s_add_u32 {s(R['os'])}, {s(sT3)}, {WS_O}
        s_cmp_eq_u32 {s(sCLS)}, 0
        s_cselect_b32 {s(R['cw'])}, {C_YT//4}, {C_WO//4}
        s_cselect_b32 {s(R['cp'])}, {C_PE//4}, {C_PL//4}
        s_lshl_b32 {s(R['cw'])}, {s(R['cw'])}, 2
        s_lshl_b32 {s(R['cp'])}, {s(R['cp'])}, 2
        s_add_u32 {s(R['cw'])}, {s(R['cw'])}, {CNT}
        s_add_u32 {s(R['cp'])}, {s(R['cp'])}, {CNT}""")
    def att_tail(self):
        a = self.a; vL, vZ, vONE, vT = self.vL, self.vZ, self.vONE, self.vT
        Q0, O0, S0, KA = self.Q0, self.O0, self.S0, self.KA
        R = self.tail_regs()
        T = Q0 + 4
        if self.opt("tprio", 0) == 1:
            a(f"s_cmp_eq_u32 {s(sCLS)}, 0\ns_cbranch_scc1 L_notp\ns_setprio 3")
            a.label("L_notp")
        if self.opt("tprio", 0) == 2: a("s_setprio 3")
        a(f"""v_mov_b32 v{T+1}, {s(R['cp'])}
        v_lshlrev_b32 v{T+2}, 4, v0
        v_lshlrev_b32 v{T+3}, 2, v0
        s_waitcnt lgkmcnt(0)
        v_readfirstlane_b32 {s(sT0)}, v3
        v_add_u32 v{T+4}, {s(R['p'][1])}, v{T+2}
        v_add_u32 v{T+5}, {s(R['p'][1])}, v{T+3}
        s_cmp_ge_u32 {s(sT0)}, 4
        s_cbranch_scc1 L_pfree""")
        n0 = len(a.lines)
        self.waitc(0, 4, 7, vT)
        for i in range(n0, len(a.lines)):
            l = a.lines[i]
            if not l.endswith(":") and "nocount" not in l and not l.startswith(("v_readfirst", "s_cmp")): a.lines[i] = l + " ; nocount"
        a.label("L_pfree")
        for i in range(1, 4):
            j = (i + 1) & 3
            a(f"""ds_write_b128 v{T+4+2*(i&1^1)}, {v(O0+16*i,4)} offset:{(i-1)*PSLOT}
            ds_write_b128 v{T+4+2*(i&1^1)}, {v(O0+16*i+4,4)} offset:{(i-1)*PSLOT+1024}
            ds_write_b32 v{T+5+2*(i&1^1)}, v{O0+16*i+8} offset:{(i-1)*PSLOT+2048}
            v_add_u32 v{T+4+2*(i&1)}, {s(R['p'][j])}, v{T+2}
            v_add_u32 v{T+5+2*(i&1)}, {s(R['p'][j])}, v{T+3}""")
        a("s_waitcnt lgkmcnt(0)")
        self.sync4(0, T + 1, vONE, vT)
        for i in range(1, 4):
            a(f"""ds_read_b128 {v(O0+16*i,4)}, v{T+6} offset:{(i-1)*PSLOT}
            ds_read_b128 {v(O0+16*i+4,4)}, v{T+6} offset:{(i-1)*PSLOT+1024}
            ds_read_b32 v{O0+16*i+8}, v{T+7} offset:{(i-1)*PSLOT+2048}""")
        a(f"""s_mov_b32 {s(sT5)}, {s(R['os'])}
        s_waitcnt vmcnt(0)
        v_mov_b32 v146, v{T+2}
        s_waitcnt lgkmcnt(6)""")
        def add9(d, x):
            for k in range(0, 8, 2): a(f"v_pk_add_f32 {v(d+k,2)}, {v(d+k,2)}, {v(x+k,2)}")
            a(f"v_add_f32 v{d+8}, v{d+8}, v{x+8}")
        add9(O0, O0 + 16)
        a("s_waitcnt lgkmcnt(3)"); add9(O0, O0 + 32)
        a("s_waitcnt lgkmcnt(0)"); add9(O0, O0 + 48)
        lo = struct.unpack("<I", struct.pack("<f", 2.0**-60))[0]; hi = struct.unpack("<I", struct.pack("<f", 2.0**60))[0]
        a(f"""v_pk_add_f32 v[150:151], {v(O0,2)}, {v(O0+2,2)}
        v_pk_add_f32 v[152:153], {v(O0+4,2)}, {v(O0+6,2)}
        v_pk_add_f32 v[150:151], v[150:151], v[152:153]
        v_add_f32 v150, v150, v151
        v_fma_f32 v150, v150, 0, v{O0+8}
        v_subrev_u32 v150, {hex(lo)}, v150
        v_cmp_ge_u32 vcc, {hex(hi-lo)}, v150""")
        if self.opt("force_fallback"): a("s_mov_b64 vcc, 0")
        a(f"""s_cmp_eq_u64 vcc, exec
        s_cbranch_scc0 L_fallback""")
        a.label("L_att_fin")
        self.stamp(9)
        a(f"v_rcp_f32 v150, v{O0+8}")
        for k in range(0, 8, 2): a(f"v_pk_mul_f32 {v(O0+k,2)}, {v(O0+k,2)}, v[150:151] op_sel_hi:[1,0]")
        for k in range(4): a(f"v_cvt_pk_bf16_f32 v{152+k}, v{O0+2*k}, v{O0+2*k+1}")
        for k in range(4): a(f"v_min_u32 v{152+k}, -2, v{152+k}")
        a(f"""s_lshl_b32 {s(sT2)}, {s(sCLS)}, 2
        v_add_u32 v151, {s(sT2)}, v1
        buffer_store_dwordx4 v[152:155], v146, {s(rWS,4)}, {s(sT5)} offen sc1
        s_waitcnt vmcnt(0)""")
        self.arrive(C_OE, 151, vONE)
        a(f"""s_or_b32 {s(sT2)}, {s(sWG)}, {s(sW4)}
        s_or_b32 {s(sT2)}, {s(sT2)}, {s(sCLS)}
        s_cmp_eq_u32 {s(sT2)}, 0
        s_cbranch_scc0 L_end
        v_mov_b32 v150, {s(sNONCE)}
        v_mov_b32 v151, 0
        s_mov_b64 exec, 1
        buffer_store_dword v150, v151, {s(rWS,4)}, 0 offen sc1
        s_mov_b64 exec, -1
        s_branch L_end""")
        self.fallback()

    def fallback(self):
        a = self.a
        Q0, O0, S0, KA = self.Q0, self.O0, self.S0, self.KA
        vKO, vVO, vIDX = self.vKO, self.vVO, self.vIDX
        C0 = O0 + 16
        a.label("L_fallback")
        a(f"""s_mul_i32 {s(sT2)}, {s(sW4)}, {16*KVT}
        v_subrev_u32 v7, {s(sT2)}, v{vKO}
        v_subrev_u32 v151, {s(sT2)}, v{vVO}
        v_mov_b32 v150, 0xff800000
        s_mov_b32 {s(sSOF)}, 0""")
        a.label("L_fb1")
        a(f"""buffer_load_dwordx4 {v(KA,4)}, v7, {s(rWS,4)}, {s(sSOF)} offen sc1
        s_waitcnt vmcnt(0)
        v_mfma_f32_32x32x16_bf16 {v(S0,16)}, {v(KA,4)}, {v(Q0,4)}, 0""")
        for k in range(8): a(f"v_max3_f32 v150, v150, v{S0+2*k}, v{S0+2*k+1}")
        a(f"""s_add_u32 {s(sSOF)}, {s(sSOF)}, {KVT}
        s_cmp_lt_u32 {s(sSOF)}, {64*KVT}
        s_cbranch_scc1 L_fb1
        v_mov_b32 v152, v150
        v_permlane32_swap_b32 v150, v152
        v_max_f32 v150, v150, v152""")
        for k in range(16): a(f"v_sub_f32 v{C0+k}, 0, v150")
        for k in range(16): a(f"v_mov_b32 v{O0+k}, 0")
        a(f"s_mov_b32 {s(sSOF)}, 0")
        a.label("L_fb2")
        a(f"""buffer_load_dwordx4 {v(KA,4)}, v7, {s(rWS,4)}, {s(sSOF)} offen sc1
        buffer_load_dwordx4 {v(KA+4,4)}, v151, {s(rWS,4)}, {s(sSOF)} offen offset:1024 sc1
        buffer_load_dwordx4 {v(KA+8,4)}, v151, {s(rWS,4)}, {s(sSOF)} offen offset:1664 sc1
        s_waitcnt vmcnt(0)
        v_mfma_f32_32x32x16_bf16 {v(S0,16)}, {v(KA,4)}, {v(Q0,4)}, {v(C0,16)}""")
        for k in range(16): a(f"v_exp_f32 v{S0+k}, v{S0+k}")
        a(f"""v_smfmac_f32_32x32x32_bf16 {v(O0,16)}, {v(KA+4,4)}, {v(S0,8)}, v{vIDX}
        v_smfmac_f32_32x32x32_bf16 {v(O0,16)}, {v(KA+8,4)}, {v(S0+8,8)}, v{vIDX}
        s_add_u32 {s(sSOF)}, {s(sSOF)}, {KVT}
        s_cmp_lt_u32 {s(sSOF)}, {64*KVT}
        s_nop 9
        s_cbranch_scc1 L_fb2
        s_nop 3
        s_branch L_att_fin""")

    def role_s(self):
        a = self.a; vL, vZ, vONE, vT = self.vL, self.vZ, self.vONE, self.vT
        a.label("L_role_s")
        a(f"s_setprio {self.opt('sprio', 3)}")
        sCH, sMH = sLOOP, sSOF
        a(f"""s_and_b32 {s(sCH)}, {s(sW4)}, 1
        s_lshr_b32 {s(sMH)}, {s(sW4)}, 1
        s_lshl_b32 {s(sT0)}, {s(sP)}, 2
        s_lshl_b32 {s(sT1)}, {s(sP)}, 9
        s_lshl_b32 {s(sT2)}, {s(sCH)}, 8
        s_add_u32 {s(sT1)}, {s(sT1)}, {s(sT2)}
        s_lshl_b32 {s(sT2)}, {s(sMH)}, 7
        s_add_u32 {s(sT1)}, {s(sT1)}, {s(sT2)}
        v_lshlrev_b32 v4, 1, v0
        s_mov_b32 {s(rA+2)}, 131072""")
        self.ptrs_ready(False)
        a(f"""s_load_dword {s(sT4)}, {s(pLDT,2)}, {s(sT0)}
        s_load_dword {s(sT5)}, {s(pDSK,2)}, {s(sT0)}""")
        for i, p in enumerate([pARE, pAIM, pBRE, pBIM, pCRE, pCIM]):
            a(f"s_mov_b32 {s(rA)}, {s(p)}\ns_mov_b32 {s(rA+1)}, {s(p+1)}")
            a(f"buffer_load_ushort v{8+i}, v4, {s(rA,4)}, {s(sT1)} offen")
        UE = self.opt("uearly", 0)
        a("s_barrier")
        a(f"""s_lshl_b32 {s(sT2)}, {s(sW4)}, 12
        s_add_u32 {s(sT2)}, {s(sT2)}, {GEN}
        v_bfe_u32 v5, v0, 1, 2
        v_lshlrev_b32 v5, 4, v5
        v_lshl_add_u32 v5, v0, 6, v5
        v_add_u32 v150, {s(sT2)}, v5
        v_xor_b32 v151, 16, v150
        v_xor_b32 v152, 32, v150
        v_xor_b32 v153, 48, v150
        v_bfe_u32 v5, v0, 2, 2
        v_lshrrev_b32 v6, 5, v0
        v_lshl_add_u32 v6, v6, 3, v5
        v_lshlrev_b32 v6, 6, v6
        v_bfe_u32 v7, v0, 4, 1
        v_lshlrev_b32 v7, 1, v7
        v_bfe_u32 v14, v0, 1, 1
        v_add_u32 v7, v7, v14
        v_lshrrev_b32 v5, 1, v5
        v_xor_b32 v7, v7, v5
        v_lshl_add_u32 v6, v7, 4, v6
        v_and_b32 v7, 1, v0
        v_lshl_add_u32 v6, v7, 3, v6
        v_add_u32 v154, {s(sT2)}, v6
        v_xor_b32 v155, 32, v154
        s_waitcnt lgkmcnt(0)
        s_lshl_b32 {s(sT2)}, {s(sCH)}, 4
        s_lshr_b32 {s(sT4)}, {s(sT4)}, {s(sT2)}
        s_lshl_b32 {s(sT4)}, {s(sT4)}, 16
        s_lshr_b32 {s(sT5)}, {s(sT5)}, {s(sT2)}
        s_lshl_b32 {s(sT5)}, {s(sT5)}, 16
        v_mov_b32 v14, {fbits(LOG2E)}
        v_mul_f32 v15, {s(sT4)}, v14
        v_exp_f32 v15, v15
        v_cvt_pk_bf16_f32 v15, v15, v15
        v_and_b32 v15, 0xffff0000, v15
        s_waitcnt vmcnt({8 if UE else 0})""")
        self.stamp(1)
        for i in range(6): a(f"v_lshlrev_b32 v{8+i}, 16, v{8+i}")
        Z1, Z2, Z4, Z8, Z256, CB, TMP = 18, 20, 22, 24, 26, 16, 28
        a(f"""v_mul_f32 v8, v15, v8
        v_mul_f32 v9, v15, v9
        v_mul_f32 v10, v15, v10
        v_mul_f32 v11, v15, v11
        v_mul_f32 v8, v14, v8
        v_mul_f32 v9, 0.15915494, v9""")
        self.cmul(CB, 10, 12, TMP)
        def cpow(d, mult):
            if mult != 1:
                a(f"v_mul_f32 v30, {fbits(mult)}, v8\nv_mul_f32 v31, {fbits(mult)}, v9")
                x, y = 30, 31
            else:
                x, y = 8, 9
            a(f"""v_exp_f32 v28, v{x}
            v_rndne_f32 v29, v{y}
            v_sub_f32 v29, v{y}, v29
            v_cos_f32 v{d}, v29
            v_sin_f32 v{d+1}, v29
            v_mul_f32 v{d}, v28, v{d}
            v_mul_f32 v{d+1}, v28, v{d+1}""")
        cpow(Z1, 1); cpow(Z256, 256)
        self.cmul(Z2, Z1, Z1, TMP); self.cmul(Z4, Z2, Z2, TMP); self.cmul(Z8, Z4, Z4, TMP)
        RE, IM = 32, 48
        FB = 64
        FA = 96
        ACC = 112
        X0, X1 = 128, 130
        def wr(src):
            for c in range(4): a(f"ds_write_b128 v{150+c}, {v(src+4*c,4)}")
        def rdtr(dst):
            for ks in range(4):
                a(f"ds_read_b64_tr_b16 {v(dst+4*ks,2)}, v154 offset:{1024*ks}")
                a(f"ds_read_b64_tr_b16 {v(dst+4*ks+2,2)}, v155 offset:{1024*ks+256}")
        if self.opt("gst"): self.stamp(3)
        a(f"v_mov_b32 v{X0}, 1.0\nv_mov_b32 v{X0+1}, 0")
        for j in range(0, 32, 2):
            if j > 0: self.cmul(X0, X1, Z8, TMP)
            self.cmul(X1, X0, Z8, TMP)
            a(f"v_cvt_pk_bf16_f32 v{RE+j//2}, v{X0}, v{X1}")
            a(f"v_cvt_pk_bf16_f32 v{IM+j//2}, -v{X0+1}, -v{X1+1}")
        if self.opt("gst"): self.stamp(4)
        wr(RE); rdtr(FB); wr(IM); rdtr(FB + 16)
        if self.opt("gst"): self.stamp(5)
        if self.opt("upf", 0):
            a(f"""s_and_b32 {s(sT0)}, {s(sP)}, 31
            s_lshl_b32 {s(sT0)}, {s(sT0)}, 2
            s_add_u32 {s(sT0)}, {s(sT0)}, {s(sW4)}
            s_lshl_b32 {s(sT0)}, {s(sT0)}, 14
            s_lshr_b32 {s(sT1)}, {s(sP)}, 5
            s_lshl_b32 {s(sT1)}, {s(sT1)}, 7
            s_add_u32 {s(sT0)}, {s(sT0)}, {s(sT1)}""")
            self.s_prefetch(pU, sT0, 16, 1024)
            if self.opt("upf", 0) == 2:
                a(f"s_add_u32 {s(sT0)}, {s(sT0)}, 64"); self.s_prefetch(pU, sT0, 16, 1024)
        B = [CB] + [132 + 2 * m for m in range(7)]
        for m in range(1, 8): self.cmul(B[m], B[m - 1], Z256, TMP)
        Y0, Y1 = 146, 148
        def pack(row, x, y):
            a(f"v_cvt_pk_bf16_f32 v{RE+row//2}, v{x}, v{y}")
            a(f"v_cvt_pk_bf16_f32 v{IM+row//2}, v{x+1}, v{y+1}")
        a("s_waitcnt lgkmcnt(8)")
        self.cmul(X1, CB, Z1, TMP); pack(0, CB, X1)
        for row in (2, 4, 6):
            self.cmul(X0, X1, Z1, TMP); self.cmul(X1, X0, Z1, TMP); pack(row, X0, X1)
        self.cmul(X0, B[1], Z2, TMP); pack(8, B[1], X0)
        self.cmul(X1, X0, Z2, TMP); pack(10, X1, X1)
        self.cmul(X0, X1, Z2, TMP); pack(12, X1, X0)
        self.cmul(X1, X0, Z2, TMP); pack(14, X1, X1)
        for q, m in ((16, 2), (20, 3)):
            self.cmul(X0, B[m], Z4, TMP); pack(q, B[m], X0)
            self.cmul(X1, X0, Z4, TMP); pack(q + 2, X1, X1)
        for q, m in ((24, 4), (26, 6), (28, 5), (30, 7)):
            self.cmul(X0, B[m], Z8, TMP); pack(q, B[m], X0)
        if self.opt("gst"): self.stamp(6)
        wr(RE); rdtr(FA)
        a("s_waitcnt lgkmcnt(0)")
        if self.opt("gst"): self.stamp(7)
        for ks in range(4):
            a(f"v_mfma_f32_32x32x16_bf16 {v(ACC,16)}, {v(FA+4*ks,4)}, {v(FB+4*ks,4)}, {'0' if ks==0 else v(ACC,16)}")
        wr(IM); rdtr(RE)
        a("s_waitcnt lgkmcnt(0)")
        for ks in range(4):
            a(f"v_mfma_f32_32x32x16_bf16 {v(ACC,16)}, {v(RE+4*ks,4)}, {v(FB+16+4*ks,4)}, {v(ACC,16)}")
        self.stamp(2)
        if self.opt("abl_s") == 1: self.arrive(C_YT, vZ, vONE); self.arrive(C_WO, vZ, vONE); a("s_branch L_end")
        UG = self.UG
        self.waitc(C_KV, 4, vZ, vT, slp=1)
        a("ds_read_b32 v167, v1 offset:128")
        if not UE:
            if self.opt("uwait", 2): self.waitc({1: C_WQB, 2: C_FL, 3: C_QL}[self.opt("uwait", 2)], 4, vZ, vT, slp=2)
            self.y_guard(self.u_transpose, self.opt('paru', 1))
        a("s_waitcnt lgkmcnt(0)")
        if self.opt("paru", 1): self.y_guard(lambda: self.s_publish(C_UT, WS_FLAG3), 1)
        else: self.s_publish(C_UT, WS_FLAG3)
        a(f"""s_lshl_b32 {s(sT2)}, {s(sCH)}, 12
        s_add_u32 {s(sT2)}, {s(sT2)}, {GEN+8192}
        v_lshl_add_u32 v5, v0, 4, {s(sT2)}
        s_lshl_b32 {s(sT2)}, {s(sCH)}, 2
        v_add_u32 v6, {s(sT2)}, v1
        s_mul_i32 {s(sT3)}, {s(sCH)}, {KCH}
        s_add_u32 {s(sT3)}, {s(sT3)}, {R0+256}
        s_cmp_eq_u32 {s(sMH)}, 0
        s_cbranch_scc1 L_s_expand""")
        for c in range(4): a(f"ds_write_b128 v5, {v(ACC+4*c,4)} offset:{1024*c}")
        a("s_waitcnt lgkmcnt(0)")
        self.arrive(C_KT0, 6, vONE)
        a("s_branch L_s_ucopy")
        a.label("L_s_expand")
        self.waitc(C_KT0, 1, 6, vT)
        for c in range(4): a(f"ds_read_b128 {v(32+4*c,4)}, v5 offset:{1024*c}")
        a(f"""v_lshl_add_u32 v7, v0, 4, {s(sT3)}
        v_mov_b32 v48, 0
        v_mov_b32 v49, 0
        v_mov_b32 v50, 0
        v_mov_b32 v51, 0""")
        for cp in range(2):
            for off in (0, 1024, 1136):
                a(f"ds_write_b128 v7, v[48:51] offset:{cp*KCOPY+off}")
        for k in range(0, 16, 2): a(f"v_pk_add_f32 {v(ACC+k,2)}, {v(ACC+k,2)}, {v(32+k,2)}")
        a(f"""v_cmp_eq_u32 vcc, 0, v0
        v_mov_b32 v9, {s(sT5)}
        v_cndmask_b32 v9, 0, v9, vcc
        v_add_f32 v{ACC}, v{ACC}, v9
        v_bfe_u32 v8, v0, 3, 2
        v_mul_u32_u24 v8, 144, v8
        v_and_b32 v9, 7, v0
        v_lshl_add_u32 v8, v9, 4, v8
        v_add_u32 v8, {s(sT3)}, v8
        v_lshrrev_b32 v9, 5, v0
        v_lshlrev_b32 v10, 3, v9
        v_sub_u32 v10, v8, v10
        v_mul_u32_u24 v9, 576, v9
        v_add_u32 v9, v8, v9
        v_and_b32 v11, 1, v0
        v_cmp_eq_u32 vcc, 0, v11""")
        A = ACC
        a(f"""v_cvt_pk_bf16_f32 v32, v{A+3}, v{A+2}
        v_cvt_pk_bf16_f32 v33, v{A+1}, v{A}
        ds_write_b64 v10, v[32:33] offset:{144*15+8}
        v_cvt_pk_bf16_f32 v34, v{A+6}, v{A+5}
        v_cvt_pk_bf16_f32 v35, v{A+4}, v{A+4}
        ds_write_b64 v10, v[34:35] offset:{144*19+8}
        v_cvt_pk_bf16_f32 v36, v{A+10}, v{A+10}
        v_cvt_pk_bf16_f32 v37, v{A+9}, v{A+9}
        v_cvt_pk_bf16_f32 v38, v{A+9}, v{A+8}
        v_cvt_pk_bf16_f32 v39, v{A+8}, v{A+8}
        ds_write_b128 v9, v[36:39] offset:{144*23}""")
        for q, (ra, dst, blk) in enumerate(((A + 12, 40, 31), (A + 14, 44, 39))):
            a(f"""v_cndmask_b32 v11, v{ra+1}, v{ra}, vcc
            v_cvt_pk_bf16_f32 v{dst}, v{ra+1}, v{ra+1}
            v_cvt_pk_bf16_f32 v{dst+1}, v{ra+1}, v11
            v_cvt_pk_bf16_f32 v{dst+2}, v{ra}, v{ra}
            v_cvt_pk_bf16_f32 v{dst+3}, v{ra}, v{ra}
            ds_write_b128 v9, {v(dst,4)} offset:{144*blk}""")
        a(f"""v_lshrrev_b32 v8, 3, v0
        v_mul_u32_u24 v8, 144, v8
        v_and_b32 v9, 7, v0
        v_lshl_add_u32 v8, v9, 4, v8
        v_add_u32 v8, {s(sT3)}, v8
        v_cmp_eq_u32 vcc, 0, v9
        v_mov_b32 v10, 16
        v_cndmask_b32 v10, v10, 32, vcc
        v_sub_u32 v10, v8, v10""")
        for it in range(4):
            a(f"ds_read_b128 {v(64+8*it,4)}, v8 offset:{144*(15+8*it)}")
            a(f"ds_read_b32 v{68+8*it}, v10 offset:{144*(15+8*it)}")
        for it in range(4):
            b = 64 + 8 * it
            a(f"s_waitcnt lgkmcnt({6-2*it+it})")
            for k in range(4): a(f"v_alignbit_b32 v{32+4*it+k}, v{b+k+1}, v{b+k}, 16")
            a(f"ds_write_b128 v8, {v(32+4*it,4)} offset:{KCOPY+144*(15+8*it)}")
        a.label("L_s_ucopy")
        self.stamp(3)
        if self.opt("abl_s") == 3: self.arrive(C_YT, vZ, vONE); self.arrive(C_WO, vZ, vONE); a("s_branch L_end")
        a(f"""s_lshr_b32 {s(sT4)}, {s(sP)}, {5 + self.opt("paru", 1)}
        s_lshl_b32 {s(sT4)}, {s(sT4)}, {12 + self.opt("paru", 1)}
        s_add_u32 {s(sT4)}, {s(sT4)}, {WS_FLAG3}""")
        self.s_poll(sT4, 31)
        a(f"""s_lshl_b32 {s(sT1)}, {s(sP)}, 13
        s_lshl_b32 {s(sT2)}, {s(sW4)}, 11
        s_add_u32 {s(sT1)}, {s(sT1)}, {s(sT2)}
        s_add_u32 {s(sT1)}, {s(sT1)}, {WS_UT}
        v_lshlrev_b32 v4, 5, v0
        buffer_load_dwordx4 {v(UG,4)}, v4, {s(rWS,4)}, {s(sT1)} offen sc1
        buffer_load_dwordx4 {v(UG+4,4)}, v4, {s(rWS,4)}, {s(sT1)} offen offset:16 sc1""")
        self.waitc(C_QE, 4, vZ, vT, slp=4)
        a(f"""s_cmp_eq_u32 {s(sW4)}, 0
        s_cbranch_scc0 L_s_nouz
        v_lshrrev_b32 v8, 3, v0
        v_mul_u32_u24 v8, {UCOPY}, v8
        v_and_b32 v9, 7, v0
        v_lshl_add_u32 v8, v9, 4, v8
        v_add_u32 v8, {W}, v8
        v_mov_b32 v48, 0
        v_mov_b32 v49, 0
        v_mov_b32 v50, 0
        v_mov_b32 v51, 0
        ds_write_b128 v8, v[48:51]""")
        a.label("L_s_nouz")
        a(f"""s_lshl_b32 {s(sT2)}, {s(sW4)}, 10
        s_add_u32 {s(sT2)}, {s(sT2)}, {W}
        v_lshl_add_u32 v8, v0, 4, {s(sT2)}
        s_mov_b32 {s(sT0)}, 0x05040100
        s_mov_b32 {s(sT1)}, 0x07060302
        s_waitcnt vmcnt(0)""")
        self.stamp(4)
        for k in range(4):
            a(f"v_perm_b32 v{32+k}, v{UG+2*k+1}, v{UG+2*k}, {s(sT0)}")
            a(f"v_perm_b32 v{36+k}, v{UG+2*k+1}, v{UG+2*k}, {s(sT1)}")
        for ch in range(2):
            d = 32 + 4 * ch
            for ph in range(4):
                off = ch * UCH + ph * UCOPY + 128 - 4 * (ph + 1)
                if ph == 3:
                    a(f"ds_write_b128 v8, {v(d,4)} offset:{off}")
                elif ph == 1:
                    a(f"ds_write_b64 v8, {v(d,2)} offset:{off}\nds_write_b64 v8, {v(d+2,2)} offset:{off+8}")
                else:
                    a(f"v_add_u32 v9, {off}, v8")
                    a(f"ds_write2_b32 v9, v{d}, v{d+1} offset0:0 offset1:1\nds_write2_b32 v9, v{d+2}, v{d+3} offset0:2 offset1:3")
        a("s_waitcnt lgkmcnt(0)")
        self.arrive(C_KU, vZ, vONE)
        a(f"""s_mul_i32 {s(sT2)}, {s(sMH)}, 1152
        s_sub_u32 {s(sT3)}, {s(sT3)}, {s(sT2)}
        v_and_b32 v10, 15, v0
        v_mul_u32_u24 v8, 144, v10
        v_bfe_u32 v10, v0, 4, 1
        v_mul_u32_u24 v10, {KCOPY}, v10
        v_add_u32 v8, v8, v10
        v_lshrrev_b32 v11, 5, v0
        v_lshlrev_b32 v11, 4, v11
        v_sub_u32 v8, v8, v11
        v_add_u32 v8, {s(sT3)}, v8
        s_mul_i32 {s(sT2)}, {s(sCH)}, {UCH}
        s_lshl_b32 {s(sT4)}, {s(sMH)}, 10
        s_add_u32 {s(sT2)}, {s(sT2)}, {s(sT4)}
        s_add_u32 {s(sT2)}, {s(sT2)}, {W}
        v_and_b32 v10, 3, v0
        v_mul_u32_u24 v9, {UCOPY}, v10
        v_bfe_u32 v10, v0, 2, 3
        v_lshl_add_u32 v9, v10, 4, v9
        v_add_u32 v9, v9, v11
        v_add_u32 v9, {s(sT2)}, v9""")
        T0, T1 = 64, 80
        for k in range(0, 32, 2): a(f"v_mov_b64 {v(T0+k,2)}, 0")
        if self.opt("wospf", 0):
            a(f"""s_and_b32 {s(sT0)}, {s(sP)}, 31
            s_lshl_b32 {s(sT0)}, {s(sT0)}, 2
            s_add_u32 {s(sT0)}, {s(sT0)}, {s(sW4)}
            s_lshl_b32 {s(sT0)}, {s(sT0)}, 12""")
            self.s_prefetch(pWO, sT0, 32 * self.opt("wospf"), 128 // self.opt("wospf"))
        if self.opt("wopf", 0):
            self.srd(rB, pWO, 524288)
            self.l2_prefetch(rB, self.opt("wopf"), 10, 11, sT4)
        self.waitc(C_KU, 4, vZ, vT)
        self.stamp(5)
        if self.opt("abl_s") == 5: self.arrive(C_YT, vZ, vONE); self.arrive(C_WO, vZ, vONE); a("s_branch L_end")
        def crd(u, b):
            ao = 144 * 15 + 16 * (7 - 2 * u) if u < 4 else 144 * 14 + 16 * 7
            a(f"ds_read_b128 {v(b,4)}, v8 offset:{ao}")
            a(f"ds_read_b128 {v(b+8,4)}, v9 offset:{32*u}")
            a(f"ds_read_b128 {v(b+12,4)}, v9 offset:{32*u+2048}")
            a(f"ds_read_b128 {v(b+4,4)}, v8 offset:{ao+2304}")
        F = [32, 48]
        pace = self.opt("pace", 1)
        if pace == 0: crd(0, F[0])
        if self.opt("cprio", 3) != 3: a(f"s_setprio {self.opt('cprio')}")
        a(f"s_mov_b32 {s(sT4)}, {self.opt('convit', 8)}")
        a.label("L_conv")
        for u in range(4):
            b = F[u & 1]
            m0 = f"v_mfma_f32_32x32x16_bf16 {v(T0,16)}, {v(b,4)}, {v(b+8,4)}, {v(T0,16)}"
            m1 = f"v_mfma_f32_32x32x16_bf16 {v(T1,16)}, {v(b,4)}, {v(b+12,4)}, {v(T1,16)}"
            m2 = f"v_mfma_f32_32x32x16_bf16 {v(T1,16)}, {v(b+4,4)}, {v(b+8,4)}, {v(T1,16)}"
            ao = 144 * 15 + 16 * (7 - 2 * u)
            if pace == 0:
                crd(u + 1, F[(u + 1) & 1])
                a("s_waitcnt lgkmcnt(4)"); a(m0); a(m1); a(m2)
            elif pace == 1:
                a(f"ds_read_b128 {v(b,4)}, v8 offset:{ao}\nds_read_b128 {v(b+8,4)}, v9 offset:{32*u}\ns_waitcnt lgkmcnt(0)"); a(m0)
                a(f"ds_read_b128 {v(b+12,4)}, v9 offset:{32*u+2048}\ns_waitcnt lgkmcnt(0)"); a(m1)
                a(f"ds_read_b128 {v(b+4,4)}, v8 offset:{ao+2304}\ns_waitcnt lgkmcnt(0)"); a(m2)
            elif pace == 2:
                crd(u, b)
                a("s_waitcnt lgkmcnt(0)"); a(m0); a(m1); a(m2)
        a(f"""v_subrev_u32 v8, 144, v8
        v_add_u32 v9, 128, v9
        s_sub_u32 {s(sT4)}, {s(sT4)}, 1
        s_cmp_lg_u32 {s(sT4)}, 0
        s_cbranch_scc1 L_conv""")
        self.stamp(6)
        if self.opt("cprio", 3) != 3: a(f"s_setprio {self.opt('sprio', 3)}")
        if self.opt("abl_s") == 6: self.arrive(C_YT, vZ, vONE); self.arrive(C_WO, vZ, vONE); a("s_branch L_end")
        def xchg_write(base, accs, ymode=False):
            a(f"""s_lshl_b32 {s(sT2)}, {s(sW4)}, 11
            s_add_u32 {s(sT2)}, {s(sT2)}, {base}
            v_lshl_add_u32 v10, v0, 4, {s(sT2)}
            s_lshl_b32 {s(sT2)}, {s(sW4)}, 13
            s_add_u32 {s(sT2)}, {s(sT2)}, {base}
            v_lshl_add_u32 v11, v0, 4, {s(sT2)}""")
            for q in range(4):
                r0, r1 = (accs+8*q, accs+8*q+4) if not ymode else (accs+16*(q>>1)+4*(q&1), accs+16*(q>>1)+8+4*(q&1))
                a(f"ds_write_b128 v10, {v(r0,4)} offset:{8192*q}")
                a(f"ds_write_b128 v10, {v(r1,4)} offset:{8192*q+1024}")
        def xchg_read(dst):
            for w in range(4):
                a(f"ds_read_b128 {v(dst+8*w,4)}, v11 offset:{2048*w}")
                a(f"ds_read_b128 {v(dst+8*w+4,4)}, v11 offset:{2048*w+1024}")
        a("s_waitcnt lgkmcnt(0)")
        xchg_write(YX, T0, True)
        a("s_waitcnt lgkmcnt(0)")
        self.arrive(C_Y, vZ, vONE)
        self.srd(rC, pOUT, 4194304)
        a(f"""s_lshl_b32 {s(sT1)}, {s(sP)}, 13
        s_lshl_b32 {s(sT2)}, {s(sW4)}, 11
        s_add_u32 {s(sT1)}, {s(sT1)}, {s(sT2)}
        s_add_u32 {s(sT1)}, {s(sT1)}, {WS_YT}
        v_and_b32 v12, 31, v0
        v_lshlrev_b32 v12, 3, v12
        v_lshrrev_b32 v13, 5, v0
        v_lshl_add_u32 v12, v13, 10, v12""")
        self.waitc(C_Y, 4, vZ, vT)
        xchg_read(32)
        self.srd(rB, pWO, 524288)
        a(f"""v_lshrrev_b32 v14, 3, v0
        v_and_b32 v15, 7, v0
        v_and_b32 v16, 2, v14
        v_lshlrev_b32 v16, 1, v16
        v_xor_b32 v15, v15, v16
        v_lshlrev_b32 v14, 10, v14
        v_lshl_add_u32 v14, v15, 4, v14
        s_lshl_b32 {s(sT3)}, {s(sW4)}, 17
        s_lshl_b32 {s(sT2)}, {s(sR)}, 7
        s_add_u32 {s(sT3)}, {s(sT3)}, {s(sT2)}
        s_lshl_b32 {s(sT4)}, {s(sW4)}, 13
        s_add_u32 {s(sT4)}, {s(sT4)}, {R0}""")
        def wo_dma():
            a(f"s_mov_b32 m0, {s(sT4)}")
            for i in range(8):
                if i and i % self.opt("wosplit", 4) == 0: a("s_waitcnt vmcnt(0)")
                a(f"buffer_load_dwordx4 v14, {s(rB,4)}, {s(sT3)} offen lds")
                if i < 7: a("s_add_u32 m0, m0, 1024")
                a(f"s_add_u32 {s(sT3)}, {s(sT3)}, 8192")
        wo_dma()
        a("s_waitcnt lgkmcnt(0)")
        for k in range(0, 16, 2): a(f"v_pk_add_f32 {v(32+k,2)}, {v(32+k,2)}, {v(48+k,2)}")
        for e in range(4):
            a(f"v_cvt_pk_bf16_f32 v{48+2*e}, v{36+e}, v{44+e}")
            a(f"v_cvt_pk_bf16_f32 v{49+2*e}, v{32+e}, v{40+e}")
        for e in range(4):
            a(f"buffer_store_dwordx2 {v(48+2*e,2)}, v12, {s(rWS,4)}, {s(sT1)} offen offset:{256*e} sc1")
        a(f"""s_lshl_b32 {s(sT1)}, {s(sG)}, 6
        s_lshl_b32 {s(sT2)}, {s(sR)}, 2
        s_add_u32 {s(sT1)}, {s(sT1)}, {s(sT2)}
        s_add_u32 {s(sT1)}, {s(sT1)}, {s(sW4)}
        s_lshl_b32 {s(sT1)}, {s(sT1)}, 10
        s_add_u32 {s(sT1)}, {s(sT1)}, {WS_O}
        s_add_u32 {s(sT2)}, {s(sT1)}, 32768
        v_mov_b64 v[20:21], -1
        v_mov_b64 v[22:23], -1
        v_lshlrev_b32 v15, 4, v0
        buffer_store_dwordx4 v[20:23], v15, {s(rWS,4)}, {s(sT1)} offen sc1
        buffer_store_dwordx4 v[20:23], v15, {s(rWS,4)}, {s(sT2)} offen sc1""")
        self.stamp(7)
        if self.opt("abl_s") == 7: self.arrive(C_YT, vZ, vONE); self.arrive(C_WO, vZ, vONE); a("s_branch L_end")
        WOF = 96
        a(f"""v_bfe_u32 v15, v0, 2, 2
        v_lshrrev_b32 v16, 5, v0
        v_lshl_add_u32 v16, v16, 3, v15
        v_lshlrev_b32 v16, 7, v16
        v_and_b32 v15, 2, v15
        v_lshl_add_u32 v16, v15, 5, v16
        v_bfe_u32 v15, v0, 4, 1
        v_lshl_add_u32 v16, v15, 5, v16
        v_and_b32 v15, 1, v0
        v_lshl_add_u32 v16, v15, 4, v16
        v_bfe_u32 v15, v0, 1, 1
        v_lshl_add_u32 v16, v15, 3, v16
        v_add_u32 v16, {s(sT4)}, v16
        v_xor_b32 v17, 64, v16""")
        for rnd in range(2):
            a("s_waitcnt vmcnt(6)" if rnd == 0 else "s_waitcnt vmcnt(0)")
            for ks in range(4):
                for ct in range(2):
                    d = WOF + 32 * rnd + 8 * ks + 4 * ct
                    a(f"ds_read_b64_tr_b16 {v(d,2)}, v{16+ct} offset:{2048*ks}")
                    a(f"ds_read_b64_tr_b16 {v(d+2,2)}, v{16+ct} offset:{2048*ks+512}")
            if rnd == 0:
                a("s_waitcnt lgkmcnt(0)")
                self.waitc(C_QL, 4, vZ, vT, slp=2)
                self.s_publish(C_YT, WS_FLAG4)
                wo_dma()
        a("s_waitcnt lgkmcnt(0)")
        self.arrive(C_WO, vZ, vONE)
        self.stamp(8)
        if self.opt("abl_s") == 8: a("s_branch L_end")
        self.y_poll()
        self.y_guard(self.y_assemble, self.opt('pary', 0))
        if self.opt("abl_s") == 9: a("s_branch L_end")
        a(f"""s_lshl_b32 {s(sT3)}, {s(sG)}, 16
        s_lshl_b32 {s(sT2)}, {s(sW4)}, 13
        s_add_u32 {s(sT3)}, {s(sT3)}, {s(sT2)}
        s_add_u32 {s(sT3)}, {s(sT3)}, {WS_O}
        v_lshlrev_b32 v14, 4, v0
        s_lshl_b32 {s(sT1)}, {s(sG)}, 17
        s_lshl_b32 {s(sT2)}, {s(sR)}, 7
        s_add_u32 {s(sT1)}, {s(sT1)}, {s(sT2)}
        s_lshl_b32 {s(sT2)}, {s(sW4)}, 14
        s_add_u32 {s(sT1)}, {s(sT1)}, {s(sT2)}
        v_lshrrev_b32 v12, 3, v0
        v_lshlrev_b32 v12, 11, v12
        v_and_b32 v15, 7, v0
        v_lshl_add_u32 v12, v15, 4, v12""")
        OF = 32; AC = 64
        a(f"""v_and_b32 v10, 31, v0
        v_lshlrev_b32 v10, 4, v10
        v_mul_u32_u24 v11, 576, v13
        v_add_u32 v10, v10, v11
        s_mul_i32 {s(sT2)}, {s(sW4)}, 2304
        s_add_u32 {s(sT2)}, {s(sT2)}, {W}
        v_add_u32 v10, {s(sT2)}, v10
        v_lshrrev_b32 v11, 3, v0
        v_lshlrev_b32 v11, 4, v11
        v_and_b32 v15, 1, v0
        v_mul_u32_u24 v15, 576, v15
        v_add_u32 v11, v11, v15
        v_bfe_u32 v15, v0, 1, 2
        v_mul_u32_u24 v15, 9344, v15
        v_add_u32 v11, v11, v15
        s_lshl_b32 {s(sT2)}, {s(sW4)}, 7
        s_add_u32 {s(sT2)}, {s(sT2)}, {W}
        v_add_u32 v11, {s(sT2)}, v11""")
        def oxw():
            for q in range(4):
                a(f"ds_write_b128 v10, {v(AC+8*q,4)} offset:{9344*q}")
                a(f"ds_write_b128 v10, {v(AC+8*q+4,4)} offset:{9344*q+1152}")
        def oxr():
            for w in range(4):
                a(f"ds_read_b128 {v(32+8*w,4)}, v11 offset:{2304*w}")
                a(f"ds_read_b128 {v(36+8*w,4)}, v11 offset:{2304*w+1152}")
        def omm(h):
            for ct in range(2):
                w = WOF + 8 * h + 4 * ct
                a(f"v_mfma_f32_32x32x16_bf16 {v(AC+16*ct,16)}, {v(w,4)}, {v(OF+4*h,4)}, {'0' if h==0 else v(AC+16*ct,16)}")
        a(f"""s_mov_b32 {s(sT5)}, 0
        v_mov_b32 v16, v1""")
        a.label("L_round")
        a(f"s_add_u32 {s(sT4)}, {s(sT3)}, 4096")
        self.waitc(C_OE, 4, 16, vT, slp=1)
        LP = self.opt("lightp", 1)
        if LP:
            if LP == 1: a(f"s_cmp_eq_u32 {s(sT5)}, 0\ns_cbranch_scc0 L_opoll")
            a(f"""v_lshlrev_b32 v18, 10, v0
            s_mov_b64 exec, 0xff""")
            a.label("L_lpoll")
            a(f"""buffer_load_dword v19, v18, {s(rWS,4)}, {s(sT3)} offen offset:1020 sc1
            s_waitcnt vmcnt(0)
            v_cmp_eq_u32 vcc, -1, v19
            s_and_b64 exec, exec, vcc
            s_cbranch_execz L_lok
            s_sleep {self.opt('lslp', 2)}
            s_sub_u32 {s(sBUD)}, {s(sBUD)}, 1
            s_cbranch_scc0 L_lpoll
            s_mov_b32 {s(sBUD)}, 0""")
            a.label("L_lok")
            a("s_mov_b64 exec, -1")
        a.label("L_opoll")
        for h in range(8): a(f"buffer_load_dwordx4 {v(OF+4*h,4)}, v14, {s(rWS,4)}, {s(sT3 if h<4 else sT4)} offen offset:{1024*(h&3)} sc1")
        for h in range(8):
            a(f"s_waitcnt vmcnt({7-h})")
            b = OF + 4 * h
            a(f"v_max_u32 v15, v{b}, v{b+1}" if h == 0 else f"v_max3_u32 v15, v15, v{b}, v{b+1}")
            if self.opt("ospec", 1): omm(h)
            a(f"v_max3_u32 v15, v15, v{b+2}, v{b+3}")
        a(f"""v_cmp_ne_u32 vcc, -1, v15
        s_cmp_eq_u64 vcc, exec
        s_cbranch_scc1 L_ook
        s_sub_u32 {s(sBUD)}, {s(sBUD)}, 1 ; nocount
        s_cbranch_scc0 L_opoll ; nocount
        s_mov_b32 {s(sBUD)}, 0 ; nocount""")
        a.label("L_ook")
        if self.dbg:
            a(f"s_cmp_eq_u32 {s(sT5)}, 0\ns_cbranch_scc0 L_st10")
            self.stamp(9)
            a.label("L_st10")
            self.stamp(10)
        if not self.opt("ospec", 1):
            for h in range(8): omm(h)
        oxw()
        a("s_waitcnt lgkmcnt(0)")
        self.sync4(C_O1, 16, vONE, vT, slp=0)
        oxr()
        a("s_waitcnt lgkmcnt(4)")
        for k in range(0, 8, 2): a(f"v_pk_add_f32 {v(32+k,2)}, {v(32+k,2)}, {v(40+k,2)}")
        a("s_waitcnt lgkmcnt(2)")
        for k in range(0, 8, 2): a(f"v_pk_add_f32 {v(32+k,2)}, {v(32+k,2)}, {v(48+k,2)}")
        a("s_waitcnt lgkmcnt(0)")
        for k in range(0, 8, 2): a(f"v_pk_add_f32 {v(32+k,2)}, {v(32+k,2)}, {v(56+k,2)}")
        for k in range(4): a(f"v_cvt_pk_bf16_f32 v{20+k}, v{32+2*k}, v{33+2*k}")
        a(f"""buffer_store_dwordx4 v[20:23], v12, {s(rC,4)}, {s(sT1)} offen {self.opt_sc('osc', 0)}
        s_cmp_eq_u32 {s(sT5)}, 0
        s_cbranch_scc0 L_end
        s_mov_b32 {s(sT5)}, 1
        s_add_u32 {s(sT3)}, {s(sT3)}, 32768
        s_add_u32 {s(sT1)}, {s(sT1)}, 65536
        v_add_u32 v16, 4, v16
        v_add_u32 v10, {OX2-OX1}, v10
        v_add_u32 v11, {OX2-OX1}, v11
        s_branch L_round""")

    UG = 156
    def blk_ids(self, par):
        a = self.a
        a(f"""s_lshr_b32 {s(sT4)}, {s(sP)}, 5
        s_and_b32 {s(sT0)}, {s(sP)}, 31
        s_lshl_b32 {s(sT0)}, {s(sT0)}, 1
        s_and_b32 {s(sT2)}, {s(sW4)}, 1
        s_add_u32 {s(sT0)}, {s(sT0)}, {s(sT2)}""")
        if par:
            a(f"""s_lshr_b32 {s(sT2)}, {s(sW4)}, 1
            s_xor_b32 {s(sT4)}, {s(sT4)}, {s(sT2)}""")
    def swap44(self, b):
        for i in range(4):
            for j in range(i + 1, 4): self.a(f"v_swap_b32 v{b+4*i+j}, v{b+4*j+i}")
    def u_transpose(self):
        a = self.a; B = 32
        self.blk_ids(self.opt("paru", 1))
        a(f"""s_mov_b32 {s(rB)}, {s(pU)}
        s_mov_b32 {s(rB+1)}, {s(pU+1)}
        s_mov_b32 {s(rB+2)}, 2097152
        s_lshl_b32 {s(sT1)}, {s(sT0)}, 15
        s_lshl_b32 {s(sT2)}, {s(sT4)}, 7
        s_add_u32 {s(sT1)}, {s(sT1)}, {s(sT2)}
        v_and_b32 v5, 7, v0
        v_lshrrev_b32 v6, 3, v0
        v_lshlrev_b32 v4, 12, v6
        v_lshl_add_u32 v4, v5, 4, v4""")
        for i in range(4): a(f"buffer_load_dwordx4 {v(B+4*i,4)}, v4, {s(rB,4)}, {s(sT1)} offen offset:{1024*i}")
        a(f"""s_lshl_b32 {s(sT1)}, {s(sT4)}, 18
        s_lshl_b32 {s(sT2)}, {s(sT0)}, 7
        s_add_u32 {s(sT1)}, {s(sT1)}, {s(sT2)}
        s_add_u32 {s(sT1)}, {s(sT1)}, {WS_UT}
        v_lshlrev_b32 v4, 15, v5
        v_lshl_add_u32 v4, v6, 4, v4
        s_waitcnt vmcnt(0)""")
        self.swap44(B)
        for j in range(4):
            if j: a(f"s_add_u32 {s(sT1)}, {s(sT1)}, 8192")
            a(f"buffer_store_dwordx4 {v(B+4*j,4)}, v4, {s(rWS,4)}, {s(sT1)} offen sc1")
    def y_poll(self):
        a = self.a
        par = self.opt("pary", 0)
        a(f"""s_lshr_b32 {s(sT4)}, {s(sP)}, {5 + par}
        s_lshl_b32 {s(sT2)}, {s(sT4)}, {12 + par}
        s_add_u32 {s(sT2)}, {s(sT2)}, {WS_FLAG4}""")
        self.s_poll(sT2, 63 if par else 31, slp=8)
    def y_assemble(self):
        a = self.a
        self.srd(rC, pOUT, 4194304)
        self.blk_ids(self.opt("pary", 0))
        a(f"""s_lshl_b32 {s(sT1)}, {s(sT4)}, 18
        s_lshl_b32 {s(sT2)}, {s(sT0)}, 7
        s_add_u32 {s(sT1)}, {s(sT1)}, {s(sT2)}
        s_add_u32 {s(sT1)}, {s(sT1)}, {WS_YT}
        v_and_b32 v5, 7, v0
        v_lshrrev_b32 v6, 3, v0
        v_lshlrev_b32 v4, 15, v6
        v_lshl_add_u32 v4, v5, 4, v4""")
        for i in range(4):
            if i: a(f"s_add_u32 {s(sT1)}, {s(sT1)}, 8192")
            a(f"buffer_load_dwordx4 {v(32+4*i,4)}, v4, {s(rWS,4)}, {s(sT1)} offen sc1")
        a(f"""s_lshl_b32 {s(sT1)}, {s(sT0)}, 16
        s_lshl_b32 {s(sT2)}, {s(sT4)}, 7
        s_add_u32 {s(sT1)}, {s(sT1)}, {s(sT2)}
        s_add_u32 {s(sT1)}, {s(sT1)}, 1024
        s_add_u32 {s(sT2)}, {s(sT1)}, 4096
        v_lshlrev_b32 v4, 13, v5
        v_lshl_add_u32 v4, v6, 4, v4
        s_waitcnt vmcnt(0)""")
        self.swap44(32)
        for t in range(4):
            a(f"buffer_store_dwordx4 {v(32+4*t,4)}, v4, {s(rC,4)}, {s(sT1 if t < 2 else sT2)} offen offset:{2048*(t&1)} {self.opt_sc('ysc', 1)}")
        a("s_nop 1")
    def y_guard(self, f, par):
        L = self.a.newlabel("Ly")
        if par: self.a(f"s_bitcmp0_b32 {s(sP)}, 5\ns_cbranch_scc0 {L}")
        else: self.a(f"s_cmp_ge_u32 {s(sW4)}, 2\ns_cbranch_scc0 {L}")
        f()
        self.a.label(L)
    def opt_sc(self, k, d=0):
        return {0: "", 1: "sc1", 2: "nt", 3: "sc0 sc1"}[self.opt(k, d)]

    def finish(self):
        a = self.a
        a.label("L_end")
        if self.opt("diagm"):
            i = self.opt("diagi", 11)
            a("s_waitcnt vmcnt(0)")
            self.stamp(11)
            a(f"""s_waitcnt lgkmcnt(0)
            s_cmp_eq_u32 {s(sWG)}, {self.opt("diagwg", 100)}
            s_cbranch_scc0 L_exit
            s_cmp_eq_u32 {s(sWAVE)}, {4*[((self.opt('order', 0x201) >> (4*c)) & 3) for c in range(3)].index(self.opt('diagc', 2))}
            s_cbranch_scc0 L_exit
            s_sub_u32 {s(sT0)}, {s(sSTAMP+2*i)}, {s(sSTAMP)}
            s_mul_i32 {s(sT0)}, {s(sT0)}, {self.opt("diagm")}
            s_lshr_b32 {s(sT0)}, {s(sT0)}, {self.opt("diags", 0)}
            s_min_u32 {s(sT0)}, {s(sT0)}, 100000""")
            if self.opt("diagfix"): a(f"s_mov_b32 {s(sT0)}, {self.opt('diagfix')}")
            a.label("L_diag")
            a(f"""s_memrealtime {s(sT2,2)}
            s_waitcnt lgkmcnt(0)
            s_sub_u32 {s(sT1)}, {s(sT2)}, {s(sSTAMP)}
            s_cmp_lt_u32 {s(sT1)}, {s(sT0)}
            s_cbranch_scc1 L_diag""")
        elif self.dbg:
            a("s_waitcnt vmcnt(0)")
            self.stamp(11)
            a(f"""s_waitcnt lgkmcnt(0)
            s_mul_i32 {s(sT0)}, {s(sWG)}, 12
            s_add_u32 {s(sT0)}, {s(sT0)}, {s(sWAVE)}
            s_lshl_b32 {s(sT0)}, {s(sT0)}, 6
            s_add_u32 {s(sT0)}, {s(sT0)}, {WS_STAMP}
            v_mov_b32 v4, 0""")
            for i in range(12): a(f"v_mov_b32 v{8+i}, {s(sSTAMP+2*i)}")
            a(f"v_mov_b32 v20, {s(sBUD)}")
            a("s_mov_b64 exec, 1")
            for i in range(3): a(f"buffer_store_dwordx4 {v(8+4*i,4)}, v4, {s(rWS,4)}, {s(sT0)} offen offset:{16*i}")
            a(f"buffer_store_dword v20, v4, {s(rWS,4)}, {s(sT0)} offen offset:48")
        a.label("L_exit")
        a("s_endpgm")

if __name__ == "__main__":
    ap = argparse.ArgumentParser()
    ap.add_argument("-o", default=f"cdna_kernels/{NAME}.s")
    ap.add_argument("--dbg", action="store_true")
    ap.add_argument("opts", nargs="*")
    args = ap.parse_args()
    opts = {}
    for kv in args.opts:
        k, _, val = kv.partition("=")
        opts[k] = int(val, 0) if val else 1
    open(args.o, "w").write(Gen(args.dbg, opts).build())
```

```python
import re

class Asm:
    def __init__(self):
        self.lines = []
        self.uid = 0
    def __call__(self, s):
        for l in s.split("\n"):
            l = l.strip()
            if l:
                self.lines.append(l)
    def label(self, name):
        self.lines.append(name + ":")
    def newlabel(self, base="L"):
        self.uid += 1
        return f"{base}_{self.uid}"

def v(a, n=1):
    return f"v{a}" if n == 1 else f"v[{a}:{a+n-1}]"
def s(a, n=1):
    return f"s{a}" if n == 1 else f"s[{a}:{a+n-1}]"

_reg = re.compile(r"^-?\|?(?:abs\()?([vsa])(\d+)\)?\|?$")
_rng = re.compile(r"^-?([vsa])\[(\d+):(\d+)\]$")
def regs(op):
    op = op.strip()
    m = _reg.match(op)
    if m: return {(m.group(1), int(m.group(2)))}
    m = _rng.match(op)
    if m: return {(m.group(1), i) for i in range(int(m.group(2)), int(m.group(3)) + 1)}
    if op == "vcc": return {("s", "vcc")}
    if op == "exec": return {("s", "exec")}
    if op == "m0": return {("s", "m0")}
    return set()

TRANS = ("v_exp_", "v_log_", "v_rcp_", "v_rsq_", "v_sqrt_", "v_sin_", "v_cos_")
class Ins:
    def __init__(self, text):
        self.text = text
        t = text.split(";")[0].strip()
        parts = t.split(None, 1)
        self.op = parts[0]
        rest = parts[1] if len(parts) > 1 else ""
        ops = [o.strip() for o in rest.split(",")] if rest else []
        ops = [o.split()[0] if o else o for o in ops]
        self.ops = ops
        op = self.op
        self.is_mfma = op.startswith("v_mfma") or op.startswith("v_smfmac")
        self.is_valu = op.startswith("v_") and not self.is_mfma
        self.is_trans = op.startswith(TRANS)
        self.is_vmem = op.startswith(("buffer_", "global_"))
        self.is_ds = op.startswith("ds_")
        self.is_salu = op.startswith("s_")
        self.w = set(); self.r = set(); self.srcC = set(); self.srcAB = set(); self.sdata = set()
        self.passes = 0
        self.lds_dma = self.is_vmem and (" lds" in t or "_lds_" in op)
        if self.is_mfma:
            self.passes = 8 if "32x32" in op else 4
            self.w = regs(ops[0])
            self.srcAB = regs(ops[1]) | regs(ops[2])
            if op.startswith("v_smfmac"):
                self.srcC = set(self.w); self.srcAB |= regs(ops[3])
            else:
                self.srcC = regs(ops[3])
            self.r = self.srcAB | self.srcC
        elif self.is_valu:
            if op.startswith("v_cmp"):
                self.w = regs(ops[0]);
                for o in ops[1:]: self.r |= regs(o)
                if op.startswith("v_cmpx"): self.w |= {("s", "exec")}
            elif op.startswith(("v_permlane16_swap", "v_permlane32_swap", "v_swap")):
                self.w = regs(ops[0]) | regs(ops[1]); self.r = set(self.w)
            else:
                self.w = regs(ops[0])
                k = 1
                if op.startswith(("v_add_co", "v_sub_co", "v_addc_co", "v_subb_co")):
                    self.w |= regs(ops[1]); k = 2
                for o in ops[k:]: self.r |= regs(o)
                if op.startswith(("v_fmac", "v_writelane")) or "UNUSED_PRESERVE" in t or "_dpp" in op: self.r |= regs(ops[0])
        elif self.is_vmem:
            if "store" in op:
                self.sdata = regs(ops[0]) if op.startswith("buffer_") else regs(ops[1])
                for o in ops: self.r |= regs(o)
            elif self.lds_dma:
                for o in ops: self.r |= regs(o)
                self.r |= {("s", "m0")}
            else:
                self.w = regs(ops[0])
                for o in ops[1:]: self.r |= regs(o)
                if "d16" in op or "atomic" in op: self.r |= regs(ops[0])
        elif self.is_ds:
            if op.startswith(("ds_read", "ds_bpermute", "ds_permute", "ds_swizzle")) or "_rtn" in op:
                self.w = regs(ops[0])
                for o in ops[1:]: self.r |= regs(o)
            else:
                for o in ops: self.r |= regs(o)
        elif self.is_salu:
            if op.startswith(("s_cmp", "s_cbranch", "s_branch", "s_nop", "s_waitcnt", "s_barrier", "s_sleep", "s_setprio", "s_endpgm", "s_bitcmp")):
                for o in ops: self.r |= regs(o)
            else:
                self.w = regs(ops[0]) if ops else set()
                for o in ops[1:]: self.r |= regs(o)
                if "saveexec" in op: self.w |= {("s", "exec")}
        self.states = 1
        if op == "s_nop": self.states = int(ops[0]) + 1
        if "nocount" in text: self.states = 0
        self.wide_store = self.is_vmem and "store" in op and ("x3" in op or "x4" in op)

def isv(r): return r[0] in "va"
def iss(r): return r[0] == "s"

def need(p, c):
    n = 0
    pw_v = {r for r in p.w if isv(r)}; pw_s = {r for r in p.w if iss(r)}
    if p.is_mfma:
        big = p.passes == 8
        if c.is_mfma:
            if pw_v & c.srcAB: n = max(n, 12 if big else 8)
            if pw_v & c.srcC:
                if not (c.srcC == pw_v and c.passes == p.passes): n = max(n, 10 if big else 6)
            elif pw_v & c.w: n = max(n, 12 if big else 8)
        elif c.is_valu or c.is_vmem or c.is_ds:
            if pw_v & (c.r | c.w): n = max(n, 12 if big else 8)
        if c.is_valu and (p.srcC & c.w): n = max(n, 7 if big else 3)
    if p.is_valu:
        if c.is_mfma and (pw_v & c.r): n = max(n, 2)
        if c.is_mfma and ("s", "exec") in pw_s: n = max(n, 4)
        if c.is_vmem and (pw_s & c.r): n = max(n, 5)
        if c.is_valu and (pw_s & c.r): n = max(n, 4 if c.op.startswith(("v_readlane", "v_writelane")) else 2)
        if c.is_salu and (pw_s & c.r): n = max(n, 3)
        if c.op.startswith(("v_readfirstlane", "v_readlane")) and (pw_v & c.r): n = max(n, 1)
        if c.op.startswith("v_permlane") and (pw_v & c.r): n = max(n, 2)
        if "_dpp" in c.op and (pw_v & c.r): n = max(n, 2)
        if p.is_trans and c.is_valu and not c.is_trans and (pw_v & c.r): n = max(n, 1)
        if ("sdwa" in p.op or "op_sel" in p.text and p.op.startswith("v_cvt")) and c.is_valu and (pw_v & (c.r | c.w)): n = max(n, 1)
        if ("s", "exec") in pw_s and c.is_valu: n = max(n, 5)
    if p.is_salu and ("s", "m0") in p.w and c.lds_dma: n = max(n, 1)
    if p.wide_store and (p.sdata & c.w): n = max(n, 2)
    return n

def hazard_pass(lines, verbose=False):
    out = []; hist = []; ninserted = 0
    for l in lines:
        if l == "HZ_RESET":
            hist = []; continue
        if l.endswith(":") or l.startswith(".") or l.startswith(";"):
            out.append(l); continue
        c = Ins(l)
        dist = 0; req = 0
        for p in reversed(hist):
            if dist >= 20: break
            k = need(p, c)
            if k - dist > req: req = k - dist
            dist += p.states
        if req > 0:
            ninserted += 1
            if verbose: print("nop", req, "before", l)
            while req > 0:
                k = min(req, 16)
                out.append(f"s_nop {k-1}"); hist.append(Ins(f"s_nop {k-1}")); req -= k
        out.append(l); hist.append(c)
        if len(hist) > 40: hist = hist[-24:]
        if c.op in ("s_branch", "s_endpgm"): hist = []
    return out, ninserted

def wait_check(lines):
    lds = []; vm = []; sm = []; rep = []
    for n, l in enumerate(lines):
        if l.endswith(":") or l.startswith((".", ";")): continue
        c = Ins(l)
        if c.op == "s_waitcnt":
            m = re.search(r"vmcnt\((\d+)\)", l)
            if m:
                k = int(m.group(1)); vm = vm[len(vm) - k:] if k < len(vm) and k > 0 else ([] if k == 0 else vm)
            m = re.search(r"lgkmcnt\((\d+)\)", l)
            if m:
                k = int(m.group(1))
                if k == 0: lds = []; sm = []
                elif k < len(lds): lds = lds[len(lds) - k:]
            continue
        if c.op in ("s_branch", "s_endpgm"):
            lds = []; vm = []; sm = []; continue
        touched = c.r | c.w
        for nm, q in (("lds", lds), ("vmem", vm), ("smem", sm)):
            for (w, t) in q:
                if w & touched and not (w == c.w and (c.is_vmem or c.is_ds or c.op.startswith("s_load"))):
                    rep.append(f"line {n}: '{l}' touches result of outstanding {nm} '{t}'")
        if c.is_ds: lds.append((c.w, l))
        elif c.is_vmem: vm.append((c.w, l))
        elif c.op.startswith(("s_load", "s_mem")): sm.append((c.w, l))
    return rep
```

```python
import sys, struct, argparse
from asmlib import Asm, v, s, hazard_pass, wait_check

NAME = "concat_heads__grouped_kv_mqa__ssm_conv_s4__prompt"
def fbits(x): return "0x%08x" % struct.unpack("<I", struct.pack("<f", x))[0]
import math
LOG2E = math.log2(math.e)

R0   = 0
XE   = 32768
W    = 65536
GEN  = 131072
QB   = 147456
KVR  = 155648
CNT  = 159744
LDS_BYTES = 160000
KCOPY = 6912; KCH = 2 * KCOPY
UCOPY = 4416; UCH = 4 * UCOPY
YX   = W + 37888
OX1  = W
OX2  = YX
PSLOT = 2304
C_KV, C_WQA, C_WQB, C_XL, C_QE, C_QL, C_FL, C_KT0, C_KT1, C_KU, C_Y, C_PE, C_PED, C_PL, C_O1, C_O2, C_OE, C_OL, C_UT, C_YT, C_WQC, C_WQD, C_Y4, C_WO, C_X = [4 * i for i in range(25)]

WS_FLAG = 4096
WS_FLAG2 = 4096 + 32768
WS_FLAG3 = 4096 + 2 * 32768
WS_FLAG4 = 4096 + 3 * 32768
WS_KV   = 147456
KVT     = 2816
V1OFF = 1792
WS_O    = 1 << 19
WS_UT = 6 << 20
WS_YT = 8 << 20
WS_STAMP = 4 << 20
WS_DBG  = 5 << 20
WS_SIZE = 16 << 20

sWG, sWAVE, sG, sR, sP, sW4 = 2, 3, 4, 5, 6, 7
sT0, sT1, sT2, sT3, sT4, sT5 = 8, 9, 10, 11, 12, 13
sCLS = 14; sROT = 15
pX, pWQ, pWK, pWV, pWO, pU, pARE, pAIM, pBRE, pBIM, pCRE, pCIM, pLDT, pDSK, pOUT, pDBG, pWS = [16 + 2 * i for i in range(17)]
sNONCE, sBUD = 50, 51
rA, rB, rC, rWS = 52, 56, 60, 64
sLOOP = 68; sSOF = 69
sSTAMP = 70
OOB = 0x7ff00000

def _qa_waits():
    order = [("w", 0), ("w", 1), ("w", 2)]; out = []
    for sx in range(8):
        i = order.index(("w", sx))
        out.append(2 * (len(order) - 1 - i))
        if sx + 3 < 8: order.append(("w", sx + 3))
        order.append(("x", sx + 8))
    return out
QW = _qa_waits()

class Gen:
    def __init__(self, dbg=False, opts=None):
        self.a = Asm(); self.dbg = dbg; self.o = opts or {}
    def opt(self, k, d=None): return self.o.get(k, d)

    def srd(self, r, p, nbytes):
        a = self.a
        a(f"s_mov_b32 {s(r)}, {s(p)}\ns_mov_b32 {s(r+1)}, {s(p+1)}\ns_mov_b32 {s(r+2)}, {nbytes}\ns_mov_b32 {s(r+3)}, 0x20000")
    def stamp(self, i):
        if self.dbg: self.a(f"{'s_memtime' if self.opt('cyc') else 's_memrealtime'} {s(sSTAMP+2*i,2)}")
    def arrive(self, c, vz, vone):
        self.a(f"s_mov_b64 exec, 1\nds_add_u32 {v(vz)}, {v(vone)} offset:{c}\ns_mov_b64 exec, -1")
    def arrive_rtn(self, c, vz, vone, vt):
        self.a(f"""s_mov_b64 exec, 1
        ds_add_rtn_u32 {v(vt)}, {v(vz)}, {v(vone)} offset:{c}
        s_mov_b64 exec, -1
        s_waitcnt lgkmcnt(0)
        v_readfirstlane_b32 {s(sT0)}, {v(vt)}
        s_cmp_eq_u32 {s(sT0)}, 3""")
    def sync4(self, c, vz, vone, vt, slp=0):
        D = self.a.newlabel("Ls")
        self.arrive_rtn(c, vz, vone, vt)
        self.a(f"s_cbranch_scc1 {D}")
        n0 = len(self.a.lines)
        self.waitc(c, 4, vz, vt, slp)
        for i in range(n0, len(self.a.lines)):
            l = self.a.lines[i]
            if not l.endswith(":") and "nocount" not in l and not l.startswith(("v_readfirst", "s_cmp")): self.a.lines[i] = l + " ; nocount"
        self.a.label(D)
    def waitc(self, c, n, vz, vt, slp=1):
        a = self.a; L = a.newlabel("Lw"); D = a.newlabel("Ld")
        a.label(L)
        a(f"""ds_read_b32 {v(vt)}, {v(vz)} offset:{c}
        s_waitcnt lgkmcnt(0)
        v_readfirstlane_b32 {s(sT0)}, {v(vt)}
        s_cmp_ge_u32 {s(sT0)}, {n}
        s_cbranch_scc1 {D}
        s_sleep {slp} ; nocount
        s_sub_u32 {s(sBUD)}, {s(sBUD)}, 1 ; nocount
        s_cbranch_scc0 {L} ; nocount
        s_mov_b32 {s(sBUD)}, 0 ; nocount""")
        a.label(D)
    def s_publish(self, cnt, base):
        a = self.a; L = a.newlabel("Lpub")
        a("s_waitcnt vmcnt(0)")
        self.arrive_rtn(cnt, self.vZ, self.vONE, self.vT)
        a(f"s_cbranch_scc0 {L}")
        a(f"""s_lshl_b32 {s(sT2)}, {s(sP)}, 7
        s_add_u32 {s(sT2)}, {s(sT2)}, {base}
        v_mov_b32 v18, 0
        s_mov_b64 exec, 1
        buffer_store_dword v167, v18, {s(rWS,4)}, {s(sT2)} offen sc1
        s_mov_b64 exec, -1""")
        a.label(L)
    def s_poll(self, sbase, mask, slp=4):
        a = self.a; Lp = a.newlabel("Lpoll"); Lo = a.newlabel("Lok")
        a(f"v_lshlrev_b32 v18, 7, v0\ns_mov_b64 exec, {hex((1 << (mask + 1)) - 1) if mask < 63 else -1}")
        a.label(Lp)
        a(f"""buffer_load_dword v19, v18, {s(rWS,4)}, {s(sbase)} offen sc1
        s_waitcnt vmcnt(0)
        v_cmp_ne_u32 vcc, v167, v19
        s_and_b64 exec, exec, vcc
        s_cbranch_execz {Lo}
        s_sleep {slp} ; nocount
        s_sub_u32 {s(sBUD)}, {s(sBUD)}, 1 ; nocount
        s_cbranch_scc0 {Lp} ; nocount
        s_mov_b32 {s(sBUD)}, 0 ; nocount""")
        a.label(Lo)
        a("s_mov_b64 exec, -1")
    def cmul(self, d, x, m, t):
        self.a(f"v_pk_mul_f32 {v(t,2)}, {v(x,2)}, {v(m,2)} op_sel_hi:[1,0]")
        self.a(f"v_pk_fma_f32 {v(d,2)}, {v(x,2)}, {v(m,2)}, {v(t,2)} op_sel:[1,1,0] op_sel_hi:[0,1,1] neg_lo:[0,1,0]")

    def build(self):
        a = self.a
        self.entry()
        self.role_late_start()
        self.role_early_start()
        self.qproj_and_attention()
        self.role_s()
        self.finish()
        lines, n = hazard_pass(a.lines, verbose=self.opt("vhz"))
        for r_ in wait_check(lines):
            if "s37" not in r_: print("WAIT:", r_, file=sys.stderr)
        body = "\n".join(l if l.endswith(":") or l.startswith(".") else "    " + l for l in lines)
        head = f"""; fused MQA attention + S4 long convolution, one persistent launch (generated by gen/gen.py)
; @launch grid=(256,1,1) block=(768,1,1) lds={LDS_BYTES}
.amdgcn_target "amdgcn-amd-amdhsa--gfx950"
.text
.globl {NAME}_kernel
.p2align 8
.type {NAME}_kernel,@function
{NAME}_kernel:
"""
        tail = f"""
.section .rodata,"a"
.p2align 6
.amdhsa_kernel {NAME}_kernel
  .amdhsa_next_free_vgpr 168
  .amdhsa_next_free_sgpr 98
  .amdhsa_accum_offset 168
  .amdhsa_group_segment_fixed_size 0
  .amdhsa_kernarg_size 136
  .amdhsa_user_sgpr_count 2
  .amdhsa_user_sgpr_kernarg_segment_ptr 1
  .amdhsa_system_sgpr_workgroup_id_x 1
  .amdhsa_float_denorm_mode_32 3
.end_amdhsa_kernel
"""
        return head + body + tail

    vL, vZ, vONE, vT = 0, 1, 2, 3

    def entry(self):
        a = self.a
        if self.dbg:
            for i in range(12): a(f"s_mov_b64 {s(sSTAMP+2*i,2)}, 0")
        self.stamp(0)
        a(f"""s_cmp_ge_u32 s2, 256
        s_cbranch_scc1 L_exit
        s_xor_b32 s2, s2, {self.opt('wgxor', 0)}
        s_load_dwordx16 s[16:31], s[0:1], 0
        s_load_dwordx16 s[32:47], s[0:1], 64
        s_load_dwordx2 s[48:49], s[0:1], 128
        v_lshrrev_b32 v3, 6, v0
        v_and_b32 v0, 63, v0
        v_readfirstlane_b32 {s(sWAVE)}, v3
        v_mov_b32 v1, {CNT}
        v_mov_b32 v2, 1
        s_and_b32 {s(sT0)}, s2, 7
        s_lshr_b32 {s(sT1)}, s2, 3
        s_lshl_b32 {s(sG)}, {s(sT0)}, 2
        s_lshr_b32 {s(sT2)}, {s(sT1)}, 3
        s_add_u32 {s(sG)}, {s(sG)}, {s(sT2)}
        s_and_b32 {s(sR)}, {s(sT1)}, 7
        s_xor_b32 {s(sR)}, {s(sR)}, {self.opt('rxor', 0)}
        s_lshl_b32 {s(sP)}, {s(sT0)}, 5
        s_add_u32 {s(sP)}, {s(sP)}, {s(sT1)}
        s_and_b32 {s(sROT)}, {s(sT1)}, 15
        s_mov_b32 {s(sBUD)}, 200000
        s_and_b32 {s(sW4)}, {s(sWAVE)}, 3
        s_lshr_b32 {s(sCLS)}, {s(sWAVE)}, 2
        s_lshl_b32 {s(sCLS)}, {s(sCLS)}, 2
        s_lshr_b32 {s(sCLS)}, {self.opt('order', 0x201)}, {s(sCLS)}
        s_and_b32 {s(sCLS)}, {s(sCLS)}, 3
        s_mov_b32 {s(rWS+2)}, {WS_SIZE}
        s_mov_b32 {s(rWS+3)}, 0x20000
        s_mov_b32 {s(rA+3)}, 0x20000
        s_mov_b32 {s(rB+3)}, 0x20000
        s_cmp_eq_u32 {s(sCLS)}, 2
        s_cbranch_scc1 L_role_s
        s_mov_b32 {s(rA+2)}, 2097152
        s_cmp_eq_u32 {s(sCLS)}, 0
        s_cbranch_scc1 L_role_early""")
    def ptrs_ready(self, x=True, nonce=False):
        a = self.a
        a(f"""s_waitcnt lgkmcnt(0)
        s_mov_b32 {s(rWS)}, {s(pWS)}
        s_mov_b32 {s(rWS+1)}, {s(pWS+1)}""")
        if x: a(f"""s_mov_b32 {s(rA)}, {s(pX)}
        s_mov_b32 {s(rA+1)}, {s(pX+1)}""")
        if nonce: a(f"s_load_dword {s(sNONCE)}, {s(pWS,2)}, 0")

    def role_late_start(self):
        a = self.a; vL, vZ, vONE, vT = self.vL, self.vZ, self.vONE, self.vT
        a("s_setprio 3")
        a(f"""s_and_b32 {s(sT0)}, {s(sR)}, 3
        s_lshl_b32 {s(sT1)}, {s(sG)}, 2
        s_add_u32 {s(sT1)}, {s(sT1)}, {s(sT0)}
        s_lshl_b32 {s(sT1)}, {s(sT1)}, 14
        s_lshl_b32 {s(sT2)}, {s(sW4)}, 8
        s_add_u32 {s(sT1)}, {s(sT1)}, {s(sT2)}
        v_and_b32 v4, 15, v0
        v_lshrrev_b32 v5, 4, v0
        v_lshlrev_b32 v6, 10, v4
        v_lshl_add_u32 v6, v5, 4, v6
        s_lshl_b32 {s(sT2)}, {s(sW4)}, 12
        v_lshrrev_b32 v7, 4, v0
        v_and_b32 v7, 1, v7
        v_lshlrev_b32 v7, 7, v7
        v_lshlrev_b32 v24, 4, v0
        v_xor_b32 v7, v7, v24
        s_add_u32 m0, {s(sT2)}, {R0}
        s_mov_b32 {s(rB+2)}, 16384""")
        self.ptrs_ready(nonce=True)
        for k in range(4):
            a(f"buffer_load_dwordx4 {v(8+4*k,4)}, v6, {s(rA,4)}, {s(sT1)} offen offset:{64*k}")
        a(f"""s_cmp_ge_u32 {s(sR)}, 4
        s_cselect_b32 {s(rB)}, {s(pWV)}, {s(pWK)}
        s_cselect_b32 {s(rB+1)}, {s(pWV+1)}, {s(pWK+1)}""")
        for k in range(4):
            a(f"buffer_load_dwordx4 v7, {s(rB,4)}, {s(sT2)} offen offset:{1024*k} lds")
        TOUCH = self.opt("touch", 0)
        if TOUCH == 1:
            a(f"""s_lshl_b32 {s(sT3)}, {s(sG)}, 3
            s_add_u32 {s(sT3)}, {s(sT3)}, {s(sR)}
            s_lshl_b32 {s(sT3)}, {s(sT3)}, {self.opt('fsh', 5)}
            v_mov_b32 v29, {WS_FLAG}
            s_mov_b64 exec, 1
            buffer_load_dword v30, v29, {s(rWS,4)}, {s(sT3)} offen sc1
            s_mov_b64 exec, -1""")
        if TOUCH == 2:
            a(f"""s_lshl_b32 {s(sT3)}, {s(sG)}, 3
            s_add_u32 {s(sT3)}, {s(sT3)}, {s(sR)}
            s_lshl_b32 {s(sT3)}, {s(sT3)}, {self.opt('fsh', 5)}
            s_add_u32 {s(sT3)}, {s(sT3)}, {WS_FLAG}
            s_bfe_u32 {s(sT4)}, {s(sR)}, 0x10001
            s_lshl_b32 {s(sT5)}, {s(sG)}, 1
            s_add_u32 {s(sT4)}, {s(sT4)}, {s(sT5)}
            s_mul_i32 {s(sT4)}, {s(sT4)}, {KVT}
            s_add_u32 {s(sT4)}, {s(sT4)}, {WS_KV}
            v_lshlrev_b32 v29, 7, v0
            v_add_u32 v29, {s(sT4)}, v29
            v_writelane_b32 v29, {s(sT3)}, 18
            s_mov_b64 exec, 0x7ffff
            buffer_load_dword v30, v29, {s(rWS,4)}, 0 offen sc1
            s_mov_b64 exec, -1""")
        a(f"""v_bfe_u32 v25, v0, 2, 2
        v_lshl_add_u32 v25, v5, 3, v25
        v_and_b32 v26, 1, v5
        v_lshl_add_u32 v25, v26, 2, v25
        v_lshlrev_b32 v25, 5, v25
        v_and_b32 v26, 3, v0
        v_lshl_add_u32 v25, v26, 3, v25
        v_add_u32 v25, {s(sT2)}, v25
        v_xor_b32 v26, 0x80, v25
        s_mov_b32 s41, 0""")
        self.qproj()
        a(f"""s_barrier
        s_waitcnt vmcnt({1 if TOUCH else 0}) lgkmcnt(0)""")
        self.stamp(1)
        for k in range(4):
            a(f"ds_read_b64_tr_b16 {v(32+4*k,2)}, v25 offset:{R0+1024*k}")
            a(f"ds_read_b64_tr_b16 {v(34+4*k,2)}, v26 offset:{R0+1024*k}")
        a(f"""s_cmp_ge_u32 {s(sR)}, 4
        s_cbranch_scc1 L_kv_v""")
        for k in range(4):
            a(f"s_waitcnt lgkmcnt({6-2*k})")
            a(f"v_mfma_f32_16x16x32_bf16 v[48:51], {v(32+4*k,4)}, {v(8+4*k,4)}, {'0' if k==0 else 'v[48:51]'}")
        a("s_branch L_kv_j")
        a.label("L_kv_v")
        for k in range(4):
            a(f"s_waitcnt lgkmcnt({6-2*k})")
            a(f"v_mfma_f32_16x16x32_bf16 v[48:51], {v(8+4*k,4)}, {v(32+4*k,4)}, {'0' if k==0 else 'v[48:51]'}")
        a.label("L_kv_j")
        a(f"""s_lshl_b32 {s(sT2)}, {s(sW4)}, 10
        s_add_u32 {s(sT2)}, {s(sT2)}, {KVR}
        v_add_u32 v27, {s(sT2)}, v24
        s_add_u32 {s(sT3)}, {s(sNONCE)}, 0x9e3779b9
        v_mov_b32 v28, {s(sT3)}
        ds_write_b32 v1, v28 offset:128
        s_nop 3
        ds_write_b128 v27, v[48:51]
        s_waitcnt lgkmcnt(0)""")
        self.arrive_rtn(C_KV, vZ, vONE, vT)
        self.stamp(7)
        a("s_cbranch_scc0 L_kv_done")
        a(f"""v_add_u32 v27, {KVR}, v24
        ds_read_b128 v[48:51], v27
        ds_read_b128 v[52:55], v27 offset:1024
        ds_read_b128 v[56:59], v27 offset:2048
        ds_read_b128 v[60:63], v27 offset:3072
        s_cmp_ge_u32 {s(sR)}, 4
        s_cselect_b32 {s(sT2)}, 1.0, {fbits(0.25*LOG2E)}
        s_cselect_b32 {s(sT3)}, 1024, 0
        s_cselect_b32 {s(sT4)}, 6, 4
        s_lshl_b32 {s(sT4)}, {s(sT4)}, 7
        s_bitcmp1_b32 {s(sR)}, 0
        s_cselect_b32 {s(sT4)}, {s(sT4)}, 0
        s_add_u32 {s(sT3)}, {s(sT3)}, {s(sT4)}
        s_bfe_u32 {s(sT4)}, {s(sR)}, 0x10001
        s_lshl_b32 {s(sT5)}, {s(sG)}, 1
        s_add_u32 {s(sT4)}, {s(sT4)}, {s(sT5)}
        s_mul_i32 {s(sT4)}, {s(sT4)}, {KVT}
        s_add_u32 {s(sT3)}, {s(sT3)}, {s(sT4)}
        s_add_u32 {s(sT3)}, {s(sT3)}, {WS_KV}
        v_lshlrev_b32 v6, 5, v4
        v_lshl_add_u32 v6, v5, 3, v6
        s_waitcnt lgkmcnt(0)""")
        for i in range(4): a(f"v_add_f32 v{48+i}, v{48+i}, v{52+i}")
        for i in range(4): a(f"v_add_f32 v{56+i}, v{56+i}, v{60+i}")
        for i in range(4): a(f"v_add_f32 v{48+i}, v{48+i}, v{56+i}")
        for i in range(4): a(f"v_mul_f32 v{48+i}, {s(sT2)}, v{48+i}")
        a(f"""v_cvt_pk_bf16_f32 v52, v48, v49
        v_cvt_pk_bf16_f32 v53, v50, v51
        buffer_store_dwordx2 v[52:53], v6, {s(rWS,4)}, {s(sT3)} offen sc1""")
        if self.opt("ib", 1):
            a(f"""v_add_u32 v56, v52, v53
            v_add_u32 v57, v52, v53
            s_add_u32 {s(sT5)}, {s(sNONCE)}, 0x9e3779b9
            s_and_b32 {s(sT2)}, {s(sR)}, 1
            s_mul_i32 {s(sT2)}, {s(sT2)}, 384
            s_sub_u32 {s(sT2)}, 2560, {s(sT2)}
            v_permlane16_swap_b32 v56, v57
            s_cmp_ge_u32 {s(sR)}, 4
            s_cselect_b32 {s(sT2)}, 640, {s(sT2)}
            s_add_u32 {s(sT2)}, {s(sT2)}, {s(sT3)}
            v_add_u32 v56, v56, v57
            v_sub_u32 v56, {s(sT5)}, v56
            v_lshrrev_b32 v57, 5, v0
            v_lshlrev_b32 v57, 2, v57
            v_lshl_add_u32 v57, v4, 3, v57
            s_mov_b32 exec_lo, 0xffff
            s_mov_b32 exec_hi, 0xffff
            buffer_store_dword v56, v57, {s(rWS,4)}, {s(sT2)} offen sc1
            s_mov_b64 exec, -1""")
        a(f"""s_cmp_ge_u32 {s(sR)}, 4
        s_cbranch_scc0 L_kv_noones
        v_mov_b32 v54, 0x3f803f80
        v_mov_b32 v55, 0x3f803f80""")
        if self.opt("ib", 1):
            a(f"""s_sub_u32 {s(sT5)}, {s(sT5)}, {(4 * 0x3f803f80) & 0xffffffff}
            v_writelane_b32 v54, {s(sT5)}, 4
            v_writelane_b32 v55, {s(sT5)}, 4""")
        a(f"""v_lshlrev_b32 v7, 3, v0
        s_mov_b64 exec, 0xffff
        buffer_store_dwordx2 v[54:55], v7, {s(rWS,4)}, {s(sT3)} offen offset:512 sc1
        s_mov_b64 exec, -1""")
        a.label("L_kv_noones")
        self.stamp(8)
        if self.opt("wq1", 8) < 16: self.arrive(C_WQD, vZ, vONE)
        a("s_mov_b32 s41, 1")
        if self.opt("flagat", 0) == 0: self.kv_flag()
        a.label("L_kv_done")
        self.stamp(2)
        self.qproj_run()
        a("s_branch L_att_setup")
    def kv_flag(self):
        a = self.a; L = a.newlabel("Lkf")
        a(f"""s_cmp_eq_u32 s41, 1
        s_cbranch_scc0 {L}
        s_lshl_b32 {s(sT2)}, {s(sG)}, 3
        s_add_u32 {s(sT2)}, {s(sT2)}, {s(sR)}
        s_lshl_b32 {s(sT2)}, {s(sT2)}, {self.opt('fsh', 5)}
        s_add_u32 {s(sT2)}, {s(sT2)}, {WS_FLAG}
        s_add_u32 {s(sT3)}, {s(sNONCE)}, 0x9e3779b9
        v_mov_b32 v74, {s(sT3)}
        v_mov_b32 v75, 0
        s_waitcnt vmcnt(0)
        s_mov_b64 exec, 1
        buffer_store_dword v74, v75, {s(rWS,4)}, {s(sT2)} offen sc1
        s_mov_b64 exec, -1""")
        if self.opt("wq1", 8) < 16 and self.opt("wqn", 1) == 2: self.arrive(C_WQD, self.vZ, self.vONE)
        a.label(L)

    def l2_prefetch(self, srd, mode, vt, vd, st):
        a = self.a
        a(f"s_and_b32 {s(st)}, {s(sP)}, 31")
        if mode == 1:
            a(f"""s_lshl_b32 {s(st)}, {s(st)}, 2
            s_add_u32 {s(st)}, {s(st)}, {s(sW4)}
            s_lshl_b32 {s(st)}, {s(st)}, 12
            v_lshlrev_b32 v{vt}, 10, v0
            s_mov_b64 exec, 0xf
            buffer_load_dword v{vd}, v{vt}, {s(srd,4)}, {s(st)} offen offset:384
            s_mov_b64 exec, -1""")
        else:
            a(f"""s_lshl_b32 {s(st)}, {s(st)}, 2
            s_add_u32 {s(st)}, {s(st)}, {s(sW4)}
            s_lshl_b32 {s(st)}, {s(st)}, 12
            v_lshlrev_b32 v{vt}, 7, v0
            s_mov_b64 exec, 0xffffffff
            buffer_load_dword v{vd}, v{vt}, {s(srd,4)}, {s(st)} offen
            s_mov_b64 exec, -1""")
    def s_prefetch(self, p, soff, n, stride):
        a = self.a
        a(f"s_add_u32 s96, {s(p)}, {s(soff)}\ns_addc_u32 s97, {s(p+1)}, 0")
        for i in range(n): a(f"s_load_dword s{94 + (i & 1)}, s[96:97], {i*stride}")
    def x_dma(self, lds, row0):
        a = self.a
        a(f"""s_lshl_b32 {s(sT1)}, {s(sG)}, 16
        s_lshl_b32 {s(sT2)}, {s(sW4)}, 13
        s_add_u32 {s(sT1)}, {s(sT1)}, {s(sT2)}
        s_add_u32 {s(sT1)}, {s(sT1)}, {row0*1024}
        s_add_u32 m0, {s(sT2)}, {lds}
        s_and_b32 {s(sT3)}, {s(sW4)}, 1
        s_lshl_b32 {s(sT3)}, {s(sT3)}, 7
        v_lshlrev_b32 v12, 4, v0
        v_xor_b32 v12, {s(sT3)}, v12""")
        for i in range(8):
            if i == 4:
                a(f"s_add_u32 {s(sT1)}, {s(sT1)}, 4096\ns_add_u32 m0, m0, 4096")
            if i == 0:
                a(f"buffer_load_dwordx4 v12, {s(rA,4)}, {s(sT1)} offen lds")
            else:
                a(f"v_xor_b32 v{13+(i&1)}, {16*i}, v12")
                a(f"buffer_load_dwordx4 v{13+(i&1)}, {s(rA,4)}, {s(sT1)} offen offset:{1024*(i&3)} lds")

    def role_early_start(self):
        a = self.a; vL, vZ, vONE, vT = self.vL, self.vZ, self.vONE, self.vT
        a.label("L_role_early")
        a(f"""s_setprio 3
        v_lshl_add_u32 v4, v0, 2, v1
        v_mov_b32 v5, 0
        ds_write_b32 v4, v5""")
        self.ptrs_ready()
        if self.opt("ipf", 1):
            a(f"""s_getpc_b64 {s(sT2,2)}""")
            a.label("L_pc")
            a(f"""s_and_b32 {s(sT0)}, {s(sP)}, 31
            s_lshl_b32 {s(sT0)}, {s(sT0)}, 2
            s_add_u32 {s(sT0)}, {s(sT0)}, {s(sW4)}
            s_lshl_b32 {s(sT0)}, {s(sT0)}, 7
            s_min_u32 {s(sT0)}, {s(sT0)}, L_exit-L_pc-128
            s_and_b32 {s(sT0)}, {s(sT0)}, -4
            s_add_u32 {s(sT2)}, {s(sT2)}, {s(sT0)}
            s_addc_u32 {s(sT3)}, {s(sT3)}, 0
            s_load_dword s94, {s(sT2,2)}, 0
            s_load_dword s95, {s(sT2,2)}, 64""")
        if not self.opt("barx", 1): a("s_barrier")
        a(f"""s_mov_b32 {s(rB)}, {s(pWQ)}
        s_mov_b32 {s(rB+1)}, {s(pWQ+1)}
        s_mov_b32 {s(rB+2)}, 524288""")
        if self.opt("esetup", 1): self.att_setup()
        if self.opt("wqpf", 3) in (1, 2): self.l2_prefetch(rB, self.opt("wqpf", 3), 10, 11, sT4)
        self.x_dma(XE, 0)
        if self.opt("wqpf", 3) in (3, 4): self.l2_prefetch(rB, self.opt("wqpf", 3) - 2, 10, 11, sT4)
        a(f"""v_lshrrev_b32 v15, 3, v0
        v_and_b32 v16, 7, v0
        v_and_b32 v17, 2, v15
        v_xor_b32 v16, v16, v17
        s_and_b32 {s(sT3)}, {s(sW4)}, 1
        s_lshl_b32 {s(sT3)}, {s(sT3)}, 2
        v_xor_b32 v16, {s(sT3)}, v16
        v_lshlrev_b32 v15, 10, v15
        v_lshl_add_u32 v15, v16, 4, v15
        s_lshl_b32 {s(sT1)}, {s(sW4)}, 13
        s_lshl_b32 {s(sT2)}, {s(sR)}, 7
        s_add_u32 {s(sT1)}, {s(sT1)}, {s(sT2)}
        s_lshl_b32 {s(sT2)}, {s(sW4)}, 10
        s_add_u32 m0, {s(sT2)}, {W}""")
        self.stamp(7)
        if self.opt("barx", 1): a("s_barrier")
        if self.opt("xwait", 0): a("s_waitcnt vmcnt(0)")
        self.stamp(8)
        for i in range(16):
            if i == min(self.opt("wq1", 8), 8):
                a(f"s_waitcnt vmcnt({i + (1 if self.opt('wqpf', 3) in (3, 4) else 0)})")
                self.arrive(C_X, vZ, vONE)
            if i == self.opt("wq1", 8): self.waitc(C_WQD, self.opt("wqn", 1), vZ, vT, slp=1)
            if i == 8 + self.opt("wqa", 8):
                a(f"s_waitcnt vmcnt({i - 8})")
                self.arrive(C_WQA, vZ, vONE)
            a(f"buffer_load_dwordx4 v15, {s(rB,4)}, {s(sT1)} offen lds")
            if i < 15: a(f"s_add_u32 m0, m0, 4096\ns_add_u32 {s(sT1)}, {s(sT1)}, 32768")
        self.stamp(1)
        self.waitc(C_KV, 4, vZ, vT, slp=1)
        a("ds_read_b32 v103, v1 offset:128")
        if not self.opt("esetup", 1): self.att_setup()
        a(f"""s_waitcnt lgkmcnt(0)
        v_readfirstlane_b32 {s(sNONCE)}, v103""")
        if self.opt("wqa", 8) >= 8:
            a("s_waitcnt vmcnt(8)")
            self.arrive(C_WQA, vZ, vONE)
        IB = self.opt("ib", 1)
        if IB and self.opt("ibat", 1) == 0:
            self.val_loads(); a("s_waitcnt vmcnt(12)")
        else:
            a("s_waitcnt vmcnt(0)")
        self.arrive(C_WQB, vZ, vONE)
        self.stamp(10)
        if IB:
            if self.opt("ibat", 1) == 0: a("s_branch L_val_chk")
            a.label("L_val")
            self.val_loads()
            a.label("L_val_chk")
            KA = self.KA
            for f in range(6):
                b = KA + 4 * f; acc = 93 if f % 3 == 0 else 94
                a(f"""s_waitcnt vmcnt({10 - 2*f})
                v_add3_u32 v95, v{b}, v{b+1}, v{b+2}
                v_add3_u32 v95, v95, v{b+3}, v{97+f}""")
                if f < 2: a(f"v_xor_b32 v{acc}, v103, v95")
                else: a(f"v_bitop3_b32 v{acc}, v{acc}, v95, v103 bitop3:0xf6")
            a(f"""v_cmp_ne_u32 {s(sT2,2)}, 0, v94
            v_cmp_ne_u32 vcc, 0, v93
            s_and_b32 {s(sT2)}, {s(sT2)}, 0x11ffff
            s_and_b32 {s(sT3)}, {s(sT3)}, 0x11ffff
            s_or_b64 vcc, vcc, {s(sT2,2)}
            s_cbranch_scc0 L_val_ok
            s_sub_u32 {s(sBUD)}, {s(sBUD)}, 1
            s_cbranch_scc0 L_val
            s_mov_b32 {s(sBUD)}, 0""")
            a.label("L_val_ok")
            self.stamp(4)
            if not self.opt("lpoll", 0):
                if self.opt("pwait", 1): self.waitc(C_QE, self.opt("pwait", 1), vZ, vT, slp=self.opt('qslp', 0))
                a(f"""s_lshl_b32 s40, {s(sW4)}, {6 + self.opt('fsh', 5)}
                s_add_u32 s40, s40, {WS_FLAG}
                v_lshlrev_b32 v144, {self.opt('fsh', 5)}, v0
                buffer_load_dword v145, v144, {s(rWS,4)}, s40 offen sc1""")
            a("s_branch L_att_go")
        else:
            a(f"s_mov_b32 {s(sT3)}, {s(sNONCE)}")
            self.stamp(2); self.flag_poll()
            self.stamp(4)
            self.prologue_loads()
            self.arrive(C_FL, vZ, vONE)
            a("s_branch L_att_go")

    Q0, O0, S0, KA = 8, 24, 88, 120
    vKO, vVO, vIDX = 4, 5, 6
    def qproj(self):
        a = self.a; vL, vZ, vONE, vT = self.vL, self.vZ, self.vONE, self.vT
        WF = 76; XA = 152; AC = 140
        a(f"""v_xor_b32 v6, v4, v5
        v_lshlrev_b32 v6, 4, v6
        v_lshl_add_u32 v6, v4, 10, v6
        v_add_u32 v{XA}, {XE}, v6
        v_xor_b32 v{XA+1}, 64, v{XA}
        v_xor_b32 v{XA+2}, 0x80, v{XA}
        v_xor_b32 v{XA+3}, 0xc0, v{XA}
        v_bfe_u32 v6, v0, 2, 2
        v_lshl_add_u32 v7, v5, 3, v6
        v_lshlrev_b32 v7, 7, v7
        v_and_b32 v6, 2, v6
        v_and_b32 v72, 1, v5
        v_lshl_add_u32 v6, v72, 2, v6
        s_lshl_b32 {s(sT1)}, {s(sW4)}, 1
        v_xor_b32 v6, {s(sT1)}, v6
        v_lshl_add_u32 v7, v6, 4, v7
        v_and_b32 v6, 3, v0
        v_lshl_add_u32 v7, v6, 3, v7
        v_add_u32 v{XA+4}, {W}, v7
        v_lshrrev_b32 v6, 1, v5
        v_lshlrev_b32 v6, 9, v6
        v_lshl_add_u32 v6, v4, 4, v6
        v_lshl_add_u32 v6, v72, 3, v6
        s_lshl_b32 {s(sT1)}, {s(sW4)}, 10
        s_add_u32 {s(sT1)}, {s(sT1)}, {QB}
        v_add_u32 v{XA+5}, {s(sT1)}, v6""")
    def qproj_run(self):
        a = self.a; vL, vZ, vONE, vT = self.vL, self.vZ, self.vONE, self.vT
        WF = 76; XA = 152; AC = 140
        def rdw(sx):
            a(f"ds_read_b64_tr_b16 {v(WF+4*sx,2)}, v{XA+4} offset:{4096*sx}")
            a(f"ds_read_b64_tr_b16 {v(WF+4*sx+2,2)}, v{XA+4} offset:{4096*sx+512}")
        def rdx(sx):
            b = 8 + 8 * (sx % 8)
            a(f"ds_read_b128 {v(b,4)}, v{XA+(sx&3)} offset:{256*(sx>>2)}")
            a(f"ds_read_b128 {v(b+4,4)}, v{XA+(sx&3)} offset:{256*(sx>>2)+16384}")
        def mm(sx):
            b = 8 + 8 * (sx % 8)
            a(f"v_mfma_f32_16x16x32_bf16 {v(AC,4)}, {v(WF+4*sx,4)}, {v(b,4)}, {'0' if sx==0 else v(AC,4)}")
            a(f"v_mfma_f32_16x16x32_bf16 {v(AC+4,4)}, {v(WF+4*sx,4)}, {v(b+4,4)}, {'0' if sx==0 else v(AC+4,4)}")
        def qout(off):
            for k in range(4): a(f"v_cvt_pk_bf16_f32 v{AC+8+k}, v{AC+2*k}, v{AC+2*k+1}")
            a(f"""ds_write_b64 v{XA+5}, {v(AC+8,2)} offset:{off}
            ds_write_b64 v{XA+5}, {v(AC+10,2)} offset:{off+256}
            s_waitcnt lgkmcnt(0)""")
        self.waitc(C_X, 4, vZ, vT, slp=self.opt('lslp2', 0))
        for k in range(8): rdx(k)
        self.waitc(C_WQA, 4, vZ, vT, slp=self.opt('lslp2', 0))
        if self.opt("qst"): self.stamp(7)
        for k in range(3): rdw(k)
        for sx in range(8):
            n = sum(2 for k in (sx + 1, sx + 2) if k < 8) + sum(2 for k in (sx - 3, sx - 2, sx - 1) if k >= 0 and k >= sx - 3 + 0 and (k > sx - 3 or False))
            a(f"s_waitcnt lgkmcnt({QW[sx]})")
            mm(sx)
            if sx + 3 < 8: rdw(sx + 3)
            rdx(sx + 8)
        if self.opt("qst"): self.stamp(8)
        if self.opt("flagat", 0) == 1: self.kv_flag()
        self.waitc(C_WQB, 4, vZ, vT, slp=self.opt('lslp2', 0))
        self.stamp(10)
        for k in range(8, 14): rdw(k)
        for sx in range(8, 16):
            a(f"s_waitcnt lgkmcnt({2 * (min(sx + 5, 15) - sx)})")
            mm(sx)
            if sx + 6 < 16: rdw(sx + 6)
        if self.opt("qst"): self.stamp(1)
        qout(0)
        self.sync4(C_QE, vZ, vONE, vT, slp=1)
        self.stamp(3)
        if self.opt("ib", 1) and self.opt("lpoll", 0):
            a(f"s_add_u32 {s(sT3)}, {s(sNONCE)}, 0x9e3779b9")
            self.flag_poll(vA=72, vD=73)
            self.arrive(C_FL, vZ, vONE)
        if self.opt("xlwait", 0): self.waitc(C_FL, 4, vZ, vT, slp=2)
        self.x_dma(XE, 32)
        a("s_waitcnt vmcnt(0)")
        self.sync4(C_XL, vZ, vONE, vT, slp=1)
        for k in range(6): rdx(k)
        for sx in range(16):
            a(f"s_waitcnt lgkmcnt({2 * (min(sx + 5, 15) - sx)})")
            mm(sx)
            if sx + 6 < 16: rdx(sx + 6)
        qout(4096)
        self.arrive(C_QL, vZ, vONE)

    def att_setup(self):
        a = self.a; vL, vZ, vONE, vT = self.vL, self.vZ, self.vONE, self.vT
        a(f"""s_lshl_b32 {s(sT2)}, {s(sCLS)}, 2
        v_add_u32 v92, {s(sT2)}, v1""")
        Q0, O0, S0, KA = self.Q0, self.O0, self.S0, self.KA
        vKO, vVO, vIDX = self.vKO, self.vVO, self.vIDX
        a(f"""s_mul_i32 {s(sT2)}, {s(sW4)}, {16*KVT}
        s_add_u32 {s(sT2)}, {s(sT2)}, {WS_KV}
        v_and_b32 v7, 31, v0
        v_lshrrev_b32 v8, 5, v0
        v_lshlrev_b32 v4, 5, v7
        v_lshl_add_u32 v4, v8, 4, v4
        v_add_u32 v4, {s(sT2)}, v4
        v_and_b32 v9, 3, v7
        v_bfe_u32 v10, v7, 2, 1
        v_lshl_add_u32 v9, v10, 3, v9
        v_bfe_u32 v10, v7, 3, 1
        v_lshl_add_u32 v9, v10, 2, v9
        v_lshlrev_b32 v9, 5, v9
        v_cmp_gt_u32 vcc, 16, v7
        v_mov_b32 v10, {OOB}
        v_cndmask_b32 v9, v10, v9, vcc
        v_and_b32 v10, 27, v7
        v_cmp_eq_u32 vcc, 16, v10
        v_mov_b32 v10, 512
        v_cndmask_b32 v9, v9, v10, vcc
        v_lshl_add_u32 v9, v8, 4, v9
        v_add_u32 v5, {s(sT2)}, v9
        v_mov_b32 v6, 0xdddddddd""")
        for h in range(4):
            for i in range(0, 10, 2): a(f"v_mov_b64 {v(O0+16*h+i,2)}, 0")
        for i in range(0, 8, 2): a(f"v_mov_b64 {v(S0+24+i,2)}, 0")
        for i in range(0, 4, 2): a(f"v_mov_b64 {v(KA+12*self.opt('nbuf',4)-4+i,2)}, 0")
        self.tail_setup()
        if self.opt("chunk", 1):
            a(f"""s_cmp_eq_u32 {s(sCLS)}, 0
            s_cselect_b32 s35, {self.opt('ce', 4) + 1}, {self.opt('cl', 6) + 1}
            s_lshl_b32 s35, 1, s35""")
        a(f"""s_lshl_b32 {s(sT2)}, {s(sCLS)}, 12
        s_add_u32 {s(sT2)}, {s(sT2)}, {QB}
        v_lshl_add_u32 v7, v0, 4, {s(sT2)}""")
        for i in range(4):
            a(f"""s_add_u32 {s(sT3)}, {s(sW4)}, {i}
            s_and_b32 {s(sT3)}, {s(sT3)}, 3
            s_lshl_b32 {s(sT3)}, {s(sT3)}, 10
            v_add_u32 v{S0+i}, {s(sT3)}, v7""")
        a(f"v_mov_b32 v7, {s(self.tail_regs()['cw'])}")
        for b in range(self.opt("nbuf", 4)):
            if b: a(f"s_add_u32 {s(sROT)}, {s(sROT)}, 1\ns_and_b32 {s(sROT)}, {s(sROT)}, 15")
            a(f"s_mul_i32 s{36+b}, {s(sROT)}, {KVT}")
        if self.opt("ib", 1):
            a(f"""s_mul_i32 {s(sT2)}, {s(sW4)}, {16*KVT}
            s_add_u32 {s(sT2)}, {s(sT2)}, {WS_KV}
            v_subrev_u32 v96, {s(sT2)}, v4
            v_lshrrev_b32 v96, 2, v96
            v_add_u32 v96, {s(sT2)}, v96
            v_subrev_u32 v104, {s(sT2)}, v5
            v_cmp_gt_u32 vcc, 512, v104
            v_lshrrev_b32 v104, 2, v104
            v_add_u32 v9, 640, v104
            v_add_u32 v104, 416, v104
            v_cndmask_b32 v104, v104, v9, vcc
            v_add_u32 v104, {s(sT2)}, v104""")
            a(f"s_mov_b32 {s(sSOF)}, {OOB}")
        else:
            a(f"s_mov_b32 {s(sSOF)}, s{36 + self.opt('nbuf', 4) - 1}")
    def ld(self, kind, b, so):
        SC = {0: "sc1", 1: "", 2: "sc0", 3: "nt", 4: "sc0 sc1"}[self.opt("kvsc", 0)]
        off = [0, 1024, V1OFF][kind]
        self.a(f"buffer_load_dwordx4 {v(b+4*kind,4)}, v{self.vKO if kind == 0 else self.vVO}, {s(rWS,4)}, {s(so)} offen offset:{off} {SC}")
    def val_loads(self):
        for t in range(2):
            for kind in range(3):
                self.ld(kind, self.KA + 12 * t, 36 + t)
                self.a(f"buffer_load_dword v{97+3*t+kind}, v{96 if kind == 0 else 104}, {s(rWS,4)}, s{36+t} offen offset:{[2560, 1024, V1OFF][kind]} sc1")
    def prologue_loads(self):
        NB = self.opt("nbuf", 4)
        n = 2 if self.opt("ib", 1) else NB
        for b in range(n):
            for kind in range(3):
                if kind < 2 or b < NB - 1: self.ld(kind, self.KA + 12 * b, 36 + b)
    def flag_poll(self, vA=93, vD=94):
        a = self.a; Lp = a.newlabel("Lfp"); Lo = a.newlabel("Lfo")
        a(f"""s_lshl_b32 {s(sT1)}, {s(sW4)}, {6 + self.opt('fsh', 5)}
        s_add_u32 {s(sT1)}, {s(sT1)}, {WS_FLAG}
        v_lshlrev_b32 v{vA}, {self.opt('fsh', 5)}, v0""")
        a.label(Lp)
        a(f"""buffer_load_dword v{vD}, v{vA}, {s(rWS,4)}, {s(sT1)} offen sc1
        s_waitcnt vmcnt(0)
        v_cmp_ne_u32 vcc, {s(sT3)}, v{vD}
        s_and_b64 exec, exec, vcc
        s_cbranch_execz {Lo}
        s_sleep {self.opt('pslp', 1)}
        s_sub_u32 {s(sBUD)}, {s(sBUD)}, 1
        s_cbranch_scc0 {Lp}
        s_mov_b32 {s(sBUD)}, 0""")
        a.label(Lo)
        a("s_mov_b64 exec, -1")

    def qproj_and_attention(self):
        a = self.a; vL, vZ, vONE, vT = self.vL, self.vZ, self.vONE, self.vT
        Q0, O0, S0, KA = self.Q0, self.O0, self.S0, self.KA
        vKO, vVO, vIDX = self.vKO, self.vVO, self.vIDX
        NB = self.opt("nbuf", 4); IB = self.opt("ib", 1)
        BUF = [KA + 12 * i for i in range(NB)]
        a.label("L_att_setup")
        self.att_setup()
        self.waitc(C_FL, 4, vZ, vT)
        self.stamp(4)
        self.prologue_loads()
        a.label("L_att_go")
        def sof_next():
            a(f"""s_add_u32 {s(sROT)}, {s(sROT)}, 1
            s_and_b32 {s(sROT)}, {s(sROT)}, 15
            s_mul_i32 {s(sSOF)}, {s(sROT)}, {KVT}
            s_cmp_eq_u32 {s(sLOOP)}, 1
            s_cselect_b32 {s(sSOF)}, {OOB}, {s(sSOF)}""")
        def ldK(b): self.ld(0, b, sSOF)
        def ldV0(b): self.ld(1, b, sSOF)
        def ldV1(b): self.ld(2, b, sSOF)
        self.waitc(C_QE, 4, 92, vT, slp=self.opt('qslp', 0))
        for i in range(4): a(f"ds_read_b128 {v(Q0+4*i,4)}, v{S0+i}")
        a(f"""s_mov_b32 {s(sLOOP)}, {16//NB}
        s_waitcnt vmcnt({3 if IB else 3*NB-4}) lgkmcnt(0)
        v_mfma_f32_32x32x16_bf16 {v(S0,16)}, {v(KA,4)}, {v(Q0,4)}, 0
        s_nop 11""")
        self.stamp(5)
        a(f"""s_setprio {self.opt('eprio', 2)}
        s_cmp_eq_u32 {s(sCLS)}, 0
        s_cbranch_scc1 L_att0
        s_setprio {self.opt('lprio', 1)}""")
        a.label("L_att0")
        a(".p2align 6")
        a.label("L_att")
        self.inloop = True
        CHK = self.opt("chunk", 1)
        for t in range(NB):
            cur = BUF[t]; prv = BUF[(t - 1) % NB]; nxt = BUF[(t + 1) % NB]
            for i in range(4):
                S = S0 + 16 * (i & 1); Sn = S0 + 16 * ((i + 1) & 1)
                def ex(a0, a1):
                    for k in range(a0, a1): a(f"v_exp_f32 v{S+k}, v{S+k}")
                ex(0, 2)
                if i == 1 and NB == 2 and not self.opt("nowait"): a("s_waitcnt vmcnt(3)")
                pv = prv if i == 0 else cur
                a(f"v_smfmac_f32_32x32x32_bf16 {v(O0+16*((i-1)&3),16)}, {v(pv+8,4)}, {v(Sn+8,8)}, v{vIDX}")
                if i == 0: ldV1(prv)
                if i == 1 and not self.opt("nosof"): sof_next()
                if CHK and t % 2 == self.opt('cpar', 0) and i == 2:
                    L = a.newlabel("Lp")
                    a(f"""s_lshr_b32 s35, s35, 1
                    s_bitcmp1_b32 s35, 0
                    s_cbranch_scc0 {L}
                    s_setprio {self.opt('lprio', 1) - 1}
                    s_cmp_eq_u32 {s(sCLS)}, 0
                    s_cbranch_scc0 {L}
                    s_setprio {self.opt('eprio', 2) - 1}""")
                    a.label(L)
                ex(2, 5)
                if i == 3 and not self.opt("nowait"): a(f"s_waitcnt vmcnt({2 if NB == 2 else 3*NB-5})")
                kk = nxt if i == 3 else cur
                a(f"v_mfma_f32_32x32x16_bf16 {v(Sn,16)}, {v(kk,4)}, {v(Q0+4*((i+1)&3),4)}, 0")
                if IB and t == 0 and i == 2:
                    a(f"s_cmp_eq_u32 {s(sLOOP)}, {16//NB}\ns_cbranch_scc1 L_first")
                    a.label("L_first_ret")
                if i == 2: ldK(cur)
                ex(5, 10)
                a(f"v_smfmac_f32_32x32x32_bf16 {v(O0+16*i,16)}, {v(cur+4,4)}, {v(S,8)}, v{vIDX}")
                if i == 3: ldV0(cur)
                if i == 2 and t == NB - 1: a("ds_read_b32 v3, v7")
                if t == NB - 1 and i == 3:
                    ex(10, 13)
                    a(f"s_sub_u32 {s(sLOOP)}, {s(sLOOP)}, 1\ns_cmp_lg_u32 {s(sLOOP)}, 0")
                    ex(13, 16)
                else:
                    ex(10, 16)
        a("s_cbranch_scc1 L_att")
        a(f"s_nop 1")
        a(f"v_smfmac_f32_32x32x32_bf16 {v(O0+48,16)}, {v(BUF[-1]+8,4)}, {v(S0+24,8)}, v{vIDX}")
        self.stamp(6)
        if self.opt("r0late", 0) == 2:
            a(f"s_cmp_eq_u32 {s(sCLS)}, 0\ns_cbranch_scc1 L_nole")
            self.arrive(C_WQC, vZ, vONE)
            a.label("L_nole")
        self.att_tail()
        if IB:
            a.label("L_first")
            if self.opt("lpoll", 0):
                self.waitc(C_FL, 4, vZ, vT, slp=0)
            else:
                a(f"s_cmp_eq_u32 {s(sCLS)}, 0\ns_cbranch_scc0 L_first_ld")
                a.label("L_fp")
                a(f"""s_waitcnt vmcnt(0)
                v_cmp_ne_u32 vcc, {s(sNONCE)}, v145
                s_and_b64 exec, exec, vcc
                s_cbranch_execz L_fp_ok
                buffer_load_dword v145, v144, {s(rWS,4)}, s40 offen sc1
                s_sub_u32 {s(sBUD)}, {s(sBUD)}, 1
                s_cbranch_scc0 L_fp
                s_mov_b32 {s(sBUD)}, 0
                s_waitcnt vmcnt(0)""")
                a.label("L_fp_ok")
                a("s_mov_b64 exec, -1")
                self.arrive(C_FL, vZ, vONE)
                a.label("L_first_ld")
            for b in (2, 3):
                for kind in range(3): self.ld(kind, BUF[b], 36 + b)
            a("s_branch L_first_ret")

    def first_poll(self):
        self.a(f"""s_lshl_b32 {s(sT1)}, {s(sW4)}, {6 + self.opt('fsh', 5)}
        s_add_u32 {s(sT1)}, {s(sT1)}, {WS_FLAG}
        v_lshlrev_b32 v93, {self.opt('fsh', 5)}, v0""")
        if self.opt("p16", 0):
            self.a(f"""v_lshrrev_b32 v95, 3, v0
            v_bfe_u32 v96, v0, 1, 1
            v_lshl_add_u32 v95, v95, 1, v96
            v_subrev_u32 v95, {s(sROT)}, v95
            v_and_b32 v95, 15, v95
            v_cmp_gt_u32 vcc, {self.opt('nbuf', 4)}, v95
            s_mov_b64 exec, vcc""")
        self.a(f"buffer_load_dword v94, v93, {s(rWS,4)}, {s(sT1)} offen sc1")

    sP1, sP2, sP3, sP0, sOS = 70, 71, 72, 73, 74
    def tail_regs(self):
        b = 40 if True else 70
        return dict(p=[28, 29, 30, 31], os=32, cw=33, cp=34)
    def tail_setup(self):
        a = self.a; R = self.tail_regs()
        for i in range(4):
            a(f"""s_add_u32 {s(sT2)}, {s(sW4)}, {i}
            s_and_b32 {s(sT2)}, {s(sT2)}, 3
            s_mul_i32 {s(R['p'][i])}, {s(sT2)}, {3*PSLOT}""")
        a(f"""s_cmp_eq_u32 {s(sCLS)}, 0
        s_cselect_b32 {s(sT2)}, {XE}, {R0}""")
        for i in range(4): a(f"s_add_u32 {s(R['p'][i])}, {s(R['p'][i])}, {s(sT2)}")
        a(f"""s_lshl_b32 {s(sT3)}, {s(sG)}, 1
        s_add_u32 {s(sT3)}, {s(sT3)}, {s(sCLS)}
        s_lshl_b32 {s(sT3)}, {s(sT3)}, 5
        s_lshl_b32 {s(sT4)}, {s(sR)}, 2
        s_add_u32 {s(sT3)}, {s(sT3)}, {s(sT4)}
        s_add_u32 {s(sT3)}, {s(sT3)}, {s(sW4)}
        s_lshl_b32 {s(sT3)}, {s(sT3)}, 10
        s_add_u32 {s(R['os'])}, {s(sT3)}, {WS_O}
        s_cmp_eq_u32 {s(sCLS)}, 0
        s_mov_b32 {s(R['cw'])}, {C_YT//4}
        s_cselect_b32 {s(R['cp'])}, {C_PE//4}, {C_PL//4}
        s_lshl_b32 {s(R['cw'])}, {s(R['cw'])}, 2
        s_lshl_b32 {s(R['cp'])}, {s(R['cp'])}, 2
        s_add_u32 {s(R['cw'])}, {s(R['cw'])}, {CNT}
        s_add_u32 {s(R['cp'])}, {s(R['cp'])}, {CNT}""")
    def att_tail(self):
        a = self.a; vL, vZ, vONE, vT = self.vL, self.vZ, self.vONE, self.vT
        Q0, O0, S0, KA = self.Q0, self.O0, self.S0, self.KA
        R = self.tail_regs()
        T = Q0 + 4
        if self.opt("tprio", 0) == 1:
            a(f"s_cmp_eq_u32 {s(sCLS)}, 0\ns_cbranch_scc1 L_notp\ns_setprio 3")
            a.label("L_notp")
        if self.opt("tprio", 0) == 2: a("s_setprio 3")
        a(f"""v_mov_b32 v{T+1}, {s(R['cp'])}
        v_lshlrev_b32 v{T+2}, 4, v0
        v_lshlrev_b32 v{T+3}, 2, v0
        s_waitcnt lgkmcnt(0)
        v_readfirstlane_b32 {s(sT0)}, v3
        v_add_u32 v{T+4}, {s(R['p'][1])}, v{T+2}
        v_add_u32 v{T+5}, {s(R['p'][1])}, v{T+3}
        s_cmp_ge_u32 {s(sT0)}, 4
        s_cbranch_scc1 L_pfree""")
        n0 = len(a.lines)
        self.waitc(0, 4, 7, vT)
        for i in range(n0, len(a.lines)):
            l = a.lines[i]
            if not l.endswith(":") and "nocount" not in l and not l.startswith(("v_readfirst", "s_cmp")): a.lines[i] = l + " ; nocount"
        a.label("L_pfree")
        for i in range(1, 4):
            j = (i + 1) & 3
            a(f"""ds_write_b128 v{T+4+2*(i&1^1)}, {v(O0+16*i,4)} offset:{(i-1)*PSLOT}
            ds_write_b128 v{T+4+2*(i&1^1)}, {v(O0+16*i+4,4)} offset:{(i-1)*PSLOT+1024}
            ds_write_b32 v{T+5+2*(i&1^1)}, v{O0+16*i+8} offset:{(i-1)*PSLOT+2048}
            v_add_u32 v{T+4+2*(i&1)}, {s(R['p'][j])}, v{T+2}
            v_add_u32 v{T+5+2*(i&1)}, {s(R['p'][j])}, v{T+3}""")
        a("s_waitcnt lgkmcnt(0)")
        self.sync4(0, T + 1, vONE, vT)
        for i in range(1, 4):
            a(f"""ds_read_b128 {v(O0+16*i,4)}, v{T+6} offset:{(i-1)*PSLOT}
            ds_read_b128 {v(O0+16*i+4,4)}, v{T+6} offset:{(i-1)*PSLOT+1024}
            ds_read_b32 v{O0+16*i+8}, v{T+7} offset:{(i-1)*PSLOT+2048}""")
        a(f"""s_mov_b32 {s(sT5)}, {s(R['os'])}
        s_waitcnt vmcnt(0)
        v_mov_b32 v146, v{T+2}
        s_waitcnt lgkmcnt(6)""")
        def add9(d, x):
            for k in range(0, 8, 2): a(f"v_pk_add_f32 {v(d+k,2)}, {v(d+k,2)}, {v(x+k,2)}")
            a(f"v_add_f32 v{d+8}, v{d+8}, v{x+8}")
        add9(O0, O0 + 16)
        a("s_waitcnt lgkmcnt(3)"); add9(O0, O0 + 32)
        a("s_waitcnt lgkmcnt(0)"); add9(O0, O0 + 48)
        lo = struct.unpack("<I", struct.pack("<f", 2.0**-60))[0]; hi = struct.unpack("<I", struct.pack("<f", 2.0**60))[0]
        a(f"""v_pk_add_f32 v[150:151], {v(O0,2)}, {v(O0+2,2)}
        v_pk_add_f32 v[152:153], {v(O0+4,2)}, {v(O0+6,2)}
        v_pk_add_f32 v[150:151], v[150:151], v[152:153]
        v_add_f32 v150, v150, v151
        v_fma_f32 v150, v150, 0, v{O0+8}
        v_subrev_u32 v150, {hex(lo)}, v150
        v_cmp_ge_u32 vcc, {hex(hi-lo)}, v150""")
        if self.opt("force_fallback"): a("s_mov_b64 vcc, 0")
        a(f"""s_cmp_eq_u64 vcc, exec
        s_cbranch_scc0 L_fallback""")
        a.label("L_att_fin")
        self.stamp(9)
        a(f"v_rcp_f32 v150, v{O0+8}")
        for k in range(0, 8, 2): a(f"v_pk_mul_f32 {v(O0+k,2)}, {v(O0+k,2)}, v[150:151] op_sel_hi:[1,0]")
        for k in range(4): a(f"v_cvt_pk_bf16_f32 v{152+k}, v{O0+2*k}, v{O0+2*k+1}")
        for k in range(4): a(f"v_min_u32 v{152+k}, -2, v{152+k}")
        a(f"""s_lshl_b32 {s(sT2)}, {s(sCLS)}, 2
        v_add_u32 v151, {s(sT2)}, v1
        buffer_store_dwordx4 v[152:155], v146, {s(rWS,4)}, {s(sT5)} offen sc1
        s_waitcnt vmcnt(0)""")
        self.arrive(C_OE, 151, vONE)
        if self.opt("yby", 2) in (0, 1):
            a(f"s_cmp_eq_u32 {s(sCLS)}, {self.opt('yby', 2)}\ns_cbranch_scc0 L_noya")
            self.y_guard(lambda: (self.waitc(C_Y4, 4, vZ, vT, slp=2), self.y_assemble()), self.opt('pary', 0))
            a.label("L_noya")
        a(f"""s_or_b32 {s(sT2)}, {s(sWG)}, {s(sW4)}
        s_or_b32 {s(sT2)}, {s(sT2)}, {s(sCLS)}
        s_cmp_eq_u32 {s(sT2)}, 0
        s_cbranch_scc0 L_end
        v_mov_b32 v150, {s(sNONCE)}
        v_mov_b32 v151, 0
        s_mov_b64 exec, 1
        buffer_store_dword v150, v151, {s(rWS,4)}, 0 offen sc1
        s_mov_b64 exec, -1
        s_branch L_end""")
        self.fallback()

    def fallback(self):
        a = self.a
        Q0, O0, S0, KA = self.Q0, self.O0, self.S0, self.KA
        vKO, vVO, vIDX = self.vKO, self.vVO, self.vIDX
        C0 = O0 + 16
        a.label("L_fallback")
        a(f"""s_mul_i32 {s(sT2)}, {s(sW4)}, {16*KVT}
        v_subrev_u32 v7, {s(sT2)}, v{vKO}
        v_subrev_u32 v151, {s(sT2)}, v{vVO}
        v_mov_b32 v150, 0xff800000
        s_mov_b32 {s(sSOF)}, 0""")
        a.label("L_fb1")
        a(f"""buffer_load_dwordx4 {v(KA,4)}, v7, {s(rWS,4)}, {s(sSOF)} offen sc1
        s_waitcnt vmcnt(0)
        v_mfma_f32_32x32x16_bf16 {v(S0,16)}, {v(KA,4)}, {v(Q0,4)}, 0""")
        for k in range(8): a(f"v_max3_f32 v150, v150, v{S0+2*k}, v{S0+2*k+1}")
        a(f"""s_add_u32 {s(sSOF)}, {s(sSOF)}, {KVT}
        s_cmp_lt_u32 {s(sSOF)}, {64*KVT}
        s_cbranch_scc1 L_fb1
        v_mov_b32 v152, v150
        v_permlane32_swap_b32 v150, v152
        v_max_f32 v150, v150, v152""")
        for k in range(16): a(f"v_sub_f32 v{C0+k}, 0, v150")
        for k in range(16): a(f"v_mov_b32 v{O0+k}, 0")
        a(f"s_mov_b32 {s(sSOF)}, 0")
        a.label("L_fb2")
        a(f"""buffer_load_dwordx4 {v(KA,4)}, v7, {s(rWS,4)}, {s(sSOF)} offen sc1
        buffer_load_dwordx4 {v(KA+4,4)}, v151, {s(rWS,4)}, {s(sSOF)} offen offset:1024 sc1
        buffer_load_dwordx4 {v(KA+8,4)}, v151, {s(rWS,4)}, {s(sSOF)} offen offset:{V1OFF} sc1
        s_waitcnt vmcnt(0)
        v_mfma_f32_32x32x16_bf16 {v(S0,16)}, {v(KA,4)}, {v(Q0,4)}, {v(C0,16)}""")
        for k in range(16): a(f"v_exp_f32 v{S0+k}, v{S0+k}")
        a(f"""v_smfmac_f32_32x32x32_bf16 {v(O0,16)}, {v(KA+4,4)}, {v(S0,8)}, v{vIDX}
        v_smfmac_f32_32x32x32_bf16 {v(O0,16)}, {v(KA+8,4)}, {v(S0+8,8)}, v{vIDX}
        s_add_u32 {s(sSOF)}, {s(sSOF)}, {KVT}
        s_cmp_lt_u32 {s(sSOF)}, {64*KVT}
        s_nop 9
        s_cbranch_scc1 L_fb2
        s_nop 3
        s_branch L_att_fin""")

    def role_s(self):
        a = self.a; vL, vZ, vONE, vT = self.vL, self.vZ, self.vONE, self.vT
        a.label("L_role_s")
        a(f"s_setprio {self.opt('gprio', 3)}")
        sCH, sMH = sLOOP, sSOF
        a(f"""s_and_b32 {s(sCH)}, {s(sW4)}, 1
        s_lshr_b32 {s(sMH)}, {s(sW4)}, 1
        s_lshl_b32 {s(sT0)}, {s(sP)}, 2
        s_lshl_b32 {s(sT1)}, {s(sP)}, 9
        s_lshl_b32 {s(sT2)}, {s(sCH)}, 8
        s_add_u32 {s(sT1)}, {s(sT1)}, {s(sT2)}
        s_lshl_b32 {s(sT2)}, {s(sMH)}, 7
        s_add_u32 {s(sT1)}, {s(sT1)}, {s(sT2)}
        v_lshlrev_b32 v4, 1, v0
        s_mov_b32 {s(rA+2)}, 131072""")
        self.ptrs_ready(False)
        a(f"""s_load_dword {s(sT4)}, {s(pLDT,2)}, {s(sT0)}
        s_load_dword {s(sT5)}, {s(pDSK,2)}, {s(sT0)}""")
        for i, p in enumerate([pARE, pAIM, pBRE, pBIM, pCRE, pCIM]):
            a(f"s_mov_b32 {s(rA)}, {s(p)}\ns_mov_b32 {s(rA+1)}, {s(p+1)}")
            a(f"buffer_load_ushort v{8+i}, v4, {s(rA,4)}, {s(sT1)} offen")
        UE = self.opt("uearly", 0)
        a("s_barrier")
        self.s_precompute()
        a(f"""s_lshl_b32 {s(sT2)}, {s(sW4)}, 12
        s_add_u32 {s(sT2)}, {s(sT2)}, {GEN}
        v_bfe_u32 v5, v0, 1, 2
        v_lshlrev_b32 v5, 4, v5
        v_lshl_add_u32 v5, v0, 6, v5
        v_add_u32 v150, {s(sT2)}, v5
        v_xor_b32 v151, 16, v150
        v_xor_b32 v152, 32, v150
        v_xor_b32 v153, 48, v150
        v_bfe_u32 v5, v0, 2, 2
        v_lshrrev_b32 v6, 5, v0
        v_lshl_add_u32 v6, v6, 3, v5
        v_lshlrev_b32 v6, 6, v6
        v_bfe_u32 v7, v0, 4, 1
        v_lshlrev_b32 v7, 1, v7
        v_bfe_u32 v14, v0, 1, 1
        v_add_u32 v7, v7, v14
        v_lshrrev_b32 v5, 1, v5
        v_xor_b32 v7, v7, v5
        v_lshl_add_u32 v6, v7, 4, v6
        v_and_b32 v7, 1, v0
        v_lshl_add_u32 v6, v7, 3, v6
        v_add_u32 v154, {s(sT2)}, v6
        v_xor_b32 v155, 32, v154
        s_waitcnt lgkmcnt(0)
        s_lshl_b32 {s(sT2)}, {s(sCH)}, 4
        s_lshr_b32 {s(sT4)}, {s(sT4)}, {s(sT2)}
        s_lshl_b32 {s(sT4)}, {s(sT4)}, 16
        s_lshr_b32 {s(sT5)}, {s(sT5)}, {s(sT2)}
        s_lshl_b32 {s(sT5)}, {s(sT5)}, 16
        v_mov_b32 v14, {fbits(LOG2E)}
        v_mul_f32 v15, {s(sT4)}, v14
        v_exp_f32 v15, v15
        v_cvt_pk_bf16_f32 v15, v15, v15
        v_and_b32 v15, 0xffff0000, v15
        s_waitcnt vmcnt({8 if UE else 0})""")
        self.stamp(1)
        for i in range(6): a(f"v_lshlrev_b32 v{8+i}, 16, v{8+i}")
        Z1, Z2, Z4, Z8, Z256, CB, TMP = 18, 20, 22, 24, 26, 16, 28
        a(f"""v_mul_f32 v8, v15, v8
        v_mul_f32 v9, v15, v9
        v_mul_f32 v10, v15, v10
        v_mul_f32 v11, v15, v11
        v_mul_f32 v8, v14, v8
        v_mul_f32 v9, 0.15915494, v9""")
        self.cmul(CB, 10, 12, TMP)
        def cpow(d, mult):
            if mult != 1:
                a(f"v_mul_f32 v30, {fbits(mult)}, v8\nv_mul_f32 v31, {fbits(mult)}, v9")
                x, y = 30, 31
            else:
                x, y = 8, 9
            a(f"""v_exp_f32 v28, v{x}
            v_rndne_f32 v29, v{y}
            v_sub_f32 v29, v{y}, v29
            v_cos_f32 v{d}, v29
            v_sin_f32 v{d+1}, v29
            v_mul_f32 v{d}, v28, v{d}
            v_mul_f32 v{d+1}, v28, v{d+1}""")
        cpow(Z1, 1); cpow(Z256, 256)
        self.cmul(Z2, Z1, Z1, TMP); self.cmul(Z4, Z2, Z2, TMP); self.cmul(Z8, Z4, Z4, TMP)
        RE, IM = 32, 48
        FB = 64
        FA = 96
        ACC = 112
        X0, X1 = 128, 130
        def wr(src):
            for c in range(4): a(f"ds_write_b128 v{150+c}, {v(src+4*c,4)}")
        def rdtr(dst):
            for ks in range(4):
                a(f"ds_read_b64_tr_b16 {v(dst+4*ks,2)}, v154 offset:{1024*ks}")
                a(f"ds_read_b64_tr_b16 {v(dst+4*ks+2,2)}, v155 offset:{1024*ks+256}")
        if self.opt("gst"): self.stamp(3)
        a(f"v_mov_b32 v{X0}, 1.0\nv_mov_b32 v{X0+1}, 0")
        for j in range(0, 32, 2):
            if j > 0: self.cmul(X0, X1, Z8, TMP)
            self.cmul(X1, X0, Z8, TMP)
            a(f"v_cvt_pk_bf16_f32 v{RE+j//2}, v{X0}, v{X1}")
            a(f"v_cvt_pk_bf16_f32 v{IM+j//2}, -v{X0+1}, -v{X1+1}")
        if self.opt("gst"): self.stamp(4)
        wr(RE); rdtr(FB); wr(IM); rdtr(FB + 16)
        if self.opt("gst"): self.stamp(5)
        if self.opt("upf", 0):
            a(f"""s_and_b32 {s(sT0)}, {s(sP)}, 31
            s_lshl_b32 {s(sT0)}, {s(sT0)}, 2
            s_add_u32 {s(sT0)}, {s(sT0)}, {s(sW4)}
            s_lshl_b32 {s(sT0)}, {s(sT0)}, 14
            s_lshr_b32 {s(sT1)}, {s(sP)}, 5
            s_lshl_b32 {s(sT1)}, {s(sT1)}, 7
            s_add_u32 {s(sT0)}, {s(sT0)}, {s(sT1)}""")
            self.s_prefetch(pU, sT0, 16, 1024)
            if self.opt("upf", 0) == 2:
                a(f"s_add_u32 {s(sT0)}, {s(sT0)}, 64"); self.s_prefetch(pU, sT0, 16, 1024)
        B = [CB] + [132 + 2 * m for m in range(7)]
        for m in range(1, 8): self.cmul(B[m], B[m - 1], Z256, TMP)
        Y0, Y1 = 146, 148
        def pack(row, x, y):
            a(f"v_cvt_pk_bf16_f32 v{RE+row//2}, v{x}, v{y}")
            a(f"v_cvt_pk_bf16_f32 v{IM+row//2}, v{x+1}, v{y+1}")
        a("s_waitcnt lgkmcnt(8)")
        self.cmul(X1, CB, Z1, TMP); pack(0, CB, X1)
        for row in (2, 4, 6):
            self.cmul(X0, X1, Z1, TMP); self.cmul(X1, X0, Z1, TMP); pack(row, X0, X1)
        self.cmul(X0, B[1], Z2, TMP); pack(8, B[1], X0)
        self.cmul(X1, X0, Z2, TMP); pack(10, X1, X1)
        self.cmul(X0, X1, Z2, TMP); pack(12, X1, X0)
        self.cmul(X1, X0, Z2, TMP); pack(14, X1, X1)
        for q, m in ((16, 2), (20, 3)):
            self.cmul(X0, B[m], Z4, TMP); pack(q, B[m], X0)
            self.cmul(X1, X0, Z4, TMP); pack(q + 2, X1, X1)
        for q, m in ((24, 4), (26, 6), (28, 5), (30, 7)):
            self.cmul(X0, B[m], Z8, TMP); pack(q, B[m], X0)
        if self.opt("gst"): self.stamp(6)
        wr(RE); rdtr(FA)
        a("s_waitcnt lgkmcnt(0)")
        if self.opt("gst"): self.stamp(7)
        for ks in range(4):
            a(f"v_mfma_f32_32x32x16_bf16 {v(ACC,16)}, {v(FA+4*ks,4)}, {v(FB+4*ks,4)}, {'0' if ks==0 else v(ACC,16)}")
        wr(IM); rdtr(RE)
        a("s_waitcnt lgkmcnt(0)")
        for ks in range(4):
            a(f"v_mfma_f32_32x32x16_bf16 {v(ACC,16)}, {v(RE+4*ks,4)}, {v(FB+16+4*ks,4)}, {v(ACC,16)}")
        self.stamp(2)
        if self.opt("gprio", 3) != self.opt("sprio", 3): a(f"s_setprio {self.opt('sprio', 3)}")
        if self.opt("abl_s") == 1: self.arrive(C_YT, vZ, vONE); self.arrive(C_WO, vZ, vONE); a("s_branch L_end")
        UG = self.UG
        self.waitc(C_KV, 4, vZ, vT, slp=1)
        a("ds_read_b32 v167, v1 offset:128")
        if self.opt("uwait", 2): self.waitc({1: C_WQB, 2: C_FL, 3: C_QE}[self.opt("uwait", 2)], 4, vZ, vT, slp=2)
        self.y_guard(self.u_transpose, self.opt('paru', 1))
        a(f"v_mov_b32 v26, v{self.pCA}\nv_mov_b32 v27, v{self.pCB}")
        a(f"""s_lshl_b32 {s(sT2)}, {s(sCH)}, 12
        s_add_u32 {s(sT2)}, {s(sT2)}, {GEN+8192}
        v_lshl_add_u32 v5, v0, 4, {s(sT2)}
        s_lshl_b32 {s(sT2)}, {s(sCH)}, 2
        v_add_u32 v6, {s(sT2)}, v1
        s_cmp_eq_u32 {s(sMH)}, 0
        s_cbranch_scc1 L_s_expand""")
        for c in range(4): a(f"ds_write_b128 v5, {v(ACC+4*c,4)} offset:{1024*c}")
        a("s_waitcnt lgkmcnt(0)")
        self.arrive(C_KT0, 6, vONE)
        a("s_branch L_s_ucopy")
        a.label("L_s_expand")
        self.waitc(C_KT0, 1, 6, vT)
        for c in range(4): a(f"ds_read_b128 {v(32+4*c,4)}, v5 offset:{1024*c}")
        a(f"""v_lshl_add_u32 v7, v0, 4, s46
        v_mov_b64 v[48:49], 0
        v_mov_b64 v[50:51], 0""")
        for cp in range(2):
            for off in (0, 1024, 1136):
                a(f"ds_write_b128 v7, v[48:51] offset:{cp*KCOPY+off}")
        a("s_waitcnt lgkmcnt(6)")
        for k in range(0, 16, 2): a(f"v_pk_add_f32 {v(ACC+k,2)}, {v(ACC+k,2)}, {v(32+k,2)}")
        a(f"""s_mov_b64 exec, 1
        v_add_f32 v{ACC}, {s(sT5)}, v{ACC}
        s_mov_b64 exec, -1
        s_mov_b32 {s(sT2)}, 0x55555555
        s_mov_b32 {s(sT3)}, 0x55555555""")
        A = ACC
        a(f"""v_cvt_pk_bf16_f32 v32, v{A+3}, v{A+2}
        v_cvt_pk_bf16_f32 v33, v{A+1}, v{A}
        ds_write_b64 v{self.pE10}, v[32:33] offset:{144*15+8}
        v_cvt_pk_bf16_f32 v34, v{A+6}, v{A+5}
        v_cvt_pk_bf16_f32 v35, v{A+4}, v{A+4}
        ds_write_b64 v{self.pE10}, v[34:35] offset:{144*19+8}
        v_cvt_pk_bf16_f32 v36, v{A+10}, v{A+10}
        v_cvt_pk_bf16_f32 v37, v{A+9}, v{A+9}
        v_cvt_pk_bf16_f32 v38, v{A+9}, v{A+8}
        v_cvt_pk_bf16_f32 v39, v{A+8}, v{A+8}
        ds_write_b128 v{self.pE9}, v[36:39] offset:{144*23}""")
        for q, (ra, dst, blk) in enumerate(((A + 12, 40, 31), (A + 14, 44, 39))):
            a(f"""v_cndmask_b32 v11, v{ra+1}, v{ra}, {s(sT2,2)}
            v_cvt_pk_bf16_f32 v{dst}, v{ra+1}, v{ra+1}
            v_cvt_pk_bf16_f32 v{dst+1}, v{ra+1}, v11
            v_cvt_pk_bf16_f32 v{dst+2}, v{ra}, v{ra}
            v_cvt_pk_bf16_f32 v{dst+3}, v{ra}, v{ra}
            ds_write_b128 v{self.pE9}, {v(dst,4)} offset:{144*blk}""")
        for it in range(4):
            a(f"ds_read_b128 {v(64+8*it,4)}, v{self.pE8} offset:{144*(15+8*it)}")
            a(f"ds_read_b32 v{68+8*it}, v{self.pE8p} offset:{144*(15+8*it)}")
        for it in range(4):
            b = 64 + 8 * it
            a(f"s_waitcnt lgkmcnt({6-2*it+it})")
            for k in range(4): a(f"v_alignbit_b32 v{32+4*it+k}, v{b+k+1}, v{b+k}, 16")
            a(f"ds_write_b128 v{self.pE8}, {v(32+4*it,4)} offset:{KCOPY+144*(15+8*it)}")
        a.label("L_s_ucopy")
        self.y_guard(self.u_transpose2, self.opt('paru', 1))
        a("s_waitcnt lgkmcnt(0)")
        if self.opt("paru", 1): self.y_guard(lambda: self.s_publish(C_UT, WS_FLAG3), 1)
        else: self.s_publish(C_UT, WS_FLAG3)
        self.stamp(3)
        if self.opt("abl_s") == 3: self.arrive(C_YT, vZ, vONE); self.arrive(C_WO, vZ, vONE); a("s_branch L_end")
        self.waitc(C_QL, 4, vZ, vT, slp=2)
        self.srd(rB, pWO, 524288)
        a(f"""s_lshl_b32 {s(sT3)}, {s(sW4)}, 17
        s_lshl_b32 {s(sT2)}, {s(sR)}, 7
        s_add_u32 {s(sT3)}, {s(sT3)}, {s(sT2)}
        s_lshl_b32 {s(sT4)}, {s(sW4)}, 13
        s_add_u32 {s(sT4)}, {s(sT4)}, {XE}""")
        def wo_dma():
            a(f"s_mov_b32 m0, {s(sT4)}")
            for i in range(8):
                if i and i % self.opt("wosplit", 4) == 0: a("s_waitcnt vmcnt(0)")
                a(f"buffer_load_dwordx4 v{self.pWD}, {s(rB,4)}, {s(sT3)} offen lds")
                if i < 7: a("s_add_u32 m0, m0, 1024")
                a(f"s_add_u32 {s(sT3)}, {s(sT3)}, 8192")
        WOF = 96
        WIN = self.opt("woin", 0)
        a(f"v_mov_b32 v16, v{self.pWT}\nv_xor_b32 v17, 64, v{self.pWT}\ns_mov_b32 s44, {s(sT3)}\ns_mov_b32 s45, {s(sT4)}" if False else f"v_mov_b32 v16, v{self.pWT}\nv_xor_b32 v17, 64, v{self.pWT}")
        def wo_frags(rnd):
            a("s_waitcnt vmcnt(0)")
            for ks in range(4):
                for ct in range(2):
                    d = WOF + 32 * rnd + 8 * ks + 4 * ct
                    a(f"ds_read_b64_tr_b16 {v(d,2)}, v{16+ct} offset:{2048*ks}")
                    a(f"ds_read_b64_tr_b16 {v(d+2,2)}, v{16+ct} offset:{2048*ks+512}")
            a("s_waitcnt lgkmcnt(0)")
        if WIN:
            a(f"s_mov_b32 s42, {s(sT3)}\ns_mov_b32 s43, {s(sT4)}")
        else:
            for rnd in range(2): wo_dma(); wo_frags(rnd)
        a(f"""s_lshr_b32 {s(sT4)}, {s(sP)}, {5 + self.opt("paru", 1)}
        s_lshl_b32 {s(sT4)}, {s(sT4)}, {12 + self.opt("paru", 1)}
        s_add_u32 {s(sT4)}, {s(sT4)}, {WS_FLAG3}""")
        self.s_poll(sT4, 31)
        a(f"""s_lshl_b32 {s(sT1)}, {s(sP)}, 13
        s_lshl_b32 {s(sT2)}, {s(sW4)}, 11
        s_add_u32 {s(sT1)}, {s(sT1)}, {s(sT2)}
        s_add_u32 {s(sT1)}, {s(sT1)}, {WS_UT}
        v_lshlrev_b32 v4, 5, v0
        buffer_load_dwordx4 {v(UG,4)}, v4, {s(rWS,4)}, {s(sT1)} offen sc1
        buffer_load_dwordx4 {v(UG+4,4)}, v4, {s(rWS,4)}, {s(sT1)} offen offset:16 sc1""")
        a(f"""s_cmp_eq_u32 {s(sW4)}, 0
        s_cbranch_scc0 L_s_nouz
        v_lshrrev_b32 v8, 3, v0
        v_mul_u32_u24 v8, {UCOPY}, v8
        v_and_b32 v9, 7, v0
        v_lshl_add_u32 v8, v9, 4, v8
        v_add_u32 v8, {W}, v8
        v_mov_b64 v[48:49], 0
        v_mov_b64 v[50:51], 0
        ds_write_b128 v8, v[48:51]""")
        a.label("L_s_nouz")
        a(f"""s_mov_b32 {s(sT0)}, 0x05040100
        s_mov_b32 {s(sT1)}, 0x07060302
        s_waitcnt vmcnt(0)""")
        self.stamp(4)
        for k in range(4):
            a(f"v_perm_b32 v{32+k}, v{UG+2*k+1}, v{UG+2*k}, {s(sT0)}")
            a(f"v_perm_b32 v{36+k}, v{UG+2*k+1}, v{UG+2*k}, {s(sT1)}")
        for ch in range(2):
            d = 32 + 4 * ch
            for ph in range(4):
                off = ch * UCH + ph * UCOPY + 128 - 4 * (ph + 1)
                if ph == 3:
                    a(f"ds_write_b128 v{self.pUC}, {v(d,4)} offset:{off}")
                elif ph == 1:
                    a(f"ds_write_b64 v{self.pUC}, {v(d,2)} offset:{off}\nds_write_b64 v{self.pUC}, {v(d+2,2)} offset:{off+8}")
                else:
                    a(f"v_add_u32 v9, {off}, v{self.pUC}")
                    a(f"ds_write2_b32 v9, v{d}, v{d+1} offset0:0 offset1:1\nds_write2_b32 v9, v{d+2}, v{d+3} offset0:2 offset1:3")
        a("s_waitcnt lgkmcnt(0)")
        self.arrive(C_KU, vZ, vONE)
        T0, T1 = 64, 80
        vA, vB = 26, 27
        if self.opt("wospf", 0):
            a(f"""s_and_b32 {s(sT0)}, {s(sP)}, 31
            s_lshl_b32 {s(sT0)}, {s(sT0)}, 2
            s_add_u32 {s(sT0)}, {s(sT0)}, {s(sW4)}
            s_lshl_b32 {s(sT0)}, {s(sT0)}, 12""")
            self.s_prefetch(pWO, sT0, 32 * self.opt("wospf"), 128 // self.opt("wospf"))
        if self.opt("wopf", 0):
            self.srd(rB, pWO, 524288)
            self.l2_prefetch(rB, self.opt("wopf"), 10, 11, sT4)
        self.waitc(C_KU, 4, vZ, vT)
        self.stamp(5)
        if self.opt("abl_s") == 5: self.arrive(C_YT, vZ, vONE); self.arrive(C_WO, vZ, vONE); a("s_branch L_end")
        if self.opt("cprio", 3) != 3: a(f"s_setprio {self.opt('cprio')}")
        a(f"s_mov_b32 {s(sT4)}, {self.opt('convit', 8)}")
        def step(u, first=False):
            b = 32 + 16 * (u & 1)
            ao = 144 * 15 + 16 * (7 - 2 * u)
            a(f"""ds_read_b128 {v(b,4)}, v{vA} offset:{ao}
            ds_read_b128 {v(b+8,4)}, v{vB} offset:{32*u}
            s_waitcnt lgkmcnt(0)
            v_mfma_f32_32x32x16_bf16 {v(T0,16)}, {v(b,4)}, {v(b+8,4)}, {'0' if first else v(T0,16)}
            ds_read_b128 {v(b+12,4)}, v{vB} offset:{32*u+2048}
            s_waitcnt lgkmcnt(0)
            v_mfma_f32_32x32x16_bf16 {v(T1,16)}, {v(b,4)}, {v(b+12,4)}, {'0' if first else v(T1,16)}
            ds_read_b128 {v(b+4,4)}, v{vA} offset:{ao+2304}
            s_waitcnt lgkmcnt(0)
            v_mfma_f32_32x32x16_bf16 {v(T1,16)}, {v(b+4,4)}, {v(b+8,4)}, {v(T1,16)}""")
        def dma1():
            a(f"""buffer_load_dwordx4 v{self.pWD}, {s(rB,4)}, s42 offen lds
            s_add_u32 m0, m0, 1024
            s_add_u32 s42, s42, 8192""")
        for part in range(2 if WIN else 1):
            if WIN: a(f"s_mov_b32 m0, s43\ns_mov_b32 {s(sT4)}, 4")
            if part == 0:
                step(0, True)
                a("s_branch L_conv1")
            a.label(f"L_conv_{part}")
            step(0)
            if part == 0: a.label("L_conv1")
            if WIN: dma1()
            step(1); step(2)
            if WIN: dma1()
            step(3)
            a(f"""v_subrev_u32 v{vA}, 144, v{vA}
            v_add_u32 v{vB}, 128, v{vB}
            s_sub_u32 {s(sT4)}, {s(sT4)}, 1
            s_cmp_lg_u32 {s(sT4)}, 0
            s_cbranch_scc1 L_conv_{part}""")
            if WIN: wo_frags(part)
        self.stamp(6)
        if self.opt("cprio", 3) != 3: a(f"s_setprio {self.opt('sprio', 3)}")
        if self.opt("abl_s") == 6: self.arrive(C_YT, vZ, vONE); self.arrive(C_WO, vZ, vONE); a("s_branch L_end")
        def xchg_write(base, accs, ymode=False):
            a(f"""s_lshl_b32 {s(sT2)}, {s(sW4)}, 11
            s_add_u32 {s(sT2)}, {s(sT2)}, {base}
            v_lshl_add_u32 v10, v0, 4, {s(sT2)}
            s_lshl_b32 {s(sT2)}, {s(sW4)}, 13
            s_add_u32 {s(sT2)}, {s(sT2)}, {base}
            v_lshl_add_u32 v11, v0, 4, {s(sT2)}""")
            for q in range(4):
                r0, r1 = (accs+8*q, accs+8*q+4) if not ymode else (accs+16*(q>>1)+4*(q&1), accs+16*(q>>1)+8+4*(q&1))
                a(f"ds_write_b128 v10, {v(r0,4)} offset:{8192*q}")
                a(f"ds_write_b128 v10, {v(r1,4)} offset:{8192*q+1024}")
        def xchg_read(dst):
            for w in range(4):
                a(f"ds_read_b128 {v(dst+8*w,4)}, v11 offset:{2048*w}")
                a(f"ds_read_b128 {v(dst+8*w+4,4)}, v11 offset:{2048*w+1024}")
        a("s_waitcnt lgkmcnt(0)")
        xchg_write(YX, T0, True)
        a("s_waitcnt lgkmcnt(0)")
        self.arrive(C_Y, vZ, vONE)
        self.srd(rC, pOUT, 4194304)
        a(f"""s_lshl_b32 {s(sT1)}, {s(sP)}, 13
        s_lshl_b32 {s(sT2)}, {s(sW4)}, 11
        s_add_u32 {s(sT1)}, {s(sT1)}, {s(sT2)}
        s_add_u32 {s(sT1)}, {s(sT1)}, {WS_YT}""")
        self.waitc(C_Y, 4, vZ, vT)
        xchg_read(32)
        a("s_waitcnt lgkmcnt(0)")
        for k in range(0, 16, 2): a(f"v_pk_add_f32 {v(32+k,2)}, {v(32+k,2)}, {v(48+k,2)}")
        for e in range(4):
            a(f"v_cvt_pk_bf16_f32 v{48+2*e}, v{36+e}, v{44+e}")
            a(f"v_cvt_pk_bf16_f32 v{49+2*e}, v{32+e}, v{40+e}")
        for e in range(4):
            a(f"buffer_store_dwordx2 {v(48+2*e,2)}, v{self.pYS}, {s(rWS,4)}, {s(sT1)} offen offset:{256*e} sc1")
        a(f"""s_lshl_b32 {s(sT1)}, {s(sG)}, 6
        s_lshl_b32 {s(sT2)}, {s(sR)}, 2
        s_add_u32 {s(sT1)}, {s(sT1)}, {s(sT2)}
        s_add_u32 {s(sT1)}, {s(sT1)}, {s(sW4)}
        s_lshl_b32 {s(sT1)}, {s(sT1)}, 10
        s_add_u32 {s(sT1)}, {s(sT1)}, {WS_O}
        s_add_u32 {s(sT2)}, {s(sT1)}, 32768
        v_mov_b64 v[20:21], -1
        v_mov_b64 v[22:23], -1
        v_lshlrev_b32 v14, 4, v0
        buffer_store_dwordx4 v[20:23], v14, {s(rWS,4)}, {s(sT1)} offen sc1
        buffer_store_dwordx4 v[20:23], v14, {s(rWS,4)}, {s(sT2)} offen sc1""")
        self.s_publish(C_YT, WS_FLAG4)
        self.stamp(7)
        if self.opt("abl_s") == 7: self.arrive(C_YT, vZ, vONE); self.arrive(C_WO, vZ, vONE); a("s_branch L_end")
        self.stamp(8)
        if self.opt("abl_s") == 8: a("s_branch L_end")
        self.y_poll()
        if self.opt("yby", 2) == 2: self.y_guard(self.y_assemble, self.opt('pary', 0))
        else: self.arrive(C_Y4, vZ, vONE)
        if self.opt("abl_s") == 9: a("s_branch L_end")
        a(f"""s_lshl_b32 {s(sT3)}, {s(sG)}, 16
        s_lshl_b32 {s(sT2)}, {s(sW4)}, 13
        s_add_u32 {s(sT3)}, {s(sT3)}, {s(sT2)}
        s_add_u32 {s(sT3)}, {s(sT3)}, {WS_O}
        s_lshl_b32 {s(sT1)}, {s(sG)}, 17
        s_lshl_b32 {s(sT2)}, {s(sR)}, 7
        s_add_u32 {s(sT1)}, {s(sT1)}, {s(sT2)}
        s_lshl_b32 {s(sT2)}, {s(sW4)}, 14
        s_add_u32 {s(sT1)}, {s(sT1)}, {s(sT2)}
        v_mov_b32 v12, v{self.pOS}
        v_mov_b32 v10, v{self.pOW}
        v_mov_b32 v11, v{self.pOR}""")
        OF = 32; AC = 64
        def oxw():
            for q in range(4):
                a(f"ds_write_b128 v10, {v(AC+8*q,4)} offset:{9344*q}")
                a(f"ds_write_b128 v10, {v(AC+8*q+4,4)} offset:{9344*q+1152}")
        def oxr():
            for w in range(4):
                a(f"ds_read_b128 {v(32+8*w,4)}, v11 offset:{2304*w}")
                a(f"ds_read_b128 {v(36+8*w,4)}, v11 offset:{2304*w+1152}")
        def omm(h):
            for ct in range(2):
                w = WOF + 8 * h + 4 * ct
                a(f"v_mfma_f32_32x32x16_bf16 {v(AC+16*ct,16)}, {v(w,4)}, {v(OF+4*h,4)}, {'0' if h==0 else v(AC+16*ct,16)}")
        if self.opt("rpipe", 3):
            self.rounds_piped(OF, AC, omm, oxw)
            return
        a(f"""s_mov_b32 {s(sT5)}, 0
        v_mov_b32 v16, v1""")
        a.label("L_round")
        a(f"s_add_u32 {s(sT4)}, {s(sT3)}, 4096")
        if self.opt("rst"): self.stamp(3)
        self.waitc(C_OE, 4, 16, vT, slp=1)
        if self.opt("rst"): self.stamp(4)
        LP = self.opt("lightp", 1)
        if LP:
            if LP == 1: a(f"s_cmp_eq_u32 {s(sT5)}, 0\ns_cbranch_scc0 L_opoll")
            a(f"""v_lshlrev_b32 v18, 10, v0
            s_mov_b64 exec, 0xff""")
            a.label("L_lpoll")
            a(f"""buffer_load_dword v19, v18, {s(rWS,4)}, {s(sT3)} offen offset:1020 sc1
            s_waitcnt vmcnt(0)
            v_cmp_eq_u32 vcc, -1, v19
            s_and_b64 exec, exec, vcc
            s_cbranch_execz L_lok
            s_sleep {self.opt('lslp', 0)}
            s_sub_u32 {s(sBUD)}, {s(sBUD)}, 1
            s_cbranch_scc0 L_lpoll
            s_mov_b32 {s(sBUD)}, 0""")
            a.label("L_lok")
            a("s_mov_b64 exec, -1")
        a.label("L_opoll")
        if self.opt("rst"): self.stamp(5)
        for h in range(8): a(f"buffer_load_dwordx4 {v(OF+4*h,4)}, v14, {s(rWS,4)}, {s(sT3 if h<4 else sT4)} offen offset:{1024*(h&3)} sc1")
        for h in range(8):
            a(f"s_waitcnt vmcnt({7-h})")
            b = OF + 4 * h
            a(f"v_max_u32 v15, v{b}, v{b+1}" if h == 0 else f"v_max3_u32 v15, v15, v{b}, v{b+1}")
            if self.opt("ospec", 1): omm(h)
            a(f"v_max3_u32 v15, v15, v{b+2}, v{b+3}")
        a(f"""v_cmp_ne_u32 vcc, -1, v15
        s_cmp_eq_u64 vcc, exec
        s_cbranch_scc1 L_ook
        s_sub_u32 {s(sBUD)}, {s(sBUD)}, 1 ; nocount
        s_cbranch_scc0 L_opoll ; nocount
        s_mov_b32 {s(sBUD)}, 0 ; nocount""")
        a.label("L_ook")
        if self.dbg:
            a(f"s_cmp_eq_u32 {s(sT5)}, 0\ns_cbranch_scc0 L_st10")
            self.stamp(9)
            a.label("L_st10")
            self.stamp(10)
        if not self.opt("ospec", 1):
            for h in range(8): omm(h)
        oxw()
        a("s_waitcnt lgkmcnt(0)")
        self.sync4(C_O1, 16, vONE, vT, slp=0)
        if self.opt("rst"): self.stamp(6)
        oxr()
        a("s_waitcnt lgkmcnt(4)")
        for k in range(0, 8, 2): a(f"v_pk_add_f32 {v(32+k,2)}, {v(32+k,2)}, {v(40+k,2)}")
        a("s_waitcnt lgkmcnt(2)")
        for k in range(0, 8, 2): a(f"v_pk_add_f32 {v(32+k,2)}, {v(32+k,2)}, {v(48+k,2)}")
        a("s_waitcnt lgkmcnt(0)")
        for k in range(0, 8, 2): a(f"v_pk_add_f32 {v(32+k,2)}, {v(32+k,2)}, {v(56+k,2)}")
        for k in range(4): a(f"v_cvt_pk_bf16_f32 v{20+k}, v{32+2*k}, v{33+2*k}")
        a(f"""buffer_store_dwordx4 v[20:23], v12, {s(rC,4)}, {s(sT1)} offen {self.opt_sc('osc', 0)}
        s_cmp_eq_u32 {s(sT5)}, 0
        s_cbranch_scc0 L_end
        s_mov_b32 {s(sT5)}, 1
        s_add_u32 {s(sT3)}, {s(sT3)}, 32768
        s_add_u32 {s(sT1)}, {s(sT1)}, 65536
        v_add_u32 v16, 4, v16
        v_add_u32 v10, {OX2-OX1}, v10
        v_add_u32 v11, {OX2-OX1}, v11
        s_branch L_round""")

    def rounds_piped(self, OF, AC, omm, oxw):
        a = self.a; vL, vZ, vONE, vT = self.vL, self.vZ, self.vONE, self.vT
        def loads():
            for h in range(8): a(f"buffer_load_dwordx4 {v(OF+4*h,4)}, v14, {s(rWS,4)}, {s(sT3 if h<4 else sT4)} offen offset:{1024*(h&3)} sc1")
        def check_mm(Lok):
            for h in range(8):
                a(f"s_waitcnt vmcnt({7-h})")
                b = OF + 4 * h
                a(f"v_max_u32 v15, v{b}, v{b+1}" if h == 0 else f"v_max3_u32 v15, v15, v{b}, v{b+1}")
                omm(h)
                a(f"v_max3_u32 v15, v15, v{b+2}, v{b+3}")
            a(f"""v_cmp_ne_u32 vcc, -1, v15
            s_cmp_eq_u64 vcc, exec
            s_cbranch_scc1 {Lok}""")
        def reduce(dst):
            for w in range(4):
                a(f"ds_read_b128 {v(AC+8*w,4)}, v11 offset:{2304*w}")
                a(f"ds_read_b128 {v(AC+4+8*w,4)}, v11 offset:{2304*w+1152}")
            for w in range(1, 4):
                a(f"s_waitcnt lgkmcnt({6-2*w})")
                for k in range(0, 8, 2): a(f"v_pk_add_f32 {v(AC+k,2)}, {v(AC+k,2)}, {v(AC+8*w+k,2)}")
            for k in range(4): a(f"v_cvt_pk_bf16_f32 v{dst+k}, v{AC+2*k}, v{AC+2*k+1}")
        a(f"s_add_u32 {s(sT4)}, {s(sT3)}, 4096")
        self.waitc(C_OE, 4, vZ, vT, slp=1)
        a(f"""v_lshlrev_b32 v18, 10, v0
        s_mov_b64 exec, 0xff""")
        a.label("L_lpoll")
        a(f"""buffer_load_dword v19, v18, {s(rWS,4)}, {s(sT3)} offen offset:1020 sc1
        s_waitcnt vmcnt(0)
        v_cmp_eq_u32 vcc, -1, v19
        s_and_b64 exec, exec, vcc
        s_cbranch_execz L_lok
        s_sub_u32 {s(sBUD)}, {s(sBUD)}, 1
        s_cbranch_scc0 L_lpoll
        s_mov_b32 {s(sBUD)}, 0""")
        a.label("L_lok")
        a("s_mov_b64 exec, -1")
        a.label("L_o0")
        loads(); check_mm("L_o0ok")
        a(f"""s_sub_u32 {s(sBUD)}, {s(sBUD)}, 1 ; nocount
        s_cbranch_scc0 L_o0 ; nocount
        s_mov_b32 {s(sBUD)}, 0 ; nocount""")
        a.label("L_o0ok")
        self.stamp(9)
        a(f"s_add_u32 {s(sT3)}, {s(sT3)}, 32768\ns_add_u32 {s(sT4)}, {s(sT4)}, 32768")
        if self.opt("rpipe", 3) == 2: loads()
        oxw()
        a("s_waitcnt lgkmcnt(0)")
        self.sync4(C_O1, vZ, vONE, vT, slp=0)
        if self.opt("rpipe", 3) == 1: loads()
        if self.opt("rpipe", 3) == 3:
            a(f"""ds_read_b32 v3, v1 offset:{C_OL}
            s_waitcnt lgkmcnt(0)
            v_readfirstlane_b32 {s(sT5)}, v3
            s_cmp_ge_u32 {s(sT5)}, {self.opt('rthr', 4)}
            s_cbranch_scc0 L_nopf""")
            loads()
            a.label("L_nopf")
        reduce(20)
        if self.opt("rpipe", 3) == 3:
            a(f"s_cmp_ge_u32 {s(sT5)}, {self.opt('rthr', 4)}\ns_cbranch_scc1 L_pfd")
            self.waitc(C_OL, 4, vZ, vT, slp=0)
            loads()
            a.label("L_pfd")
        a(f"v_add_u32 v10, {OX2-OX1}, v10\nv_add_u32 v11, {OX2-OX1}, v11")
        if self.opt("rst"): self.stamp(3)
        a.label("L_o1")
        if self.opt("rst"): self.stamp(5)
        check_mm("L_o1ok")
        n0 = len(a.lines)
        self.waitc(C_OL, 4, vZ, vT, slp=0)
        loads()
        a(f"""s_sub_u32 {s(sBUD)}, {s(sBUD)}, 1
        s_cbranch_scc0 L_o1
        s_mov_b32 {s(sBUD)}, 0
        s_waitcnt vmcnt(0)""")
        for i in range(n0, len(a.lines)):
            l = a.lines[i]
            if not l.endswith(":") and "nocount" not in l and not l.startswith(("v_readfirst", "s_cmp")): a.lines[i] = l + " ; nocount"
        a.label("L_o1ok")
        self.stamp(10)
        a(f"""buffer_store_dwordx4 v[20:23], v12, {s(rC,4)}, {s(sT1)} offen {self.opt_sc('osc', 0)}
        s_add_u32 {s(sT1)}, {s(sT1)}, 65536
        s_nop 7""")
        oxw()
        a("s_waitcnt lgkmcnt(0)")
        self.sync4(C_O2, vZ, vONE, vT, slp=0)
        if self.opt("rst"): self.stamp(6)
        reduce(24)
        a(f"buffer_store_dwordx4 v[24:27], v12, {s(rC,4)}, {s(sT1)} offen {self.opt_sc('osc', 0)}\ns_branch L_end")

    UG = 64
    pE10, pE9, pE8, pE8p, pCA, pCB, pUC = 146, 147, 148, 149, 156, 157, 166
    pWT, pWD, pYS, pOW, pOR, pOS = 160, 161, 162, 163, 164, 165
    def s_precompute(self):
        a = self.a; sCH, sMH = sLOOP, sSOF
        a(f"""s_mul_i32 s46, {s(sCH)}, {KCH}
        s_add_u32 s46, s46, {R0+256}
        v_and_b32 v16, 7, v0
        v_lshrrev_b32 v17, 5, v0
        v_lshrrev_b32 v18, 3, v0
        v_and_b32 v19, 3, v18
        v_mul_u32_u24 v19, 144, v19
        v_lshl_add_u32 v19, v16, 4, v19
        v_add_u32 v19, s46, v19
        v_lshlrev_b32 v20, 3, v17
        v_sub_u32 v{self.pE10}, v19, v20
        v_mul_u32_u24 v20, 576, v17
        v_add_u32 v{self.pE9}, v19, v20
        v_mul_u32_u24 v19, 144, v18
        v_lshl_add_u32 v19, v16, 4, v19
        v_add_u32 v{self.pE8}, s46, v19
        v_cmp_eq_u32 {s(sT2,2)}, 0, v16
        v_mov_b32 v19, 16
        v_cndmask_b32 v19, v19, 32, {s(sT2,2)}
        v_sub_u32 v{self.pE8p}, v{self.pE8}, v19
        s_mul_i32 {s(sT2)}, {s(sMH)}, 1152
        s_sub_u32 {s(sT3)}, s46, {s(sT2)}
        v_and_b32 v19, 15, v0
        v_mul_u32_u24 v19, 144, v19
        v_bfe_u32 v21, v0, 4, 1
        v_mul_u32_u24 v22, {KCOPY}, v21
        v_add_u32 v19, v19, v22
        v_lshlrev_b32 v22, 4, v17
        v_sub_u32 v19, v19, v22
        v_add_u32 v{self.pCA}, {s(sT3)}, v19
        s_mul_i32 {s(sT2)}, {s(sCH)}, {UCH}
        s_lshl_b32 {s(sT3)}, {s(sMH)}, 10
        s_add_u32 {s(sT2)}, {s(sT2)}, {s(sT3)}
        s_add_u32 {s(sT2)}, {s(sT2)}, {W}
        v_and_b32 v19, 3, v0
        v_mul_u32_u24 v19, {UCOPY}, v19
        v_bfe_u32 v23, v0, 2, 3
        v_lshl_add_u32 v19, v23, 4, v19
        v_add_u32 v19, v19, v22
        v_add_u32 v{self.pCB}, {s(sT2)}, v19
        s_lshl_b32 {s(sT2)}, {s(sW4)}, 10
        s_add_u32 {s(sT2)}, {s(sT2)}, {W}
        v_lshl_add_u32 v{self.pUC}, v0, 4, {s(sT2)}
        v_and_b32 v19, 31, v0
        v_lshlrev_b32 v23, 3, v19
        v_lshl_add_u32 v{self.pYS}, v17, 10, v23
        v_and_b32 v23, 2, v18
        v_lshlrev_b32 v23, 1, v23
        v_xor_b32 v23, v16, v23
        v_lshlrev_b32 v24, 10, v18
        v_lshl_add_u32 v{self.pWD}, v23, 4, v24
        v_bfe_u32 v23, v0, 2, 2
        v_lshl_add_u32 v24, v17, 3, v23
        v_lshlrev_b32 v24, 7, v24
        v_and_b32 v23, 2, v23
        v_lshl_add_u32 v24, v23, 5, v24
        v_lshl_add_u32 v24, v21, 5, v24
        v_and_b32 v25, 1, v0
        v_lshl_add_u32 v24, v25, 4, v24
        v_bfe_u32 v23, v0, 1, 1
        v_lshl_add_u32 v24, v23, 3, v24
        s_lshl_b32 {s(sT2)}, {s(sW4)}, 13
        s_add_u32 {s(sT2)}, {s(sT2)}, {XE}
        v_add_u32 v{self.pWT}, {s(sT2)}, v24
        v_lshl_add_u32 v19, v19, 4, v20
        s_mul_i32 {s(sT2)}, {s(sW4)}, 2304
        s_add_u32 {s(sT2)}, {s(sT2)}, {W}
        v_add_u32 v{self.pOW}, {s(sT2)}, v19
        v_lshlrev_b32 v19, 4, v18
        v_mul_u32_u24 v23, 576, v25
        v_add_u32 v19, v19, v23
        v_bfe_u32 v23, v0, 1, 2
        v_mul_u32_u24 v23, 9344, v23
        v_add_u32 v19, v19, v23
        s_lshl_b32 {s(sT2)}, {s(sW4)}, 7
        s_add_u32 {s(sT2)}, {s(sT2)}, {W}
        v_add_u32 v{self.pOR}, {s(sT2)}, v19
        v_lshlrev_b32 v19, 11, v18
        v_lshl_add_u32 v{self.pOS}, v16, 4, v19""")
    def blk_ids(self, par):
        a = self.a
        a(f"""s_lshr_b32 {s(sT4)}, {s(sP)}, 5
        s_and_b32 {s(sT0)}, {s(sP)}, 31
        s_lshl_b32 {s(sT0)}, {s(sT0)}, 1
        s_and_b32 {s(sT2)}, {s(sW4)}, 1
        s_add_u32 {s(sT0)}, {s(sT0)}, {s(sT2)}""")
        if par:
            a(f"""s_lshr_b32 {s(sT2)}, {s(sW4)}, 1
            s_xor_b32 {s(sT4)}, {s(sT4)}, {s(sT2)}""")
    def swap44(self, b):
        for i in range(4):
            for j in range(i + 1, 4): self.a(f"v_swap_b32 v{b+4*i+j}, v{b+4*j+i}")
    def u_transpose(self):
        a = self.a; B = 96
        self.blk_ids(self.opt("paru", 1))
        a(f"""s_mov_b32 {s(rB)}, {s(pU)}
        s_mov_b32 {s(rB+1)}, {s(pU+1)}
        s_mov_b32 {s(rB+2)}, 2097152
        s_lshl_b32 {s(sT1)}, {s(sT0)}, 15
        s_lshl_b32 {s(sT2)}, {s(sT4)}, 7
        s_add_u32 {s(sT1)}, {s(sT1)}, {s(sT2)}
        v_and_b32 v29, 7, v0
        v_lshrrev_b32 v30, 3, v0
        v_lshlrev_b32 v28, 12, v30
        v_lshl_add_u32 v28, v29, 4, v28""")
        for i in range(4): a(f"buffer_load_dwordx4 {v(B+4*i,4)}, v28, {s(rB,4)}, {s(sT1)} offen offset:{1024*i}")
        a(f"""s_lshl_b32 s47, {s(sT4)}, 18
        s_lshl_b32 {s(sT2)}, {s(sT0)}, 7
        s_add_u32 s47, s47, {s(sT2)}
        s_add_u32 s47, s47, {WS_UT}
        v_lshlrev_b32 v28, 15, v29
        v_lshl_add_u32 v28, v30, 4, v28""")
    def u_transpose2(self):
        a = self.a; B = 96
        a("s_waitcnt vmcnt(0)")
        self.swap44(B)
        for j in range(4):
            if j: a("s_add_u32 s47, s47, 8192")
            a(f"buffer_store_dwordx4 {v(B+4*j,4)}, v28, {s(rWS,4)}, s47 offen sc1")
    def y_poll(self):
        a = self.a
        par = self.opt("pary", 0)
        a(f"""s_lshr_b32 {s(sT4)}, {s(sP)}, {5 + par}
        s_lshl_b32 {s(sT2)}, {s(sT4)}, {12 + par}
        s_add_u32 {s(sT2)}, {s(sT2)}, {WS_FLAG4}""")
        self.s_poll(sT2, 63 if par else 31, slp=8)
    def y_assemble(self):
        a = self.a
        self.srd(rC, pOUT, 4194304)
        self.blk_ids(self.opt("pary", 0))
        a(f"""s_lshl_b32 {s(sT1)}, {s(sT4)}, 18
        s_lshl_b32 {s(sT2)}, {s(sT0)}, 7
        s_add_u32 {s(sT1)}, {s(sT1)}, {s(sT2)}
        s_add_u32 {s(sT1)}, {s(sT1)}, {WS_YT}
        v_and_b32 v5, 7, v0
        v_lshrrev_b32 v6, 3, v0
        v_lshlrev_b32 v4, 15, v6
        v_lshl_add_u32 v4, v5, 4, v4""")
        for i in range(4):
            if i: a(f"s_add_u32 {s(sT1)}, {s(sT1)}, 8192")
            a(f"buffer_load_dwordx4 {v(32+4*i,4)}, v4, {s(rWS,4)}, {s(sT1)} offen sc1")
        a(f"""s_lshl_b32 {s(sT1)}, {s(sT0)}, 16
        s_lshl_b32 {s(sT2)}, {s(sT4)}, 7
        s_add_u32 {s(sT1)}, {s(sT1)}, {s(sT2)}
        s_add_u32 {s(sT1)}, {s(sT1)}, 1024
        s_add_u32 {s(sT2)}, {s(sT1)}, 4096
        v_lshlrev_b32 v4, 13, v5
        v_lshl_add_u32 v4, v6, 4, v4
        s_waitcnt vmcnt(0)""")
        self.swap44(32)
        for t in range(4):
            a(f"buffer_store_dwordx4 {v(32+4*t,4)}, v4, {s(rC,4)}, {s(sT1 if t < 2 else sT2)} offen offset:{2048*(t&1)} {self.opt_sc('ysc', 1)}")
        a("s_nop 1")
    def y_guard(self, f, par):
        L = self.a.newlabel("Ly")
        if par: self.a(f"s_bitcmp0_b32 {s(sP)}, 5\ns_cbranch_scc0 {L}")
        else: self.a(f"s_cmp_ge_u32 {s(sW4)}, 2\ns_cbranch_scc0 {L}")
        f()
        self.a.label(L)
    def opt_sc(self, k, d=0):
        return {0: "", 1: "sc1", 2: "nt", 3: "sc0 sc1"}[self.opt(k, d)]

    def finish(self):
        a = self.a
        a.label("L_end")
        if self.opt("diagm"):
            i = self.opt("diagi", 11)
            a("s_waitcnt vmcnt(0)")
            self.stamp(11)
            a(f"""s_waitcnt lgkmcnt(0)
            s_cmp_eq_u32 {s(sWG)}, {self.opt("diagwg", 100)}
            s_cbranch_scc0 L_exit
            s_cmp_eq_u32 {s(sWAVE)}, {4*[((self.opt('order', 0x201) >> (4*c)) & 3) for c in range(3)].index(self.opt('diagc', 2))}
            s_cbranch_scc0 L_exit
            s_sub_u32 {s(sT0)}, {s(sSTAMP+2*i)}, {s(sSTAMP)}
            s_mul_i32 {s(sT0)}, {s(sT0)}, {self.opt("diagm")}
            s_lshr_b32 {s(sT0)}, {s(sT0)}, {self.opt("diags", 0)}
            s_min_u32 {s(sT0)}, {s(sT0)}, 100000""")
            if self.opt("diagfix"): a(f"s_mov_b32 {s(sT0)}, {self.opt('diagfix')}")
            a.label("L_diag")
            a(f"""s_memrealtime {s(sT2,2)}
            s_waitcnt lgkmcnt(0)
            s_sub_u32 {s(sT1)}, {s(sT2)}, {s(sSTAMP)}
            s_cmp_lt_u32 {s(sT1)}, {s(sT0)}
            s_cbranch_scc1 L_diag""")
        elif self.dbg:
            a("s_waitcnt vmcnt(0)")
            self.stamp(11)
            a(f"""s_waitcnt lgkmcnt(0)
            s_mul_i32 {s(sT0)}, {s(sWG)}, 12
            s_add_u32 {s(sT0)}, {s(sT0)}, {s(sWAVE)}
            s_lshl_b32 {s(sT0)}, {s(sT0)}, 6
            s_add_u32 {s(sT0)}, {s(sT0)}, {WS_STAMP}
            v_mov_b32 v4, 0""")
            for i in range(12): a(f"v_mov_b32 v{8+i}, {s(sSTAMP+2*i)}")
            a(f"v_mov_b32 v20, {s(sBUD)}")
            a("s_mov_b64 exec, 1")
            for i in range(3): a(f"buffer_store_dwordx4 {v(8+4*i,4)}, v4, {s(rWS,4)}, {s(sT0)} offen offset:{16*i}")
            a(f"buffer_store_dword v20, v4, {s(rWS,4)}, {s(sT0)} offen offset:48")
        a.label("L_exit")
        a("s_endpgm")

if __name__ == "__main__":
    ap = argparse.ArgumentParser()
    ap.add_argument("-o", default=f"cdna_kernels/{NAME}.s")
    ap.add_argument("--dbg", action="store_true")
    ap.add_argument("opts", nargs="*")
    args = ap.parse_args()
    opts = {}
    for kv in args.opts:
        k, _, val = kv.partition("=")
        opts[k] = int(val, 0) if val else 1
    open(args.o, "w").write(Gen(args.dbg, opts).build())
```

```python
import sys, struct, argparse
from asmlib import Asm, v, s, hazard_pass, wait_check

NAME = "concat_heads__grouped_kv_mqa__ssm_conv_s4__prompt"
def fbits(x): return "0x%08x" % struct.unpack("<I", struct.pack("<f", x))[0]
import math
LOG2E = math.log2(math.e)

R0   = 0
XE   = 32768
W    = 65536
GEN  = 131072
QB   = 147456
KVR  = 155648
CNT  = 159744
LDS_BYTES = 160000
KCOPY = 6912; KCH = 2 * KCOPY
UCOPY = 4416; UCH = 4 * UCOPY
YX   = W + 37888
OX1  = W
OX2  = YX
PSLOT = 2304
C_KV, C_WQA, C_WQB, C_XL, C_QE, C_QL, C_FL, C_KT0, C_KT1, C_KU, C_Y, C_PE, C_PED, C_PL, C_O1, C_O2, C_OE, C_OL, C_UT, C_YT, C_WQC, C_WQD, C_Y4, C_WO, C_X = [4 * i for i in range(25)]

WS_FLAG = 4096
WS_FLAG2 = 4096 + 32768
WS_FLAG3 = 4096 + 2 * 32768
WS_FLAG4 = 4096 + 3 * 32768
WS_KV   = 147456
KVT     = 2816
V1OFF = 1792
WS_O    = 1 << 19
WS_UT = 6 << 20
WS_YT = 8 << 20
WS_STAMP = 4 << 20
WS_DBG  = 5 << 20
WS_SIZE = 16 << 20

sWG, sWAVE, sG, sR, sP, sW4 = 2, 3, 4, 5, 6, 7
sT0, sT1, sT2, sT3, sT4, sT5 = 8, 9, 10, 11, 12, 13
sCLS = 14; sROT = 15
pX, pWQ, pWK, pWV, pWO, pU, pARE, pAIM, pBRE, pBIM, pCRE, pCIM, pLDT, pDSK, pOUT, pDBG, pWS = [16 + 2 * i for i in range(17)]
sNONCE, sBUD = 50, 51
rA, rB, rC, rWS = 52, 56, 60, 64
sLOOP = 68; sSOF = 69
sSTAMP = 70
OOB = 0x7ff00000

def _qa_waits():
    order = [("w", 0), ("w", 1), ("w", 2)]; out = []
    for sx in range(8):
        i = order.index(("w", sx))
        out.append(2 * (len(order) - 1 - i))
        if sx + 3 < 8: order.append(("w", sx + 3))
        order.append(("x", sx + 8))
    return out
QW = _qa_waits()

class Gen:
    def __init__(self, dbg=False, opts=None):
        self.a = Asm(); self.dbg = dbg; self.o = opts or {}
    def opt(self, k, d=None): return self.o.get(k, d)

    def srd(self, r, p, nbytes):
        a = self.a
        a(f"s_mov_b32 {s(r)}, {s(p)}\ns_mov_b32 {s(r+1)}, {s(p+1)}\ns_mov_b32 {s(r+2)}, {nbytes}\ns_mov_b32 {s(r+3)}, 0x20000")
    def stamp(self, i):
        if self.dbg: self.a(f"{'s_memtime' if self.opt('cyc') else 's_memrealtime'} {s(sSTAMP+2*i,2)}")
    def arrive(self, c, vz, vone):
        self.a(f"s_mov_b64 exec, 1\nds_add_u32 {v(vz)}, {v(vone)} offset:{c}\ns_mov_b64 exec, -1")
    def arrive_rtn(self, c, vz, vone, vt):
        self.a(f"""s_mov_b64 exec, 1
        ds_add_rtn_u32 {v(vt)}, {v(vz)}, {v(vone)} offset:{c}
        s_mov_b64 exec, -1
        s_waitcnt lgkmcnt(0)
        v_readfirstlane_b32 {s(sT0)}, {v(vt)}
        s_cmp_eq_u32 {s(sT0)}, 3""")
    def sync4(self, c, vz, vone, vt, slp=0):
        D = self.a.newlabel("Ls")
        self.arrive_rtn(c, vz, vone, vt)
        self.a(f"s_cbranch_scc1 {D}")
        n0 = len(self.a.lines)
        self.waitc(c, 4, vz, vt, slp)
        for i in range(n0, len(self.a.lines)):
            l = self.a.lines[i]
            if not l.endswith(":") and "nocount" not in l and not l.startswith(("v_readfirst", "s_cmp")): self.a.lines[i] = l + " ; nocount"
        self.a.label(D)
    def waitc(self, c, n, vz, vt, slp=1):
        a = self.a; L = a.newlabel("Lw"); D = a.newlabel("Ld")
        a.label(L)
        a(f"""ds_read_b32 {v(vt)}, {v(vz)} offset:{c}
        s_waitcnt lgkmcnt(0)
        v_readfirstlane_b32 {s(sT0)}, {v(vt)}
        s_cmp_ge_u32 {s(sT0)}, {n}
        s_cbranch_scc1 {D}
        s_sleep {slp} ; nocount
        s_sub_u32 {s(sBUD)}, {s(sBUD)}, 1 ; nocount
        s_cbranch_scc0 {L} ; nocount
        s_mov_b32 {s(sBUD)}, 0 ; nocount""")
        a.label(D)
    def s_publish(self, cnt, base):
        a = self.a; L = a.newlabel("Lpub")
        a("s_waitcnt vmcnt(0)")
        self.arrive_rtn(cnt, self.vZ, self.vONE, self.vT)
        a(f"s_cbranch_scc0 {L}")
        a(f"""s_lshl_b32 {s(sT2)}, {s(sP)}, 7
        s_add_u32 {s(sT2)}, {s(sT2)}, {base}
        v_mov_b32 v18, 0
        s_mov_b64 exec, 1
        buffer_store_dword v167, v18, {s(rWS,4)}, {s(sT2)} offen sc1
        s_mov_b64 exec, -1""")
        a.label(L)
    def s_poll(self, sbase, mask, slp=4):
        a = self.a; Lp = a.newlabel("Lpoll"); Lo = a.newlabel("Lok")
        a(f"v_lshlrev_b32 v18, 7, v0\ns_mov_b64 exec, {hex((1 << (mask + 1)) - 1) if mask < 63 else -1}")
        a.label(Lp)
        a(f"""buffer_load_dword v19, v18, {s(rWS,4)}, {s(sbase)} offen sc1
        s_waitcnt vmcnt(0)
        v_cmp_ne_u32 vcc, v167, v19
        s_and_b64 exec, exec, vcc
        s_cbranch_execz {Lo}
        s_sleep {slp} ; nocount
        s_sub_u32 {s(sBUD)}, {s(sBUD)}, 1 ; nocount
        s_cbranch_scc0 {Lp} ; nocount
        s_mov_b32 {s(sBUD)}, 0 ; nocount""")
        a.label(Lo)
        a("s_mov_b64 exec, -1")
    def cmul(self, d, x, m, t):
        self.a(f"v_pk_mul_f32 {v(t,2)}, {v(x,2)}, {v(m,2)} op_sel_hi:[1,0]")
        self.a(f"v_pk_fma_f32 {v(d,2)}, {v(x,2)}, {v(m,2)}, {v(t,2)} op_sel:[1,1,0] op_sel_hi:[0,1,1] neg_lo:[0,1,0]")

    def build(self):
        a = self.a
        self.entry()
        self.role_late_start()
        self.role_early_start()
        self.qproj_and_attention()
        self.role_s()
        self.finish()
        lines, n = hazard_pass(a.lines, verbose=self.opt("vhz"))
        for r_ in wait_check(lines):
            if "s37" not in r_: print("WAIT:", r_, file=sys.stderr)
        body = "\n".join(l if l.endswith(":") or l.startswith(".") else "    " + l for l in lines)
        head = f"""; fused MQA attention + S4 long convolution, one persistent launch (generated by gen/gen.py)
; @launch grid=(256,1,1) block=(768,1,1) lds={LDS_BYTES}
.amdgcn_target "amdgcn-amd-amdhsa--gfx950"
.text
.globl {NAME}_kernel
.p2align 8
.type {NAME}_kernel,@function
{NAME}_kernel:
"""
        tail = f"""
.section .rodata,"a"
.p2align 6
.amdhsa_kernel {NAME}_kernel
  .amdhsa_next_free_vgpr 168
  .amdhsa_next_free_sgpr 98
  .amdhsa_accum_offset 168
  .amdhsa_group_segment_fixed_size 0
  .amdhsa_kernarg_size 136
  .amdhsa_user_sgpr_count 2
  .amdhsa_user_sgpr_kernarg_segment_ptr 1
  .amdhsa_system_sgpr_workgroup_id_x 1
  .amdhsa_float_denorm_mode_32 3
.end_amdhsa_kernel
"""
        return head + body + tail

    vL, vZ, vONE, vT = 0, 1, 2, 3

    def entry(self):
        a = self.a
        if self.dbg:
            for i in range(12): a(f"s_mov_b64 {s(sSTAMP+2*i,2)}, 0")
        self.stamp(0)
        a(f"""s_cmp_ge_u32 s2, 256
        s_cbranch_scc1 L_exit
        s_xor_b32 s2, s2, {self.opt('wgxor', 0)}
        s_load_dwordx16 s[16:31], s[0:1], 0
        s_load_dwordx16 s[32:47], s[0:1], 64
        s_load_dwordx2 s[48:49], s[0:1], 128
        v_lshrrev_b32 v3, 6, v0
        v_and_b32 v0, 63, v0
        v_readfirstlane_b32 {s(sWAVE)}, v3
        v_mov_b32 v1, {CNT}
        v_mov_b32 v2, 1
        s_and_b32 {s(sT0)}, s2, 7
        s_lshr_b32 {s(sT1)}, s2, 3
        s_lshl_b32 {s(sG)}, {s(sT0)}, 2
        s_lshr_b32 {s(sT2)}, {s(sT1)}, 3
        s_add_u32 {s(sG)}, {s(sG)}, {s(sT2)}
        s_and_b32 {s(sR)}, {s(sT1)}, 7
        s_xor_b32 {s(sR)}, {s(sR)}, {self.opt('rxor', 0)}
        s_lshl_b32 {s(sP)}, {s(sT0)}, 5
        s_add_u32 {s(sP)}, {s(sP)}, {s(sT1)}
        s_and_b32 {s(sROT)}, {s(sT1)}, 15
        s_mov_b32 {s(sBUD)}, 200000
        s_and_b32 {s(sW4)}, {s(sWAVE)}, 3
        s_lshr_b32 {s(sCLS)}, {s(sWAVE)}, 2
        s_lshl_b32 {s(sCLS)}, {s(sCLS)}, 2
        s_lshr_b32 {s(sCLS)}, {self.opt('order', 0x201)}, {s(sCLS)}
        s_and_b32 {s(sCLS)}, {s(sCLS)}, 3
        s_mov_b32 {s(rWS+2)}, {WS_SIZE}
        s_mov_b32 {s(rWS+3)}, 0x20000
        s_mov_b32 {s(rA+3)}, 0x20000
        s_mov_b32 {s(rB+3)}, 0x20000
        s_cmp_eq_u32 {s(sCLS)}, 2
        s_cbranch_scc1 L_role_s
        s_mov_b32 {s(rA+2)}, 2097152
        s_cmp_eq_u32 {s(sCLS)}, 0
        s_cbranch_scc1 L_role_early""")
    def ptrs_ready(self, x=True, nonce=False):
        a = self.a
        a(f"""s_waitcnt lgkmcnt(0)
        s_mov_b32 {s(rWS)}, {s(pWS)}
        s_mov_b32 {s(rWS+1)}, {s(pWS+1)}""")
        if x: a(f"""s_mov_b32 {s(rA)}, {s(pX)}
        s_mov_b32 {s(rA+1)}, {s(pX+1)}""")
        if nonce: a(f"s_load_dword {s(sNONCE)}, {s(pWS,2)}, 0")

    def role_late_start(self):
        a = self.a; vL, vZ, vONE, vT = self.vL, self.vZ, self.vONE, self.vT
        a("s_setprio 3")
        a(f"""s_and_b32 {s(sT0)}, {s(sR)}, 3
        s_lshl_b32 {s(sT1)}, {s(sG)}, 2
        s_add_u32 {s(sT1)}, {s(sT1)}, {s(sT0)}
        s_lshl_b32 {s(sT1)}, {s(sT1)}, 14
        s_lshl_b32 {s(sT2)}, {s(sW4)}, 8
        s_add_u32 {s(sT1)}, {s(sT1)}, {s(sT2)}
        v_and_b32 v4, 15, v0
        v_lshrrev_b32 v5, 4, v0
        v_lshlrev_b32 v6, 10, v4
        v_lshl_add_u32 v6, v5, 4, v6
        s_lshl_b32 {s(sT2)}, {s(sW4)}, 12
        v_lshrrev_b32 v7, 4, v0
        v_and_b32 v7, 1, v7
        v_lshlrev_b32 v7, 7, v7
        v_lshlrev_b32 v24, 4, v0
        v_xor_b32 v7, v7, v24
        s_add_u32 m0, {s(sT2)}, {R0}
        s_mov_b32 {s(rB+2)}, 16384""")
        self.ptrs_ready(nonce=True)
        for k in range(4):
            a(f"buffer_load_dwordx4 {v(8+4*k,4)}, v6, {s(rA,4)}, {s(sT1)} offen offset:{64*k}")
        a(f"""s_cmp_ge_u32 {s(sR)}, 4
        s_cselect_b32 {s(rB)}, {s(pWV)}, {s(pWK)}
        s_cselect_b32 {s(rB+1)}, {s(pWV+1)}, {s(pWK+1)}""")
        for k in range(4):
            a(f"buffer_load_dwordx4 v7, {s(rB,4)}, {s(sT2)} offen offset:{1024*k} lds")
        TOUCH = self.opt("touch", 0)
        if TOUCH == 1:
            a(f"""s_lshl_b32 {s(sT3)}, {s(sG)}, 3
            s_add_u32 {s(sT3)}, {s(sT3)}, {s(sR)}
            s_lshl_b32 {s(sT3)}, {s(sT3)}, {self.opt('fsh', 5)}
            v_mov_b32 v29, {WS_FLAG}
            s_mov_b64 exec, 1
            buffer_load_dword v30, v29, {s(rWS,4)}, {s(sT3)} offen sc1
            s_mov_b64 exec, -1""")
        if TOUCH == 2:
            a(f"""s_lshl_b32 {s(sT3)}, {s(sG)}, 3
            s_add_u32 {s(sT3)}, {s(sT3)}, {s(sR)}
            s_lshl_b32 {s(sT3)}, {s(sT3)}, {self.opt('fsh', 5)}
            s_add_u32 {s(sT3)}, {s(sT3)}, {WS_FLAG}
            s_bfe_u32 {s(sT4)}, {s(sR)}, 0x10001
            s_lshl_b32 {s(sT5)}, {s(sG)}, 1
            s_add_u32 {s(sT4)}, {s(sT4)}, {s(sT5)}
            s_mul_i32 {s(sT4)}, {s(sT4)}, {KVT}
            s_add_u32 {s(sT4)}, {s(sT4)}, {WS_KV}
            v_lshlrev_b32 v29, 7, v0
            v_add_u32 v29, {s(sT4)}, v29
            v_writelane_b32 v29, {s(sT3)}, 18
            s_mov_b64 exec, 0x7ffff
            buffer_load_dword v30, v29, {s(rWS,4)}, 0 offen sc1
            s_mov_b64 exec, -1""")
        a(f"""v_bfe_u32 v25, v0, 2, 2
        v_lshl_add_u32 v25, v5, 3, v25
        v_and_b32 v26, 1, v5
        v_lshl_add_u32 v25, v26, 2, v25
        v_lshlrev_b32 v25, 5, v25
        v_and_b32 v26, 3, v0
        v_lshl_add_u32 v25, v26, 3, v25
        v_add_u32 v25, {s(sT2)}, v25
        v_xor_b32 v26, 0x80, v25
        s_mov_b32 s41, 0""")
        if self.opt("lbar", 0) == 1: a("s_barrier")
        self.qproj()
        if self.opt("lbar", 0) == 2: a("s_barrier")
        if self.opt("lhoist", 1): self.att_addr(158, 159, 72, False)
        if self.opt("lbar", 0) == 0: a("s_barrier")
        a(f"""        s_waitcnt vmcnt({1 if TOUCH else 0}) lgkmcnt(0)""")
        self.stamp(1)
        for k in range(4):
            a(f"ds_read_b64_tr_b16 {v(32+4*k,2)}, v25 offset:{R0+1024*k}")
            a(f"ds_read_b64_tr_b16 {v(34+4*k,2)}, v26 offset:{R0+1024*k}")
        a(f"""s_cmp_ge_u32 {s(sR)}, 4
        s_cbranch_scc1 L_kv_v""")
        for k in range(4):
            a(f"s_waitcnt lgkmcnt({6-2*k})")
            a(f"v_mfma_f32_16x16x32_bf16 v[48:51], {v(32+4*k,4)}, {v(8+4*k,4)}, {'0' if k==0 else 'v[48:51]'}")
        a("s_branch L_kv_j")
        a.label("L_kv_v")
        for k in range(4):
            a(f"s_waitcnt lgkmcnt({6-2*k})")
            a(f"v_mfma_f32_16x16x32_bf16 v[48:51], {v(8+4*k,4)}, {v(32+4*k,4)}, {'0' if k==0 else 'v[48:51]'}")
        a.label("L_kv_j")
        a(f"""s_lshl_b32 {s(sT2)}, {s(sW4)}, 10
        s_add_u32 {s(sT2)}, {s(sT2)}, {KVR}
        v_add_u32 v27, {s(sT2)}, v24
        s_add_u32 {s(sT3)}, {s(sNONCE)}, 0x9e3779b9
        v_mov_b32 v28, {s(sT3)}
        ds_write_b32 v1, v28 offset:128
        s_nop 3
        ds_write_b128 v27, v[48:51]
        s_waitcnt lgkmcnt(0)""")
        self.arrive_rtn(C_KV, vZ, vONE, vT)
        self.stamp(7)
        a("s_cbranch_scc0 L_kv_done")
        a(f"""v_add_u32 v27, {KVR}, v24
        ds_read_b128 v[48:51], v27
        ds_read_b128 v[52:55], v27 offset:1024
        ds_read_b128 v[56:59], v27 offset:2048
        ds_read_b128 v[60:63], v27 offset:3072
        s_cmp_ge_u32 {s(sR)}, 4
        s_cselect_b32 {s(sT2)}, 1.0, {fbits(0.25*LOG2E)}
        s_cselect_b32 {s(sT3)}, 1024, 0
        s_cselect_b32 {s(sT4)}, 6, 4
        s_lshl_b32 {s(sT4)}, {s(sT4)}, 7
        s_bitcmp1_b32 {s(sR)}, 0
        s_cselect_b32 {s(sT4)}, {s(sT4)}, 0
        s_add_u32 {s(sT3)}, {s(sT3)}, {s(sT4)}
        s_bfe_u32 {s(sT4)}, {s(sR)}, 0x10001
        s_lshl_b32 {s(sT5)}, {s(sG)}, 1
        s_add_u32 {s(sT4)}, {s(sT4)}, {s(sT5)}
        s_mul_i32 {s(sT4)}, {s(sT4)}, {KVT}
        s_add_u32 {s(sT3)}, {s(sT3)}, {s(sT4)}
        s_add_u32 {s(sT3)}, {s(sT3)}, {WS_KV}
        v_lshlrev_b32 v6, 5, v4
        v_lshl_add_u32 v6, v5, 3, v6
        s_waitcnt lgkmcnt(0)""")
        for i in range(4): a(f"v_add_f32 v{48+i}, v{48+i}, v{52+i}")
        for i in range(4): a(f"v_add_f32 v{56+i}, v{56+i}, v{60+i}")
        for i in range(4): a(f"v_add_f32 v{48+i}, v{48+i}, v{56+i}")
        for i in range(4): a(f"v_mul_f32 v{48+i}, {s(sT2)}, v{48+i}")
        a(f"""v_cvt_pk_bf16_f32 v52, v48, v49
        v_cvt_pk_bf16_f32 v53, v50, v51
        buffer_store_dwordx2 v[52:53], v6, {s(rWS,4)}, {s(sT3)} offen sc1""")
        if self.opt("ib", 1):
            a(f"""v_add_u32 v56, v52, v53
            v_add_u32 v57, v52, v53
            s_add_u32 {s(sT5)}, {s(sNONCE)}, 0x9e3779b9
            s_and_b32 {s(sT2)}, {s(sR)}, 1
            s_mul_i32 {s(sT2)}, {s(sT2)}, 384
            s_sub_u32 {s(sT2)}, 2560, {s(sT2)}
            v_permlane16_swap_b32 v56, v57
            s_cmp_ge_u32 {s(sR)}, 4
            s_cselect_b32 {s(sT2)}, 640, {s(sT2)}
            s_add_u32 {s(sT2)}, {s(sT2)}, {s(sT3)}
            v_add_u32 v56, v56, v57
            v_sub_u32 v56, {s(sT5)}, v56
            v_lshrrev_b32 v57, 5, v0
            v_lshlrev_b32 v57, 2, v57
            v_lshl_add_u32 v57, v4, 3, v57
            s_mov_b32 exec_lo, 0xffff
            s_mov_b32 exec_hi, 0xffff
            buffer_store_dword v56, v57, {s(rWS,4)}, {s(sT2)} offen sc1
            s_mov_b64 exec, -1""")
        a(f"""s_cmp_ge_u32 {s(sR)}, 4
        s_cbranch_scc0 L_kv_noones
        v_mov_b32 v54, 0x3f803f80
        v_mov_b32 v55, 0x3f803f80""")
        if self.opt("ib", 1):
            a(f"""s_sub_u32 {s(sT5)}, {s(sT5)}, {(4 * 0x3f803f80) & 0xffffffff}
            v_writelane_b32 v54, {s(sT5)}, 4
            v_writelane_b32 v55, {s(sT5)}, 4""")
        a(f"""v_lshlrev_b32 v7, 3, v0
        s_mov_b64 exec, 0xffff
        buffer_store_dwordx2 v[54:55], v7, {s(rWS,4)}, {s(sT3)} offen offset:512 sc1
        s_mov_b64 exec, -1""")
        a.label("L_kv_noones")
        self.stamp(8)
        if self.opt("wq1", 8) < 16: self.arrive(C_WQD, vZ, vONE)
        a("s_mov_b32 s41, 1")
        if self.opt("flagat", 0) == 0: self.kv_flag()
        a.label("L_kv_done")
        self.stamp(2)
        self.qproj_run()
        a("s_branch L_att_setup")
    def kv_flag(self):
        a = self.a; L = a.newlabel("Lkf")
        a(f"""s_cmp_eq_u32 s41, 1
        s_cbranch_scc0 {L}
        s_lshl_b32 {s(sT2)}, {s(sG)}, 3
        s_add_u32 {s(sT2)}, {s(sT2)}, {s(sR)}
        s_lshl_b32 {s(sT2)}, {s(sT2)}, {self.opt('fsh', 5)}
        s_add_u32 {s(sT2)}, {s(sT2)}, {WS_FLAG}
        s_add_u32 {s(sT3)}, {s(sNONCE)}, 0x9e3779b9
        v_mov_b32 v74, {s(sT3)}
        v_mov_b32 v75, 0
        s_waitcnt vmcnt(0)
        s_mov_b64 exec, 1
        buffer_store_dword v74, v75, {s(rWS,4)}, {s(sT2)} offen sc1
        s_mov_b64 exec, -1""")
        if self.opt("wq1", 8) < 16 and self.opt("wqn", 1) == 2: self.arrive(C_WQD, self.vZ, self.vONE)
        a.label(L)

    def l2_prefetch(self, srd, mode, vt, vd, st):
        a = self.a
        a(f"s_and_b32 {s(st)}, {s(sP)}, 31")
        if mode == 1:
            a(f"""s_lshl_b32 {s(st)}, {s(st)}, 2
            s_add_u32 {s(st)}, {s(st)}, {s(sW4)}
            s_lshl_b32 {s(st)}, {s(st)}, 12
            v_lshlrev_b32 v{vt}, 10, v0
            s_mov_b64 exec, 0xf
            buffer_load_dword v{vd}, v{vt}, {s(srd,4)}, {s(st)} offen offset:384
            s_mov_b64 exec, -1""")
        else:
            a(f"""s_lshl_b32 {s(st)}, {s(st)}, 2
            s_add_u32 {s(st)}, {s(st)}, {s(sW4)}
            s_lshl_b32 {s(st)}, {s(st)}, 12
            v_lshlrev_b32 v{vt}, 7, v0
            s_mov_b64 exec, 0xffffffff
            buffer_load_dword v{vd}, v{vt}, {s(srd,4)}, {s(st)} offen
            s_mov_b64 exec, -1""")
    def s_prefetch(self, p, soff, n, stride):
        a = self.a
        a(f"s_add_u32 s96, {s(p)}, {s(soff)}\ns_addc_u32 s97, {s(p+1)}, 0")
        for i in range(n): a(f"s_load_dword s{94 + (i & 1)}, s[96:97], {i*stride}")
    def x_dma(self, lds, row0):
        a = self.a
        a(f"""s_lshl_b32 {s(sT1)}, {s(sG)}, 16
        s_lshl_b32 {s(sT2)}, {s(sW4)}, 13
        s_add_u32 {s(sT1)}, {s(sT1)}, {s(sT2)}
        s_add_u32 {s(sT1)}, {s(sT1)}, {row0*1024}
        s_add_u32 m0, {s(sT2)}, {lds}
        s_and_b32 {s(sT3)}, {s(sW4)}, 1
        s_lshl_b32 {s(sT3)}, {s(sT3)}, 7
        v_lshlrev_b32 v12, 4, v0
        v_xor_b32 v12, {s(sT3)}, v12""")
        for i in range(8):
            if i == 4:
                a(f"s_add_u32 {s(sT1)}, {s(sT1)}, 4096\ns_add_u32 m0, m0, 4096")
            if i == 0:
                a(f"buffer_load_dwordx4 v12, {s(rA,4)}, {s(sT1)} offen lds")
            else:
                a(f"v_xor_b32 v{13+(i&1)}, {16*i}, v12")
                a(f"buffer_load_dwordx4 v{13+(i&1)}, {s(rA,4)}, {s(sT1)} offen offset:{1024*(i&3)} lds")

    def role_early_start(self):
        a = self.a; vL, vZ, vONE, vT = self.vL, self.vZ, self.vONE, self.vT
        a.label("L_role_early")
        a(f"""s_setprio 3
        v_lshl_add_u32 v4, v0, 2, v1
        v_mov_b32 v5, 0
        ds_write_b32 v4, v5""")
        self.ptrs_ready()
        if self.opt("ipf", 1):
            a(f"""s_getpc_b64 {s(sT2,2)}""")
            a.label("L_pc")
            a(f"""s_and_b32 {s(sT0)}, {s(sP)}, 31
            s_lshl_b32 {s(sT0)}, {s(sT0)}, 2
            s_add_u32 {s(sT0)}, {s(sT0)}, {s(sW4)}
            s_lshl_b32 {s(sT0)}, {s(sT0)}, 7
            s_min_u32 {s(sT0)}, {s(sT0)}, L_exit-L_pc-128
            s_and_b32 {s(sT0)}, {s(sT0)}, -4
            s_add_u32 {s(sT2)}, {s(sT2)}, {s(sT0)}
            s_addc_u32 {s(sT3)}, {s(sT3)}, 0
            s_load_dword s94, {s(sT2,2)}, 0
            s_load_dword s95, {s(sT2,2)}, 64""")
        if not self.opt("barx", 1): a("s_barrier")
        a(f"""s_mov_b32 {s(rB)}, {s(pWQ)}
        s_mov_b32 {s(rB+1)}, {s(pWQ+1)}
        s_mov_b32 {s(rB+2)}, 524288""")
        if self.opt("esetup", 1): self.att_setup()
        if self.opt("wqpf", 3) in (1, 2): self.l2_prefetch(rB, self.opt("wqpf", 3), 10, 11, sT4)
        self.x_dma(XE, 0)
        if self.opt("wqpf", 3) in (3, 4): self.l2_prefetch(rB, self.opt("wqpf", 3) - 2, 10, 11, sT4)
        a(f"""v_lshrrev_b32 v15, 3, v0
        v_and_b32 v16, 7, v0
        v_and_b32 v17, 2, v15
        v_xor_b32 v16, v16, v17
        s_and_b32 {s(sT3)}, {s(sW4)}, 1
        s_lshl_b32 {s(sT3)}, {s(sT3)}, 2
        v_xor_b32 v16, {s(sT3)}, v16
        v_lshlrev_b32 v15, 10, v15
        v_lshl_add_u32 v15, v16, 4, v15
        s_lshl_b32 {s(sT1)}, {s(sW4)}, 13
        s_lshl_b32 {s(sT2)}, {s(sR)}, 7
        s_add_u32 {s(sT1)}, {s(sT1)}, {s(sT2)}
        s_lshl_b32 {s(sT2)}, {s(sW4)}, 10
        s_add_u32 m0, {s(sT2)}, {W}""")
        self.stamp(7)
        if self.opt("barx", 1): a("s_barrier")
        if self.opt("xwait", 0): a("s_waitcnt vmcnt(0)")
        self.stamp(8)
        for i in range(16):
            if i == min(self.opt("wq1", 8), 8):
                a(f"s_waitcnt vmcnt({i + (1 if self.opt('wqpf', 3) in (3, 4) else 0)})")
                self.arrive(C_X, vZ, vONE)
            if i == self.opt("wq1", 8): self.waitc(C_WQD, self.opt("wqn", 1), vZ, vT, slp=1)
            if i == 8 + self.opt("wqa", 8):
                a(f"s_waitcnt vmcnt({i - 8})")
                self.arrive(C_WQA, vZ, vONE)
            a(f"buffer_load_dwordx4 v15, {s(rB,4)}, {s(sT1)} offen lds")
            if i < 15: a(f"s_add_u32 m0, m0, 4096\ns_add_u32 {s(sT1)}, {s(sT1)}, 32768")
        self.stamp(1)
        self.waitc(C_KV, 4, vZ, vT, slp=1)
        a("ds_read_b32 v103, v1 offset:128")
        if not self.opt("esetup", 1): self.att_setup()
        a(f"""s_waitcnt lgkmcnt(0)
        v_readfirstlane_b32 {s(sNONCE)}, v103""")
        if self.opt("wqa", 8) >= 8:
            a("s_waitcnt vmcnt(8)")
            self.arrive(C_WQA, vZ, vONE)
        IB = self.opt("ib", 1)
        if IB and self.opt("ibat", 1) == 0:
            self.val_loads(); a("s_waitcnt vmcnt(12)")
        else:
            a("s_waitcnt vmcnt(0)")
        self.arrive(C_WQB, vZ, vONE)
        self.stamp(10)
        if IB:
            if self.opt("ibat", 1) == 0: a("s_branch L_val_chk")
            a.label("L_val")
            self.val_loads()
            a.label("L_val_chk")
            KA = self.KA
            for f in range(6):
                b = KA + 4 * f; acc = 93 if f % 3 == 0 else 94
                a(f"""s_waitcnt vmcnt({10 - 2*f})
                v_add3_u32 v95, v{b}, v{b+1}, v{b+2}
                v_add3_u32 v95, v95, v{b+3}, v{97+f}""")
                if f < 2: a(f"v_xor_b32 v{acc}, v103, v95")
                else: a(f"v_bitop3_b32 v{acc}, v{acc}, v95, v103 bitop3:0xf6")
            a(f"""v_cmp_ne_u32 {s(sT2,2)}, 0, v94
            v_cmp_ne_u32 vcc, 0, v93
            s_and_b32 {s(sT2)}, {s(sT2)}, 0x11ffff
            s_and_b32 {s(sT3)}, {s(sT3)}, 0x11ffff
            s_or_b64 vcc, vcc, {s(sT2,2)}
            s_cbranch_scc0 L_val_ok
            s_sub_u32 {s(sBUD)}, {s(sBUD)}, 1
            s_cbranch_scc0 L_val
            s_mov_b32 {s(sBUD)}, 0""")
            a.label("L_val_ok")
            self.stamp(4)
            if not self.opt("lpoll", 0):
                if self.opt("pwait", 0): self.waitc(C_QE, self.opt("pwait", 0), vZ, vT, slp=self.opt('qslp', 0))
                a(f"""s_lshl_b32 s40, {s(sW4)}, {6 + self.opt('fsh', 5)}
                s_add_u32 s40, s40, {WS_FLAG}
                v_lshlrev_b32 v144, {self.opt('fsh', 5)}, v0
                buffer_load_dword v145, v144, {s(rWS,4)}, s40 offen sc1""")
            a("s_branch L_att_go")
        else:
            a(f"s_mov_b32 {s(sT3)}, {s(sNONCE)}")
            self.stamp(2); self.flag_poll()
            self.stamp(4)
            self.prologue_loads()
            self.arrive(C_FL, vZ, vONE)
            a("s_branch L_att_go")

    Q0, O0, S0, KA = 8, 24, 88, 120
    vKO, vVO, vIDX = 4, 5, 6
    def qproj(self):
        a = self.a; vL, vZ, vONE, vT = self.vL, self.vZ, self.vONE, self.vT
        WF = 76; XA = 152; AC = 140
        a(f"""v_xor_b32 v6, v4, v5
        v_lshlrev_b32 v6, 4, v6
        v_lshl_add_u32 v6, v4, 10, v6
        v_add_u32 v{XA}, {XE}, v6
        v_xor_b32 v{XA+1}, 64, v{XA}
        v_xor_b32 v{XA+2}, 0x80, v{XA}
        v_xor_b32 v{XA+3}, 0xc0, v{XA}
        v_bfe_u32 v6, v0, 2, 2
        v_lshl_add_u32 v7, v5, 3, v6
        v_lshlrev_b32 v7, 7, v7
        v_and_b32 v6, 2, v6
        v_and_b32 v72, 1, v5
        v_lshl_add_u32 v6, v72, 2, v6
        s_lshl_b32 {s(sT1)}, {s(sW4)}, 1
        v_xor_b32 v6, {s(sT1)}, v6
        v_lshl_add_u32 v7, v6, 4, v7
        v_and_b32 v6, 3, v0
        v_lshl_add_u32 v7, v6, 3, v7
        v_add_u32 v{XA+4}, {W}, v7
        v_lshrrev_b32 v6, 1, v5
        v_lshlrev_b32 v6, 9, v6
        v_lshl_add_u32 v6, v4, 4, v6
        v_lshl_add_u32 v6, v72, 3, v6
        s_lshl_b32 {s(sT1)}, {s(sW4)}, 10
        s_add_u32 {s(sT1)}, {s(sT1)}, {QB}
        v_add_u32 v{XA+5}, {s(sT1)}, v6""")
    def qproj_run(self):
        a = self.a; vL, vZ, vONE, vT = self.vL, self.vZ, self.vONE, self.vT
        WF = 76; XA = 152; AC = 140
        def rdw(sx):
            a(f"ds_read_b64_tr_b16 {v(WF+4*sx,2)}, v{XA+4} offset:{4096*sx}")
            a(f"ds_read_b64_tr_b16 {v(WF+4*sx+2,2)}, v{XA+4} offset:{4096*sx+512}")
        def rdx(sx):
            b = 8 + 8 * (sx % 8)
            a(f"ds_read_b128 {v(b,4)}, v{XA+(sx&3)} offset:{256*(sx>>2)}")
            a(f"ds_read_b128 {v(b+4,4)}, v{XA+(sx&3)} offset:{256*(sx>>2)+16384}")
        def mm(sx):
            b = 8 + 8 * (sx % 8)
            a(f"v_mfma_f32_16x16x32_bf16 {v(AC,4)}, {v(WF+4*sx,4)}, {v(b,4)}, {'0' if sx==0 else v(AC,4)}")
            a(f"v_mfma_f32_16x16x32_bf16 {v(AC+4,4)}, {v(WF+4*sx,4)}, {v(b+4,4)}, {'0' if sx==0 else v(AC+4,4)}")
        def qout(off):
            for k in range(4): a(f"v_cvt_pk_bf16_f32 v{AC+8+k}, v{AC+2*k}, v{AC+2*k+1}")
            a(f"""ds_write_b64 v{XA+5}, {v(AC+8,2)} offset:{off}
            ds_write_b64 v{XA+5}, {v(AC+10,2)} offset:{off+256}
            s_waitcnt lgkmcnt(0)""")
        self.waitc(C_X, 4, vZ, vT, slp=self.opt('lslp2', 0))
        for k in range(8): rdx(k)
        self.waitc(C_WQA, 4, vZ, vT, slp=self.opt('lslp2', 0))
        if self.opt("qst"): self.stamp(7)
        for k in range(3): rdw(k)
        for sx in range(8):
            n = sum(2 for k in (sx + 1, sx + 2) if k < 8) + sum(2 for k in (sx - 3, sx - 2, sx - 1) if k >= 0 and k >= sx - 3 + 0 and (k > sx - 3 or False))
            a(f"s_waitcnt lgkmcnt({QW[sx]})")
            mm(sx)
            if sx + 3 < 8: rdw(sx + 3)
            rdx(sx + 8)
        if self.opt("qst"): self.stamp(8)
        if self.opt("flagat", 0) == 1: self.kv_flag()
        self.waitc(C_WQB, 4, vZ, vT, slp=self.opt('lslp2', 0))
        self.stamp(10)
        for k in range(8, 14): rdw(k)
        for sx in range(8, 16):
            a(f"s_waitcnt lgkmcnt({2 * (min(sx + 5, 15) - sx)})")
            mm(sx)
            if sx + 6 < 16: rdw(sx + 6)
        if self.opt("qst"): self.stamp(1)
        qout(0)
        self.sync4(C_QE, vZ, vONE, vT, slp=1)
        self.stamp(3)
        if self.opt("ib", 1) and self.opt("lpoll", 0):
            a(f"s_add_u32 {s(sT3)}, {s(sNONCE)}, 0x9e3779b9")
            self.flag_poll(vA=72, vD=73)
            self.arrive(C_FL, vZ, vONE)
        if self.opt("xlwait", 0): self.waitc(C_FL, 4, vZ, vT, slp=2)
        self.x_dma(XE, 32)
        a("s_waitcnt vmcnt(0)")
        self.sync4(C_XL, vZ, vONE, vT, slp=1)
        for k in range(6): rdx(k)
        for sx in range(16):
            a(f"s_waitcnt lgkmcnt({2 * (min(sx + 5, 15) - sx)})")
            mm(sx)
            if sx + 6 < 16: rdx(sx + 6)
        qout(4096)
        self.arrive(C_QL, vZ, vONE)

    def att_setup(self):
        self.att_addr(4, 5, 7, True); self.att_zero()
    def att_addr(self, dK, dV, t, sums):
        a = self.a
        a(f"""s_mul_i32 {s(sT2)}, {s(sW4)}, {16*KVT}
        s_add_u32 {s(sT2)}, {s(sT2)}, {WS_KV}
        v_and_b32 v{t}, 31, v0
        v_lshrrev_b32 v{t+1}, 5, v0
        v_lshlrev_b32 v{dK}, 5, v{t}
        v_lshl_add_u32 v{dK}, v{t+1}, 4, v{dK}
        v_and_b32 v{t+2}, 3, v{t}
        v_bfe_u32 v{t+3}, v{t}, 2, 1
        v_lshl_add_u32 v{t+2}, v{t+3}, 3, v{t+2}
        v_bfe_u32 v{t+3}, v{t}, 3, 1
        v_lshl_add_u32 v{t+2}, v{t+3}, 2, v{t+2}
        v_lshlrev_b32 v{t+2}, 5, v{t+2}
        s_mov_b32 {s(sT4)}, 0xffff
        s_mov_b32 {s(sT5)}, 0xffff
        v_mov_b32 v{t+3}, {OOB}
        v_cndmask_b32 v{t+2}, v{t+3}, v{t+2}, {s(sT4,2)}
        s_mov_b32 {s(sT4)}, 0x110000
        s_mov_b32 {s(sT5)}, 0x110000
        v_mov_b32 v{t+3}, 512
        v_cndmask_b32 v{t+2}, v{t+2}, v{t+3}, {s(sT4,2)}
        v_lshl_add_u32 v{dV}, v{t+1}, 4, v{t+2}""")
        if sums and self.opt("ib", 1):
            a(f"""v_lshrrev_b32 v96, 2, v{dK}
            v_add_u32 v96, {s(sT2)}, v96
            v_lshrrev_b32 v104, 2, v{dV}
            v_add_u32 v{t+2}, 640, v104
            v_add_u32 v104, 416, v104
            s_mov_b32 {s(sT4)}, 0xffff
            s_mov_b32 {s(sT5)}, 0xffff
            v_cndmask_b32 v104, v104, v{t+2}, {s(sT4,2)}
            v_add_u32 v104, {s(sT2)}, v104""")
        a(f"""v_add_u32 v{dK}, {s(sT2)}, v{dK}
        v_add_u32 v{dV}, {s(sT2)}, v{dV}""")
        self.tail_setup()
        if self.opt("chunk", 1):
            a(f"""s_cmp_eq_u32 {s(sCLS)}, 0
            s_cselect_b32 s35, {self.opt('ce', 4) + 1}, {self.opt('cl', 6) + 1}
            s_lshl_b32 s35, 1, s35""")
        a(f"""s_lshl_b32 {s(sT2)}, {s(sCLS)}, 12
        s_add_u32 {s(sT2)}, {s(sT2)}, {QB}
        v_lshl_add_u32 v{t}, v0, 4, {s(sT2)}""")
        for i in range(4):
            a(f"""s_add_u32 {s(sT3)}, {s(sW4)}, {i}
            s_and_b32 {s(sT3)}, {s(sT3)}, 3
            s_lshl_b32 {s(sT3)}, {s(sT3)}, 10
            v_add_u32 v{160+i}, {s(sT3)}, v{t}""")
        for b in range(self.opt("nbuf", 4)):
            if b: a(f"s_add_u32 {s(sROT)}, {s(sROT)}, 1\ns_and_b32 {s(sROT)}, {s(sROT)}, 15")
            a(f"s_mul_i32 s{36+b}, {s(sROT)}, {KVT}")
        a(f"s_mov_b32 {s(sSOF)}, {OOB}")
    def att_zero(self):
        a = self.a
        Q0, O0, S0, KA = self.Q0, self.O0, self.S0, self.KA
        a(f"""s_lshl_b32 {s(sT2)}, {s(sCLS)}, 2
        v_add_u32 v92, {s(sT2)}, v1
        v_mov_b32 v6, 0xdddddddd
        v_mov_b32 v7, {s(self.tail_regs()['cw'])}""")
        for h in range(4):
            for i in range(0, 16 if self.opt("zfull", 1) else 10, 2): a(f"v_mov_b64 {v(O0+16*h+i,2)}, 0")
        for i in range(0, 8, 2): a(f"v_mov_b64 {v(S0+24+i,2)}, 0")
        for i in range(0, 4, 2): a(f"v_mov_b64 {v(KA+44+i,2)}, 0")
    def ld(self, kind, b, so):
        SC = {0: "sc1", 1: "", 2: "sc0", 3: "nt", 4: "sc0 sc1"}[self.opt("kvsc", 0)]
        off = [0, 1024, V1OFF][kind]
        self.a(f"buffer_load_dwordx4 {v(b+4*kind,4)}, v{self.vKO if kind == 0 else self.vVO}, {s(rWS,4)}, {s(so)} offen offset:{off} {SC}")
    def val_loads(self):
        for t in range(2):
            for kind in range(3):
                self.ld(kind, self.KA + 12 * t, 36 + t)
                self.a(f"buffer_load_dword v{97+3*t+kind}, v{96 if kind == 0 else 104}, {s(rWS,4)}, s{36+t} offen offset:{[2560, 1024, V1OFF][kind]} sc1")
    def prologue_loads(self):
        NB = self.opt("nbuf", 4)
        n = 2 if self.opt("ib", 1) else NB
        for b in range(n):
            for kind in range(3):
                if kind < 2 or b < NB - 1: self.ld(kind, self.KA + 12 * b, 36 + b)
    def flag_poll(self, vA=93, vD=94):
        a = self.a; Lp = a.newlabel("Lfp"); Lo = a.newlabel("Lfo")
        a(f"""s_lshl_b32 {s(sT1)}, {s(sW4)}, {6 + self.opt('fsh', 5)}
        s_add_u32 {s(sT1)}, {s(sT1)}, {WS_FLAG}
        v_lshlrev_b32 v{vA}, {self.opt('fsh', 5)}, v0""")
        a.label(Lp)
        a(f"""buffer_load_dword v{vD}, v{vA}, {s(rWS,4)}, {s(sT1)} offen sc1
        s_waitcnt vmcnt(0)
        v_cmp_ne_u32 vcc, {s(sT3)}, v{vD}
        s_and_b64 exec, exec, vcc
        s_cbranch_execz {Lo}
        s_sleep {self.opt('pslp', 1)}
        s_sub_u32 {s(sBUD)}, {s(sBUD)}, 1
        s_cbranch_scc0 {Lp}
        s_mov_b32 {s(sBUD)}, 0""")
        a.label(Lo)
        a("s_mov_b64 exec, -1")

    def qproj_and_attention(self):
        a = self.a; vL, vZ, vONE, vT = self.vL, self.vZ, self.vONE, self.vT
        Q0, O0, S0, KA = self.Q0, self.O0, self.S0, self.KA
        vKO, vVO, vIDX = self.vKO, self.vVO, self.vIDX
        NB = self.opt("nbuf", 4); IB = self.opt("ib", 1)
        BUF = [KA + 12 * i for i in range(NB)]
        a.label("L_att_setup")
        if self.opt("lhoist", 1):
            a("v_mov_b32 v4, v158\nv_mov_b32 v5, v159"); self.att_zero()
        else:
            self.att_addr(4, 5, 7, False); self.att_zero()
        self.waitc(C_FL, 4, vZ, vT)
        self.stamp(4)
        self.prologue_loads()
        a.label("L_att_go")
        def sof_next():
            a(f"""s_add_u32 {s(sROT)}, {s(sROT)}, 1
            s_and_b32 {s(sROT)}, {s(sROT)}, 15
            s_mul_i32 {s(sSOF)}, {s(sROT)}, {KVT}
            s_cmp_eq_u32 {s(sLOOP)}, 1
            s_cselect_b32 {s(sSOF)}, {OOB}, {s(sSOF)}""")
        def ldK(b): self.ld(0, b, sSOF)
        def ldV0(b): self.ld(1, b, sSOF)
        def ldV1(b): self.ld(2, b, sSOF)
        self.waitc(C_QE, 4, 92, vT, slp=self.opt('qslp', 0))
        for i in range(4): a(f"ds_read_b128 {v(Q0+4*i,4)}, v{160+i}")
        a(f"""s_mov_b32 {s(sLOOP)}, {16//NB}
        s_waitcnt vmcnt({3 if IB else 3*NB-4}) lgkmcnt(0)
        v_mfma_f32_32x32x16_bf16 {v(S0,16)}, {v(KA,4)}, {v(Q0,4)}, 0
        s_nop 11""")
        self.stamp(5)
        a(f"""s_setprio {self.opt('eprio', 2)}
        s_cmp_eq_u32 {s(sCLS)}, 0
        s_cbranch_scc1 L_att0
        s_setprio {self.opt('lprio', 1)}""")
        a.label("L_att0")
        a(".p2align 6")
        a.label("L_att")
        self.inloop = True
        CHK = self.opt("chunk", 1)
        for t in range(NB):
            cur = BUF[t]; prv = BUF[(t - 1) % NB]; nxt = BUF[(t + 1) % NB]
            for i in range(4):
                S = S0 + 16 * (i & 1); Sn = S0 + 16 * ((i + 1) & 1)
                def ex(a0, a1):
                    for k in range(a0, a1): a(f"v_exp_f32 v{S+k}, v{S+k}")
                ex(0, 2)
                if i == 1 and NB == 2 and not self.opt("nowait"): a("s_waitcnt vmcnt(3)")
                pv = prv if i == 0 else cur
                a(f"v_smfmac_f32_32x32x32_bf16 {v(O0+16*((i-1)&3),16)}, {v(pv+8,4)}, {v(Sn+8,8)}, v{vIDX}")
                if i == 0: ldV1(prv)
                if i == 1 and not self.opt("nosof"): sof_next()
                if CHK and t % 2 == self.opt('cpar', 0) and i == 2:
                    L = a.newlabel("Lp")
                    a(f"""s_lshr_b32 s35, s35, 1
                    s_bitcmp1_b32 s35, 0
                    s_cbranch_scc0 {L}
                    s_setprio {self.opt('lprio', 1) - 1}
                    s_cmp_eq_u32 {s(sCLS)}, 0
                    s_cbranch_scc0 {L}
                    s_setprio {self.opt('eprio', 2) - 1}""")
                    a.label(L)
                ex(2, 5)
                if i == 3 and not self.opt("nowait"): a(f"s_waitcnt vmcnt({2 if NB == 2 else 3*NB-5})")
                kk = nxt if i == 3 else cur
                a(f"v_mfma_f32_32x32x16_bf16 {v(Sn,16)}, {v(kk,4)}, {v(Q0+4*((i+1)&3),4)}, 0")
                if IB and t == 0 and i == 2:
                    a(f"s_cmp_eq_u32 {s(sLOOP)}, {16//NB}\ns_cbranch_scc1 L_first")
                    a.label("L_first_ret")
                if i == 2: ldK(cur)
                ex(5, 10)
                a(f"v_smfmac_f32_32x32x32_bf16 {v(O0+16*i,16)}, {v(cur+4,4)}, {v(S,8)}, v{vIDX}")
                if i == 3: ldV0(cur)
                if i == 2 and t == NB - 1: a("ds_read_b32 v3, v7")
                if t == NB - 1 and i == 3:
                    ex(10, 13)
                    a(f"s_sub_u32 {s(sLOOP)}, {s(sLOOP)}, 1\ns_cmp_lg_u32 {s(sLOOP)}, 0")
                    ex(13, 16)
                else:
                    ex(10, 16)
        a("s_cbranch_scc1 L_att")
        a(f"s_nop 1")
        a(f"v_smfmac_f32_32x32x32_bf16 {v(O0+48,16)}, {v(BUF[-1]+8,4)}, {v(S0+24,8)}, v{vIDX}")
        self.stamp(6)
        if self.opt("r0late", 0) == 2:
            a(f"s_cmp_eq_u32 {s(sCLS)}, 0\ns_cbranch_scc1 L_nole")
            self.arrive(C_WQC, vZ, vONE)
            a.label("L_nole")
        self.att_tail()
        if IB:
            a.label("L_first")
            if self.opt("lpoll", 0):
                self.waitc(C_FL, 4, vZ, vT, slp=0)
            else:
                a(f"s_cmp_eq_u32 {s(sCLS)}, 0\ns_cbranch_scc0 L_first_ld")
                a.label("L_fp")
                a(f"""s_waitcnt vmcnt(0)
                v_cmp_ne_u32 vcc, {s(sNONCE)}, v145
                s_and_b64 exec, exec, vcc
                s_cbranch_execz L_fp_ok
                buffer_load_dword v145, v144, {s(rWS,4)}, s40 offen sc1
                s_sub_u32 {s(sBUD)}, {s(sBUD)}, 1
                s_cbranch_scc0 L_fp
                s_mov_b32 {s(sBUD)}, 0
                s_waitcnt vmcnt(0)""")
                a.label("L_fp_ok")
                a("s_mov_b64 exec, -1")
                self.arrive(C_FL, vZ, vONE)
                a.label("L_first_ld")
            for b in (2, 3):
                for kind in range(3): self.ld(kind, BUF[b], 36 + b)
            a("s_branch L_first_ret")

    def first_poll(self):
        self.a(f"""s_lshl_b32 {s(sT1)}, {s(sW4)}, {6 + self.opt('fsh', 5)}
        s_add_u32 {s(sT1)}, {s(sT1)}, {WS_FLAG}
        v_lshlrev_b32 v93, {self.opt('fsh', 5)}, v0""")
        if self.opt("p16", 0):
            self.a(f"""v_lshrrev_b32 v95, 3, v0
            v_bfe_u32 v96, v0, 1, 1
            v_lshl_add_u32 v95, v95, 1, v96
            v_subrev_u32 v95, {s(sROT)}, v95
            v_and_b32 v95, 15, v95
            v_cmp_gt_u32 vcc, {self.opt('nbuf', 4)}, v95
            s_mov_b64 exec, vcc""")
        self.a(f"buffer_load_dword v94, v93, {s(rWS,4)}, {s(sT1)} offen sc1")

    sP1, sP2, sP3, sP0, sOS = 70, 71, 72, 73, 74
    def tail_regs(self):
        b = 40 if True else 70
        return dict(p=[28, 29, 30, 31], os=32, cw=33, cp=34)
    def tail_setup(self):
        a = self.a; R = self.tail_regs()
        for i in range(4):
            a(f"""s_add_u32 {s(sT2)}, {s(sW4)}, {i}
            s_and_b32 {s(sT2)}, {s(sT2)}, 3
            s_mul_i32 {s(R['p'][i])}, {s(sT2)}, {3*PSLOT}""")
        a(f"""s_cmp_eq_u32 {s(sCLS)}, 0
        s_cselect_b32 {s(sT2)}, {XE}, {R0}""")
        for i in range(4): a(f"s_add_u32 {s(R['p'][i])}, {s(R['p'][i])}, {s(sT2)}")
        a(f"""s_lshl_b32 {s(sT3)}, {s(sG)}, 1
        s_add_u32 {s(sT3)}, {s(sT3)}, {s(sCLS)}
        s_lshl_b32 {s(sT3)}, {s(sT3)}, 5
        s_lshl_b32 {s(sT4)}, {s(sR)}, 2
        s_add_u32 {s(sT3)}, {s(sT3)}, {s(sT4)}
        s_add_u32 {s(sT3)}, {s(sT3)}, {s(sW4)}
        s_lshl_b32 {s(sT3)}, {s(sT3)}, 10
        s_add_u32 {s(R['os'])}, {s(sT3)}, {WS_O}
        s_cmp_eq_u32 {s(sCLS)}, 0
        s_mov_b32 {s(R['cw'])}, {C_YT//4}
        s_cselect_b32 {s(R['cp'])}, {C_PE//4}, {C_PL//4}
        s_lshl_b32 {s(R['cw'])}, {s(R['cw'])}, 2
        s_lshl_b32 {s(R['cp'])}, {s(R['cp'])}, 2
        s_add_u32 {s(R['cw'])}, {s(R['cw'])}, {CNT}
        s_add_u32 {s(R['cp'])}, {s(R['cp'])}, {CNT}""")
    def att_tail(self):
        a = self.a; vL, vZ, vONE, vT = self.vL, self.vZ, self.vONE, self.vT
        Q0, O0, S0, KA = self.Q0, self.O0, self.S0, self.KA
        R = self.tail_regs()
        T = Q0 + 4
        if self.opt("tprio", 0) == 1:
            a(f"s_cmp_eq_u32 {s(sCLS)}, 0\ns_cbranch_scc1 L_notp\ns_setprio 3")
            a.label("L_notp")
        if self.opt("tprio", 0) == 2: a("s_setprio 3")
        a(f"""v_mov_b32 v{T+1}, {s(R['cp'])}
        v_lshlrev_b32 v{T+2}, 4, v0
        v_lshlrev_b32 v{T+3}, 2, v0
        s_waitcnt lgkmcnt(0)
        v_readfirstlane_b32 {s(sT0)}, v3
        v_add_u32 v{T+4}, {s(R['p'][1])}, v{T+2}
        v_add_u32 v{T+5}, {s(R['p'][1])}, v{T+3}
        s_cmp_ge_u32 {s(sT0)}, 4
        s_cbranch_scc1 L_pfree""")
        n0 = len(a.lines)
        self.waitc(0, 4, 7, vT)
        for i in range(n0, len(a.lines)):
            l = a.lines[i]
            if not l.endswith(":") and "nocount" not in l and not l.startswith(("v_readfirst", "s_cmp")): a.lines[i] = l + " ; nocount"
        a.label("L_pfree")
        for i in range(1, 4):
            j = (i + 1) & 3
            a(f"""ds_write_b128 v{T+4+2*(i&1^1)}, {v(O0+16*i,4)} offset:{(i-1)*PSLOT}
            ds_write_b128 v{T+4+2*(i&1^1)}, {v(O0+16*i+4,4)} offset:{(i-1)*PSLOT+1024}
            ds_write_b32 v{T+5+2*(i&1^1)}, v{O0+16*i+8} offset:{(i-1)*PSLOT+2048}
            v_add_u32 v{T+4+2*(i&1)}, {s(R['p'][j])}, v{T+2}
            v_add_u32 v{T+5+2*(i&1)}, {s(R['p'][j])}, v{T+3}""")
        a("s_waitcnt lgkmcnt(0)")
        self.sync4(0, T + 1, vONE, vT)
        for i in range(1, 4):
            a(f"""ds_read_b128 {v(O0+16*i,4)}, v{T+6} offset:{(i-1)*PSLOT}
            ds_read_b128 {v(O0+16*i+4,4)}, v{T+6} offset:{(i-1)*PSLOT+1024}
            ds_read_b32 v{O0+16*i+8}, v{T+7} offset:{(i-1)*PSLOT+2048}""")
        a(f"""s_mov_b32 {s(sT5)}, {s(R['os'])}
        s_waitcnt vmcnt(0)
        v_mov_b32 v146, v{T+2}
        s_waitcnt lgkmcnt(6)""")
        def add9(d, x):
            for k in range(0, 8, 2): a(f"v_pk_add_f32 {v(d+k,2)}, {v(d+k,2)}, {v(x+k,2)}")
            a(f"v_add_f32 v{d+8}, v{d+8}, v{x+8}")
        add9(O0, O0 + 16)
        a("s_waitcnt lgkmcnt(3)"); add9(O0, O0 + 32)
        a("s_waitcnt lgkmcnt(0)"); add9(O0, O0 + 48)
        lo = struct.unpack("<I", struct.pack("<f", 2.0**-60))[0]; hi = struct.unpack("<I", struct.pack("<f", 2.0**60))[0]
        a(f"""v_pk_add_f32 v[150:151], {v(O0,2)}, {v(O0+2,2)}
        v_pk_add_f32 v[152:153], {v(O0+4,2)}, {v(O0+6,2)}
        v_pk_add_f32 v[150:151], v[150:151], v[152:153]
        v_add_f32 v150, v150, v151
        v_fma_f32 v150, v150, 0, v{O0+8}
        v_subrev_u32 v150, {hex(lo)}, v150
        v_cmp_ge_u32 vcc, {hex(hi-lo)}, v150""")
        if self.opt("force_fallback"): a("s_mov_b64 vcc, 0")
        a(f"""s_cmp_eq_u64 vcc, exec
        s_cbranch_scc0 L_fallback""")
        a.label("L_att_fin")
        self.stamp(9)
        a(f"v_rcp_f32 v150, v{O0+8}")
        for k in range(0, 8, 2): a(f"v_pk_mul_f32 {v(O0+k,2)}, {v(O0+k,2)}, v[150:151] op_sel_hi:[1,0]")
        for k in range(4): a(f"v_cvt_pk_bf16_f32 v{152+k}, v{O0+2*k}, v{O0+2*k+1}")
        for k in range(4): a(f"v_min_u32 v{152+k}, -2, v{152+k}")
        a(f"""s_lshl_b32 {s(sT2)}, {s(sCLS)}, 2
        v_add_u32 v151, {s(sT2)}, v1
        buffer_store_dwordx4 v[152:155], v146, {s(rWS,4)}, {s(sT5)} offen sc1
        s_waitcnt vmcnt(0)""")
        self.arrive(C_OE, 151, vONE)
        if self.opt("yby", 2) in (0, 1):
            a(f"s_cmp_eq_u32 {s(sCLS)}, {self.opt('yby', 2)}\ns_cbranch_scc0 L_noya")
            self.y_guard(lambda: (self.waitc(C_Y4, 4, vZ, vT, slp=2), self.y_assemble()), self.opt('pary', 0))
            a.label("L_noya")
        a(f"""s_or_b32 {s(sT2)}, {s(sWG)}, {s(sW4)}
        s_or_b32 {s(sT2)}, {s(sT2)}, {s(sCLS)}
        s_cmp_eq_u32 {s(sT2)}, 0
        s_cbranch_scc0 L_end
        v_mov_b32 v150, {s(sNONCE)}
        v_mov_b32 v151, 0
        s_mov_b64 exec, 1
        buffer_store_dword v150, v151, {s(rWS,4)}, 0 offen sc1
        s_mov_b64 exec, -1
        s_branch L_end""")
        self.fallback()

    def fallback(self):
        a = self.a
        Q0, O0, S0, KA = self.Q0, self.O0, self.S0, self.KA
        vKO, vVO, vIDX = self.vKO, self.vVO, self.vIDX
        C0 = O0 + 16
        a.label("L_fallback")
        a(f"""s_mul_i32 {s(sT2)}, {s(sW4)}, {16*KVT}
        v_subrev_u32 v7, {s(sT2)}, v{vKO}
        v_subrev_u32 v151, {s(sT2)}, v{vVO}
        v_mov_b32 v150, 0xff800000
        s_mov_b32 {s(sSOF)}, 0""")
        a.label("L_fb1")
        a(f"""buffer_load_dwordx4 {v(KA,4)}, v7, {s(rWS,4)}, {s(sSOF)} offen sc1
        s_waitcnt vmcnt(0)
        v_mfma_f32_32x32x16_bf16 {v(S0,16)}, {v(KA,4)}, {v(Q0,4)}, 0""")
        for k in range(8): a(f"v_max3_f32 v150, v150, v{S0+2*k}, v{S0+2*k+1}")
        a(f"""s_add_u32 {s(sSOF)}, {s(sSOF)}, {KVT}
        s_cmp_lt_u32 {s(sSOF)}, {64*KVT}
        s_cbranch_scc1 L_fb1
        v_mov_b32 v152, v150
        v_permlane32_swap_b32 v150, v152
        v_max_f32 v150, v150, v152""")
        for k in range(16): a(f"v_sub_f32 v{C0+k}, 0, v150")
        for k in range(16): a(f"v_mov_b32 v{O0+k}, 0")
        a(f"s_mov_b32 {s(sSOF)}, 0")
        a.label("L_fb2")
        a(f"""buffer_load_dwordx4 {v(KA,4)}, v7, {s(rWS,4)}, {s(sSOF)} offen sc1
        buffer_load_dwordx4 {v(KA+4,4)}, v151, {s(rWS,4)}, {s(sSOF)} offen offset:1024 sc1
        buffer_load_dwordx4 {v(KA+8,4)}, v151, {s(rWS,4)}, {s(sSOF)} offen offset:{V1OFF} sc1
        s_waitcnt vmcnt(0)
        v_mfma_f32_32x32x16_bf16 {v(S0,16)}, {v(KA,4)}, {v(Q0,4)}, {v(C0,16)}""")
        for k in range(16): a(f"v_exp_f32 v{S0+k}, v{S0+k}")
        a(f"""v_smfmac_f32_32x32x32_bf16 {v(O0,16)}, {v(KA+4,4)}, {v(S0,8)}, v{vIDX}
        v_smfmac_f32_32x32x32_bf16 {v(O0,16)}, {v(KA+8,4)}, {v(S0+8,8)}, v{vIDX}
        s_add_u32 {s(sSOF)}, {s(sSOF)}, {KVT}
        s_cmp_lt_u32 {s(sSOF)}, {64*KVT}
        s_nop 9
        s_cbranch_scc1 L_fb2
        s_nop 3
        s_branch L_att_fin""")

    def role_s(self):
        a = self.a; vL, vZ, vONE, vT = self.vL, self.vZ, self.vONE, self.vT
        a.label("L_role_s")
        a(f"s_setprio {self.opt('gprio', 3)}")
        sCH, sMH = sLOOP, sSOF
        a(f"""s_and_b32 {s(sCH)}, {s(sW4)}, 1
        s_lshr_b32 {s(sMH)}, {s(sW4)}, 1
        s_lshl_b32 {s(sT0)}, {s(sP)}, 2
        s_lshl_b32 {s(sT1)}, {s(sP)}, 9
        s_lshl_b32 {s(sT2)}, {s(sCH)}, 8
        s_add_u32 {s(sT1)}, {s(sT1)}, {s(sT2)}
        s_lshl_b32 {s(sT2)}, {s(sMH)}, 7
        s_add_u32 {s(sT1)}, {s(sT1)}, {s(sT2)}
        v_lshlrev_b32 v4, 1, v0
        s_mov_b32 {s(rA+2)}, 131072""")
        self.ptrs_ready(False)
        a(f"""s_load_dword {s(sT4)}, {s(pLDT,2)}, {s(sT0)}
        s_load_dword {s(sT5)}, {s(pDSK,2)}, {s(sT0)}""")
        for i, p in enumerate([pARE, pAIM, pBRE, pBIM, pCRE, pCIM]):
            a(f"s_mov_b32 {s(rA)}, {s(p)}\ns_mov_b32 {s(rA+1)}, {s(p+1)}")
            a(f"buffer_load_ushort v{8+i}, v4, {s(rA,4)}, {s(sT1)} offen")
        UE = self.opt("uearly", 0)
        if not self.opt("sbar", 0): a("s_barrier")
        self.s_precompute()
        a(f"""s_lshl_b32 {s(sT2)}, {s(sW4)}, 12
        s_add_u32 {s(sT2)}, {s(sT2)}, {GEN}
        v_bfe_u32 v5, v0, 1, 2
        v_lshlrev_b32 v5, 4, v5
        v_lshl_add_u32 v5, v0, 6, v5
        v_add_u32 v150, {s(sT2)}, v5
        v_xor_b32 v151, 16, v150
        v_xor_b32 v152, 32, v150
        v_xor_b32 v153, 48, v150
        v_bfe_u32 v5, v0, 2, 2
        v_lshrrev_b32 v6, 5, v0
        v_lshl_add_u32 v6, v6, 3, v5
        v_lshlrev_b32 v6, 6, v6
        v_bfe_u32 v7, v0, 4, 1
        v_lshlrev_b32 v7, 1, v7
        v_bfe_u32 v14, v0, 1, 1
        v_add_u32 v7, v7, v14
        v_lshrrev_b32 v5, 1, v5
        v_xor_b32 v7, v7, v5
        v_lshl_add_u32 v6, v7, 4, v6
        v_and_b32 v7, 1, v0
        v_lshl_add_u32 v6, v7, 3, v6
        v_add_u32 v154, {s(sT2)}, v6
        v_xor_b32 v155, 32, v154""")
        if self.opt("sbar", 0) == 1: a("s_barrier")
        a(f"""s_waitcnt lgkmcnt(0)
        s_lshl_b32 {s(sT2)}, {s(sCH)}, 4
        s_lshr_b32 {s(sT4)}, {s(sT4)}, {s(sT2)}
        s_lshl_b32 {s(sT4)}, {s(sT4)}, 16
        s_lshr_b32 {s(sT5)}, {s(sT5)}, {s(sT2)}
        s_lshl_b32 {s(sT5)}, {s(sT5)}, 16
        v_mov_b32 v14, {fbits(LOG2E)}
        v_mul_f32 v15, {s(sT4)}, v14
        v_exp_f32 v15, v15
        v_cvt_pk_bf16_f32 v15, v15, v15
        v_and_b32 v15, 0xffff0000, v15
        s_waitcnt vmcnt({8 if UE else 0})""")
        self.stamp(1)
        for i in range(6): a(f"v_lshlrev_b32 v{8+i}, 16, v{8+i}")
        Z1, Z2, Z4, Z8, Z256, CB, TMP = 18, 20, 22, 24, 26, 16, 28
        a(f"""v_mul_f32 v8, v15, v8
        v_mul_f32 v9, v15, v9
        v_mul_f32 v10, v15, v10
        v_mul_f32 v11, v15, v11
        v_mul_f32 v8, v14, v8
        v_mul_f32 v9, 0.15915494, v9""")
        self.cmul(CB, 10, 12, TMP)
        def cpow(d, mult):
            if mult != 1:
                a(f"v_mul_f32 v30, {fbits(mult)}, v8\nv_mul_f32 v31, {fbits(mult)}, v9")
                x, y = 30, 31
            else:
                x, y = 8, 9
            a(f"""v_exp_f32 v28, v{x}
            v_rndne_f32 v29, v{y}
            v_sub_f32 v29, v{y}, v29
            v_cos_f32 v{d}, v29
            v_sin_f32 v{d+1}, v29
            v_mul_f32 v{d}, v28, v{d}
            v_mul_f32 v{d+1}, v28, v{d+1}""")
        cpow(Z1, 1); cpow(Z256, 256)
        self.cmul(Z2, Z1, Z1, TMP); self.cmul(Z4, Z2, Z2, TMP); self.cmul(Z8, Z4, Z4, TMP)
        RE, IM = 32, 48
        FB = 64
        FA = 96
        ACC = 112
        X0, X1 = 128, 130
        def wr(src):
            for c in range(4): a(f"ds_write_b128 v{150+c}, {v(src+4*c,4)}")
        def rdtr(dst):
            for ks in range(4):
                a(f"ds_read_b64_tr_b16 {v(dst+4*ks,2)}, v154 offset:{1024*ks}")
                a(f"ds_read_b64_tr_b16 {v(dst+4*ks+2,2)}, v155 offset:{1024*ks+256}")
        if self.opt("gst"): self.stamp(3)
        if self.opt("sbar", 0) == 2: a("s_barrier")
        a(f"v_mov_b32 v{X0}, 1.0\nv_mov_b32 v{X0+1}, 0")
        for j in range(0, 32, 2):
            if j > 0: self.cmul(X0, X1, Z8, TMP)
            self.cmul(X1, X0, Z8, TMP)
            a(f"v_cvt_pk_bf16_f32 v{RE+j//2}, v{X0}, v{X1}")
            a(f"v_cvt_pk_bf16_f32 v{IM+j//2}, -v{X0+1}, -v{X1+1}")
        if self.opt("gst"): self.stamp(4)
        wr(RE); rdtr(FB); wr(IM); rdtr(FB + 16)
        if self.opt("gst"): self.stamp(5)
        if self.opt("upf", 0):
            a(f"""s_and_b32 {s(sT0)}, {s(sP)}, 31
            s_lshl_b32 {s(sT0)}, {s(sT0)}, 2
            s_add_u32 {s(sT0)}, {s(sT0)}, {s(sW4)}
            s_lshl_b32 {s(sT0)}, {s(sT0)}, 14
            s_lshr_b32 {s(sT1)}, {s(sP)}, 5
            s_lshl_b32 {s(sT1)}, {s(sT1)}, 7
            s_add_u32 {s(sT0)}, {s(sT0)}, {s(sT1)}""")
            self.s_prefetch(pU, sT0, 16, 1024)
            if self.opt("upf", 0) == 2:
                a(f"s_add_u32 {s(sT0)}, {s(sT0)}, 64"); self.s_prefetch(pU, sT0, 16, 1024)
        B = [CB] + [132 + 2 * m for m in range(7)]
        for m in range(1, 8): self.cmul(B[m], B[m - 1], Z256, TMP)
        Y0, Y1 = 146, 148
        def pack(row, x, y):
            a(f"v_cvt_pk_bf16_f32 v{RE+row//2}, v{x}, v{y}")
            a(f"v_cvt_pk_bf16_f32 v{IM+row//2}, v{x+1}, v{y+1}")
        a("s_waitcnt lgkmcnt(8)")
        self.cmul(X1, CB, Z1, TMP); pack(0, CB, X1)
        for row in (2, 4, 6):
            self.cmul(X0, X1, Z1, TMP); self.cmul(X1, X0, Z1, TMP); pack(row, X0, X1)
        self.cmul(X0, B[1], Z2, TMP); pack(8, B[1], X0)
        self.cmul(X1, X0, Z2, TMP); pack(10, X1, X1)
        self.cmul(X0, X1, Z2, TMP); pack(12, X1, X0)
        self.cmul(X1, X0, Z2, TMP); pack(14, X1, X1)
        for q, m in ((16, 2), (20, 3)):
            self.cmul(X0, B[m], Z4, TMP); pack(q, B[m], X0)
            self.cmul(X1, X0, Z4, TMP); pack(q + 2, X1, X1)
        for q, m in ((24, 4), (26, 6), (28, 5), (30, 7)):
            self.cmul(X0, B[m], Z8, TMP); pack(q, B[m], X0)
        if self.opt("gst"): self.stamp(6)
        wr(RE); rdtr(FA)
        a("s_waitcnt lgkmcnt(0)")
        if self.opt("gst"): self.stamp(7)
        for ks in range(4):
            a(f"v_mfma_f32_32x32x16_bf16 {v(ACC,16)}, {v(FA+4*ks,4)}, {v(FB+4*ks,4)}, {'0' if ks==0 else v(ACC,16)}")
        wr(IM); rdtr(RE)
        a("s_waitcnt lgkmcnt(0)")
        for ks in range(4):
            a(f"v_mfma_f32_32x32x16_bf16 {v(ACC,16)}, {v(RE+4*ks,4)}, {v(FB+16+4*ks,4)}, {v(ACC,16)}")
        self.stamp(2)
        if self.opt("gprio", 3) != self.opt("sprio", 3): a(f"s_setprio {self.opt('sprio', 3)}")
        if self.opt("abl_s") == 1: self.arrive(C_YT, vZ, vONE); self.arrive(C_WO, vZ, vONE); a("s_branch L_end")
        UG = self.UG
        self.waitc(C_KV, 4, vZ, vT, slp=1)
        a("ds_read_b32 v167, v1 offset:128")
        if self.opt("uwait", 2): self.waitc({1: C_WQB, 2: C_FL, 3: C_QE}[self.opt("uwait", 2)], 4, vZ, vT, slp=2)
        self.y_guard(self.u_transpose, self.opt('paru', 1))
        a(f"v_mov_b32 v26, v{self.pCA}\nv_mov_b32 v27, v{self.pCB}")
        a(f"""s_lshl_b32 {s(sT2)}, {s(sCH)}, 12
        s_add_u32 {s(sT2)}, {s(sT2)}, {GEN+8192}
        v_lshl_add_u32 v5, v0, 4, {s(sT2)}
        s_lshl_b32 {s(sT2)}, {s(sCH)}, 2
        v_add_u32 v6, {s(sT2)}, v1
        s_cmp_eq_u32 {s(sMH)}, 0
        s_cbranch_scc1 L_s_expand""")
        for c in range(4): a(f"ds_write_b128 v5, {v(ACC+4*c,4)} offset:{1024*c}")
        a("s_waitcnt lgkmcnt(0)")
        self.arrive(C_KT0, 6, vONE)
        a("s_branch L_s_ucopy")
        a.label("L_s_expand")
        self.waitc(C_KT0, 1, 6, vT)
        for c in range(4): a(f"ds_read_b128 {v(32+4*c,4)}, v5 offset:{1024*c}")
        a(f"""v_lshl_add_u32 v7, v0, 4, s46
        v_mov_b64 v[48:49], 0
        v_mov_b64 v[50:51], 0""")
        for cp in range(2):
            for off in (0, 1024, 1136):
                a(f"ds_write_b128 v7, v[48:51] offset:{cp*KCOPY+off}")
        a("s_waitcnt lgkmcnt(6)")
        for k in range(0, 16, 2): a(f"v_pk_add_f32 {v(ACC+k,2)}, {v(ACC+k,2)}, {v(32+k,2)}")
        a(f"""s_mov_b64 exec, 1
        v_add_f32 v{ACC}, {s(sT5)}, v{ACC}
        s_mov_b64 exec, -1
        s_mov_b32 {s(sT2)}, 0x55555555
        s_mov_b32 {s(sT3)}, 0x55555555""")
        A = ACC
        a(f"""v_cvt_pk_bf16_f32 v32, v{A+3}, v{A+2}
        v_cvt_pk_bf16_f32 v33, v{A+1}, v{A}
        ds_write_b64 v{self.pE10}, v[32:33] offset:{144*15+8}
        v_cvt_pk_bf16_f32 v34, v{A+6}, v{A+5}
        v_cvt_pk_bf16_f32 v35, v{A+4}, v{A+4}
        ds_write_b64 v{self.pE10}, v[34:35] offset:{144*19+8}
        v_cvt_pk_bf16_f32 v36, v{A+10}, v{A+10}
        v_cvt_pk_bf16_f32 v37, v{A+9}, v{A+9}
        v_cvt_pk_bf16_f32 v38, v{A+9}, v{A+8}
        v_cvt_pk_bf16_f32 v39, v{A+8}, v{A+8}
        ds_write_b128 v{self.pE9}, v[36:39] offset:{144*23}""")
        for q, (ra, dst, blk) in enumerate(((A + 12, 40, 31), (A + 14, 44, 39))):
            a(f"""v_cndmask_b32 v11, v{ra+1}, v{ra}, {s(sT2,2)}
            v_cvt_pk_bf16_f32 v{dst}, v{ra+1}, v{ra+1}
            v_cvt_pk_bf16_f32 v{dst+1}, v{ra+1}, v11
            v_cvt_pk_bf16_f32 v{dst+2}, v{ra}, v{ra}
            v_cvt_pk_bf16_f32 v{dst+3}, v{ra}, v{ra}
            ds_write_b128 v{self.pE9}, {v(dst,4)} offset:{144*blk}""")
        for it in range(4):
            a(f"ds_read_b128 {v(64+8*it,4)}, v{self.pE8} offset:{144*(15+8*it)}")
            a(f"ds_read_b32 v{68+8*it}, v{self.pE8p} offset:{144*(15+8*it)}")
        for it in range(4):
            b = 64 + 8 * it
            a(f"s_waitcnt lgkmcnt({6-2*it+it})")
            for k in range(4): a(f"v_alignbit_b32 v{32+4*it+k}, v{b+k+1}, v{b+k}, 16")
            a(f"ds_write_b128 v{self.pE8}, {v(32+4*it,4)} offset:{KCOPY+144*(15+8*it)}")
        a.label("L_s_ucopy")
        self.y_guard(self.u_transpose2, self.opt('paru', 1))
        a("s_waitcnt lgkmcnt(0)")
        if self.opt("paru", 1): self.y_guard(lambda: self.s_publish(C_UT, WS_FLAG3), 1)
        else: self.s_publish(C_UT, WS_FLAG3)
        self.stamp(3)
        if self.opt("abl_s") == 3: self.arrive(C_YT, vZ, vONE); self.arrive(C_WO, vZ, vONE); a("s_branch L_end")
        self.waitc(C_QL, 4, vZ, vT, slp=2)
        self.srd(rB, pWO, 524288)
        a(f"""s_lshl_b32 {s(sT3)}, {s(sW4)}, 17
        s_lshl_b32 {s(sT2)}, {s(sR)}, 7
        s_add_u32 {s(sT3)}, {s(sT3)}, {s(sT2)}
        s_lshl_b32 {s(sT4)}, {s(sW4)}, 13
        s_add_u32 {s(sT4)}, {s(sT4)}, {XE}""")
        def wo_dma():
            a(f"s_mov_b32 m0, {s(sT4)}")
            for i in range(8):
                if i and i % self.opt("wosplit", 4) == 0: a("s_waitcnt vmcnt(0)")
                a(f"buffer_load_dwordx4 v{self.pWD}, {s(rB,4)}, {s(sT3)} offen lds")
                if i < 7: a("s_add_u32 m0, m0, 1024")
                a(f"s_add_u32 {s(sT3)}, {s(sT3)}, 8192")
        WOF = 96
        WIN = self.opt("woin", 0)
        a(f"v_mov_b32 v16, v{self.pWT}\nv_xor_b32 v17, 64, v{self.pWT}\ns_mov_b32 s44, {s(sT3)}\ns_mov_b32 s45, {s(sT4)}" if False else f"v_mov_b32 v16, v{self.pWT}\nv_xor_b32 v17, 64, v{self.pWT}")
        def wo_frags(rnd):
            a("s_waitcnt vmcnt(0)")
            for ks in range(4):
                for ct in range(2):
                    d = WOF + 32 * rnd + 8 * ks + 4 * ct
                    a(f"ds_read_b64_tr_b16 {v(d,2)}, v{16+ct} offset:{2048*ks}")
                    a(f"ds_read_b64_tr_b16 {v(d+2,2)}, v{16+ct} offset:{2048*ks+512}")
            a("s_waitcnt lgkmcnt(0)")
        if WIN:
            a(f"s_mov_b32 s42, {s(sT3)}\ns_mov_b32 s43, {s(sT4)}")
        else:
            for rnd in range(2): wo_dma(); wo_frags(rnd)
        a(f"""s_lshr_b32 {s(sT4)}, {s(sP)}, {5 + self.opt("paru", 1)}
        s_lshl_b32 {s(sT4)}, {s(sT4)}, {12 + self.opt("paru", 1)}
        s_add_u32 {s(sT4)}, {s(sT4)}, {WS_FLAG3}""")
        self.s_poll(sT4, 31)
        a(f"""s_lshl_b32 {s(sT1)}, {s(sP)}, 13
        s_lshl_b32 {s(sT2)}, {s(sW4)}, 11
        s_add_u32 {s(sT1)}, {s(sT1)}, {s(sT2)}
        s_add_u32 {s(sT1)}, {s(sT1)}, {WS_UT}
        v_lshlrev_b32 v4, 5, v0
        buffer_load_dwordx4 {v(UG,4)}, v4, {s(rWS,4)}, {s(sT1)} offen sc1
        buffer_load_dwordx4 {v(UG+4,4)}, v4, {s(rWS,4)}, {s(sT1)} offen offset:16 sc1""")
        a(f"""s_cmp_eq_u32 {s(sW4)}, 0
        s_cbranch_scc0 L_s_nouz
        v_lshrrev_b32 v8, 3, v0
        v_mul_u32_u24 v8, {UCOPY}, v8
        v_and_b32 v9, 7, v0
        v_lshl_add_u32 v8, v9, 4, v8
        v_add_u32 v8, {W}, v8
        v_mov_b64 v[48:49], 0
        v_mov_b64 v[50:51], 0
        ds_write_b128 v8, v[48:51]""")
        a.label("L_s_nouz")
        a(f"""s_mov_b32 {s(sT0)}, 0x05040100
        s_mov_b32 {s(sT1)}, 0x07060302
        s_waitcnt vmcnt(0)""")
        self.stamp(4)
        for k in range(4):
            a(f"v_perm_b32 v{32+k}, v{UG+2*k+1}, v{UG+2*k}, {s(sT0)}")
            a(f"v_perm_b32 v{36+k}, v{UG+2*k+1}, v{UG+2*k}, {s(sT1)}")
        for ch in range(2):
            d = 32 + 4 * ch
            for ph in range(4):
                off = ch * UCH + ph * UCOPY + 128 - 4 * (ph + 1)
                if ph == 3:
                    a(f"ds_write_b128 v{self.pUC}, {v(d,4)} offset:{off}")
                elif ph == 1:
                    a(f"ds_write_b64 v{self.pUC}, {v(d,2)} offset:{off}\nds_write_b64 v{self.pUC}, {v(d+2,2)} offset:{off+8}")
                else:
                    a(f"v_add_u32 v9, {off}, v{self.pUC}")
                    a(f"ds_write2_b32 v9, v{d}, v{d+1} offset0:0 offset1:1\nds_write2_b32 v9, v{d+2}, v{d+3} offset0:2 offset1:3")
        a("s_waitcnt lgkmcnt(0)")
        self.arrive(C_KU, vZ, vONE)
        T0, T1 = 64, 80
        vA, vB = 26, 27
        if self.opt("wospf", 0):
            a(f"""s_and_b32 {s(sT0)}, {s(sP)}, 31
            s_lshl_b32 {s(sT0)}, {s(sT0)}, 2
            s_add_u32 {s(sT0)}, {s(sT0)}, {s(sW4)}
            s_lshl_b32 {s(sT0)}, {s(sT0)}, 12""")
            self.s_prefetch(pWO, sT0, 32 * self.opt("wospf"), 128 // self.opt("wospf"))
        if self.opt("wopf", 0):
            self.srd(rB, pWO, 524288)
            self.l2_prefetch(rB, self.opt("wopf"), 10, 11, sT4)
        self.waitc(C_KU, 4, vZ, vT)
        self.stamp(5)
        if self.opt("abl_s") == 5: self.arrive(C_YT, vZ, vONE); self.arrive(C_WO, vZ, vONE); a("s_branch L_end")
        if self.opt("cprio", 3) != 3: a(f"s_setprio {self.opt('cprio')}")
        a(f"s_mov_b32 {s(sT4)}, {self.opt('convit', 8)}")
        def step(u, first=False):
            b = 32 + 16 * (u & 1)
            ao = 144 * 15 + 16 * (7 - 2 * u)
            a(f"""ds_read_b128 {v(b,4)}, v{vA} offset:{ao}
            ds_read_b128 {v(b+8,4)}, v{vB} offset:{32*u}
            s_waitcnt lgkmcnt(0)
            v_mfma_f32_32x32x16_bf16 {v(T0,16)}, {v(b,4)}, {v(b+8,4)}, {'0' if first else v(T0,16)}
            ds_read_b128 {v(b+12,4)}, v{vB} offset:{32*u+2048}
            s_waitcnt lgkmcnt(0)
            v_mfma_f32_32x32x16_bf16 {v(T1,16)}, {v(b,4)}, {v(b+12,4)}, {'0' if first else v(T1,16)}
            ds_read_b128 {v(b+4,4)}, v{vA} offset:{ao+2304}
            s_waitcnt lgkmcnt(0)
            v_mfma_f32_32x32x16_bf16 {v(T1,16)}, {v(b+4,4)}, {v(b+8,4)}, {v(T1,16)}""")
        def dma1():
            a(f"""buffer_load_dwordx4 v{self.pWD}, {s(rB,4)}, s42 offen lds
            s_add_u32 m0, m0, 1024
            s_add_u32 s42, s42, 8192""")
        for part in range(2 if WIN else 1):
            if WIN: a(f"s_mov_b32 m0, s43\ns_mov_b32 {s(sT4)}, 4")
            if part == 0:
                step(0, True)
                a("s_branch L_conv1")
            a.label(f"L_conv_{part}")
            step(0)
            if part == 0: a.label("L_conv1")
            if WIN: dma1()
            step(1); step(2)
            if WIN: dma1()
            step(3)
            a(f"""v_subrev_u32 v{vA}, 144, v{vA}
            v_add_u32 v{vB}, 128, v{vB}
            s_sub_u32 {s(sT4)}, {s(sT4)}, 1
            s_cmp_lg_u32 {s(sT4)}, 0
            s_cbranch_scc1 L_conv_{part}""")
            if WIN: wo_frags(part)
        self.stamp(6)
        if self.opt("cprio", 3) != 3: a(f"s_setprio {self.opt('sprio', 3)}")
        if self.opt("abl_s") == 6: self.arrive(C_YT, vZ, vONE); self.arrive(C_WO, vZ, vONE); a("s_branch L_end")
        def xchg_write(base, accs, ymode=False):
            a(f"""s_lshl_b32 {s(sT2)}, {s(sW4)}, 11
            s_add_u32 {s(sT2)}, {s(sT2)}, {base}
            v_lshl_add_u32 v10, v0, 4, {s(sT2)}
            s_lshl_b32 {s(sT2)}, {s(sW4)}, 13
            s_add_u32 {s(sT2)}, {s(sT2)}, {base}
            v_lshl_add_u32 v11, v0, 4, {s(sT2)}""")
            for q in range(4):
                r0, r1 = (accs+8*q, accs+8*q+4) if not ymode else (accs+16*(q>>1)+4*(q&1), accs+16*(q>>1)+8+4*(q&1))
                a(f"ds_write_b128 v10, {v(r0,4)} offset:{8192*q}")
                a(f"ds_write_b128 v10, {v(r1,4)} offset:{8192*q+1024}")
        def xchg_read(dst):
            for w in range(4):
                a(f"ds_read_b128 {v(dst+8*w,4)}, v11 offset:{2048*w}")
                a(f"ds_read_b128 {v(dst+8*w+4,4)}, v11 offset:{2048*w+1024}")
        a("s_waitcnt lgkmcnt(0)")
        xchg_write(YX, T0, True)
        a("s_waitcnt lgkmcnt(0)")
        self.arrive(C_Y, vZ, vONE)
        self.srd(rC, pOUT, 4194304)
        a(f"""s_lshl_b32 {s(sT1)}, {s(sP)}, 13
        s_lshl_b32 {s(sT2)}, {s(sW4)}, 11
        s_add_u32 {s(sT1)}, {s(sT1)}, {s(sT2)}
        s_add_u32 {s(sT1)}, {s(sT1)}, {WS_YT}""")
        self.waitc(C_Y, 4, vZ, vT)
        xchg_read(32)
        a("s_waitcnt lgkmcnt(0)")
        for k in range(0, 16, 2): a(f"v_pk_add_f32 {v(32+k,2)}, {v(32+k,2)}, {v(48+k,2)}")
        for e in range(4):
            a(f"v_cvt_pk_bf16_f32 v{48+2*e}, v{36+e}, v{44+e}")
            a(f"v_cvt_pk_bf16_f32 v{49+2*e}, v{32+e}, v{40+e}")
        for e in range(4):
            a(f"buffer_store_dwordx2 {v(48+2*e,2)}, v{self.pYS}, {s(rWS,4)}, {s(sT1)} offen offset:{256*e} sc1")
        a(f"""s_lshl_b32 {s(sT1)}, {s(sG)}, 6
        s_lshl_b32 {s(sT2)}, {s(sR)}, 2
        s_add_u32 {s(sT1)}, {s(sT1)}, {s(sT2)}
        s_add_u32 {s(sT1)}, {s(sT1)}, {s(sW4)}
        s_lshl_b32 {s(sT1)}, {s(sT1)}, 10
        s_add_u32 {s(sT1)}, {s(sT1)}, {WS_O}
        s_add_u32 {s(sT2)}, {s(sT1)}, 32768
        v_mov_b64 v[20:21], -1
        v_mov_b64 v[22:23], -1
        v_lshlrev_b32 v14, 4, v0
        buffer_store_dwordx4 v[20:23], v14, {s(rWS,4)}, {s(sT1)} offen sc1
        buffer_store_dwordx4 v[20:23], v14, {s(rWS,4)}, {s(sT2)} offen sc1""")
        self.s_publish(C_YT, WS_FLAG4)
        self.stamp(7)
        if self.opt("abl_s") == 7: self.arrive(C_YT, vZ, vONE); self.arrive(C_WO, vZ, vONE); a("s_branch L_end")
        self.stamp(8)
        if self.opt("abl_s") == 8: a("s_branch L_end")
        self.y_poll()
        if self.opt("yby", 2) == 2: self.y_guard(self.y_assemble, self.opt('pary', 0))
        else: self.arrive(C_Y4, vZ, vONE)
        if self.opt("abl_s") == 9: a("s_branch L_end")
        a(f"""s_lshl_b32 {s(sT3)}, {s(sG)}, 16
        s_lshl_b32 {s(sT2)}, {s(sW4)}, 13
        s_add_u32 {s(sT3)}, {s(sT3)}, {s(sT2)}
        s_add_u32 {s(sT3)}, {s(sT3)}, {WS_O}
        s_lshl_b32 {s(sT1)}, {s(sG)}, 17
        s_lshl_b32 {s(sT2)}, {s(sR)}, 7
        s_add_u32 {s(sT1)}, {s(sT1)}, {s(sT2)}
        s_lshl_b32 {s(sT2)}, {s(sW4)}, 14
        s_add_u32 {s(sT1)}, {s(sT1)}, {s(sT2)}
        v_mov_b32 v12, v{self.pOS}
        v_mov_b32 v10, v{self.pOW}
        v_mov_b32 v11, v{self.pOR}""")
        OF = 32; AC = 64
        def oxw():
            for q in range(4):
                a(f"ds_write_b128 v10, {v(AC+8*q,4)} offset:{9344*q}")
                a(f"ds_write_b128 v10, {v(AC+8*q+4,4)} offset:{9344*q+1152}")
        def oxr():
            for w in range(4):
                a(f"ds_read_b128 {v(32+8*w,4)}, v11 offset:{2304*w}")
                a(f"ds_read_b128 {v(36+8*w,4)}, v11 offset:{2304*w+1152}")
        def omm(h):
            for ct in range(2):
                w = WOF + 8 * h + 4 * ct
                a(f"v_mfma_f32_32x32x16_bf16 {v(AC+16*ct,16)}, {v(w,4)}, {v(OF+4*h,4)}, {'0' if h==0 else v(AC+16*ct,16)}")
        if self.opt("rpipe", 3):
            self.rounds_piped(OF, AC, omm, oxw)
            return
        a(f"""s_mov_b32 {s(sT5)}, 0
        v_mov_b32 v16, v1""")
        a.label("L_round")
        a(f"s_add_u32 {s(sT4)}, {s(sT3)}, 4096")
        if self.opt("rst"): self.stamp(3)
        self.waitc(C_OE, 4, 16, vT, slp=1)
        if self.opt("rst"): self.stamp(4)
        LP = self.opt("lightp", 1)
        if LP:
            if LP == 1: a(f"s_cmp_eq_u32 {s(sT5)}, 0\ns_cbranch_scc0 L_opoll")
            a(f"""v_lshlrev_b32 v18, 10, v0
            s_mov_b64 exec, 0xff""")
            a.label("L_lpoll")
            a(f"""buffer_load_dword v19, v18, {s(rWS,4)}, {s(sT3)} offen offset:1020 sc1
            s_waitcnt vmcnt(0)
            v_cmp_eq_u32 vcc, -1, v19
            s_and_b64 exec, exec, vcc
            s_cbranch_execz L_lok
            s_sleep {self.opt('lslp', 0)}
            s_sub_u32 {s(sBUD)}, {s(sBUD)}, 1
            s_cbranch_scc0 L_lpoll
            s_mov_b32 {s(sBUD)}, 0""")
            a.label("L_lok")
            a("s_mov_b64 exec, -1")
        a.label("L_opoll")
        if self.opt("rst"): self.stamp(5)
        for h in range(8): a(f"buffer_load_dwordx4 {v(OF+4*h,4)}, v14, {s(rWS,4)}, {s(sT3 if h<4 else sT4)} offen offset:{1024*(h&3)} sc1")
        for h in range(8):
            a(f"s_waitcnt vmcnt({7-h})")
            b = OF + 4 * h
            a(f"v_max_u32 v15, v{b}, v{b+1}" if h == 0 else f"v_max3_u32 v15, v15, v{b}, v{b+1}")
            if self.opt("ospec", 1): omm(h)
            a(f"v_max3_u32 v15, v15, v{b+2}, v{b+3}")
        a(f"""v_cmp_ne_u32 vcc, -1, v15
        s_cmp_eq_u64 vcc, exec
        s_cbranch_scc1 L_ook
        s_sub_u32 {s(sBUD)}, {s(sBUD)}, 1 ; nocount
        s_cbranch_scc0 L_opoll ; nocount
        s_mov_b32 {s(sBUD)}, 0 ; nocount""")
        a.label("L_ook")
        if self.dbg:
            a(f"s_cmp_eq_u32 {s(sT5)}, 0\ns_cbranch_scc0 L_st10")
            self.stamp(9)
            a.label("L_st10")
            self.stamp(10)
        if not self.opt("ospec", 1):
            for h in range(8): omm(h)
        oxw()
        a("s_waitcnt lgkmcnt(0)")
        self.sync4(C_O1, 16, vONE, vT, slp=0)
        if self.opt("rst"): self.stamp(6)
        oxr()
        a("s_waitcnt lgkmcnt(4)")
        for k in range(0, 8, 2): a(f"v_pk_add_f32 {v(32+k,2)}, {v(32+k,2)}, {v(40+k,2)}")
        a("s_waitcnt lgkmcnt(2)")
        for k in range(0, 8, 2): a(f"v_pk_add_f32 {v(32+k,2)}, {v(32+k,2)}, {v(48+k,2)}")
        a("s_waitcnt lgkmcnt(0)")
        for k in range(0, 8, 2): a(f"v_pk_add_f32 {v(32+k,2)}, {v(32+k,2)}, {v(56+k,2)}")
        for k in range(4): a(f"v_cvt_pk_bf16_f32 v{20+k}, v{32+2*k}, v{33+2*k}")
        a(f"""buffer_store_dwordx4 v[20:23], v12, {s(rC,4)}, {s(sT1)} offen {self.opt_sc('osc', 0)}
        s_cmp_eq_u32 {s(sT5)}, 0
        s_cbranch_scc0 L_end
        s_mov_b32 {s(sT5)}, 1
        s_add_u32 {s(sT3)}, {s(sT3)}, 32768
        s_add_u32 {s(sT1)}, {s(sT1)}, 65536
        v_add_u32 v16, 4, v16
        v_add_u32 v10, {OX2-OX1}, v10
        v_add_u32 v11, {OX2-OX1}, v11
        s_branch L_round""")

    def rounds_piped(self, OF, AC, omm, oxw):
        a = self.a; vL, vZ, vONE, vT = self.vL, self.vZ, self.vONE, self.vT
        def loads():
            for h in range(8): a(f"buffer_load_dwordx4 {v(OF+4*h,4)}, v14, {s(rWS,4)}, {s(sT3 if h<4 else sT4)} offen offset:{1024*(h&3)} sc1")
        def check_mm(Lok):
            for h in range(8):
                a(f"s_waitcnt vmcnt({7-h})")
                b = OF + 4 * h
                a(f"v_max_u32 v15, v{b}, v{b+1}" if h == 0 else f"v_max3_u32 v15, v15, v{b}, v{b+1}")
                omm(h)
                a(f"v_max3_u32 v15, v15, v{b+2}, v{b+3}")
            a(f"""v_cmp_ne_u32 vcc, -1, v15
            s_cmp_eq_u64 vcc, exec
            s_cbranch_scc1 {Lok}""")
        def reduce(dst):
            for w in range(4):
                a(f"ds_read_b128 {v(AC+8*w,4)}, v11 offset:{2304*w}")
                a(f"ds_read_b128 {v(AC+4+8*w,4)}, v11 offset:{2304*w+1152}")
            for w in range(1, 4):
                a(f"s_waitcnt lgkmcnt({6-2*w})")
                for k in range(0, 8, 2): a(f"v_pk_add_f32 {v(AC+k,2)}, {v(AC+k,2)}, {v(AC+8*w+k,2)}")
            for k in range(4): a(f"v_cvt_pk_bf16_f32 v{dst+k}, v{AC+2*k}, v{AC+2*k+1}")
        a(f"s_add_u32 {s(sT4)}, {s(sT3)}, 4096")
        self.waitc(C_OE, 4, vZ, vT, slp=1)
        a(f"""v_lshlrev_b32 v18, 10, v0
        s_mov_b64 exec, 0xff""")
        a.label("L_lpoll")
        a(f"""buffer_load_dword v19, v18, {s(rWS,4)}, {s(sT3)} offen offset:1020 sc1
        s_waitcnt vmcnt(0)
        v_cmp_eq_u32 vcc, -1, v19
        s_and_b64 exec, exec, vcc
        s_cbranch_execz L_lok
        s_sub_u32 {s(sBUD)}, {s(sBUD)}, 1
        s_cbranch_scc0 L_lpoll
        s_mov_b32 {s(sBUD)}, 0""")
        a.label("L_lok")
        a("s_mov_b64 exec, -1")
        a.label("L_o0")
        loads(); check_mm("L_o0ok")
        a(f"""s_sub_u32 {s(sBUD)}, {s(sBUD)}, 1 ; nocount
        s_cbranch_scc0 L_o0 ; nocount
        s_mov_b32 {s(sBUD)}, 0 ; nocount""")
        a.label("L_o0ok")
        self.stamp(9)
        a(f"s_add_u32 {s(sT3)}, {s(sT3)}, 32768\ns_add_u32 {s(sT4)}, {s(sT4)}, 32768")
        if self.opt("rpipe", 3) == 2: loads()
        oxw()
        a("s_waitcnt lgkmcnt(0)")
        self.sync4(C_O1, vZ, vONE, vT, slp=0)
        if self.opt("rpipe", 3) == 1: loads()
        if self.opt("rpipe", 3) == 3:
            a(f"""ds_read_b32 v3, v1 offset:{C_OL}
            s_waitcnt lgkmcnt(0)
            v_readfirstlane_b32 {s(sT5)}, v3
            s_cmp_ge_u32 {s(sT5)}, {self.opt('rthr', 4)}
            s_cbranch_scc0 L_nopf""")
            loads()
            a.label("L_nopf")
        reduce(20)
        if self.opt("rpipe", 3) == 3:
            a(f"s_cmp_ge_u32 {s(sT5)}, {self.opt('rthr', 4)}\ns_cbranch_scc1 L_pfd")
            self.waitc(C_OL, 4, vZ, vT, slp=0)
            loads()
            a.label("L_pfd")
        a(f"v_add_u32 v10, {OX2-OX1}, v10\nv_add_u32 v11, {OX2-OX1}, v11")
        if self.opt("rst"): self.stamp(3)
        a.label("L_o1")
        if self.opt("rst"): self.stamp(5)
        check_mm("L_o1ok")
        n0 = len(a.lines)
        self.waitc(C_OL, 4, vZ, vT, slp=0)
        loads()
        a(f"""s_sub_u32 {s(sBUD)}, {s(sBUD)}, 1
        s_cbranch_scc0 L_o1
        s_mov_b32 {s(sBUD)}, 0
        s_waitcnt vmcnt(0)""")
        for i in range(n0, len(a.lines)):
            l = a.lines[i]
            if not l.endswith(":") and "nocount" not in l and not l.startswith(("v_readfirst", "s_cmp")): a.lines[i] = l + " ; nocount"
        a.label("L_o1ok")
        self.stamp(10)
        a(f"""buffer_store_dwordx4 v[20:23], v12, {s(rC,4)}, {s(sT1)} offen {self.opt_sc('osc', 0)}
        s_add_u32 {s(sT1)}, {s(sT1)}, 65536
        s_nop 7""")
        oxw()
        a("s_waitcnt lgkmcnt(0)")
        if self.opt("fbar", 1): a("s_barrier")
        else: self.sync4(C_O2, vZ, vONE, vT, slp=0)
        if self.opt("rst"): self.stamp(6)
        reduce(24)
        a(f"buffer_store_dwordx4 v[24:27], v12, {s(rC,4)}, {s(sT1)} offen {self.opt_sc('osc', 0)}\ns_branch L_end")

    UG = 64
    pE10, pE9, pE8, pE8p, pCA, pCB, pUC = 146, 147, 148, 149, 156, 157, 166
    pWT, pWD, pYS, pOW, pOR, pOS = 160, 161, 162, 163, 164, 165
    def s_precompute(self):
        a = self.a; sCH, sMH = sLOOP, sSOF
        a(f"""s_mul_i32 s46, {s(sCH)}, {KCH}
        s_add_u32 s46, s46, {R0+256}
        v_and_b32 v16, 7, v0
        v_lshrrev_b32 v17, 5, v0
        v_lshrrev_b32 v18, 3, v0
        v_and_b32 v19, 3, v18
        v_mul_u32_u24 v19, 144, v19
        v_lshl_add_u32 v19, v16, 4, v19
        v_add_u32 v19, s46, v19
        v_lshlrev_b32 v20, 3, v17
        v_sub_u32 v{self.pE10}, v19, v20
        v_mul_u32_u24 v20, 576, v17
        v_add_u32 v{self.pE9}, v19, v20
        v_mul_u32_u24 v19, 144, v18
        v_lshl_add_u32 v19, v16, 4, v19
        v_add_u32 v{self.pE8}, s46, v19
        v_cmp_eq_u32 {s(sT2,2)}, 0, v16
        v_mov_b32 v19, 16
        v_cndmask_b32 v19, v19, 32, {s(sT2,2)}
        v_sub_u32 v{self.pE8p}, v{self.pE8}, v19
        s_mul_i32 {s(sT2)}, {s(sMH)}, 1152
        s_sub_u32 {s(sT3)}, s46, {s(sT2)}
        v_and_b32 v19, 15, v0
        v_mul_u32_u24 v19, 144, v19
        v_bfe_u32 v21, v0, 4, 1
        v_mul_u32_u24 v22, {KCOPY}, v21
        v_add_u32 v19, v19, v22
        v_lshlrev_b32 v22, 4, v17
        v_sub_u32 v19, v19, v22
        v_add_u32 v{self.pCA}, {s(sT3)}, v19
        s_mul_i32 {s(sT2)}, {s(sCH)}, {UCH}
        s_lshl_b32 {s(sT3)}, {s(sMH)}, 10
        s_add_u32 {s(sT2)}, {s(sT2)}, {s(sT3)}
        s_add_u32 {s(sT2)}, {s(sT2)}, {W}
        v_and_b32 v19, 3, v0
        v_mul_u32_u24 v19, {UCOPY}, v19
        v_bfe_u32 v23, v0, 2, 3
        v_lshl_add_u32 v19, v23, 4, v19
        v_add_u32 v19, v19, v22
        v_add_u32 v{self.pCB}, {s(sT2)}, v19
        s_lshl_b32 {s(sT2)}, {s(sW4)}, 10
        s_add_u32 {s(sT2)}, {s(sT2)}, {W}
        v_lshl_add_u32 v{self.pUC}, v0, 4, {s(sT2)}
        v_and_b32 v19, 31, v0
        v_lshlrev_b32 v23, 3, v19
        v_lshl_add_u32 v{self.pYS}, v17, 10, v23
        v_and_b32 v23, 2, v18
        v_lshlrev_b32 v23, 1, v23
        v_xor_b32 v23, v16, v23
        v_lshlrev_b32 v24, 10, v18
        v_lshl_add_u32 v{self.pWD}, v23, 4, v24
        v_bfe_u32 v23, v0, 2, 2
        v_lshl_add_u32 v24, v17, 3, v23
        v_lshlrev_b32 v24, 7, v24
        v_and_b32 v23, 2, v23
        v_lshl_add_u32 v24, v23, 5, v24
        v_lshl_add_u32 v24, v21, 5, v24
        v_and_b32 v25, 1, v0
        v_lshl_add_u32 v24, v25, 4, v24
        v_bfe_u32 v23, v0, 1, 1
        v_lshl_add_u32 v24, v23, 3, v24
        s_lshl_b32 {s(sT2)}, {s(sW4)}, 13
        s_add_u32 {s(sT2)}, {s(sT2)}, {XE}
        v_add_u32 v{self.pWT}, {s(sT2)}, v24
        v_lshl_add_u32 v19, v19, 4, v20
        s_mul_i32 {s(sT2)}, {s(sW4)}, 2304
        s_add_u32 {s(sT2)}, {s(sT2)}, {W}
        v_add_u32 v{self.pOW}, {s(sT2)}, v19
        v_lshlrev_b32 v19, 4, v18
        v_mul_u32_u24 v23, 576, v25
        v_add_u32 v19, v19, v23
        v_bfe_u32 v23, v0, 1, 2
        v_mul_u32_u24 v23, 9344, v23
        v_add_u32 v19, v19, v23
        s_lshl_b32 {s(sT2)}, {s(sW4)}, 7
        s_add_u32 {s(sT2)}, {s(sT2)}, {W}
        v_add_u32 v{self.pOR}, {s(sT2)}, v19
        v_lshlrev_b32 v19, 11, v18
        v_lshl_add_u32 v{self.pOS}, v16, 4, v19""")
    def blk_ids(self, par):
        a = self.a
        a(f"""s_lshr_b32 {s(sT4)}, {s(sP)}, 5
        s_and_b32 {s(sT0)}, {s(sP)}, 31
        s_lshl_b32 {s(sT0)}, {s(sT0)}, 1
        s_and_b32 {s(sT2)}, {s(sW4)}, 1
        s_add_u32 {s(sT0)}, {s(sT0)}, {s(sT2)}""")
        if par:
            a(f"""s_lshr_b32 {s(sT2)}, {s(sW4)}, 1
            s_xor_b32 {s(sT4)}, {s(sT4)}, {s(sT2)}""")
    def swap44(self, b):
        for i in range(4):
            for j in range(i + 1, 4): self.a(f"v_swap_b32 v{b+4*i+j}, v{b+4*j+i}")
    def u_transpose(self):
        a = self.a; B = 96
        self.blk_ids(self.opt("paru", 1))
        a(f"""s_mov_b32 {s(rB)}, {s(pU)}
        s_mov_b32 {s(rB+1)}, {s(pU+1)}
        s_mov_b32 {s(rB+2)}, 2097152
        s_lshl_b32 {s(sT1)}, {s(sT0)}, 15
        s_lshl_b32 {s(sT2)}, {s(sT4)}, 7
        s_add_u32 {s(sT1)}, {s(sT1)}, {s(sT2)}
        v_and_b32 v29, 7, v0
        v_lshrrev_b32 v30, 3, v0
        v_lshlrev_b32 v28, 12, v30
        v_lshl_add_u32 v28, v29, 4, v28""")
        for i in range(4): a(f"buffer_load_dwordx4 {v(B+4*i,4)}, v28, {s(rB,4)}, {s(sT1)} offen offset:{1024*i}")
        a(f"""s_lshl_b32 s47, {s(sT4)}, 18
        s_lshl_b32 {s(sT2)}, {s(sT0)}, 7
        s_add_u32 s47, s47, {s(sT2)}
        s_add_u32 s47, s47, {WS_UT}
        v_lshlrev_b32 v28, 15, v29
        v_lshl_add_u32 v28, v30, 4, v28""")
    def u_transpose2(self):
        a = self.a; B = 96
        a("s_waitcnt vmcnt(0)")
        self.swap44(B)
        for j in range(4):
            if j: a("s_add_u32 s47, s47, 8192")
            a(f"buffer_store_dwordx4 {v(B+4*j,4)}, v28, {s(rWS,4)}, s47 offen sc1")
    def y_poll(self):
        a = self.a
        par = self.opt("pary", 0)
        a(f"""s_lshr_b32 {s(sT4)}, {s(sP)}, {5 + par}
        s_lshl_b32 {s(sT2)}, {s(sT4)}, {12 + par}
        s_add_u32 {s(sT2)}, {s(sT2)}, {WS_FLAG4}""")
        self.s_poll(sT2, 63 if par else 31, slp=8)
    def y_assemble(self):
        a = self.a
        self.srd(rC, pOUT, 4194304)
        self.blk_ids(self.opt("pary", 0))
        a(f"""s_lshl_b32 {s(sT1)}, {s(sT4)}, 18
        s_lshl_b32 {s(sT2)}, {s(sT0)}, 7
        s_add_u32 {s(sT1)}, {s(sT1)}, {s(sT2)}
        s_add_u32 {s(sT1)}, {s(sT1)}, {WS_YT}
        v_and_b32 v5, 7, v0
        v_lshrrev_b32 v6, 3, v0
        v_lshlrev_b32 v4, 15, v6
        v_lshl_add_u32 v4, v5, 4, v4""")
        for i in range(4):
            if i: a(f"s_add_u32 {s(sT1)}, {s(sT1)}, 8192")
            a(f"buffer_load_dwordx4 {v(32+4*i,4)}, v4, {s(rWS,4)}, {s(sT1)} offen sc1")
        a(f"""s_lshl_b32 {s(sT1)}, {s(sT0)}, 16
        s_lshl_b32 {s(sT2)}, {s(sT4)}, 7
        s_add_u32 {s(sT1)}, {s(sT1)}, {s(sT2)}
        s_add_u32 {s(sT1)}, {s(sT1)}, 1024
        s_add_u32 {s(sT2)}, {s(sT1)}, 4096
        v_lshlrev_b32 v4, 13, v5
        v_lshl_add_u32 v4, v6, 4, v4
        s_waitcnt vmcnt(0)""")
        self.swap44(32)
        for t in range(4):
            a(f"buffer_store_dwordx4 {v(32+4*t,4)}, v4, {s(rC,4)}, {s(sT1 if t < 2 else sT2)} offen offset:{2048*(t&1)} {self.opt_sc('ysc', 1)}")
        a("s_nop 1")
    def y_guard(self, f, par):
        L = self.a.newlabel("Ly")
        if par: self.a(f"s_bitcmp0_b32 {s(sP)}, 5\ns_cbranch_scc0 {L}")
        else: self.a(f"s_cmp_ge_u32 {s(sW4)}, 2\ns_cbranch_scc0 {L}")
        f()
        self.a.label(L)
    def opt_sc(self, k, d=0):
        return {0: "", 1: "sc1", 2: "nt", 3: "sc0 sc1"}[self.opt(k, d)]

    def finish(self):
        a = self.a
        a.label("L_end")
        if self.opt("diagm"):
            i = self.opt("diagi", 11)
            a("s_waitcnt vmcnt(0)")
            self.stamp(11)
            a(f"""s_waitcnt lgkmcnt(0)
            s_cmp_eq_u32 {s(sWG)}, {self.opt("diagwg", 100)}
            s_cbranch_scc0 L_exit
            s_cmp_eq_u32 {s(sWAVE)}, {4*[((self.opt('order', 0x201) >> (4*c)) & 3) for c in range(3)].index(self.opt('diagc', 2))}
            s_cbranch_scc0 L_exit
            s_sub_u32 {s(sT0)}, {s(sSTAMP+2*i)}, {s(sSTAMP)}
            s_mul_i32 {s(sT0)}, {s(sT0)}, {self.opt("diagm")}
            s_lshr_b32 {s(sT0)}, {s(sT0)}, {self.opt("diags", 0)}
            s_min_u32 {s(sT0)}, {s(sT0)}, 100000""")
            if self.opt("diagfix"): a(f"s_mov_b32 {s(sT0)}, {self.opt('diagfix')}")
            a.label("L_diag")
            a(f"""s_memrealtime {s(sT2,2)}
            s_waitcnt lgkmcnt(0)
            s_sub_u32 {s(sT1)}, {s(sT2)}, {s(sSTAMP)}
            s_cmp_lt_u32 {s(sT1)}, {s(sT0)}
            s_cbranch_scc1 L_diag""")
        elif self.dbg:
            a("s_waitcnt vmcnt(0)")
            self.stamp(11)
            a(f"""s_waitcnt lgkmcnt(0)
            s_mul_i32 {s(sT0)}, {s(sWG)}, 12
            s_add_u32 {s(sT0)}, {s(sT0)}, {s(sWAVE)}
            s_lshl_b32 {s(sT0)}, {s(sT0)}, 6
            s_add_u32 {s(sT0)}, {s(sT0)}, {WS_STAMP}
            v_mov_b32 v4, 0""")
            for i in range(12): a(f"v_mov_b32 v{8+i}, {s(sSTAMP+2*i)}")
            a(f"v_mov_b32 v20, {s(sBUD)}")
            a("s_mov_b64 exec, 1")
            for i in range(3): a(f"buffer_store_dwordx4 {v(8+4*i,4)}, v4, {s(rWS,4)}, {s(sT0)} offen offset:{16*i}")
            a(f"buffer_store_dword v20, v4, {s(rWS,4)}, {s(sT0)} offen offset:48")
        a.label("L_exit")
        a("s_endpgm")

if __name__ == "__main__":
    ap = argparse.ArgumentParser()
    ap.add_argument("-o", default=f"cdna_kernels/{NAME}.s")
    ap.add_argument("--dbg", action="store_true")
    ap.add_argument("opts", nargs="*")
    args = ap.parse_args()
    opts = {}
    for kv in args.opts:
        k, _, val = kv.partition("=")
        opts[k] = int(val, 0) if val else 1
    open(args.o, "w").write(Gen(args.dbg, opts).build())
```

```python
import sys, struct, argparse
from asmlib import Asm, v, s, hazard_pass, wait_check

NAME = "concat_heads__grouped_kv_mqa__ssm_conv_s4__prompt"
def fbits(x): return "0x%08x" % struct.unpack("<I", struct.pack("<f", x))[0]
import math
LOG2E = math.log2(math.e)

R0   = 0
XE   = 32768
W    = 65536
GEN  = 131072
QB   = 147456
KVR  = 155648
CNT  = 159744
LDS_BYTES = 160000
KCOPY = 6912; KCH = 2 * KCOPY
UCOPY = 4416; UCH = 4 * UCOPY
YX   = W + 37888
OX1  = W
OX2  = YX
PSLOT = 2304
C_KV, C_WQA, C_WQB, C_XL, C_QE, C_QL, C_FL, C_KT0, C_KT1, C_KU, C_Y, C_PE, C_PED, C_PL, C_O1, C_O2, C_OE, C_OL, C_UT, C_YT, C_WQC, C_WQD, C_Y4, C_WO, C_X = [4 * i for i in range(25)]

WS_FLAG = 4096
WS_FLAG2 = 4096 + 32768
WS_FLAG3 = 4096 + 2 * 32768
WS_FLAG4 = 4096 + 3 * 32768
WS_KV   = 147456
KVT     = 2816
V1OFF = 1792
WS_O    = 1 << 19
WS_UT = 6 << 20
WS_YT = 8 << 20
WS_STAMP = 4 << 20
WS_DBG  = 5 << 20
WS_SIZE = 16 << 20

sWG, sWAVE, sG, sR, sP, sW4 = 2, 3, 4, 5, 6, 7
sT0, sT1, sT2, sT3, sT4, sT5 = 8, 9, 10, 11, 12, 13
sCLS = 14; sROT = 15
pX, pWQ, pWK, pWV, pWO, pU, pARE, pAIM, pBRE, pBIM, pCRE, pCIM, pLDT, pDSK, pOUT, pDBG, pWS = [16 + 2 * i for i in range(17)]
sNONCE, sBUD = 50, 51
rA, rB, rC, rWS = 52, 56, 60, 64
sLOOP = 68; sSOF = 69
sSTAMP = 70
OOB = 0x7ff00000

def _qa_waits():
    order = [("w", 0), ("w", 1), ("w", 2)]; out = []
    for sx in range(8):
        i = order.index(("w", sx))
        out.append(2 * (len(order) - 1 - i))
        if sx + 3 < 8: order.append(("w", sx + 3))
        order.append(("x", sx + 8))
    return out
QW = _qa_waits()

class Gen:
    def __init__(self, dbg=False, opts=None):
        self.a = Asm(); self.dbg = dbg; self.o = opts or {}
    def opt(self, k, d=None): return self.o.get(k, d)

    def srd(self, r, p, nbytes):
        a = self.a
        a(f"s_mov_b32 {s(r)}, {s(p)}\ns_mov_b32 {s(r+1)}, {s(p+1)}\ns_mov_b32 {s(r+2)}, {nbytes}\ns_mov_b32 {s(r+3)}, 0x20000")
    def stamp(self, i):
        if self.dbg: self.a(f"{'s_memtime' if self.opt('cyc') else 's_memrealtime'} {s(sSTAMP+2*i,2)}")
    def arrive(self, c, vz, vone):
        self.a(f"s_mov_b64 exec, 1\nds_add_u32 {v(vz)}, {v(vone)} offset:{c}\ns_mov_b64 exec, -1")
    def arrive_rtn(self, c, vz, vone, vt):
        self.a(f"""s_mov_b64 exec, 1
        ds_add_rtn_u32 {v(vt)}, {v(vz)}, {v(vone)} offset:{c}
        s_mov_b64 exec, -1
        s_waitcnt lgkmcnt(0)
        v_readfirstlane_b32 {s(sT0)}, {v(vt)}
        s_cmp_eq_u32 {s(sT0)}, 3""")
    def sync4(self, c, vz, vone, vt, slp=0):
        D = self.a.newlabel("Ls")
        self.arrive_rtn(c, vz, vone, vt)
        self.a(f"s_cbranch_scc1 {D}")
        n0 = len(self.a.lines)
        self.waitc(c, 4, vz, vt, slp)
        for i in range(n0, len(self.a.lines)):
            l = self.a.lines[i]
            if not l.endswith(":") and "nocount" not in l and not l.startswith(("v_readfirst", "s_cmp")): self.a.lines[i] = l + " ; nocount"
        self.a.label(D)
    def waitc(self, c, n, vz, vt, slp=1):
        a = self.a; L = a.newlabel("Lw"); D = a.newlabel("Ld")
        a.label(L)
        a(f"""ds_read_b32 {v(vt)}, {v(vz)} offset:{c}
        s_waitcnt lgkmcnt(0)
        v_readfirstlane_b32 {s(sT0)}, {v(vt)}
        s_cmp_ge_u32 {s(sT0)}, {n}
        s_cbranch_scc1 {D}
        s_sleep {slp} ; nocount
        s_sub_u32 {s(sBUD)}, {s(sBUD)}, 1 ; nocount
        s_cbranch_scc0 {L} ; nocount
        s_mov_b32 {s(sBUD)}, 0 ; nocount""")
        a.label(D)
    def s_publish(self, cnt, base):
        a = self.a; L = a.newlabel("Lpub")
        a("s_waitcnt vmcnt(0)")
        self.arrive_rtn(cnt, self.vZ, self.vONE, self.vT)
        a(f"s_cbranch_scc0 {L}")
        a(f"""s_lshl_b32 {s(sT2)}, {s(sP)}, 7
        s_add_u32 {s(sT2)}, {s(sT2)}, {base}
        v_mov_b32 v18, 0
        s_mov_b64 exec, 1
        buffer_store_dword v167, v18, {s(rWS,4)}, {s(sT2)} offen sc1
        s_mov_b64 exec, -1""")
        a.label(L)
    def s_poll(self, sbase, mask, slp=4):
        a = self.a; Lp = a.newlabel("Lpoll"); Lo = a.newlabel("Lok")
        a(f"v_lshlrev_b32 v18, 7, v0\ns_mov_b64 exec, {hex((1 << (mask + 1)) - 1) if mask < 63 else -1}")
        a.label(Lp)
        a(f"""buffer_load_dword v19, v18, {s(rWS,4)}, {s(sbase)} offen sc1
        s_waitcnt vmcnt(0)
        v_cmp_ne_u32 vcc, v167, v19
        s_and_b64 exec, exec, vcc
        s_cbranch_execz {Lo}
        s_sleep {slp} ; nocount
        s_sub_u32 {s(sBUD)}, {s(sBUD)}, 1 ; nocount
        s_cbranch_scc0 {Lp} ; nocount
        s_mov_b32 {s(sBUD)}, 0 ; nocount""")
        a.label(Lo)
        a("s_mov_b64 exec, -1")
    def cmul(self, d, x, m, t):
        self.a(f"v_pk_mul_f32 {v(t,2)}, {v(x,2)}, {v(m,2)} op_sel_hi:[1,0]")
        self.a(f"v_pk_fma_f32 {v(d,2)}, {v(x,2)}, {v(m,2)}, {v(t,2)} op_sel:[1,1,0] op_sel_hi:[0,1,1] neg_lo:[0,1,0]")

    def build(self):
        a = self.a
        self.entry()
        self.role_late_start()
        self.role_early_start()
        self.qproj_and_attention()
        self.role_s()
        self.finish()
        lines, n = hazard_pass(a.lines, verbose=self.opt("vhz"))
        for r_ in wait_check(lines):
            if "s37" not in r_: print("WAIT:", r_, file=sys.stderr)
        body = "\n".join(l if l.endswith(":") or l.startswith(".") else "    " + l for l in lines)
        head = f"""; Fused MQA attention + S4 long convolution in one persistent launch (emitted by my generator, gen/gen.py).
; @launch grid=(256,1,1) block=(768,1,1) lds={LDS_BYTES}
.amdgcn_target "amdgcn-amd-amdhsa--gfx950"
.text
.globl {NAME}_kernel
.p2align 8
.type {NAME}_kernel,@function
{NAME}_kernel:
"""
        tail = f"""
.section .rodata,"a"
.p2align 6
.amdhsa_kernel {NAME}_kernel
  .amdhsa_next_free_vgpr 168
  .amdhsa_next_free_sgpr 98
  .amdhsa_accum_offset 168
  .amdhsa_group_segment_fixed_size 0
  .amdhsa_kernarg_size 136
  .amdhsa_user_sgpr_count 2
  .amdhsa_user_sgpr_kernarg_segment_ptr 1
  .amdhsa_system_sgpr_workgroup_id_x 1
  .amdhsa_float_denorm_mode_32 3
.end_amdhsa_kernel
"""
        return head + body + tail

    vL, vZ, vONE, vT = 0, 1, 2, 3

    def entry(self):
        a = self.a
        if self.dbg:
            for i in range(12): a(f"s_mov_b64 {s(sSTAMP+2*i,2)}, 0")
        self.stamp(0)
        a(f"""s_cmp_ge_u32 s2, 256
        s_cbranch_scc1 L_exit
        s_xor_b32 s2, s2, {self.opt('wgxor', 0)}
        s_load_dwordx16 s[16:31], s[0:1], 0
        s_load_dwordx16 s[32:47], s[0:1], 64
        s_load_dwordx2 s[48:49], s[0:1], 128
        v_lshrrev_b32 v3, 6, v0
        v_and_b32 v0, 63, v0
        v_readfirstlane_b32 {s(sWAVE)}, v3
        v_mov_b32 v1, {CNT}
        v_mov_b32 v2, 1
        s_and_b32 {s(sT0)}, s2, 7
        s_lshr_b32 {s(sT1)}, s2, 3
        s_lshl_b32 {s(sG)}, {s(sT0)}, 2
        s_lshr_b32 {s(sT2)}, {s(sT1)}, 3
        s_add_u32 {s(sG)}, {s(sG)}, {s(sT2)}
        s_and_b32 {s(sR)}, {s(sT1)}, 7
        s_xor_b32 {s(sR)}, {s(sR)}, {self.opt('rxor', 0)}
        s_lshl_b32 {s(sP)}, {s(sT0)}, 5
        s_add_u32 {s(sP)}, {s(sP)}, {s(sT1)}
        s_and_b32 {s(sROT)}, {s(sT1)}, 15
        s_mov_b32 {s(sBUD)}, 200000
        s_and_b32 {s(sW4)}, {s(sWAVE)}, 3
        s_lshr_b32 {s(sCLS)}, {s(sWAVE)}, 2
        s_lshl_b32 {s(sCLS)}, {s(sCLS)}, 2
        s_lshr_b32 {s(sCLS)}, {self.opt('order', 0x201)}, {s(sCLS)}
        s_and_b32 {s(sCLS)}, {s(sCLS)}, 3
        s_mov_b32 {s(rWS+2)}, {WS_SIZE}
        s_mov_b32 {s(rWS+3)}, 0x20000
        s_mov_b32 {s(rA+3)}, 0x20000
        s_mov_b32 {s(rB+3)}, 0x20000
        s_cmp_eq_u32 {s(sCLS)}, 2
        s_cbranch_scc1 L_role_s
        s_mov_b32 {s(rA+2)}, 2097152
        s_cmp_eq_u32 {s(sCLS)}, 0
        s_cbranch_scc1 L_role_early""")
    def ptrs_ready(self, x=True, nonce=False):
        a = self.a
        a(f"""s_waitcnt lgkmcnt(0)
        s_mov_b32 {s(rWS)}, {s(pWS)}
        s_mov_b32 {s(rWS+1)}, {s(pWS+1)}""")
        if x: a(f"""s_mov_b32 {s(rA)}, {s(pX)}
        s_mov_b32 {s(rA+1)}, {s(pX+1)}""")
        if nonce: a(f"s_load_dword {s(sNONCE)}, {s(pWS,2)}, 0")

    def role_late_start(self):
        a = self.a; vL, vZ, vONE, vT = self.vL, self.vZ, self.vONE, self.vT
        a("s_setprio 3")
        a(f"""s_and_b32 {s(sT0)}, {s(sR)}, 3
        s_lshl_b32 {s(sT1)}, {s(sG)}, 2
        s_add_u32 {s(sT1)}, {s(sT1)}, {s(sT0)}
        s_lshl_b32 {s(sT1)}, {s(sT1)}, 14
        s_lshl_b32 {s(sT2)}, {s(sW4)}, 8
        s_add_u32 {s(sT1)}, {s(sT1)}, {s(sT2)}
        v_and_b32 v4, 15, v0
        v_lshrrev_b32 v5, 4, v0
        v_lshlrev_b32 v6, 10, v4
        v_lshl_add_u32 v6, v5, 4, v6
        s_lshl_b32 {s(sT2)}, {s(sW4)}, 12
        v_lshrrev_b32 v7, 4, v0
        v_and_b32 v7, 1, v7
        v_lshlrev_b32 v7, 7, v7
        v_lshlrev_b32 v24, 4, v0
        v_xor_b32 v7, v7, v24
        s_add_u32 m0, {s(sT2)}, {R0}
        s_mov_b32 {s(rB+2)}, 16384""")
        self.ptrs_ready(nonce=True)
        for k in range(4):
            a(f"buffer_load_dwordx4 {v(8+4*k,4)}, v6, {s(rA,4)}, {s(sT1)} offen offset:{64*k}")
        a(f"""s_cmp_ge_u32 {s(sR)}, 4
        s_cselect_b32 {s(rB)}, {s(pWV)}, {s(pWK)}
        s_cselect_b32 {s(rB+1)}, {s(pWV+1)}, {s(pWK+1)}""")
        for k in range(4):
            a(f"buffer_load_dwordx4 v7, {s(rB,4)}, {s(sT2)} offen offset:{1024*k} lds")
        TOUCH = self.opt("touch", 0)
        if TOUCH == 1:
            a(f"""s_lshl_b32 {s(sT3)}, {s(sG)}, 3
            s_add_u32 {s(sT3)}, {s(sT3)}, {s(sR)}
            s_lshl_b32 {s(sT3)}, {s(sT3)}, {self.opt('fsh', 5)}
            v_mov_b32 v29, {WS_FLAG}
            s_mov_b64 exec, 1
            buffer_load_dword v30, v29, {s(rWS,4)}, {s(sT3)} offen sc1
            s_mov_b64 exec, -1""")
        if TOUCH == 2:
            a(f"""s_lshl_b32 {s(sT3)}, {s(sG)}, 3
            s_add_u32 {s(sT3)}, {s(sT3)}, {s(sR)}
            s_lshl_b32 {s(sT3)}, {s(sT3)}, {self.opt('fsh', 5)}
            s_add_u32 {s(sT3)}, {s(sT3)}, {WS_FLAG}
            s_bfe_u32 {s(sT4)}, {s(sR)}, 0x10001
            s_lshl_b32 {s(sT5)}, {s(sG)}, 1
            s_add_u32 {s(sT4)}, {s(sT4)}, {s(sT5)}
            s_mul_i32 {s(sT4)}, {s(sT4)}, {KVT}
            s_add_u32 {s(sT4)}, {s(sT4)}, {WS_KV}
            v_lshlrev_b32 v29, 7, v0
            v_add_u32 v29, {s(sT4)}, v29
            v_writelane_b32 v29, {s(sT3)}, 18
            s_mov_b64 exec, 0x7ffff
            buffer_load_dword v30, v29, {s(rWS,4)}, 0 offen sc1
            s_mov_b64 exec, -1""")
        a(f"""v_bfe_u32 v25, v0, 2, 2
        v_lshl_add_u32 v25, v5, 3, v25
        v_and_b32 v26, 1, v5
        v_lshl_add_u32 v25, v26, 2, v25
        v_lshlrev_b32 v25, 5, v25
        v_and_b32 v26, 3, v0
        v_lshl_add_u32 v25, v26, 3, v25
        v_add_u32 v25, {s(sT2)}, v25
        v_xor_b32 v26, 0x80, v25
        s_mov_b32 s41, 0""")
        if self.opt("lbar", 3) == 1: a("s_barrier")
        self.qproj()
        if self.opt("tsplit", 1):
            a(f"""s_and_b32 {s(sT1)}, {s(sR)}, 1
            s_lshl_b32 {s(sT1)}, {s(sT1)}, 14
            s_lshl_b32 {s(sT3)}, {s(sW4)}, 8
            s_add_u32 {s(sT1)}, {s(sT1)}, {s(sT3)}""")
            for k in range(4): a(f"v_add_u32 v{64+k}, {s(sT1)}, v{152+k}")
        if self.opt("lbar", 3) == 2: a("s_barrier")
        if self.opt("lhoist", 1): self.att_addr(158, 159, 72, False)
        if self.opt("lbar", 3) == 0: a("s_barrier")
        a(f"""        s_waitcnt vmcnt({1 if TOUCH else 0}) lgkmcnt(0)""")
        self.stamp(1)
        for k in range(4):
            a(f"ds_read_b64_tr_b16 {v(32+4*k,2)}, v25 offset:{R0+1024*k}")
            a(f"ds_read_b64_tr_b16 {v(34+4*k,2)}, v26 offset:{R0+1024*k}")
        a(f"""s_cmp_ge_u32 {s(sR)}, 4
        s_cbranch_scc1 L_kv_v""")
        for k in range(4):
            a(f"s_waitcnt lgkmcnt({6-2*k})")
            a(f"v_mfma_f32_16x16x32_bf16 v[48:51], {v(32+4*k,4)}, {v(8+4*k,4)}, {'0' if k==0 else 'v[48:51]'}")
        a("s_branch L_kv_j")
        a.label("L_kv_v")
        for k in range(4):
            a(f"s_waitcnt lgkmcnt({6-2*k})")
            a(f"v_mfma_f32_16x16x32_bf16 v[48:51], {v(8+4*k,4)}, {v(32+4*k,4)}, {'0' if k==0 else 'v[48:51]'}")
        a.label("L_kv_j")
        if self.opt("lbar", 3) == 3: a("s_barrier")
        a(f"""s_lshl_b32 {s(sT2)}, {s(sW4)}, 10
        s_add_u32 {s(sT2)}, {s(sT2)}, {KVR}
        v_add_u32 v27, {s(sT2)}, v24
        s_add_u32 {s(sT3)}, {s(sNONCE)}, 0x9e3779b9
        v_mov_b32 v28, {s(sT3)}
        ds_write_b32 v1, v28 offset:128
        s_nop 3
        ds_write_b128 v27, v[48:51]
        s_waitcnt lgkmcnt(0)""")
        self.arrive_rtn(C_KV, vZ, vONE, vT)
        self.stamp(7)
        a("s_cbranch_scc0 L_kv_done")
        a(f"""v_add_u32 v27, {KVR}, v24
        ds_read_b128 v[48:51], v27
        ds_read_b128 v[52:55], v27 offset:1024
        ds_read_b128 v[56:59], v27 offset:2048
        ds_read_b128 v[60:63], v27 offset:3072
        s_cmp_ge_u32 {s(sR)}, 4
        s_cselect_b32 {s(sT2)}, 1.0, {fbits(0.25*LOG2E)}
        s_cselect_b32 {s(sT3)}, 1024, 0
        s_cselect_b32 {s(sT4)}, 6, 4
        s_lshl_b32 {s(sT4)}, {s(sT4)}, 7
        s_bitcmp1_b32 {s(sR)}, 0
        s_cselect_b32 {s(sT4)}, {s(sT4)}, 0
        s_add_u32 {s(sT3)}, {s(sT3)}, {s(sT4)}
        s_bfe_u32 {s(sT4)}, {s(sR)}, 0x10001
        s_lshl_b32 {s(sT5)}, {s(sG)}, 1
        s_add_u32 {s(sT4)}, {s(sT4)}, {s(sT5)}
        s_mul_i32 {s(sT4)}, {s(sT4)}, {KVT}
        s_add_u32 {s(sT3)}, {s(sT3)}, {s(sT4)}
        s_add_u32 {s(sT3)}, {s(sT3)}, {WS_KV}
        v_lshlrev_b32 v6, 5, v4
        v_lshl_add_u32 v6, v5, 3, v6
        s_waitcnt lgkmcnt(0)""")
        for i in range(4): a(f"v_add_f32 v{48+i}, v{48+i}, v{52+i}")
        for i in range(4): a(f"v_add_f32 v{56+i}, v{56+i}, v{60+i}")
        for i in range(4): a(f"v_add_f32 v{48+i}, v{48+i}, v{56+i}")
        for i in range(4): a(f"v_mul_f32 v{48+i}, {s(sT2)}, v{48+i}")
        a(f"""v_cvt_pk_bf16_f32 v52, v48, v49
        v_cvt_pk_bf16_f32 v53, v50, v51
        buffer_store_dwordx2 v[52:53], v6, {s(rWS,4)}, {s(sT3)} offen sc1""")
        if self.opt("ib", 1):
            a(f"""v_add_u32 v56, v52, v53
            v_add_u32 v57, v52, v53
            s_add_u32 {s(sT5)}, {s(sNONCE)}, 0x9e3779b9
            s_and_b32 {s(sT2)}, {s(sR)}, 1
            s_mul_i32 {s(sT2)}, {s(sT2)}, 384
            s_sub_u32 {s(sT2)}, 2560, {s(sT2)}
            v_permlane16_swap_b32 v56, v57
            s_cmp_ge_u32 {s(sR)}, 4
            s_cselect_b32 {s(sT2)}, 640, {s(sT2)}
            s_add_u32 {s(sT2)}, {s(sT2)}, {s(sT3)}
            v_add_u32 v56, v56, v57
            v_sub_u32 v56, {s(sT5)}, v56
            v_lshrrev_b32 v57, 5, v0
            v_lshlrev_b32 v57, 2, v57
            v_lshl_add_u32 v57, v4, 3, v57
            s_mov_b32 exec_lo, 0xffff
            s_mov_b32 exec_hi, 0xffff
            buffer_store_dword v56, v57, {s(rWS,4)}, {s(sT2)} offen sc1
            s_mov_b64 exec, -1""")
        a(f"""s_cmp_ge_u32 {s(sR)}, 4
        s_cbranch_scc0 L_kv_noones
        v_mov_b32 v54, 0x3f803f80
        v_mov_b32 v55, 0x3f803f80""")
        if self.opt("ib", 1):
            a(f"""s_sub_u32 {s(sT5)}, {s(sT5)}, {(4 * 0x3f803f80) & 0xffffffff}
            v_writelane_b32 v54, {s(sT5)}, 4
            v_writelane_b32 v55, {s(sT5)}, 4""")
        a(f"""v_lshlrev_b32 v7, 3, v0
        s_mov_b64 exec, 0xffff
        buffer_store_dwordx2 v[54:55], v7, {s(rWS,4)}, {s(sT3)} offen offset:512 sc1
        s_mov_b64 exec, -1""")
        a.label("L_kv_noones")
        self.stamp(8)
        if self.opt("wq1", 8) < 16: self.arrive(C_WQD, vZ, vONE)
        a("s_mov_b32 s41, 1")
        a.label("L_kv_done")
        if self.opt("tsplit", 1):
            for k in range(4): a(f"ds_write_b128 v{64+k}, {v(8+4*k,4)}")
            a("s_waitcnt lgkmcnt(0)")
            self.arrive(C_X, vZ, vONE)
        if self.opt("flagat", 0) == 0: self.kv_flag()
        self.stamp(2)
        self.qproj_run()
        a("s_branch L_att_setup")
    def kv_flag(self):
        a = self.a; L = a.newlabel("Lkf")
        a(f"""s_cmp_eq_u32 s41, 1
        s_cbranch_scc0 {L}
        s_lshl_b32 {s(sT2)}, {s(sG)}, 3
        s_add_u32 {s(sT2)}, {s(sT2)}, {s(sR)}
        s_lshl_b32 {s(sT2)}, {s(sT2)}, {self.opt('fsh', 5)}
        s_add_u32 {s(sT2)}, {s(sT2)}, {WS_FLAG}
        s_add_u32 {s(sT3)}, {s(sNONCE)}, 0x9e3779b9
        v_mov_b32 v74, {s(sT3)}
        v_mov_b32 v75, 0
        s_waitcnt vmcnt(0)
        s_mov_b64 exec, 1
        buffer_store_dword v74, v75, {s(rWS,4)}, {s(sT2)} offen sc1
        s_mov_b64 exec, -1""")
        if self.opt("wq1", 8) < 16 and self.opt("wqn", 1) == 2: self.arrive(C_WQD, self.vZ, self.vONE)
        a.label(L)

    def l2_prefetch(self, srd, mode, vt, vd, st):
        a = self.a
        a(f"s_and_b32 {s(st)}, {s(sP)}, 31")
        if mode == 1:
            a(f"""s_lshl_b32 {s(st)}, {s(st)}, 2
            s_add_u32 {s(st)}, {s(st)}, {s(sW4)}
            s_lshl_b32 {s(st)}, {s(st)}, 12
            v_lshlrev_b32 v{vt}, 10, v0
            s_mov_b64 exec, 0xf
            buffer_load_dword v{vd}, v{vt}, {s(srd,4)}, {s(st)} offen offset:384
            s_mov_b64 exec, -1""")
        else:
            a(f"""s_lshl_b32 {s(st)}, {s(st)}, 2
            s_add_u32 {s(st)}, {s(st)}, {s(sW4)}
            s_lshl_b32 {s(st)}, {s(st)}, 12
            v_lshlrev_b32 v{vt}, 7, v0
            s_mov_b64 exec, 0xffffffff
            buffer_load_dword v{vd}, v{vt}, {s(srd,4)}, {s(st)} offen
            s_mov_b64 exec, -1""")
    def s_prefetch(self, p, soff, n, stride):
        a = self.a
        a(f"s_add_u32 s96, {s(p)}, {s(soff)}\ns_addc_u32 s97, {s(p+1)}, 0")
        for i in range(n): a(f"s_load_dword s{94 + (i & 1)}, s[96:97], {i*stride}")
    def x_dma(self, lds, row0):
        a = self.a
        if self.opt("tsplit", 1):
            half = row0 == 0
            n = 4 if half else 8
            a(f"""s_bfe_u32 {s(sT3)}, {s(sR)}, 0x10001
            s_xor_b32 {s(sT3)}, {s(sT3)}, {row0 // 32}
            s_lshl_b32 {s(sT3)}, {s(sT3)}, 15
            s_lshl_b32 {s(sT1)}, {s(sG)}, 16
            s_add_u32 {s(sT1)}, {s(sT1)}, {s(sT3)}
            s_lshl_b32 {s(sT2)}, {s(sW4)}, {12 if half else 13}""")
            if half:
                a(f"""s_and_b32 {s(sT3)}, {s(sR)}, 1
                s_xor_b32 {s(sT3)}, {s(sT3)}, 1
                s_lshl_b32 {s(sT3)}, {s(sT3)}, 14
                s_add_u32 {s(sT2)}, {s(sT2)}, {s(sT3)}
                s_lshl_b32 {s(sT3)}, {s(sW4)}, 6""")
            else:
                a(f"""s_and_b32 {s(sT3)}, {s(sW4)}, 1
                s_lshl_b32 {s(sT3)}, {s(sT3)}, 7""")
            a(f"""s_add_u32 {s(sT1)}, {s(sT1)}, {s(sT2)}
            s_add_u32 m0, {s(sT2)}, {lds}
            v_lshlrev_b32 v12, 4, v0
            v_xor_b32 v12, {s(sT3)}, v12""")
        else:
            n = 8
            a(f"""s_lshl_b32 {s(sT1)}, {s(sG)}, 16
            s_lshl_b32 {s(sT2)}, {s(sW4)}, 13
            s_add_u32 {s(sT1)}, {s(sT1)}, {s(sT2)}
            s_add_u32 {s(sT1)}, {s(sT1)}, {row0*1024}
            s_add_u32 m0, {s(sT2)}, {lds}
            s_and_b32 {s(sT3)}, {s(sW4)}, 1
            s_lshl_b32 {s(sT3)}, {s(sT3)}, 7
            v_lshlrev_b32 v12, 4, v0
            v_xor_b32 v12, {s(sT3)}, v12""")
        for i in range(n):
            if i == 4:
                a(f"s_add_u32 {s(sT1)}, {s(sT1)}, 4096\ns_add_u32 m0, m0, 4096")
            if i == 0:
                a(f"buffer_load_dwordx4 v12, {s(rA,4)}, {s(sT1)} offen lds")
            else:
                a(f"v_xor_b32 v{13+(i&1)}, {16*i}, v12")
                a(f"buffer_load_dwordx4 v{13+(i&1)}, {s(rA,4)}, {s(sT1)} offen offset:{1024*(i&3)} lds")

    def role_early_start(self):
        a = self.a; vL, vZ, vONE, vT = self.vL, self.vZ, self.vONE, self.vT
        a.label("L_role_early")
        a(f"""s_setprio 3
        v_lshl_add_u32 v4, v0, 2, v1
        v_mov_b32 v5, 0
        ds_write_b32 v4, v5""")
        self.ptrs_ready()
        if self.opt("ipf", 0):
            a(f"""s_getpc_b64 {s(sT2,2)}""")
            a.label("L_pc")
            a(f"""s_and_b32 {s(sT0)}, {s(sP)}, 31
            s_lshl_b32 {s(sT0)}, {s(sT0)}, 2
            s_add_u32 {s(sT0)}, {s(sT0)}, {s(sW4)}
            s_lshl_b32 {s(sT0)}, {s(sT0)}, 7
            s_min_u32 {s(sT0)}, {s(sT0)}, L_exit-L_pc-128
            s_and_b32 {s(sT0)}, {s(sT0)}, -4
            s_add_u32 {s(sT2)}, {s(sT2)}, {s(sT0)}
            s_addc_u32 {s(sT3)}, {s(sT3)}, 0
            s_load_dword s94, {s(sT2,2)}, 0
            s_load_dword s95, {s(sT2,2)}, 64""")
        if not self.opt("barx", 1): a("s_barrier")
        if self.opt("est0"): self.stamp(2)
        a(f"""s_mov_b32 {s(rB)}, {s(pWQ)}
        s_mov_b32 {s(rB+1)}, {s(pWQ+1)}
        s_mov_b32 {s(rB+2)}, 524288""")
        if self.opt("esetup", 2) == 1: self.att_setup()
        if self.opt("est0"): self.stamp(3)
        if self.opt("wqpf", 3) in (1, 2): self.l2_prefetch(rB, self.opt("wqpf", 3), 10, 11, sT4)
        self.x_dma(XE, 0)
        if self.opt("wqpf", 3) in (3, 4): self.l2_prefetch(rB, self.opt("wqpf", 3) - 2, 10, 11, sT4)
        a(f"""v_lshrrev_b32 v15, 3, v0
        v_and_b32 v16, 7, v0
        v_and_b32 v17, 2, v15
        v_xor_b32 v16, v16, v17
        s_and_b32 {s(sT3)}, {s(sW4)}, 1
        s_lshl_b32 {s(sT3)}, {s(sT3)}, 2
        v_xor_b32 v16, {s(sT3)}, v16
        v_lshlrev_b32 v15, 10, v15
        v_lshl_add_u32 v15, v16, 4, v15
        s_lshl_b32 {s(sT1)}, {s(sW4)}, 13
        s_lshl_b32 {s(sT2)}, {s(sR)}, 7
        s_add_u32 {s(sT1)}, {s(sT1)}, {s(sT2)}
        s_lshl_b32 {s(sT2)}, {s(sW4)}, 10
        s_add_u32 m0, {s(sT2)}, {W}""")
        self.stamp(7)
        def setup_keep():
            a(f"s_mov_b32 s42, {s(sT1)}"); self.att_setup(); a(f"s_mov_b32 {s(sT1)}, s42")
        if self.opt("esetup", 2) == 2 and not self.opt("wq0", 0): setup_keep()
        if self.opt("barx", 1) and not self.opt("wq0", 0): a("s_barrier")
        if self.opt("xwait", 0): a("s_waitcnt vmcnt(0)")
        self.stamp(8)
        for i in range(16):
            if i and i == self.opt("wq0", 0):
                if self.opt("esetup", 2) == 2: setup_keep()
                if self.opt("barx", 1): a("s_barrier")
            if i == min(self.opt("wq1", 8), 8):
                a(f"s_waitcnt vmcnt({i + (1 if self.opt('wqpf', 3) in (3, 4) else 0)})")
                self.arrive(C_X, vZ, vONE)
            if i == self.opt("wq1", 8): self.waitc(C_WQD, self.opt("wqn", 1), vZ, vT, slp=1)
            if i == 8 + self.opt("wqa", 8):
                a(f"s_waitcnt vmcnt({i - 8})")
                self.arrive(C_WQA, vZ, vONE)
            a(f"buffer_load_dwordx4 v15, {s(rB,4)}, {s(sT1)} offen lds")
            if i < 15: a(f"s_add_u32 m0, m0, 4096\ns_add_u32 {s(sT1)}, {s(sT1)}, 32768")
        self.stamp(1)
        self.waitc(C_KV, 4, vZ, vT, slp=1)
        a("ds_read_b32 v103, v1 offset:128")
        if not self.opt("esetup", 2): self.att_setup()
        a(f"""s_waitcnt lgkmcnt(0)
        v_readfirstlane_b32 {s(sNONCE)}, v103""")
        if self.opt("wqa", 8) >= 8:
            a("s_waitcnt vmcnt(8)")
            self.arrive(C_WQA, vZ, vONE)
            if self.opt("qst"): self.stamp(2)
        IB = self.opt("ib", 1)
        if IB and self.opt("ibat", 1) == 0:
            self.val_loads(); a("s_waitcnt vmcnt(12)")
        else:
            a("s_waitcnt vmcnt(0)")
        self.arrive(C_WQB, vZ, vONE)
        self.stamp(10)
        if IB:
            if self.opt("ibat", 1) == 0: a("s_branch L_val_chk")
            a.label("L_val")
            self.val_loads()
            a.label("L_val_chk")
            KA = self.KA
            for f in range(6):
                b = KA + 4 * f; acc = 93 if f % 3 == 0 else 94
                a(f"""s_waitcnt vmcnt({10 - 2*f})
                v_add3_u32 v95, v{b}, v{b+1}, v{b+2}
                v_add3_u32 v95, v95, v{b+3}, v{97+f}""")
                if f < 2: a(f"v_xor_b32 v{acc}, v103, v95")
                else: a(f"v_bitop3_b32 v{acc}, v{acc}, v95, v103 bitop3:0xf6")
            a(f"""v_cmp_ne_u32 {s(sT2,2)}, 0, v94
            v_cmp_ne_u32 vcc, 0, v93
            s_and_b32 {s(sT2)}, {s(sT2)}, 0x11ffff
            s_and_b32 {s(sT3)}, {s(sT3)}, 0x11ffff
            s_or_b64 vcc, vcc, {s(sT2,2)}
            s_cbranch_scc0 L_val_ok
            s_sub_u32 {s(sBUD)}, {s(sBUD)}, 1
            s_cbranch_scc0 L_val
            s_mov_b32 {s(sBUD)}, 0""")
            a.label("L_val_ok")
            self.stamp(4)
            if not self.opt("lpoll", 0):
                if self.opt("pwait", 0): self.waitc(C_QE, self.opt("pwait", 0), vZ, vT, slp=self.opt('qslp', 0))
                a(f"""s_lshl_b32 s40, {s(sW4)}, {6 + self.opt('fsh', 5)}
                s_add_u32 s40, s40, {WS_FLAG}
                v_lshlrev_b32 v144, {self.opt('fsh', 5)}, v0
                buffer_load_dword v145, v144, {s(rWS,4)}, s40 offen sc1""")
            a("s_branch L_att_go")
        else:
            a(f"s_mov_b32 {s(sT3)}, {s(sNONCE)}")
            self.stamp(2); self.flag_poll()
            self.stamp(4)
            self.prologue_loads()
            self.arrive(C_FL, vZ, vONE)
            a("s_branch L_att_go")

    Q0, O0, S0, KA = 8, 24, 88, 120
    vKO, vVO, vIDX = 4, 5, 6
    def qproj(self):
        a = self.a; vL, vZ, vONE, vT = self.vL, self.vZ, self.vONE, self.vT
        WF = 76; XA = 152; AC = 140
        a(f"""v_xor_b32 v6, v4, v5
        v_lshlrev_b32 v6, 4, v6
        v_lshl_add_u32 v6, v4, 10, v6
        v_add_u32 v{XA}, {XE}, v6
        v_xor_b32 v{XA+1}, 64, v{XA}
        v_xor_b32 v{XA+2}, 0x80, v{XA}
        v_xor_b32 v{XA+3}, 0xc0, v{XA}
        v_bfe_u32 v6, v0, 2, 2
        v_lshl_add_u32 v7, v5, 3, v6
        v_lshlrev_b32 v7, 7, v7
        v_and_b32 v6, 2, v6
        v_and_b32 v72, 1, v5
        v_lshl_add_u32 v6, v72, 2, v6
        s_lshl_b32 {s(sT1)}, {s(sW4)}, 1
        v_xor_b32 v6, {s(sT1)}, v6
        v_lshl_add_u32 v7, v6, 4, v7
        v_and_b32 v6, 3, v0
        v_lshl_add_u32 v7, v6, 3, v7
        v_add_u32 v{XA+4}, {W}, v7
        v_lshrrev_b32 v6, 1, v5
        v_lshlrev_b32 v6, 9, v6
        v_lshl_add_u32 v6, v4, 4, v6
        v_lshl_add_u32 v6, v72, 3, v6
        s_lshl_b32 {s(sT1)}, {s(sW4)}, 10
        s_add_u32 {s(sT1)}, {s(sT1)}, {QB}
        v_add_u32 v{XA+5}, {s(sT1)}, v6""")
    def qproj_run(self):
        a = self.a; vL, vZ, vONE, vT = self.vL, self.vZ, self.vONE, self.vT
        WF = 76; XA = 152; AC = 140
        def rdw(sx):
            a(f"ds_read_b64_tr_b16 {v(WF+4*sx,2)}, v{XA+4} offset:{4096*sx}")
            a(f"ds_read_b64_tr_b16 {v(WF+4*sx+2,2)}, v{XA+4} offset:{4096*sx+512}")
        def rdx(sx):
            b = 8 + 8 * (sx % 8)
            a(f"ds_read_b128 {v(b,4)}, v{XA+(sx&3)} offset:{256*(sx>>2)}")
            a(f"ds_read_b128 {v(b+4,4)}, v{XA+(sx&3)} offset:{256*(sx>>2)+16384}")
        def mm(sx):
            b = 8 + 8 * (sx % 8)
            a(f"v_mfma_f32_16x16x32_bf16 {v(AC,4)}, {v(WF+4*sx,4)}, {v(b,4)}, {'0' if sx==0 else v(AC,4)}")
            a(f"v_mfma_f32_16x16x32_bf16 {v(AC+4,4)}, {v(WF+4*sx,4)}, {v(b+4,4)}, {'0' if sx==0 else v(AC+4,4)}")
        def qout(off):
            for k in range(4): a(f"v_cvt_pk_bf16_f32 v{AC+8+k}, v{AC+2*k}, v{AC+2*k+1}")
            a(f"""ds_write_b64 v{XA+5}, {v(AC+8,2)} offset:{off}
            ds_write_b64 v{XA+5}, {v(AC+10,2)} offset:{off+256}
            s_waitcnt lgkmcnt(0)""")
        self.waitc(C_X, 8 if self.opt("tsplit", 1) else 4, vZ, vT, slp=self.opt('lslp2', 0))
        if self.opt("qst"): self.stamp(9)
        for k in range(8): rdx(k)
        self.waitc(C_WQA, 4, vZ, vT, slp=self.opt('lslp2', 0))
        if self.opt("qst"): self.stamp(7)
        for k in range(3): rdw(k)
        for sx in range(8):
            n = sum(2 for k in (sx + 1, sx + 2) if k < 8) + sum(2 for k in (sx - 3, sx - 2, sx - 1) if k >= 0 and k >= sx - 3 + 0 and (k > sx - 3 or False))
            a(f"s_waitcnt lgkmcnt({QW[sx]})")
            mm(sx)
            if sx + 3 < 8: rdw(sx + 3)
            rdx(sx + 8)
        if self.opt("qst"): self.stamp(8)
        if self.opt("flagat", 0) == 1: self.kv_flag()
        self.waitc(C_WQB, 4, vZ, vT, slp=self.opt('lslp2', 0))
        self.stamp(10)
        for k in range(8, 14): rdw(k)
        for sx in range(8, 16):
            a(f"s_waitcnt lgkmcnt({2 * (min(sx + 5, 15) - sx)})")
            mm(sx)
            if sx + 6 < 16: rdw(sx + 6)
        if self.opt("qst"): self.stamp(1)
        qout(0)
        self.sync4(C_QE, vZ, vONE, vT, slp=1)
        self.stamp(3)
        if self.opt("ib", 1) and self.opt("lpoll", 0):
            a(f"s_add_u32 {s(sT3)}, {s(sNONCE)}, 0x9e3779b9")
            self.flag_poll(vA=72, vD=73)
            self.arrive(C_FL, vZ, vONE)
        if self.opt("xlwait", 0): self.waitc(C_FL, 4, vZ, vT, slp=2)
        self.x_dma(XE, 32)
        a("s_waitcnt vmcnt(0)")
        self.sync4(C_XL, vZ, vONE, vT, slp=1)
        for k in range(6): rdx(k)
        for sx in range(16):
            a(f"s_waitcnt lgkmcnt({2 * (min(sx + 5, 15) - sx)})")
            mm(sx)
            if sx + 6 < 16: rdx(sx + 6)
        qout(4096)
        self.arrive(C_QL, vZ, vONE)

    def att_setup(self):
        self.att_addr(4, 5, 7, True); self.att_zero()
    def att_addr(self, dK, dV, t, sums):
        a = self.a
        a(f"""s_mul_i32 {s(sT2)}, {s(sW4)}, {16*KVT}
        s_add_u32 {s(sT2)}, {s(sT2)}, {WS_KV}
        v_and_b32 v{t}, 31, v0
        v_lshrrev_b32 v{t+1}, 5, v0
        v_lshlrev_b32 v{dK}, 5, v{t}
        v_lshl_add_u32 v{dK}, v{t+1}, 4, v{dK}
        v_and_b32 v{t+2}, 3, v{t}
        v_bfe_u32 v{t+3}, v{t}, 2, 1
        v_lshl_add_u32 v{t+2}, v{t+3}, 3, v{t+2}
        v_bfe_u32 v{t+3}, v{t}, 3, 1
        v_lshl_add_u32 v{t+2}, v{t+3}, 2, v{t+2}
        v_lshlrev_b32 v{t+2}, 5, v{t+2}
        s_mov_b32 {s(sT4)}, 0xffff
        s_mov_b32 {s(sT5)}, 0xffff
        v_mov_b32 v{t+3}, {OOB}
        v_cndmask_b32 v{t+2}, v{t+3}, v{t+2}, {s(sT4,2)}
        s_mov_b32 {s(sT4)}, 0x110000
        s_mov_b32 {s(sT5)}, 0x110000
        v_mov_b32 v{t+3}, 512
        v_cndmask_b32 v{t+2}, v{t+2}, v{t+3}, {s(sT4,2)}
        v_lshl_add_u32 v{dV}, v{t+1}, 4, v{t+2}""")
        if sums and self.opt("ib", 1):
            a(f"""v_lshrrev_b32 v96, 2, v{dK}
            v_add_u32 v96, {s(sT2)}, v96
            v_lshrrev_b32 v104, 2, v{dV}
            v_add_u32 v{t+2}, 640, v104
            v_add_u32 v104, 416, v104
            s_mov_b32 {s(sT4)}, 0xffff
            s_mov_b32 {s(sT5)}, 0xffff
            v_cndmask_b32 v104, v104, v{t+2}, {s(sT4,2)}
            v_add_u32 v104, {s(sT2)}, v104""")
        a(f"""v_add_u32 v{dK}, {s(sT2)}, v{dK}
        v_add_u32 v{dV}, {s(sT2)}, v{dV}""")
        self.tail_setup()
        if self.opt("chunk", 1):
            a(f"""s_cmp_eq_u32 {s(sCLS)}, 0
            s_cselect_b32 s35, {self.opt('ce', 3) + 1}, {self.opt('cl', 6) + 1}
            s_lshl_b32 s35, 1, s35""")
        a(f"""s_lshl_b32 {s(sT2)}, {s(sCLS)}, 12
        s_add_u32 {s(sT2)}, {s(sT2)}, {QB}
        v_lshl_add_u32 v{t}, v0, 4, {s(sT2)}""")
        for i in range(4):
            a(f"""s_add_u32 {s(sT3)}, {s(sW4)}, {i}
            s_and_b32 {s(sT3)}, {s(sT3)}, 3
            s_lshl_b32 {s(sT3)}, {s(sT3)}, 10
            v_add_u32 v{160+i}, {s(sT3)}, v{t}""")
        for b in range(self.opt("nbuf", 4)):
            if b: a(f"s_add_u32 {s(sROT)}, {s(sROT)}, 1\ns_and_b32 {s(sROT)}, {s(sROT)}, 15")
            a(f"s_mul_i32 s{36+b}, {s(sROT)}, {KVT}")
        a(f"s_mov_b32 {s(sSOF)}, {OOB}")
    def att_zero(self):
        a = self.a
        Q0, O0, S0, KA = self.Q0, self.O0, self.S0, self.KA
        a(f"""s_lshl_b32 {s(sT2)}, {s(sCLS)}, 2
        v_add_u32 v92, {s(sT2)}, v1
        v_mov_b32 v6, 0xdddddddd
        v_mov_b32 v7, {s(self.tail_regs()['cw'])}""")
        for h in range(4):
            for i in range(0, 16 if self.opt("zfull", 1) else 10, 2): a(f"v_mov_b64 {v(O0+16*h+i,2)}, 0")
        for i in range(0, 8, 2): a(f"v_mov_b64 {v(S0+24+i,2)}, 0")
        for i in range(0, 4, 2): a(f"v_mov_b64 {v(KA+44+i,2)}, 0")
    def ld(self, kind, b, so):
        SC = {0: "sc1", 1: "", 2: "sc0", 3: "nt", 4: "sc0 sc1"}[self.opt("kvsc", 0)]
        off = [0, 1024, V1OFF][kind]
        self.a(f"buffer_load_dwordx4 {v(b+4*kind,4)}, v{self.vKO if kind == 0 else self.vVO}, {s(rWS,4)}, {s(so)} offen offset:{off} {SC}")
    def val_loads(self):
        for t in range(2):
            for kind in range(3):
                self.ld(kind, self.KA + 12 * t, 36 + t)
                self.a(f"buffer_load_dword v{97+3*t+kind}, v{96 if kind == 0 else 104}, {s(rWS,4)}, s{36+t} offen offset:{[2560, 1024, V1OFF][kind]} sc1")
    def prologue_loads(self):
        NB = self.opt("nbuf", 4)
        n = 2 if self.opt("ib", 1) else NB
        for b in range(n):
            for kind in range(3):
                if kind < 2 or b < NB - 1: self.ld(kind, self.KA + 12 * b, 36 + b)
    def flag_poll(self, vA=93, vD=94):
        a = self.a; Lp = a.newlabel("Lfp"); Lo = a.newlabel("Lfo")
        a(f"""s_lshl_b32 {s(sT1)}, {s(sW4)}, {6 + self.opt('fsh', 5)}
        s_add_u32 {s(sT1)}, {s(sT1)}, {WS_FLAG}
        v_lshlrev_b32 v{vA}, {self.opt('fsh', 5)}, v0""")
        a.label(Lp)
        a(f"""buffer_load_dword v{vD}, v{vA}, {s(rWS,4)}, {s(sT1)} offen sc1
        s_waitcnt vmcnt(0)
        v_cmp_ne_u32 vcc, {s(sT3)}, v{vD}
        s_and_b64 exec, exec, vcc
        s_cbranch_execz {Lo}
        s_sleep {self.opt('pslp', 1)}
        s_sub_u32 {s(sBUD)}, {s(sBUD)}, 1
        s_cbranch_scc0 {Lp}
        s_mov_b32 {s(sBUD)}, 0""")
        a.label(Lo)
        a("s_mov_b64 exec, -1")

    def qproj_and_attention(self):
        a = self.a; vL, vZ, vONE, vT = self.vL, self.vZ, self.vONE, self.vT
        Q0, O0, S0, KA = self.Q0, self.O0, self.S0, self.KA
        vKO, vVO, vIDX = self.vKO, self.vVO, self.vIDX
        NB = self.opt("nbuf", 4); IB = self.opt("ib", 1)
        BUF = [KA + 12 * i for i in range(NB)]
        a.label("L_att_setup")
        if self.opt("lhoist", 1):
            a("v_mov_b32 v4, v158\nv_mov_b32 v5, v159"); self.att_zero()
        else:
            self.att_addr(4, 5, 7, False); self.att_zero()
        self.waitc(C_FL, 4, vZ, vT)
        self.stamp(4)
        self.prologue_loads()
        a.label("L_att_go")
        def sof_next():
            a(f"""s_add_u32 {s(sROT)}, {s(sROT)}, 1
            s_and_b32 {s(sROT)}, {s(sROT)}, 15
            s_mul_i32 {s(sSOF)}, {s(sROT)}, {KVT}
            s_cmp_eq_u32 {s(sLOOP)}, 1
            s_cselect_b32 {s(sSOF)}, {OOB}, {s(sSOF)}""")
        def ldK(b): self.ld(0, b, sSOF)
        def ldV0(b): self.ld(1, b, sSOF)
        def ldV1(b): self.ld(2, b, sSOF)
        self.waitc(C_QE, 4, 92, vT, slp=self.opt('qslp', 0))
        for i in range(4): a(f"ds_read_b128 {v(Q0+4*i,4)}, v{160+i}")
        a(f"""s_mov_b32 {s(sLOOP)}, {16//NB}
        s_waitcnt vmcnt({3 if IB else 3*NB-4}) lgkmcnt(0)
        v_mfma_f32_32x32x16_bf16 {v(S0,16)}, {v(KA,4)}, {v(Q0,4)}, 0
        s_nop 11""")
        self.stamp(5)
        a(f"""s_setprio {self.opt('eprio', 2)}
        s_cmp_eq_u32 {s(sCLS)}, 0
        s_cbranch_scc1 L_att0
        s_setprio {self.opt('lprio', 1)}""")
        a.label("L_att0")
        a(".p2align 6")
        a.label("L_att")
        self.inloop = True
        CHK = self.opt("chunk", 1)
        for t in range(NB):
            cur = BUF[t]; prv = BUF[(t - 1) % NB]; nxt = BUF[(t + 1) % NB]
            for i in range(4):
                S = S0 + 16 * (i & 1); Sn = S0 + 16 * ((i + 1) & 1)
                def ex(a0, a1):
                    for k in range(a0, a1): a(f"v_exp_f32 v{S+k}, v{S+k}")
                ex(0, 2)
                if i == 1 and NB == 2 and not self.opt("nowait"): a("s_waitcnt vmcnt(3)")
                pv = prv if i == 0 else cur
                a(f"v_smfmac_f32_32x32x32_bf16 {v(O0+16*((i-1)&3),16)}, {v(pv+8,4)}, {v(Sn+8,8)}, v{vIDX}")
                if i == 0: ldV1(prv)
                if i == 1 and not self.opt("nosof"): sof_next()
                if CHK and t % 2 == self.opt('cpar', 0) and i == 2:
                    L = a.newlabel("Lp")
                    a(f"""s_lshr_b32 s35, s35, 1
                    s_bitcmp1_b32 s35, 0
                    s_cbranch_scc0 {L}
                    s_setprio {self.opt('lprio', 1) - 1}
                    s_cmp_eq_u32 {s(sCLS)}, 0
                    s_cbranch_scc0 {L}
                    s_setprio {self.opt('eprio', 2) - 1}""")
                    a.label(L)
                ex(2, 5)
                if i == 3 and not self.opt("nowait"): a(f"s_waitcnt vmcnt({2 if NB == 2 else 3*NB-5})")
                kk = nxt if i == 3 else cur
                a(f"v_mfma_f32_32x32x16_bf16 {v(Sn,16)}, {v(kk,4)}, {v(Q0+4*((i+1)&3),4)}, 0")
                if IB and t == 0 and i == 2:
                    a(f"s_cmp_eq_u32 {s(sLOOP)}, {16//NB}\ns_cbranch_scc1 L_first")
                    a.label("L_first_ret")
                if i == 2: ldK(cur)
                ex(5, 10)
                a(f"v_smfmac_f32_32x32x32_bf16 {v(O0+16*i,16)}, {v(cur+4,4)}, {v(S,8)}, v{vIDX}")
                if i == 3: ldV0(cur)
                if i == 2 and t == NB - 1: a("ds_read_b32 v3, v7")
                if t == NB - 1 and i == 3:
                    ex(10, 13)
                    a(f"s_sub_u32 {s(sLOOP)}, {s(sLOOP)}, 1\ns_cmp_lg_u32 {s(sLOOP)}, 0")
                    ex(13, 16)
                else:
                    ex(10, 16)
        a("s_cbranch_scc1 L_att")
        a(f"s_nop 1")
        a(f"v_smfmac_f32_32x32x32_bf16 {v(O0+48,16)}, {v(BUF[-1]+8,4)}, {v(S0+24,8)}, v{vIDX}")
        self.stamp(6)
        if self.opt("r0late", 0) == 2:
            a(f"s_cmp_eq_u32 {s(sCLS)}, 0\ns_cbranch_scc1 L_nole")
            self.arrive(C_WQC, vZ, vONE)
            a.label("L_nole")
        self.att_tail()
        if IB:
            a.label("L_first")
            if self.opt("lpoll", 0):
                self.waitc(C_FL, 4, vZ, vT, slp=0)
            else:
                a(f"s_cmp_eq_u32 {s(sCLS)}, 0\ns_cbranch_scc0 L_first_ld")
                a.label("L_fp")
                a(f"""s_waitcnt vmcnt(0)
                v_cmp_ne_u32 vcc, {s(sNONCE)}, v145
                s_and_b64 exec, exec, vcc
                s_cbranch_execz L_fp_ok
                buffer_load_dword v145, v144, {s(rWS,4)}, s40 offen sc1
                s_sub_u32 {s(sBUD)}, {s(sBUD)}, 1
                s_cbranch_scc0 L_fp
                s_mov_b32 {s(sBUD)}, 0
                s_waitcnt vmcnt(0)""")
                a.label("L_fp_ok")
                a("s_mov_b64 exec, -1")
                self.arrive(C_FL, vZ, vONE)
                a.label("L_first_ld")
            for b in (2, 3):
                for kind in range(3): self.ld(kind, BUF[b], 36 + b)
            a("s_branch L_first_ret")

    def first_poll(self):
        self.a(f"""s_lshl_b32 {s(sT1)}, {s(sW4)}, {6 + self.opt('fsh', 5)}
        s_add_u32 {s(sT1)}, {s(sT1)}, {WS_FLAG}
        v_lshlrev_b32 v93, {self.opt('fsh', 5)}, v0""")
        if self.opt("p16", 0):
            self.a(f"""v_lshrrev_b32 v95, 3, v0
            v_bfe_u32 v96, v0, 1, 1
            v_lshl_add_u32 v95, v95, 1, v96
            v_subrev_u32 v95, {s(sROT)}, v95
            v_and_b32 v95, 15, v95
            v_cmp_gt_u32 vcc, {self.opt('nbuf', 4)}, v95
            s_mov_b64 exec, vcc""")
        self.a(f"buffer_load_dword v94, v93, {s(rWS,4)}, {s(sT1)} offen sc1")

    sP1, sP2, sP3, sP0, sOS = 70, 71, 72, 73, 74
    def tail_regs(self):
        b = 40 if True else 70
        return dict(p=[28, 29, 30, 31], os=32, cw=33, cp=34)
    def tail_setup(self):
        a = self.a; R = self.tail_regs()
        for i in range(4):
            a(f"""s_add_u32 {s(sT2)}, {s(sW4)}, {i}
            s_and_b32 {s(sT2)}, {s(sT2)}, 3
            s_mul_i32 {s(R['p'][i])}, {s(sT2)}, {3*PSLOT}""")
        a(f"""s_cmp_eq_u32 {s(sCLS)}, 0
        s_cselect_b32 {s(sT2)}, {XE}, {R0}""")
        for i in range(4): a(f"s_add_u32 {s(R['p'][i])}, {s(R['p'][i])}, {s(sT2)}")
        a(f"""s_lshl_b32 {s(sT3)}, {s(sG)}, 1
        s_add_u32 {s(sT3)}, {s(sT3)}, {s(sCLS)}
        s_lshl_b32 {s(sT3)}, {s(sT3)}, 5
        s_lshl_b32 {s(sT4)}, {s(sR)}, 2
        s_add_u32 {s(sT3)}, {s(sT3)}, {s(sT4)}
        s_add_u32 {s(sT3)}, {s(sT3)}, {s(sW4)}
        s_lshl_b32 {s(sT3)}, {s(sT3)}, 10
        s_add_u32 {s(R['os'])}, {s(sT3)}, {WS_O}
        s_cmp_eq_u32 {s(sCLS)}, 0
        s_mov_b32 {s(R['cw'])}, {C_YT//4}
        s_cselect_b32 {s(R['cp'])}, {C_PE//4}, {C_PL//4}
        s_lshl_b32 {s(R['cw'])}, {s(R['cw'])}, 2
        s_lshl_b32 {s(R['cp'])}, {s(R['cp'])}, 2
        s_add_u32 {s(R['cw'])}, {s(R['cw'])}, {CNT}
        s_add_u32 {s(R['cp'])}, {s(R['cp'])}, {CNT}""")
    def att_tail(self):
        a = self.a; vL, vZ, vONE, vT = self.vL, self.vZ, self.vONE, self.vT
        Q0, O0, S0, KA = self.Q0, self.O0, self.S0, self.KA
        R = self.tail_regs()
        T = Q0 + 4
        if self.opt("tprio", 0) == 1:
            a(f"s_cmp_eq_u32 {s(sCLS)}, 0\ns_cbranch_scc1 L_notp\ns_setprio 3")
            a.label("L_notp")
        if self.opt("tprio", 0) == 2: a("s_setprio 3")
        a(f"""v_mov_b32 v{T+1}, {s(R['cp'])}
        v_lshlrev_b32 v{T+2}, 4, v0
        v_lshlrev_b32 v{T+3}, 2, v0
        s_waitcnt lgkmcnt(0)
        v_readfirstlane_b32 {s(sT0)}, v3
        v_add_u32 v{T+4}, {s(R['p'][1])}, v{T+2}
        v_add_u32 v{T+5}, {s(R['p'][1])}, v{T+3}
        s_cmp_ge_u32 {s(sT0)}, 4
        s_cbranch_scc1 L_pfree""")
        n0 = len(a.lines)
        self.waitc(0, 4, 7, vT)
        for i in range(n0, len(a.lines)):
            l = a.lines[i]
            if not l.endswith(":") and "nocount" not in l and not l.startswith(("v_readfirst", "s_cmp")): a.lines[i] = l + " ; nocount"
        a.label("L_pfree")
        for i in range(1, 4):
            j = (i + 1) & 3
            a(f"""ds_write_b128 v{T+4+2*(i&1^1)}, {v(O0+16*i,4)} offset:{(i-1)*PSLOT}
            ds_write_b128 v{T+4+2*(i&1^1)}, {v(O0+16*i+4,4)} offset:{(i-1)*PSLOT+1024}
            ds_write_b32 v{T+5+2*(i&1^1)}, v{O0+16*i+8} offset:{(i-1)*PSLOT+2048}
            v_add_u32 v{T+4+2*(i&1)}, {s(R['p'][j])}, v{T+2}
            v_add_u32 v{T+5+2*(i&1)}, {s(R['p'][j])}, v{T+3}""")
        a("s_waitcnt lgkmcnt(0)")
        self.sync4(0, T + 1, vONE, vT)
        for i in range(1, 4):
            a(f"""ds_read_b128 {v(O0+16*i,4)}, v{T+6} offset:{(i-1)*PSLOT}
            ds_read_b128 {v(O0+16*i+4,4)}, v{T+6} offset:{(i-1)*PSLOT+1024}
            ds_read_b32 v{O0+16*i+8}, v{T+7} offset:{(i-1)*PSLOT+2048}""")
        a(f"""s_mov_b32 {s(sT5)}, {s(R['os'])}
        s_waitcnt vmcnt(0)
        v_mov_b32 v146, v{T+2}
        s_waitcnt lgkmcnt(6)""")
        def add9(d, x):
            for k in range(0, 8, 2): a(f"v_pk_add_f32 {v(d+k,2)}, {v(d+k,2)}, {v(x+k,2)}")
            a(f"v_add_f32 v{d+8}, v{d+8}, v{x+8}")
        add9(O0, O0 + 16)
        a("s_waitcnt lgkmcnt(3)"); add9(O0, O0 + 32)
        a("s_waitcnt lgkmcnt(0)"); add9(O0, O0 + 48)
        lo = struct.unpack("<I", struct.pack("<f", 2.0**-60))[0]; hi = struct.unpack("<I", struct.pack("<f", 2.0**60))[0]
        a(f"""v_pk_add_f32 v[150:151], {v(O0,2)}, {v(O0+2,2)}
        v_pk_add_f32 v[152:153], {v(O0+4,2)}, {v(O0+6,2)}
        v_pk_add_f32 v[150:151], v[150:151], v[152:153]
        v_add_f32 v150, v150, v151
        v_fma_f32 v150, v150, 0, v{O0+8}
        v_subrev_u32 v150, {hex(lo)}, v150
        v_cmp_ge_u32 vcc, {hex(hi-lo)}, v150""")
        if self.opt("force_fallback"): a("s_mov_b64 vcc, 0")
        a(f"""s_cmp_eq_u64 vcc, exec
        s_cbranch_scc0 L_fallback""")
        a.label("L_att_fin")
        if not self.opt("qst"): self.stamp(9)
        a(f"v_rcp_f32 v150, v{O0+8}")
        for k in range(0, 8, 2): a(f"v_pk_mul_f32 {v(O0+k,2)}, {v(O0+k,2)}, v[150:151] op_sel_hi:[1,0]")
        for k in range(4): a(f"v_cvt_pk_bf16_f32 v{152+k}, v{O0+2*k}, v{O0+2*k+1}")
        for k in range(4): a(f"v_min_u32 v{152+k}, -2, v{152+k}")
        a(f"""s_lshl_b32 {s(sT2)}, {s(sCLS)}, 2
        v_add_u32 v151, {s(sT2)}, v1
        buffer_store_dwordx4 v[152:155], v146, {s(rWS,4)}, {s(sT5)} offen sc1""")
        ED = self.opt("edrain", 1)
        if ED == 1: a("s_waitcnt vmcnt(0)")
        if ED == 0:
            a(f"s_cmp_eq_u32 {s(sCLS)}, 0\ns_cbranch_scc1 L_nodrain\ns_waitcnt vmcnt(0)")
            a.label("L_nodrain")
        self.arrive(C_OE, 151, vONE)
        if self.opt("yby", 2) in (0, 1):
            a(f"s_cmp_eq_u32 {s(sCLS)}, {self.opt('yby', 2)}\ns_cbranch_scc0 L_noya")
            self.y_guard(lambda: (self.waitc(C_Y4, 4, vZ, vT, slp=2), self.y_assemble()), self.opt('pary', 0))
            a.label("L_noya")
        a(f"""s_or_b32 {s(sT2)}, {s(sWG)}, {s(sW4)}
        s_or_b32 {s(sT2)}, {s(sT2)}, {s(sCLS)}
        s_cmp_eq_u32 {s(sT2)}, 0
        s_cbranch_scc0 L_end
        v_mov_b32 v150, {s(sNONCE)}
        v_mov_b32 v151, 0
        s_mov_b64 exec, 1
        buffer_store_dword v150, v151, {s(rWS,4)}, 0 offen sc1
        s_mov_b64 exec, -1
        s_branch L_end""")
        self.fallback()

    def fallback(self):
        a = self.a
        Q0, O0, S0, KA = self.Q0, self.O0, self.S0, self.KA
        vKO, vVO, vIDX = self.vKO, self.vVO, self.vIDX
        C0 = O0 + 16
        a.label("L_fallback")
        a(f"""s_mul_i32 {s(sT2)}, {s(sW4)}, {16*KVT}
        v_subrev_u32 v7, {s(sT2)}, v{vKO}
        v_subrev_u32 v151, {s(sT2)}, v{vVO}
        v_mov_b32 v150, 0xff800000
        s_mov_b32 {s(sSOF)}, 0""")
        a.label("L_fb1")
        a(f"""buffer_load_dwordx4 {v(KA,4)}, v7, {s(rWS,4)}, {s(sSOF)} offen sc1
        s_waitcnt vmcnt(0)
        v_mfma_f32_32x32x16_bf16 {v(S0,16)}, {v(KA,4)}, {v(Q0,4)}, 0""")
        for k in range(8): a(f"v_max3_f32 v150, v150, v{S0+2*k}, v{S0+2*k+1}")
        a(f"""s_add_u32 {s(sSOF)}, {s(sSOF)}, {KVT}
        s_cmp_lt_u32 {s(sSOF)}, {64*KVT}
        s_cbranch_scc1 L_fb1
        v_mov_b32 v152, v150
        v_permlane32_swap_b32 v150, v152
        v_max_f32 v150, v150, v152""")
        for k in range(16): a(f"v_sub_f32 v{C0+k}, 0, v150")
        for k in range(16): a(f"v_mov_b32 v{O0+k}, 0")
        a(f"s_mov_b32 {s(sSOF)}, 0")
        a.label("L_fb2")
        a(f"""buffer_load_dwordx4 {v(KA,4)}, v7, {s(rWS,4)}, {s(sSOF)} offen sc1
        buffer_load_dwordx4 {v(KA+4,4)}, v151, {s(rWS,4)}, {s(sSOF)} offen offset:1024 sc1
        buffer_load_dwordx4 {v(KA+8,4)}, v151, {s(rWS,4)}, {s(sSOF)} offen offset:{V1OFF} sc1
        s_waitcnt vmcnt(0)
        v_mfma_f32_32x32x16_bf16 {v(S0,16)}, {v(KA,4)}, {v(Q0,4)}, {v(C0,16)}""")
        for k in range(16): a(f"v_exp_f32 v{S0+k}, v{S0+k}")
        a(f"""v_smfmac_f32_32x32x32_bf16 {v(O0,16)}, {v(KA+4,4)}, {v(S0,8)}, v{vIDX}
        v_smfmac_f32_32x32x32_bf16 {v(O0,16)}, {v(KA+8,4)}, {v(S0+8,8)}, v{vIDX}
        s_add_u32 {s(sSOF)}, {s(sSOF)}, {KVT}
        s_cmp_lt_u32 {s(sSOF)}, {64*KVT}
        s_nop 9
        s_cbranch_scc1 L_fb2
        s_nop 3
        s_branch L_att_fin""")

    def role_s(self):
        a = self.a; vL, vZ, vONE, vT = self.vL, self.vZ, self.vONE, self.vT
        a.label("L_role_s")
        a(f"s_setprio {self.opt('gprio', 3)}")
        sCH, sMH = sLOOP, sSOF
        a(f"""s_and_b32 {s(sCH)}, {s(sW4)}, 1
        s_lshr_b32 {s(sMH)}, {s(sW4)}, 1
        s_lshl_b32 {s(sT0)}, {s(sP)}, 2
        s_lshl_b32 {s(sT1)}, {s(sP)}, 9
        s_lshl_b32 {s(sT2)}, {s(sCH)}, 8
        s_add_u32 {s(sT1)}, {s(sT1)}, {s(sT2)}
        s_lshl_b32 {s(sT2)}, {s(sMH)}, 7
        s_add_u32 {s(sT1)}, {s(sT1)}, {s(sT2)}
        v_lshlrev_b32 v4, 1, v0
        s_mov_b32 {s(rA+2)}, 131072""")
        self.ptrs_ready(False)
        a(f"""s_load_dword {s(sT4)}, {s(pLDT,2)}, {s(sT0)}
        s_load_dword {s(sT5)}, {s(pDSK,2)}, {s(sT0)}""")
        if self.opt("pdelay", 0): self.s_precompute(); a("s_barrier")
        for i, p in enumerate([pARE, pAIM, pBRE, pBIM, pCRE, pCIM]):
            a(f"s_mov_b32 {s(rA)}, {s(p)}\ns_mov_b32 {s(rA+1)}, {s(p+1)}")
            a(f"buffer_load_ushort v{8+i}, v4, {s(rA,4)}, {s(sT1)} offen")
        UE = self.opt("uearly", 0)
        if not self.opt("pdelay", 0):
            if not self.opt("sbar", 0): a("s_barrier")
            self.s_precompute()
        a(f"""s_lshl_b32 {s(sT2)}, {s(sW4)}, 12
        s_add_u32 {s(sT2)}, {s(sT2)}, {GEN}
        v_bfe_u32 v5, v0, 1, 2
        v_lshlrev_b32 v5, 4, v5
        v_lshl_add_u32 v5, v0, 6, v5
        v_add_u32 v150, {s(sT2)}, v5
        v_xor_b32 v151, 16, v150
        v_xor_b32 v152, 32, v150
        v_xor_b32 v153, 48, v150
        v_bfe_u32 v5, v0, 2, 2
        v_lshrrev_b32 v6, 5, v0
        v_lshl_add_u32 v6, v6, 3, v5
        v_lshlrev_b32 v6, 6, v6
        v_bfe_u32 v7, v0, 4, 1
        v_lshlrev_b32 v7, 1, v7
        v_bfe_u32 v14, v0, 1, 1
        v_add_u32 v7, v7, v14
        v_lshrrev_b32 v5, 1, v5
        v_xor_b32 v7, v7, v5
        v_lshl_add_u32 v6, v7, 4, v6
        v_and_b32 v7, 1, v0
        v_lshl_add_u32 v6, v7, 3, v6
        v_add_u32 v154, {s(sT2)}, v6
        v_xor_b32 v155, 32, v154""")
        if self.opt("sbar", 0) == 1: a("s_barrier")
        a(f"""s_waitcnt lgkmcnt(0)
        s_lshl_b32 {s(sT2)}, {s(sCH)}, 4
        s_lshr_b32 {s(sT4)}, {s(sT4)}, {s(sT2)}
        s_lshl_b32 {s(sT4)}, {s(sT4)}, 16
        s_lshr_b32 {s(sT5)}, {s(sT5)}, {s(sT2)}
        s_lshl_b32 {s(sT5)}, {s(sT5)}, 16
        v_mov_b32 v14, {fbits(LOG2E)}
        v_mul_f32 v15, {s(sT4)}, v14
        v_exp_f32 v15, v15
        v_cvt_pk_bf16_f32 v15, v15, v15
        v_and_b32 v15, 0xffff0000, v15
        s_waitcnt vmcnt({8 if UE else 0})""")
        self.stamp(1)
        for i in range(6): a(f"v_lshlrev_b32 v{8+i}, 16, v{8+i}")
        Z1, Z2, Z4, Z8, Z256, CB, TMP = 18, 20, 22, 24, 26, 16, 28
        a(f"""v_mul_f32 v8, v15, v8
        v_mul_f32 v9, v15, v9
        v_mul_f32 v10, v15, v10
        v_mul_f32 v11, v15, v11
        v_mul_f32 v8, v14, v8
        v_mul_f32 v9, 0.15915494, v9""")
        self.cmul(CB, 10, 12, TMP)
        def cpow(d, mult):
            if mult != 1:
                a(f"v_mul_f32 v30, {fbits(mult)}, v8\nv_mul_f32 v31, {fbits(mult)}, v9")
                x, y = 30, 31
            else:
                x, y = 8, 9
            a(f"""v_exp_f32 v28, v{x}
            v_rndne_f32 v29, v{y}
            v_sub_f32 v29, v{y}, v29
            v_cos_f32 v{d}, v29
            v_sin_f32 v{d+1}, v29
            v_mul_f32 v{d}, v28, v{d}
            v_mul_f32 v{d+1}, v28, v{d+1}""")
        cpow(Z1, 1); cpow(Z256, 256)
        self.cmul(Z2, Z1, Z1, TMP); self.cmul(Z4, Z2, Z2, TMP); self.cmul(Z8, Z4, Z4, TMP)
        RE, IM = 32, 48
        FB = 64
        FA = 96
        ACC = 112
        X0, X1 = 128, 130
        def wr(src):
            for c in range(4): a(f"ds_write_b128 v{150+c}, {v(src+4*c,4)}")
        def rdtr(dst):
            for ks in range(4):
                a(f"ds_read_b64_tr_b16 {v(dst+4*ks,2)}, v154 offset:{1024*ks}")
                a(f"ds_read_b64_tr_b16 {v(dst+4*ks+2,2)}, v155 offset:{1024*ks+256}")
        if self.opt("gst"): self.stamp(3)
        if self.opt("sbar", 0) == 2: a("s_barrier")
        a(f"v_mov_b32 v{X0}, 1.0\nv_mov_b32 v{X0+1}, 0")
        for j in range(0, 32, 2):
            if j > 0: self.cmul(X0, X1, Z8, TMP)
            self.cmul(X1, X0, Z8, TMP)
            a(f"v_cvt_pk_bf16_f32 v{RE+j//2}, v{X0}, v{X1}")
            a(f"v_cvt_pk_bf16_f32 v{IM+j//2}, -v{X0+1}, -v{X1+1}")
        if self.opt("gst"): self.stamp(4)
        wr(RE); rdtr(FB); wr(IM); rdtr(FB + 16)
        if self.opt("gst"): self.stamp(5)
        if self.opt("upf", 0):
            a(f"""s_and_b32 {s(sT0)}, {s(sP)}, 31
            s_lshl_b32 {s(sT0)}, {s(sT0)}, 2
            s_add_u32 {s(sT0)}, {s(sT0)}, {s(sW4)}
            s_lshl_b32 {s(sT0)}, {s(sT0)}, 14
            s_lshr_b32 {s(sT1)}, {s(sP)}, 5
            s_lshl_b32 {s(sT1)}, {s(sT1)}, 7
            s_add_u32 {s(sT0)}, {s(sT0)}, {s(sT1)}""")
            self.s_prefetch(pU, sT0, 16, 1024)
            if self.opt("upf", 0) == 2:
                a(f"s_add_u32 {s(sT0)}, {s(sT0)}, 64"); self.s_prefetch(pU, sT0, 16, 1024)
        B = [CB] + [132 + 2 * m for m in range(7)]
        for m in range(1, 8): self.cmul(B[m], B[m - 1], Z256, TMP)
        Y0, Y1 = 146, 148
        def pack(row, x, y):
            a(f"v_cvt_pk_bf16_f32 v{RE+row//2}, v{x}, v{y}")
            a(f"v_cvt_pk_bf16_f32 v{IM+row//2}, v{x+1}, v{y+1}")
        a("s_waitcnt lgkmcnt(8)")
        self.cmul(X1, CB, Z1, TMP); pack(0, CB, X1)
        for row in (2, 4, 6):
            self.cmul(X0, X1, Z1, TMP); self.cmul(X1, X0, Z1, TMP); pack(row, X0, X1)
        self.cmul(X0, B[1], Z2, TMP); pack(8, B[1], X0)
        self.cmul(X1, X0, Z2, TMP); pack(10, X1, X1)
        self.cmul(X0, X1, Z2, TMP); pack(12, X1, X0)
        self.cmul(X1, X0, Z2, TMP); pack(14, X1, X1)
        for q, m in ((16, 2), (20, 3)):
            self.cmul(X0, B[m], Z4, TMP); pack(q, B[m], X0)
            self.cmul(X1, X0, Z4, TMP); pack(q + 2, X1, X1)
        for q, m in ((24, 4), (26, 6), (28, 5), (30, 7)):
            self.cmul(X0, B[m], Z8, TMP); pack(q, B[m], X0)
        if self.opt("gst"): self.stamp(6)
        wr(RE); rdtr(FA)
        a("s_waitcnt lgkmcnt(0)")
        if self.opt("gst"): self.stamp(7)
        for ks in range(4):
            a(f"v_mfma_f32_32x32x16_bf16 {v(ACC,16)}, {v(FA+4*ks,4)}, {v(FB+4*ks,4)}, {'0' if ks==0 else v(ACC,16)}")
        wr(IM); rdtr(RE)
        a("s_waitcnt lgkmcnt(0)")
        for ks in range(4):
            a(f"v_mfma_f32_32x32x16_bf16 {v(ACC,16)}, {v(RE+4*ks,4)}, {v(FB+16+4*ks,4)}, {v(ACC,16)}")
        self.stamp(2)
        if self.opt("gprio", 3) != self.opt("sprio", 3): a(f"s_setprio {self.opt('sprio', 3)}")
        if self.opt("abl_s") == 1: self.arrive(C_YT, vZ, vONE); self.arrive(C_WO, vZ, vONE); a("s_branch L_end")
        UG = self.UG
        self.waitc(C_KV, 4, vZ, vT, slp=1)
        a("ds_read_b32 v167, v1 offset:128")
        if self.opt("uwait", 2): self.waitc({1: C_WQB, 2: C_FL, 3: C_QE}[self.opt("uwait", 2)], 4, vZ, vT, slp=2)
        self.y_guard(self.u_transpose, self.opt('paru', 1))
        a(f"v_mov_b32 v26, v{self.pCA}\nv_mov_b32 v27, v{self.pCB}")
        a(f"""s_lshl_b32 {s(sT2)}, {s(sCH)}, 12
        s_add_u32 {s(sT2)}, {s(sT2)}, {GEN+8192}
        v_lshl_add_u32 v5, v0, 4, {s(sT2)}
        s_lshl_b32 {s(sT2)}, {s(sCH)}, 2
        v_add_u32 v6, {s(sT2)}, v1
        s_cmp_eq_u32 {s(sMH)}, 0
        s_cbranch_scc1 L_s_expand""")
        for c in range(4): a(f"ds_write_b128 v5, {v(ACC+4*c,4)} offset:{1024*c}")
        a("s_waitcnt lgkmcnt(0)")
        self.arrive(C_KT0, 6, vONE)
        a("s_branch L_s_ucopy")
        a.label("L_s_expand")
        self.waitc(C_KT0, 1, 6, vT)
        for c in range(4): a(f"ds_read_b128 {v(32+4*c,4)}, v5 offset:{1024*c}")
        a(f"""v_lshl_add_u32 v7, v0, 4, s46
        v_mov_b64 v[48:49], 0
        v_mov_b64 v[50:51], 0""")
        for cp in range(2):
            for off in (0, 1024, 1136):
                a(f"ds_write_b128 v7, v[48:51] offset:{cp*KCOPY+off}")
        a("s_waitcnt lgkmcnt(6)")
        for k in range(0, 16, 2): a(f"v_pk_add_f32 {v(ACC+k,2)}, {v(ACC+k,2)}, {v(32+k,2)}")
        a(f"""s_mov_b64 exec, 1
        v_add_f32 v{ACC}, {s(sT5)}, v{ACC}
        s_mov_b64 exec, -1
        s_mov_b32 {s(sT2)}, 0x55555555
        s_mov_b32 {s(sT3)}, 0x55555555""")
        A = ACC
        a(f"""v_cvt_pk_bf16_f32 v32, v{A+3}, v{A+2}
        v_cvt_pk_bf16_f32 v33, v{A+1}, v{A}
        ds_write_b64 v{self.pE10}, v[32:33] offset:{144*15+8}
        v_cvt_pk_bf16_f32 v34, v{A+6}, v{A+5}
        v_cvt_pk_bf16_f32 v35, v{A+4}, v{A+4}
        ds_write_b64 v{self.pE10}, v[34:35] offset:{144*19+8}
        v_cvt_pk_bf16_f32 v36, v{A+10}, v{A+10}
        v_cvt_pk_bf16_f32 v37, v{A+9}, v{A+9}
        v_cvt_pk_bf16_f32 v38, v{A+9}, v{A+8}
        v_cvt_pk_bf16_f32 v39, v{A+8}, v{A+8}
        ds_write_b128 v{self.pE9}, v[36:39] offset:{144*23}""")
        for q, (ra, dst, blk) in enumerate(((A + 12, 40, 31), (A + 14, 44, 39))):
            a(f"""v_cndmask_b32 v11, v{ra+1}, v{ra}, {s(sT2,2)}
            v_cvt_pk_bf16_f32 v{dst}, v{ra+1}, v{ra+1}
            v_cvt_pk_bf16_f32 v{dst+1}, v{ra+1}, v11
            v_cvt_pk_bf16_f32 v{dst+2}, v{ra}, v{ra}
            v_cvt_pk_bf16_f32 v{dst+3}, v{ra}, v{ra}
            ds_write_b128 v{self.pE9}, {v(dst,4)} offset:{144*blk}""")
        for it in range(4):
            a(f"ds_read_b128 {v(64+8*it,4)}, v{self.pE8} offset:{144*(15+8*it)}")
            a(f"ds_read_b32 v{68+8*it}, v{self.pE8p} offset:{144*(15+8*it)}")
        for it in range(4):
            b = 64 + 8 * it
            a(f"s_waitcnt lgkmcnt({6-2*it+it})")
            for k in range(4): a(f"v_alignbit_b32 v{32+4*it+k}, v{b+k+1}, v{b+k}, 16")
            a(f"ds_write_b128 v{self.pE8}, {v(32+4*it,4)} offset:{KCOPY+144*(15+8*it)}")
        a.label("L_s_ucopy")
        self.y_guard(self.u_transpose2, self.opt('paru', 1))
        a("s_waitcnt lgkmcnt(0)")
        if self.opt("paru", 1): self.y_guard(lambda: self.s_publish(C_UT, WS_FLAG3), 1)
        else: self.s_publish(C_UT, WS_FLAG3)
        self.stamp(3)
        if self.opt("abl_s") == 3: self.arrive(C_YT, vZ, vONE); self.arrive(C_WO, vZ, vONE); a("s_branch L_end")
        self.waitc(C_QL, 4, vZ, vT, slp=2)
        self.srd(rB, pWO, 524288)
        a(f"""s_lshl_b32 {s(sT3)}, {s(sW4)}, 17
        s_lshl_b32 {s(sT2)}, {s(sR)}, 7
        s_add_u32 {s(sT3)}, {s(sT3)}, {s(sT2)}
        s_lshl_b32 {s(sT4)}, {s(sW4)}, 13
        s_add_u32 {s(sT4)}, {s(sT4)}, {XE}""")
        def wo_dma():
            a(f"s_mov_b32 m0, {s(sT4)}")
            for i in range(8):
                if i and i % self.opt("wosplit", 4) == 0: a("s_waitcnt vmcnt(0)")
                a(f"buffer_load_dwordx4 v{self.pWD}, {s(rB,4)}, {s(sT3)} offen lds")
                if i < 7: a("s_add_u32 m0, m0, 1024")
                a(f"s_add_u32 {s(sT3)}, {s(sT3)}, 8192")
        WOF = 96
        WIN = self.opt("woin", 0)
        a(f"v_mov_b32 v16, v{self.pWT}\nv_xor_b32 v17, 64, v{self.pWT}\ns_mov_b32 s44, {s(sT3)}\ns_mov_b32 s45, {s(sT4)}" if False else f"v_mov_b32 v16, v{self.pWT}\nv_xor_b32 v17, 64, v{self.pWT}")
        def wo_frags(rnd):
            a("s_waitcnt vmcnt(0)")
            for ks in range(4):
                for ct in range(2):
                    d = WOF + 32 * rnd + 8 * ks + 4 * ct
                    a(f"ds_read_b64_tr_b16 {v(d,2)}, v{16+ct} offset:{2048*ks}")
                    a(f"ds_read_b64_tr_b16 {v(d+2,2)}, v{16+ct} offset:{2048*ks+512}")
            a("s_waitcnt lgkmcnt(0)")
        if WIN:
            a(f"s_mov_b32 s42, {s(sT3)}\ns_mov_b32 s43, {s(sT4)}")
        else:
            for rnd in range(2): wo_dma(); wo_frags(rnd)
        a(f"""s_lshr_b32 {s(sT4)}, {s(sP)}, {5 + self.opt("paru", 1)}
        s_lshl_b32 {s(sT4)}, {s(sT4)}, {12 + self.opt("paru", 1)}
        s_add_u32 {s(sT4)}, {s(sT4)}, {WS_FLAG3}""")
        self.s_poll(sT4, 31)
        a(f"""s_lshl_b32 {s(sT1)}, {s(sP)}, 13
        s_lshl_b32 {s(sT2)}, {s(sW4)}, 11
        s_add_u32 {s(sT1)}, {s(sT1)}, {s(sT2)}
        s_add_u32 {s(sT1)}, {s(sT1)}, {WS_UT}
        v_lshlrev_b32 v4, 5, v0
        buffer_load_dwordx4 {v(UG,4)}, v4, {s(rWS,4)}, {s(sT1)} offen sc1
        buffer_load_dwordx4 {v(UG+4,4)}, v4, {s(rWS,4)}, {s(sT1)} offen offset:16 sc1""")
        a(f"""s_cmp_eq_u32 {s(sW4)}, 0
        s_cbranch_scc0 L_s_nouz
        v_lshrrev_b32 v8, 3, v0
        v_mul_u32_u24 v8, {UCOPY}, v8
        v_and_b32 v9, 7, v0
        v_lshl_add_u32 v8, v9, 4, v8
        v_add_u32 v8, {W}, v8
        v_mov_b64 v[48:49], 0
        v_mov_b64 v[50:51], 0
        ds_write_b128 v8, v[48:51]""")
        a.label("L_s_nouz")
        a(f"""s_mov_b32 {s(sT0)}, 0x05040100
        s_mov_b32 {s(sT1)}, 0x07060302
        s_waitcnt vmcnt(0)""")
        self.stamp(4)
        for k in range(4):
            a(f"v_perm_b32 v{32+k}, v{UG+2*k+1}, v{UG+2*k}, {s(sT0)}")
            a(f"v_perm_b32 v{36+k}, v{UG+2*k+1}, v{UG+2*k}, {s(sT1)}")
        for ch in range(2):
            d = 32 + 4 * ch
            for ph in range(4):
                off = ch * UCH + ph * UCOPY + 128 - 4 * (ph + 1)
                if ph == 3:
                    a(f"ds_write_b128 v{self.pUC}, {v(d,4)} offset:{off}")
                elif ph == 1:
                    a(f"ds_write_b64 v{self.pUC}, {v(d,2)} offset:{off}\nds_write_b64 v{self.pUC}, {v(d+2,2)} offset:{off+8}")
                else:
                    a(f"v_add_u32 v9, {off}, v{self.pUC}")
                    a(f"ds_write2_b32 v9, v{d}, v{d+1} offset0:0 offset1:1\nds_write2_b32 v9, v{d+2}, v{d+3} offset0:2 offset1:3")
        a("s_waitcnt lgkmcnt(0)")
        self.arrive(C_KU, vZ, vONE)
        T0, T1 = 64, 80
        vA, vB = 26, 27
        if self.opt("wospf", 0):
            a(f"""s_and_b32 {s(sT0)}, {s(sP)}, 31
            s_lshl_b32 {s(sT0)}, {s(sT0)}, 2
            s_add_u32 {s(sT0)}, {s(sT0)}, {s(sW4)}
            s_lshl_b32 {s(sT0)}, {s(sT0)}, 12""")
            self.s_prefetch(pWO, sT0, 32 * self.opt("wospf"), 128 // self.opt("wospf"))
        if self.opt("wopf", 0):
            self.srd(rB, pWO, 524288)
            self.l2_prefetch(rB, self.opt("wopf"), 10, 11, sT4)
        self.waitc(C_KU, 4, vZ, vT)
        self.stamp(5)
        if self.opt("abl_s") == 5: self.arrive(C_YT, vZ, vONE); self.arrive(C_WO, vZ, vONE); a("s_branch L_end")
        if self.opt("cprio", 3) != 3: a(f"s_setprio {self.opt('cprio')}")
        a(f"s_mov_b32 {s(sT4)}, {self.opt('convit', 8)}")
        def step(u, first=False):
            b = 32 + 16 * (u & 1)
            ao = 144 * 15 + 16 * (7 - 2 * u)
            a(f"""ds_read_b128 {v(b,4)}, v{vA} offset:{ao}
            ds_read_b128 {v(b+8,4)}, v{vB} offset:{32*u}
            s_waitcnt lgkmcnt(0)
            v_mfma_f32_32x32x16_bf16 {v(T0,16)}, {v(b,4)}, {v(b+8,4)}, {'0' if first else v(T0,16)}
            ds_read_b128 {v(b+12,4)}, v{vB} offset:{32*u+2048}
            s_waitcnt lgkmcnt(0)
            v_mfma_f32_32x32x16_bf16 {v(T1,16)}, {v(b,4)}, {v(b+12,4)}, {'0' if first else v(T1,16)}
            ds_read_b128 {v(b+4,4)}, v{vA} offset:{ao+2304}
            s_waitcnt lgkmcnt(0)
            v_mfma_f32_32x32x16_bf16 {v(T1,16)}, {v(b+4,4)}, {v(b+8,4)}, {v(T1,16)}""")
        def dma1():
            a(f"""buffer_load_dwordx4 v{self.pWD}, {s(rB,4)}, s42 offen lds
            s_add_u32 m0, m0, 1024
            s_add_u32 s42, s42, 8192""")
        for part in range(2 if WIN else 1):
            if WIN: a(f"s_mov_b32 m0, s43\ns_mov_b32 {s(sT4)}, 4")
            if part == 0:
                step(0, True)
                a("s_branch L_conv1")
            a.label(f"L_conv_{part}")
            step(0)
            if part == 0: a.label("L_conv1")
            if WIN: dma1()
            step(1); step(2)
            if WIN: dma1()
            step(3)
            a(f"""v_subrev_u32 v{vA}, 144, v{vA}
            v_add_u32 v{vB}, 128, v{vB}
            s_sub_u32 {s(sT4)}, {s(sT4)}, 1
            s_cmp_lg_u32 {s(sT4)}, 0
            s_cbranch_scc1 L_conv_{part}""")
            if WIN: wo_frags(part)
        self.stamp(6)
        if self.opt("cprio", 3) != 3: a(f"s_setprio {self.opt('sprio', 3)}")
        if self.opt("abl_s") == 6: self.arrive(C_YT, vZ, vONE); self.arrive(C_WO, vZ, vONE); a("s_branch L_end")
        def xchg_write(base, accs, ymode=False):
            a(f"""s_lshl_b32 {s(sT2)}, {s(sW4)}, 11
            s_add_u32 {s(sT2)}, {s(sT2)}, {base}
            v_lshl_add_u32 v10, v0, 4, {s(sT2)}
            s_lshl_b32 {s(sT2)}, {s(sW4)}, 13
            s_add_u32 {s(sT2)}, {s(sT2)}, {base}
            v_lshl_add_u32 v11, v0, 4, {s(sT2)}""")
            for q in range(4):
                r0, r1 = (accs+8*q, accs+8*q+4) if not ymode else (accs+16*(q>>1)+4*(q&1), accs+16*(q>>1)+8+4*(q&1))
                a(f"ds_write_b128 v10, {v(r0,4)} offset:{8192*q}")
                a(f"ds_write_b128 v10, {v(r1,4)} offset:{8192*q+1024}")
        def xchg_read(dst):
            for w in range(4):
                a(f"ds_read_b128 {v(dst+8*w,4)}, v11 offset:{2048*w}")
                a(f"ds_read_b128 {v(dst+8*w+4,4)}, v11 offset:{2048*w+1024}")
        a("s_waitcnt lgkmcnt(0)")
        xchg_write(YX, T0, True)
        a("s_waitcnt lgkmcnt(0)")
        self.arrive(C_Y, vZ, vONE)
        self.srd(rC, pOUT, 4194304)
        a(f"""s_lshl_b32 {s(sT1)}, {s(sP)}, 13
        s_lshl_b32 {s(sT2)}, {s(sW4)}, 11
        s_add_u32 {s(sT1)}, {s(sT1)}, {s(sT2)}
        s_add_u32 {s(sT1)}, {s(sT1)}, {WS_YT}""")
        self.waitc(C_Y, 4, vZ, vT)
        xchg_read(32)
        a("s_waitcnt lgkmcnt(0)")
        for k in range(0, 16, 2): a(f"v_pk_add_f32 {v(32+k,2)}, {v(32+k,2)}, {v(48+k,2)}")
        for e in range(4):
            a(f"v_cvt_pk_bf16_f32 v{48+2*e}, v{36+e}, v{44+e}")
            a(f"v_cvt_pk_bf16_f32 v{49+2*e}, v{32+e}, v{40+e}")
        for e in range(4):
            a(f"buffer_store_dwordx2 {v(48+2*e,2)}, v{self.pYS}, {s(rWS,4)}, {s(sT1)} offen offset:{256*e} sc1")
        a(f"""s_lshl_b32 {s(sT1)}, {s(sG)}, 6
        s_lshl_b32 {s(sT2)}, {s(sR)}, 2
        s_add_u32 {s(sT1)}, {s(sT1)}, {s(sT2)}
        s_add_u32 {s(sT1)}, {s(sT1)}, {s(sW4)}
        s_lshl_b32 {s(sT1)}, {s(sT1)}, 10
        s_add_u32 {s(sT1)}, {s(sT1)}, {WS_O}
        s_add_u32 {s(sT2)}, {s(sT1)}, 32768
        v_mov_b64 v[20:21], -1
        v_mov_b64 v[22:23], -1
        v_lshlrev_b32 v14, 4, v0
        buffer_store_dwordx4 v[20:23], v14, {s(rWS,4)}, {s(sT1)} offen sc1
        buffer_store_dwordx4 v[20:23], v14, {s(rWS,4)}, {s(sT2)} offen sc1""")
        self.s_publish(C_YT, WS_FLAG4)
        self.stamp(7)
        if self.opt("abl_s") == 7: self.arrive(C_YT, vZ, vONE); self.arrive(C_WO, vZ, vONE); a("s_branch L_end")
        self.stamp(8)
        if self.opt("abl_s") == 8: a("s_branch L_end")
        self.y_poll()
        if self.opt("yby", 2) == 2: self.y_guard(self.y_assemble, self.opt('pary', 0))
        else: self.arrive(C_Y4, vZ, vONE)
        if self.opt("abl_s") == 9: a("s_branch L_end")
        a(f"""s_lshl_b32 {s(sT3)}, {s(sG)}, 16
        s_lshl_b32 {s(sT2)}, {s(sW4)}, 13
        s_add_u32 {s(sT3)}, {s(sT3)}, {s(sT2)}
        s_add_u32 {s(sT3)}, {s(sT3)}, {WS_O}
        s_lshl_b32 {s(sT1)}, {s(sG)}, 17
        s_lshl_b32 {s(sT2)}, {s(sR)}, 7
        s_add_u32 {s(sT1)}, {s(sT1)}, {s(sT2)}
        s_lshl_b32 {s(sT2)}, {s(sW4)}, 14
        s_add_u32 {s(sT1)}, {s(sT1)}, {s(sT2)}
        v_mov_b32 v12, v{self.pOS}
        v_mov_b32 v10, v{self.pOW}
        v_mov_b32 v11, v{self.pOR}""")
        OF = 32; AC = 64
        def oxw():
            for q in range(4):
                a(f"ds_write_b128 v10, {v(AC+8*q,4)} offset:{9344*q}")
                a(f"ds_write_b128 v10, {v(AC+8*q+4,4)} offset:{9344*q+1152}")
        def oxr():
            for w in range(4):
                a(f"ds_read_b128 {v(32+8*w,4)}, v11 offset:{2304*w}")
                a(f"ds_read_b128 {v(36+8*w,4)}, v11 offset:{2304*w+1152}")
        def omm(h):
            for ct in range(2):
                w = WOF + 8 * h + 4 * ct
                a(f"v_mfma_f32_32x32x16_bf16 {v(AC+16*ct,16)}, {v(w,4)}, {v(OF+4*h,4)}, {'0' if h==0 else v(AC+16*ct,16)}")
        if self.opt("rpipe", 3):
            self.rounds_piped(OF, AC, omm, oxw)
            return
        a(f"""s_mov_b32 {s(sT5)}, 0
        v_mov_b32 v16, v1""")
        a.label("L_round")
        a(f"s_add_u32 {s(sT4)}, {s(sT3)}, 4096")
        if self.opt("rst"): self.stamp(3)
        self.waitc(C_OE, 4, 16, vT, slp=1)
        if self.opt("rst"): self.stamp(4)
        LP = self.opt("lightp", 1)
        if LP:
            if LP == 1: a(f"s_cmp_eq_u32 {s(sT5)}, 0\ns_cbranch_scc0 L_opoll")
            a(f"""v_lshlrev_b32 v18, 10, v0
            s_mov_b64 exec, 0xff""")
            a.label("L_lpoll")
            a(f"""buffer_load_dword v19, v18, {s(rWS,4)}, {s(sT3)} offen offset:1020 sc1
            s_waitcnt vmcnt(0)
            v_cmp_eq_u32 vcc, -1, v19
            s_and_b64 exec, exec, vcc
            s_cbranch_execz L_lok
            s_sleep {self.opt('lslp', 0)}
            s_sub_u32 {s(sBUD)}, {s(sBUD)}, 1
            s_cbranch_scc0 L_lpoll
            s_mov_b32 {s(sBUD)}, 0""")
            a.label("L_lok")
            a("s_mov_b64 exec, -1")
        a.label("L_opoll")
        if self.opt("rst"): self.stamp(5)
        for h in range(8): a(f"buffer_load_dwordx4 {v(OF+4*h,4)}, v14, {s(rWS,4)}, {s(sT3 if h<4 else sT4)} offen offset:{1024*(h&3)} sc1")
        for h in range(8):
            a(f"s_waitcnt vmcnt({7-h})")
            b = OF + 4 * h
            a(f"v_max_u32 v15, v{b}, v{b+1}" if h == 0 else f"v_max3_u32 v15, v15, v{b}, v{b+1}")
            if self.opt("ospec", 1): omm(h)
            a(f"v_max3_u32 v15, v15, v{b+2}, v{b+3}")
        a(f"""v_cmp_ne_u32 vcc, -1, v15
        s_cmp_eq_u64 vcc, exec
        s_cbranch_scc1 L_ook
        s_sub_u32 {s(sBUD)}, {s(sBUD)}, 1 ; nocount
        s_cbranch_scc0 L_opoll ; nocount
        s_mov_b32 {s(sBUD)}, 0 ; nocount""")
        a.label("L_ook")
        if self.dbg:
            a(f"s_cmp_eq_u32 {s(sT5)}, 0\ns_cbranch_scc0 L_st10")
            self.stamp(9)
            a.label("L_st10")
            self.stamp(10)
        if not self.opt("ospec", 1):
            for h in range(8): omm(h)
        oxw()
        a("s_waitcnt lgkmcnt(0)")
        self.sync4(C_O1, 16, vONE, vT, slp=0)
        if self.opt("rst"): self.stamp(6)
        oxr()
        a("s_waitcnt lgkmcnt(4)")
        for k in range(0, 8, 2): a(f"v_pk_add_f32 {v(32+k,2)}, {v(32+k,2)}, {v(40+k,2)}")
        a("s_waitcnt lgkmcnt(2)")
        for k in range(0, 8, 2): a(f"v_pk_add_f32 {v(32+k,2)}, {v(32+k,2)}, {v(48+k,2)}")
        a("s_waitcnt lgkmcnt(0)")
        for k in range(0, 8, 2): a(f"v_pk_add_f32 {v(32+k,2)}, {v(32+k,2)}, {v(56+k,2)}")
        for k in range(4): a(f"v_cvt_pk_bf16_f32 v{20+k}, v{32+2*k}, v{33+2*k}")
        a(f"""buffer_store_dwordx4 v[20:23], v12, {s(rC,4)}, {s(sT1)} offen {self.opt_sc('osc', 0)}
        s_cmp_eq_u32 {s(sT5)}, 0
        s_cbranch_scc0 L_end
        s_mov_b32 {s(sT5)}, 1
        s_add_u32 {s(sT3)}, {s(sT3)}, 32768
        s_add_u32 {s(sT1)}, {s(sT1)}, 65536
        v_add_u32 v16, 4, v16
        v_add_u32 v10, {OX2-OX1}, v10
        v_add_u32 v11, {OX2-OX1}, v11
        s_branch L_round""")

    def rounds_piped(self, OF, AC, omm, oxw):
        a = self.a; vL, vZ, vONE, vT = self.vL, self.vZ, self.vONE, self.vT
        def loads():
            for h in range(8): a(f"buffer_load_dwordx4 {v(OF+4*h,4)}, v14, {s(rWS,4)}, {s(sT3 if h<4 else sT4)} offen offset:{1024*(h&3)} sc1")
        def check_mm(Lok):
            for h in range(8):
                a(f"s_waitcnt vmcnt({7-h})")
                b = OF + 4 * h
                a(f"v_max_u32 v15, v{b}, v{b+1}" if h == 0 else f"v_max3_u32 v15, v15, v{b}, v{b+1}")
                omm(h)
                a(f"v_max3_u32 v15, v15, v{b+2}, v{b+3}")
            a(f"""v_cmp_ne_u32 vcc, -1, v15
            s_cmp_eq_u64 vcc, exec
            s_cbranch_scc1 {Lok}""")
        def reduce(dst):
            for w in range(4):
                a(f"ds_read_b128 {v(AC+8*w,4)}, v11 offset:{2304*w}")
                a(f"ds_read_b128 {v(AC+4+8*w,4)}, v11 offset:{2304*w+1152}")
            for w in range(1, 4):
                a(f"s_waitcnt lgkmcnt({6-2*w})")
                for k in range(0, 8, 2): a(f"v_pk_add_f32 {v(AC+k,2)}, {v(AC+k,2)}, {v(AC+8*w+k,2)}")
            for k in range(4): a(f"v_cvt_pk_bf16_f32 v{dst+k}, v{AC+2*k}, v{AC+2*k+1}")
        a(f"s_add_u32 {s(sT4)}, {s(sT3)}, 4096")
        self.waitc(C_OE, self.opt("oeth", 4), vZ, vT, slp=1)
        a(f"""v_lshlrev_b32 v18, 10, v0
        s_mov_b64 exec, 0xff""")
        a.label("L_lpoll")
        a(f"""buffer_load_dword v19, v18, {s(rWS,4)}, {s(sT3)} offen offset:1020 sc1
        s_waitcnt vmcnt(0)
        v_cmp_eq_u32 vcc, -1, v19
        s_and_b64 exec, exec, vcc
        s_cbranch_execz L_lok
        s_sub_u32 {s(sBUD)}, {s(sBUD)}, 1
        s_cbranch_scc0 L_lpoll
        s_mov_b32 {s(sBUD)}, 0""")
        a.label("L_lok")
        a("s_mov_b64 exec, -1")
        a.label("L_o0")
        loads(); check_mm("L_o0ok")
        a(f"""s_sub_u32 {s(sBUD)}, {s(sBUD)}, 1 ; nocount
        s_cbranch_scc0 L_o0 ; nocount
        s_mov_b32 {s(sBUD)}, 0 ; nocount""")
        a.label("L_o0ok")
        self.stamp(9)
        if self.opt("tsplit", 1):
            a(f"""s_add_u32 {s(sT3)}, {s(sT3)}, 32768
            s_add_u32 {s(sT4)}, {s(sT4)}, 32768
            s_and_b32 {s(sT2)}, {s(sW4)}, 1
            s_mul_i32 {s(sT2)}, {s(sT2)}, {OX2-OX1}
            v_add_u32 v9, {s(sT2)}, v10
            s_sub_u32 {s(sT2)}, {OX2-OX1}, {s(sT2)}
            v_add_u32 v8, {s(sT2)}, v10
            v_mov_b32 v10, v9
            s_nop 3""")
            oxw()
            a("v_mov_b32 v10, v8")
            if self.opt("rst"): self.stamp(3)
            a.label("L_o1")
            self.waitc(C_OL, 4, vZ, vT, slp=0)
            if self.opt("lp1", 0):
                a("s_mov_b64 exec, 0xff")
                a.label("L_lpoll1")
                a(f"""buffer_load_dword v19, v18, {s(rWS,4)}, {s(sT3)} offen offset:1020 sc1
                s_waitcnt vmcnt(0)
                v_cmp_eq_u32 vcc, -1, v19
                s_and_b64 exec, exec, vcc
                s_cbranch_execz L_lok1
                s_sub_u32 {s(sBUD)}, {s(sBUD)}, 1
                s_cbranch_scc0 L_lpoll1
                s_mov_b32 {s(sBUD)}, 0""")
                a.label("L_lok1")
                a("s_mov_b64 exec, -1")
            if self.opt("rst"): self.stamp(5)
            loads(); check_mm("L_o1ok")
            a(f"""s_sub_u32 {s(sBUD)}, {s(sBUD)}, 1 ; nocount
            s_cbranch_scc0 L_o1 ; nocount
            s_mov_b32 {s(sBUD)}, 0 ; nocount""")
            a.label("L_o1ok")
            self.stamp(10)
            a(f"v_add_u32 v9, {OX2-OX1}, v11\ns_add_u32 {s(sT2)}, {s(sT1)}, 65536\ns_nop 3")
            oxw()
            a("s_waitcnt lgkmcnt(0)\ns_barrier")
            if self.opt("rst"): self.stamp(6)
            for t, (ad, B) in enumerate(((11, AC), (9, OF))):
                for w in range(4):
                    a(f"ds_read_b128 {v(B+8*w,4)}, v{ad} offset:{2304*w}")
                    a(f"ds_read_b128 {v(B+4+8*w,4)}, v{ad} offset:{2304*w+1152}")
                if t == 0: a("s_waitcnt lgkmcnt(4)"); [a(f"v_pk_add_f32 {v(B+k,2)}, {v(B+k,2)}, {v(B+8+k,2)}") for k in range(0, 8, 2)]
            for t, B in enumerate((AC, OF)):
                for w in range(1, 4):
                    if t == 0 and w == 1: continue
                    a(f"s_waitcnt lgkmcnt({(8 if t == 0 else 0) + 6 - 2*w})")
                    for k in range(0, 8, 2): a(f"v_pk_add_f32 {v(B+k,2)}, {v(B+k,2)}, {v(B+8*w+k,2)}")
                for k in range(4): a(f"v_cvt_pk_bf16_f32 v{20+4*t+k}, v{B+2*k}, v{B+2*k+1}")
                a(f"buffer_store_dwordx4 {v(20+4*t,4)}, v12, {s(rC,4)}, {s(sT1 if t == 0 else sT2)} offen {self.opt_sc('osc', 0)}")
            a("s_branch L_end")
            return
        a(f"s_add_u32 {s(sT3)}, {s(sT3)}, 32768\ns_add_u32 {s(sT4)}, {s(sT4)}, 32768")
        if self.opt("rpipe", 3) == 2: loads()
        oxw()
        a("s_waitcnt lgkmcnt(0)")
        self.sync4(C_O1, vZ, vONE, vT, slp=0)
        if self.opt("rpipe", 3) == 1: loads()
        if self.opt("rpipe", 3) == 3:
            a(f"""ds_read_b32 v3, v1 offset:{C_OL}
            s_waitcnt lgkmcnt(0)
            v_readfirstlane_b32 {s(sT5)}, v3
            s_cmp_ge_u32 {s(sT5)}, {self.opt('rthr', 4)}
            s_cbranch_scc0 L_nopf""")
            loads()
            a.label("L_nopf")
        reduce(20)
        if self.opt("rpipe", 3) == 3:
            a(f"s_cmp_ge_u32 {s(sT5)}, {self.opt('rthr', 4)}\ns_cbranch_scc1 L_pfd")
            self.waitc(C_OL, 4, vZ, vT, slp=0)
            loads()
            a.label("L_pfd")
        a(f"v_add_u32 v10, {OX2-OX1}, v10\nv_add_u32 v11, {OX2-OX1}, v11")
        if self.opt("rst"): self.stamp(3)
        a.label("L_o1")
        if self.opt("rst"): self.stamp(5)
        check_mm("L_o1ok")
        n0 = len(a.lines)
        self.waitc(C_OL, 4, vZ, vT, slp=0)
        loads()
        a(f"""s_sub_u32 {s(sBUD)}, {s(sBUD)}, 1
        s_cbranch_scc0 L_o1
        s_mov_b32 {s(sBUD)}, 0
        s_waitcnt vmcnt(0)""")
        for i in range(n0, len(a.lines)):
            l = a.lines[i]
            if not l.endswith(":") and "nocount" not in l and not l.startswith(("v_readfirst", "s_cmp")): a.lines[i] = l + " ; nocount"
        a.label("L_o1ok")
        self.stamp(10)
        a(f"""buffer_store_dwordx4 v[20:23], v12, {s(rC,4)}, {s(sT1)} offen {self.opt_sc('osc', 0)}
        s_add_u32 {s(sT1)}, {s(sT1)}, 65536
        s_nop 7""")
        oxw()
        a("s_waitcnt lgkmcnt(0)")
        if self.opt("fbar", 1): a("s_barrier")
        else: self.sync4(C_O2, vZ, vONE, vT, slp=0)
        if self.opt("rst"): self.stamp(6)
        reduce(24)
        a(f"buffer_store_dwordx4 v[24:27], v12, {s(rC,4)}, {s(sT1)} offen {self.opt_sc('osc', 0)}\ns_branch L_end")

    UG = 64
    pE10, pE9, pE8, pE8p, pCA, pCB, pUC = 146, 147, 148, 149, 156, 157, 166
    pWT, pWD, pYS, pOW, pOR, pOS = 160, 161, 162, 163, 164, 165
    def s_precompute(self):
        a = self.a; sCH, sMH = sLOOP, sSOF
        a(f"""s_mul_i32 s46, {s(sCH)}, {KCH}
        s_add_u32 s46, s46, {R0+256}
        v_and_b32 v16, 7, v0
        v_lshrrev_b32 v17, 5, v0
        v_lshrrev_b32 v18, 3, v0
        v_and_b32 v19, 3, v18
        v_mul_u32_u24 v19, 144, v19
        v_lshl_add_u32 v19, v16, 4, v19
        v_add_u32 v19, s46, v19
        v_lshlrev_b32 v20, 3, v17
        v_sub_u32 v{self.pE10}, v19, v20
        v_mul_u32_u24 v20, 576, v17
        v_add_u32 v{self.pE9}, v19, v20
        v_mul_u32_u24 v19, 144, v18
        v_lshl_add_u32 v19, v16, 4, v19
        v_add_u32 v{self.pE8}, s46, v19
        v_cmp_eq_u32 {s(sT2,2)}, 0, v16
        v_mov_b32 v19, 16
        v_cndmask_b32 v19, v19, 32, {s(sT2,2)}
        v_sub_u32 v{self.pE8p}, v{self.pE8}, v19
        s_mul_i32 {s(sT2)}, {s(sMH)}, 1152
        s_sub_u32 {s(sT3)}, s46, {s(sT2)}
        v_and_b32 v19, 15, v0
        v_mul_u32_u24 v19, 144, v19
        v_bfe_u32 v21, v0, 4, 1
        v_mul_u32_u24 v22, {KCOPY}, v21
        v_add_u32 v19, v19, v22
        v_lshlrev_b32 v22, 4, v17
        v_sub_u32 v19, v19, v22
        v_add_u32 v{self.pCA}, {s(sT3)}, v19
        s_mul_i32 {s(sT2)}, {s(sCH)}, {UCH}
        s_lshl_b32 {s(sT3)}, {s(sMH)}, 10
        s_add_u32 {s(sT2)}, {s(sT2)}, {s(sT3)}
        s_add_u32 {s(sT2)}, {s(sT2)}, {W}
        v_and_b32 v19, 3, v0
        v_mul_u32_u24 v19, {UCOPY}, v19
        v_bfe_u32 v23, v0, 2, 3
        v_lshl_add_u32 v19, v23, 4, v19
        v_add_u32 v19, v19, v22
        v_add_u32 v{self.pCB}, {s(sT2)}, v19
        s_lshl_b32 {s(sT2)}, {s(sW4)}, 10
        s_add_u32 {s(sT2)}, {s(sT2)}, {W}
        v_lshl_add_u32 v{self.pUC}, v0, 4, {s(sT2)}
        v_and_b32 v19, 31, v0
        v_lshlrev_b32 v23, 3, v19
        v_lshl_add_u32 v{self.pYS}, v17, 10, v23
        v_and_b32 v23, 2, v18
        v_lshlrev_b32 v23, 1, v23
        v_xor_b32 v23, v16, v23
        v_lshlrev_b32 v24, 10, v18
        v_lshl_add_u32 v{self.pWD}, v23, 4, v24
        v_bfe_u32 v23, v0, 2, 2
        v_lshl_add_u32 v24, v17, 3, v23
        v_lshlrev_b32 v24, 7, v24
        v_and_b32 v23, 2, v23
        v_lshl_add_u32 v24, v23, 5, v24
        v_lshl_add_u32 v24, v21, 5, v24
        v_and_b32 v25, 1, v0
        v_lshl_add_u32 v24, v25, 4, v24
        v_bfe_u32 v23, v0, 1, 1
        v_lshl_add_u32 v24, v23, 3, v24
        s_lshl_b32 {s(sT2)}, {s(sW4)}, 13
        s_add_u32 {s(sT2)}, {s(sT2)}, {XE}
        v_add_u32 v{self.pWT}, {s(sT2)}, v24
        v_lshl_add_u32 v19, v19, 4, v20
        s_mul_i32 {s(sT2)}, {s(sW4)}, 2304
        s_add_u32 {s(sT2)}, {s(sT2)}, {W}
        v_add_u32 v{self.pOW}, {s(sT2)}, v19
        v_lshlrev_b32 v19, 4, v18
        v_mul_u32_u24 v23, 576, v25
        v_add_u32 v19, v19, v23
        v_bfe_u32 v23, v0, 1, 2
        v_mul_u32_u24 v23, 9344, v23
        v_add_u32 v19, v19, v23
        s_lshl_b32 {s(sT2)}, {s(sW4)}, 7
        s_add_u32 {s(sT2)}, {s(sT2)}, {W}
        v_add_u32 v{self.pOR}, {s(sT2)}, v19
        v_lshlrev_b32 v19, 11, v18
        v_lshl_add_u32 v{self.pOS}, v16, 4, v19""")
    def blk_ids(self, par):
        a = self.a
        a(f"""s_lshr_b32 {s(sT4)}, {s(sP)}, 5
        s_and_b32 {s(sT0)}, {s(sP)}, 31
        s_lshl_b32 {s(sT0)}, {s(sT0)}, 1
        s_and_b32 {s(sT2)}, {s(sW4)}, 1
        s_add_u32 {s(sT0)}, {s(sT0)}, {s(sT2)}""")
        if par:
            a(f"""s_lshr_b32 {s(sT2)}, {s(sW4)}, 1
            s_xor_b32 {s(sT4)}, {s(sT4)}, {s(sT2)}""")
    def swap44(self, b):
        for i in range(4):
            for j in range(i + 1, 4): self.a(f"v_swap_b32 v{b+4*i+j}, v{b+4*j+i}")
    def u_transpose(self):
        a = self.a; B = 96
        self.blk_ids(self.opt("paru", 1))
        a(f"""s_mov_b32 {s(rB)}, {s(pU)}
        s_mov_b32 {s(rB+1)}, {s(pU+1)}
        s_mov_b32 {s(rB+2)}, 2097152
        s_lshl_b32 {s(sT1)}, {s(sT0)}, 15
        s_lshl_b32 {s(sT2)}, {s(sT4)}, 7
        s_add_u32 {s(sT1)}, {s(sT1)}, {s(sT2)}
        v_and_b32 v29, 7, v0
        v_lshrrev_b32 v30, 3, v0
        v_lshlrev_b32 v28, 12, v30
        v_lshl_add_u32 v28, v29, 4, v28""")
        for i in range(4): a(f"buffer_load_dwordx4 {v(B+4*i,4)}, v28, {s(rB,4)}, {s(sT1)} offen offset:{1024*i}")
        a(f"""s_lshl_b32 s47, {s(sT4)}, 18
        s_lshl_b32 {s(sT2)}, {s(sT0)}, 7
        s_add_u32 s47, s47, {s(sT2)}
        s_add_u32 s47, s47, {WS_UT}
        v_lshlrev_b32 v28, 15, v29
        v_lshl_add_u32 v28, v30, 4, v28""")
    def u_transpose2(self):
        a = self.a; B = 96
        a("s_waitcnt vmcnt(0)")
        self.swap44(B)
        for j in range(4):
            if j: a("s_add_u32 s47, s47, 8192")
            a(f"buffer_store_dwordx4 {v(B+4*j,4)}, v28, {s(rWS,4)}, s47 offen sc1")
    def y_poll(self):
        a = self.a
        par = self.opt("pary", 0)
        a(f"""s_lshr_b32 {s(sT4)}, {s(sP)}, {5 + par}
        s_lshl_b32 {s(sT2)}, {s(sT4)}, {12 + par}
        s_add_u32 {s(sT2)}, {s(sT2)}, {WS_FLAG4}""")
        self.s_poll(sT2, 63 if par else 31, slp=8)
    def y_assemble(self):
        a = self.a
        self.srd(rC, pOUT, 4194304)
        self.blk_ids(self.opt("pary", 0))
        a(f"""s_lshl_b32 {s(sT1)}, {s(sT4)}, 18
        s_lshl_b32 {s(sT2)}, {s(sT0)}, 7
        s_add_u32 {s(sT1)}, {s(sT1)}, {s(sT2)}
        s_add_u32 {s(sT1)}, {s(sT1)}, {WS_YT}
        v_and_b32 v5, 7, v0
        v_lshrrev_b32 v6, 3, v0
        v_lshlrev_b32 v4, 15, v6
        v_lshl_add_u32 v4, v5, 4, v4""")
        for i in range(4):
            if i: a(f"s_add_u32 {s(sT1)}, {s(sT1)}, 8192")
            a(f"buffer_load_dwordx4 {v(32+4*i,4)}, v4, {s(rWS,4)}, {s(sT1)} offen sc1")
        a(f"""s_lshl_b32 {s(sT1)}, {s(sT0)}, 16
        s_lshl_b32 {s(sT2)}, {s(sT4)}, 7
        s_add_u32 {s(sT1)}, {s(sT1)}, {s(sT2)}
        s_add_u32 {s(sT1)}, {s(sT1)}, 1024
        s_add_u32 {s(sT2)}, {s(sT1)}, 4096
        v_lshlrev_b32 v4, 13, v5
        v_lshl_add_u32 v4, v6, 4, v4
        s_waitcnt vmcnt(0)""")
        self.swap44(32)
        for t in range(4):
            a(f"buffer_store_dwordx4 {v(32+4*t,4)}, v4, {s(rC,4)}, {s(sT1 if t < 2 else sT2)} offen offset:{2048*(t&1)} {self.opt_sc('ysc', 1)}")
        a("s_nop 1")
    def y_guard(self, f, par):
        L = self.a.newlabel("Ly")
        if par: self.a(f"s_bitcmp0_b32 {s(sP)}, 5\ns_cbranch_scc0 {L}")
        else: self.a(f"s_cmp_ge_u32 {s(sW4)}, 2\ns_cbranch_scc0 {L}")
        f()
        self.a.label(L)
    def opt_sc(self, k, d=0):
        return {0: "", 1: "sc1", 2: "nt", 3: "sc0 sc1"}[self.opt(k, d)]

    def finish(self):
        a = self.a
        a.label("L_end")
        if self.opt("diagm"):
            i = self.opt("diagi", 11)
            a("s_waitcnt vmcnt(0)")
            self.stamp(11)
            a(f"""s_waitcnt lgkmcnt(0)
            s_cmp_eq_u32 {s(sWG)}, {self.opt("diagwg", 100)}
            s_cbranch_scc0 L_exit
            s_cmp_eq_u32 {s(sWAVE)}, {4*[((self.opt('order', 0x201) >> (4*c)) & 3) for c in range(3)].index(self.opt('diagc', 2))}
            s_cbranch_scc0 L_exit
            s_sub_u32 {s(sT0)}, {s(sSTAMP+2*i)}, {s(sSTAMP)}
            s_mul_i32 {s(sT0)}, {s(sT0)}, {self.opt("diagm")}
            s_lshr_b32 {s(sT0)}, {s(sT0)}, {self.opt("diags", 0)}
            s_min_u32 {s(sT0)}, {s(sT0)}, 100000""")
            if self.opt("diagfix"): a(f"s_mov_b32 {s(sT0)}, {self.opt('diagfix')}")
            a.label("L_diag")
            a(f"""s_memrealtime {s(sT2,2)}
            s_waitcnt lgkmcnt(0)
            s_sub_u32 {s(sT1)}, {s(sT2)}, {s(sSTAMP)}
            s_cmp_lt_u32 {s(sT1)}, {s(sT0)}
            s_cbranch_scc1 L_diag""")
        elif self.dbg:
            a("s_waitcnt vmcnt(0)")
            self.stamp(11)
            a(f"""s_waitcnt lgkmcnt(0)
            s_mul_i32 {s(sT0)}, {s(sWG)}, 12
            s_add_u32 {s(sT0)}, {s(sT0)}, {s(sWAVE)}
            s_lshl_b32 {s(sT0)}, {s(sT0)}, 6
            s_add_u32 {s(sT0)}, {s(sT0)}, {WS_STAMP}
            v_mov_b32 v4, 0""")
            for i in range(12): a(f"v_mov_b32 v{8+i}, {s(sSTAMP+2*i)}")
            a(f"v_mov_b32 v20, {s(sBUD)}")
            a("s_mov_b64 exec, 1")
            for i in range(3): a(f"buffer_store_dwordx4 {v(8+4*i,4)}, v4, {s(rWS,4)}, {s(sT0)} offen offset:{16*i}")
            a(f"buffer_store_dword v20, v4, {s(rWS,4)}, {s(sT0)} offen offset:48")
        a.label("L_exit")
        a("s_endpgm")

if __name__ == "__main__":
    ap = argparse.ArgumentParser()
    ap.add_argument("-o", default=f"cdna_kernels/{NAME}.s")
    ap.add_argument("--dbg", action="store_true")
    ap.add_argument("opts", nargs="*")
    args = ap.parse_args()
    opts = {}
    for kv in args.opts:
        k, _, val = kv.partition("=")
        opts[k] = int(val, 0) if val else 1
    open(args.o, "w").write(Gen(args.dbg, opts).build())
```

```python
import sys, struct, argparse
from asmlib import Asm, v, s, hazard_pass, wait_check

NAME = "concat_heads__grouped_kv_mqa__ssm_conv_s4__prompt"
def fbits(x): return "0x%08x" % struct.unpack("<I", struct.pack("<f", x))[0]
import math
LOG2E = math.log2(math.e)

R0   = 0
XE   = 32768
W    = 65536
GEN  = 131072
QB   = 147456
KVR  = 155648
CNT  = 159744
LDS_BYTES = 160000
KCOPY = 6912; KCH = 2 * KCOPY
UCOPY = 4416; UCH = 4 * UCOPY
YX   = W + 37888
OX1  = W
OX2  = YX
PSLOT = 2304
C_KV, C_WQA, C_WQB, C_XL, C_QE, C_QL, C_FL, C_KT0, C_KT1, C_KU, C_Y, C_PE, C_PED, C_PL, C_O1, C_O2, C_OE, C_OL, C_UT, C_YT, C_WQC, C_WQD, C_Y4, C_WO, C_X = [4 * i for i in range(25)]

WS_FLAG = 4096
WS_FLAG2 = 4096 + 32768
WS_FLAG3 = 4096 + 2 * 32768
WS_FLAG4 = 4096 + 3 * 32768
WS_KV   = 147456
KVT     = 2816
V1OFF = 1792
WS_O    = 1 << 19
WS_UT = 6 << 20
WS_YT = 8 << 20
WS_STAMP = 4 << 20
WS_DBG  = 5 << 20
WS_SIZE = 16 << 20

sWG, sWAVE, sG, sR, sP, sW4 = 2, 3, 4, 5, 6, 7
sT0, sT1, sT2, sT3, sT4, sT5 = 8, 9, 10, 11, 12, 13
sCLS = 14; sROT = 15
pX, pWQ, pWK, pWV, pWO, pU, pARE, pAIM, pBRE, pBIM, pCRE, pCIM, pLDT, pDSK, pOUT, pDBG, pWS = [16 + 2 * i for i in range(17)]
sNONCE, sBUD = 50, 51
rA, rB, rC, rWS = 52, 56, 60, 64
sLOOP = 68; sSOF = 69
sSTAMP = 70
OOB = 0x7ff00000

def _qa_waits():
    order = [("w", 0), ("w", 1), ("w", 2)]; out = []
    for sx in range(8):
        i = order.index(("w", sx))
        out.append(2 * (len(order) - 1 - i))
        if sx + 3 < 8: order.append(("w", sx + 3))
        order.append(("x", sx + 8))
    return out
QW = _qa_waits()

class Gen:
    def __init__(self, dbg=False, opts=None):
        self.a = Asm(); self.dbg = dbg; self.o = opts or {}
    def opt(self, k, d=None): return self.o.get(k, d)

    def srd(self, r, p, nbytes):
        a = self.a
        a(f"s_mov_b32 {s(r)}, {s(p)}\ns_mov_b32 {s(r+1)}, {s(p+1)}\ns_mov_b32 {s(r+2)}, {nbytes}\ns_mov_b32 {s(r+3)}, 0x20000")
    def stamp(self, i):
        if self.dbg: self.a(f"{'s_memtime' if self.opt('cyc') else 's_memrealtime'} {s(sSTAMP+2*i,2)}")
    def arrive(self, c, vz, vone):
        self.a(f"s_mov_b64 exec, 1\nds_add_u32 {v(vz)}, {v(vone)} offset:{c}\ns_mov_b64 exec, -1")
    def arrive_rtn(self, c, vz, vone, vt):
        self.a(f"""s_mov_b64 exec, 1
        ds_add_rtn_u32 {v(vt)}, {v(vz)}, {v(vone)} offset:{c}
        s_mov_b64 exec, -1
        s_waitcnt lgkmcnt(0)
        v_readfirstlane_b32 {s(sT0)}, {v(vt)}
        s_cmp_eq_u32 {s(sT0)}, 3""")
    def sync4(self, c, vz, vone, vt, slp=0):
        D = self.a.newlabel("Ls")
        self.arrive_rtn(c, vz, vone, vt)
        self.a(f"s_cbranch_scc1 {D}")
        n0 = len(self.a.lines)
        self.waitc(c, 4, vz, vt, slp)
        for i in range(n0, len(self.a.lines)):
            l = self.a.lines[i]
            if not l.endswith(":") and "nocount" not in l and not l.startswith(("v_readfirst", "s_cmp")): self.a.lines[i] = l + " ; nocount"
        self.a.label(D)
    def waitc(self, c, n, vz, vt, slp=1):
        a = self.a; L = a.newlabel("Lw"); D = a.newlabel("Ld")
        a.label(L)
        a(f"""ds_read_b32 {v(vt)}, {v(vz)} offset:{c}
        s_waitcnt lgkmcnt(0)
        v_readfirstlane_b32 {s(sT0)}, {v(vt)}
        s_cmp_ge_u32 {s(sT0)}, {n}
        s_cbranch_scc1 {D}
        {f's_sleep {slp} ; nocount' if slp or self.opt('keep0') else ''}
        s_sub_u32 {s(sBUD)}, {s(sBUD)}, 1 ; nocount
        s_cbranch_scc0 {L} ; nocount
        s_mov_b32 {s(sBUD)}, 0 ; nocount""")
        a.label(D)
    def s_publish(self, cnt, base):
        a = self.a; L = a.newlabel("Lpub")
        a("s_waitcnt vmcnt(0)")
        self.arrive_rtn(cnt, self.vZ, self.vONE, self.vT)
        a(f"s_cbranch_scc0 {L}")
        a(f"""s_lshl_b32 {s(sT2)}, {s(sP)}, 7
        s_add_u32 {s(sT2)}, {s(sT2)}, {base}
        v_mov_b32 v18, 0
        s_mov_b64 exec, 1
        buffer_store_dword v167, v18, {s(rWS,4)}, {s(sT2)} offen sc1
        s_mov_b64 exec, -1""")
        a.label(L)
    def s_poll(self, sbase, mask, slp=4):
        a = self.a; Lp = a.newlabel("Lpoll"); Lo = a.newlabel("Lok")
        a(f"v_lshlrev_b32 v18, 7, v0\ns_mov_b64 exec, {hex((1 << (mask + 1)) - 1) if mask < 63 else -1}")
        a.label(Lp)
        a(f"""buffer_load_dword v19, v18, {s(rWS,4)}, {s(sbase)} offen sc1
        s_waitcnt vmcnt(0)
        v_cmp_ne_u32 vcc, v167, v19
        s_and_b64 exec, exec, vcc
        s_cbranch_execz {Lo}
        s_sleep {slp} ; nocount
        s_sub_u32 {s(sBUD)}, {s(sBUD)}, 1 ; nocount
        s_cbranch_scc0 {Lp} ; nocount
        s_mov_b32 {s(sBUD)}, 0 ; nocount""")
        a.label(Lo)
        a("s_mov_b64 exec, -1")
    def cmul(self, d, x, m, t):
        self.a(f"v_pk_mul_f32 {v(t,2)}, {v(x,2)}, {v(m,2)} op_sel_hi:[1,0]")
        self.a(f"v_pk_fma_f32 {v(d,2)}, {v(x,2)}, {v(m,2)}, {v(t,2)} op_sel:[1,1,0] op_sel_hi:[0,1,1] neg_lo:[0,1,0]")

    def build(self):
        a = self.a
        self.entry()
        self.role_late_start()
        self.role_early_start()
        self.qproj_and_attention()
        self.role_s()
        self.finish()
        lines, n = hazard_pass(a.lines, verbose=self.opt("vhz"))
        for r_ in wait_check(lines):
            if "s37" not in r_: print("WAIT:", r_, file=sys.stderr)
        lines = [l.replace(" ; nocount", "") for l in lines]
        body = "\n".join(l if l.endswith(":") or l.startswith(".") else "    " + l for l in lines)
        head = f"""; Fused MQA attention + S4 long convolution in one persistent launch (emitted by my generator, gen/gen.py).
; @launch grid=(256,1,1) block=(768,1,1) lds={LDS_BYTES}
.amdgcn_target "amdgcn-amd-amdhsa--gfx950"
.text
.globl {NAME}_kernel
.p2align 8
.type {NAME}_kernel,@function
{NAME}_kernel:
"""
        tail = f"""
.section .rodata,"a"
.p2align 6
.amdhsa_kernel {NAME}_kernel
  .amdhsa_next_free_vgpr 168
  .amdhsa_next_free_sgpr 98
  .amdhsa_accum_offset 168
  .amdhsa_group_segment_fixed_size 0
  .amdhsa_kernarg_size 136
  .amdhsa_user_sgpr_count 2
  .amdhsa_user_sgpr_kernarg_segment_ptr 1
  .amdhsa_system_sgpr_workgroup_id_x 1
  .amdhsa_float_denorm_mode_32 3
.end_amdhsa_kernel
"""
        return head + body + tail

    vL, vZ, vONE, vT = 0, 1, 2, 3

    def entry(self):
        a = self.a
        if self.dbg:
            for i in range(12): a(f"s_mov_b64 {s(sSTAMP+2*i,2)}, 0")
        self.stamp(0)
        a(f"""s_cmp_ge_u32 s2, 256
        s_cbranch_scc1 L_exit
        s_xor_b32 s2, s2, {self.opt('wgxor', 0)}
        s_load_dwordx16 s[16:31], s[0:1], 0
        s_load_dwordx16 s[32:47], s[0:1], 64
        s_load_dwordx2 s[48:49], s[0:1], 128
        v_lshrrev_b32 v3, 6, v0
        v_and_b32 v0, 63, v0
        v_readfirstlane_b32 {s(sWAVE)}, v3
        v_mov_b32 v1, {CNT}
        v_mov_b32 v2, 1
        s_and_b32 {s(sT0)}, s2, 7
        s_lshr_b32 {s(sT1)}, s2, 3
        s_lshl_b32 {s(sG)}, {s(sT0)}, 2
        s_lshr_b32 {s(sT2)}, {s(sT1)}, 3
        s_add_u32 {s(sG)}, {s(sG)}, {s(sT2)}
        s_and_b32 {s(sR)}, {s(sT1)}, 7
        s_xor_b32 {s(sR)}, {s(sR)}, {self.opt('rxor', 0)}
        s_lshl_b32 {s(sP)}, {s(sT0)}, 5
        s_add_u32 {s(sP)}, {s(sP)}, {s(sT1)}
        s_and_b32 {s(sROT)}, {s(sT1)}, 15
        s_mov_b32 {s(sBUD)}, 200000
        s_and_b32 {s(sW4)}, {s(sWAVE)}, 3
        s_lshr_b32 {s(sCLS)}, {s(sWAVE)}, 2
        s_lshl_b32 {s(sCLS)}, {s(sCLS)}, 2
        s_lshr_b32 {s(sCLS)}, {self.opt('order', 0x201)}, {s(sCLS)}
        s_and_b32 {s(sCLS)}, {s(sCLS)}, 3
        s_mov_b32 {s(rWS+2)}, {WS_SIZE}
        s_mov_b32 {s(rWS+3)}, 0x20000
        s_mov_b32 {s(rA+3)}, 0x20000
        s_mov_b32 {s(rB+3)}, 0x20000
        s_cmp_eq_u32 {s(sCLS)}, 2
        s_cbranch_scc1 L_role_s
        s_mov_b32 {s(rA+2)}, 2097152
        s_cmp_eq_u32 {s(sCLS)}, 0
        s_cbranch_scc1 L_role_early""")
    def ptrs_ready(self, x=True, nonce=False):
        a = self.a
        a(f"""s_waitcnt lgkmcnt(0)
        s_mov_b32 {s(rWS)}, {s(pWS)}
        s_mov_b32 {s(rWS+1)}, {s(pWS+1)}""")
        if x: a(f"""s_mov_b32 {s(rA)}, {s(pX)}
        s_mov_b32 {s(rA+1)}, {s(pX+1)}""")
        if nonce: a(f"s_load_dword {s(sNONCE)}, {s(pWS,2)}, 0")

    def role_late_start(self):
        a = self.a; vL, vZ, vONE, vT = self.vL, self.vZ, self.vONE, self.vT
        a("s_setprio 3")
        a(f"""s_and_b32 {s(sT0)}, {s(sR)}, 3
        s_lshl_b32 {s(sT1)}, {s(sG)}, 2
        s_add_u32 {s(sT1)}, {s(sT1)}, {s(sT0)}
        s_lshl_b32 {s(sT1)}, {s(sT1)}, 14
        s_lshl_b32 {s(sT2)}, {s(sW4)}, 8
        s_add_u32 {s(sT1)}, {s(sT1)}, {s(sT2)}
        v_and_b32 v4, 15, v0
        v_lshrrev_b32 v5, 4, v0
        v_lshlrev_b32 v6, 10, v4
        v_lshl_add_u32 v6, v5, 4, v6
        s_lshl_b32 {s(sT2)}, {s(sW4)}, 12
        v_lshrrev_b32 v7, 4, v0
        v_and_b32 v7, 1, v7
        v_lshlrev_b32 v7, 7, v7
        v_lshlrev_b32 v24, 4, v0
        v_xor_b32 v7, v7, v24
        s_add_u32 m0, {s(sT2)}, {R0}
        s_mov_b32 {s(rB+2)}, 16384""")
        if self.opt("lst0"): self.stamp(9)
        self.ptrs_ready(nonce=True)
        if self.opt("lst0"): self.stamp(10)
        for k in range(4):
            a(f"buffer_load_dwordx4 {v(8+4*k,4)}, v6, {s(rA,4)}, {s(sT1)} offen offset:{64*k}")
        a(f"""s_cmp_ge_u32 {s(sR)}, 4
        s_cselect_b32 {s(rB)}, {s(pWV)}, {s(pWK)}
        s_cselect_b32 {s(rB+1)}, {s(pWV+1)}, {s(pWK+1)}""")
        for k in range(4):
            a(f"buffer_load_dwordx4 v7, {s(rB,4)}, {s(sT2)} offen offset:{1024*k} lds")
        if self.opt("lst0"): self.stamp(3)
        TOUCH = self.opt("touch", 0)
        if TOUCH == 1:
            a(f"""s_lshl_b32 {s(sT3)}, {s(sG)}, 3
            s_add_u32 {s(sT3)}, {s(sT3)}, {s(sR)}
            s_lshl_b32 {s(sT3)}, {s(sT3)}, {self.opt('fsh', 5)}
            v_mov_b32 v29, {WS_FLAG}
            s_mov_b64 exec, 1
            buffer_load_dword v30, v29, {s(rWS,4)}, {s(sT3)} offen sc1
            s_mov_b64 exec, -1""")
        if TOUCH == 2:
            a(f"""s_lshl_b32 {s(sT3)}, {s(sG)}, 3
            s_add_u32 {s(sT3)}, {s(sT3)}, {s(sR)}
            s_lshl_b32 {s(sT3)}, {s(sT3)}, {self.opt('fsh', 5)}
            s_add_u32 {s(sT3)}, {s(sT3)}, {WS_FLAG}
            s_bfe_u32 {s(sT4)}, {s(sR)}, 0x10001
            s_lshl_b32 {s(sT5)}, {s(sG)}, 1
            s_add_u32 {s(sT4)}, {s(sT4)}, {s(sT5)}
            s_mul_i32 {s(sT4)}, {s(sT4)}, {KVT}
            s_add_u32 {s(sT4)}, {s(sT4)}, {WS_KV}
            v_lshlrev_b32 v29, 7, v0
            v_add_u32 v29, {s(sT4)}, v29
            v_writelane_b32 v29, {s(sT3)}, 18
            s_mov_b64 exec, 0x7ffff
            buffer_load_dword v30, v29, {s(rWS,4)}, 0 offen sc1
            s_mov_b64 exec, -1""")
        a(f"""v_bfe_u32 v25, v0, 2, 2
        v_lshl_add_u32 v25, v5, 3, v25
        v_and_b32 v26, 1, v5
        v_lshl_add_u32 v25, v26, 2, v25
        v_lshlrev_b32 v25, 5, v25
        v_and_b32 v26, 3, v0
        v_lshl_add_u32 v25, v26, 3, v25
        v_add_u32 v25, {s(sT2)}, v25
        v_xor_b32 v26, 0x80, v25
        s_mov_b32 s41, 0""")
        if self.opt("lbar", 3) == 1: a("s_barrier")
        self.qproj()
        if self.opt("tsplit", 1):
            a(f"""s_and_b32 {s(sT1)}, {s(sR)}, 1
            s_lshl_b32 {s(sT1)}, {s(sT1)}, 14
            s_lshl_b32 {s(sT3)}, {s(sW4)}, 8
            s_add_u32 {s(sT1)}, {s(sT1)}, {s(sT3)}""")
            for k in range(4): a(f"v_add_u32 v{64+k}, {s(sT1)}, v{152+k}")
        if self.opt("lbar", 3) == 2: a("s_barrier")
        if self.opt("lhoist", 1): self.att_addr(158, 159, 72, False)
        if self.opt("lbar", 3) == 0: a("s_barrier")
        a(f"""        s_waitcnt vmcnt({1 if TOUCH else 0}) lgkmcnt(0)""")
        self.stamp(1)
        for k in range(4):
            a(f"ds_read_b64_tr_b16 {v(32+4*k,2)}, v25 offset:{R0+1024*k}")
            a(f"ds_read_b64_tr_b16 {v(34+4*k,2)}, v26 offset:{R0+1024*k}")
        a(f"""s_cmp_ge_u32 {s(sR)}, 4
        s_cbranch_scc1 L_kv_v""")
        for k in range(4):
            a(f"s_waitcnt lgkmcnt({6-2*k})")
            a(f"v_mfma_f32_16x16x32_bf16 v[48:51], {v(32+4*k,4)}, {v(8+4*k,4)}, {'0' if k==0 else 'v[48:51]'}")
        a("s_branch L_kv_j")
        a.label("L_kv_v")
        for k in range(4):
            a(f"s_waitcnt lgkmcnt({6-2*k})")
            a(f"v_mfma_f32_16x16x32_bf16 v[48:51], {v(8+4*k,4)}, {v(32+4*k,4)}, {'0' if k==0 else 'v[48:51]'}")
        a.label("L_kv_j")
        if self.opt("lbar", 3) == 3: a("s_barrier")
        a(f"""s_lshl_b32 {s(sT2)}, {s(sW4)}, 10
        s_add_u32 {s(sT2)}, {s(sT2)}, {KVR}
        v_add_u32 v27, {s(sT2)}, v24
        s_add_u32 {s(sT3)}, {s(sNONCE)}, 0x9e3779b9
        v_mov_b32 v28, {s(sT3)}
        ds_write_b32 v1, v28 offset:128
        s_nop 3
        ds_write_b128 v27, v[48:51]
        s_waitcnt lgkmcnt(0)""")
        self.arrive_rtn(C_KV, vZ, vONE, vT)
        self.stamp(7)
        a("s_cbranch_scc0 L_kv_done")
        a(f"""v_add_u32 v27, {KVR}, v24
        ds_read_b128 v[48:51], v27
        ds_read_b128 v[52:55], v27 offset:1024
        ds_read_b128 v[56:59], v27 offset:2048
        ds_read_b128 v[60:63], v27 offset:3072
        s_cmp_ge_u32 {s(sR)}, 4
        s_cselect_b32 {s(sT2)}, 1.0, {fbits(0.25*LOG2E)}
        s_cselect_b32 {s(sT3)}, 1024, 0
        s_cselect_b32 {s(sT4)}, 6, 4
        s_lshl_b32 {s(sT4)}, {s(sT4)}, 7
        s_bitcmp1_b32 {s(sR)}, 0
        s_cselect_b32 {s(sT4)}, {s(sT4)}, 0
        s_add_u32 {s(sT3)}, {s(sT3)}, {s(sT4)}
        s_bfe_u32 {s(sT4)}, {s(sR)}, 0x10001
        s_lshl_b32 {s(sT5)}, {s(sG)}, 1
        s_add_u32 {s(sT4)}, {s(sT4)}, {s(sT5)}
        s_mul_i32 {s(sT4)}, {s(sT4)}, {KVT}
        s_add_u32 {s(sT3)}, {s(sT3)}, {s(sT4)}
        s_add_u32 {s(sT3)}, {s(sT3)}, {WS_KV}
        v_lshlrev_b32 v6, 5, v4
        v_lshl_add_u32 v6, v5, 3, v6
        s_waitcnt lgkmcnt(0)""")
        for i in range(4): a(f"v_add_f32 v{48+i}, v{48+i}, v{52+i}")
        for i in range(4): a(f"v_add_f32 v{56+i}, v{56+i}, v{60+i}")
        for i in range(4): a(f"v_add_f32 v{48+i}, v{48+i}, v{56+i}")
        for i in range(4): a(f"v_mul_f32 v{48+i}, {s(sT2)}, v{48+i}")
        a(f"""v_cvt_pk_bf16_f32 v52, v48, v49
        v_cvt_pk_bf16_f32 v53, v50, v51
        buffer_store_dwordx2 v[52:53], v6, {s(rWS,4)}, {s(sT3)} offen sc1""")
        if self.opt("ib", 1):
            a(f"""v_add_u32 v56, v52, v53
            v_add_u32 v57, v52, v53
            s_add_u32 {s(sT5)}, {s(sNONCE)}, 0x9e3779b9
            s_and_b32 {s(sT2)}, {s(sR)}, 1
            s_mul_i32 {s(sT2)}, {s(sT2)}, 384
            s_sub_u32 {s(sT2)}, 2560, {s(sT2)}
            v_permlane16_swap_b32 v56, v57
            s_cmp_ge_u32 {s(sR)}, 4
            s_cselect_b32 {s(sT2)}, 640, {s(sT2)}
            s_add_u32 {s(sT2)}, {s(sT2)}, {s(sT3)}
            v_add_u32 v56, v56, v57
            v_sub_u32 v56, {s(sT5)}, v56
            v_lshrrev_b32 v57, 5, v0
            v_lshlrev_b32 v57, 2, v57
            v_lshl_add_u32 v57, v4, 3, v57
            s_mov_b32 exec_lo, 0xffff
            s_mov_b32 exec_hi, 0xffff
            buffer_store_dword v56, v57, {s(rWS,4)}, {s(sT2)} offen sc1
            s_mov_b64 exec, -1""")
        a(f"""s_cmp_ge_u32 {s(sR)}, 4
        s_cbranch_scc0 L_kv_noones
        v_mov_b32 v54, 0x3f803f80
        v_mov_b32 v55, 0x3f803f80""")
        if self.opt("ib", 1):
            a(f"""s_sub_u32 {s(sT5)}, {s(sT5)}, {(4 * 0x3f803f80) & 0xffffffff}
            v_writelane_b32 v54, {s(sT5)}, 4
            v_writelane_b32 v55, {s(sT5)}, 4""")
        a(f"""v_lshlrev_b32 v7, 3, v0
        s_mov_b64 exec, 0xffff
        buffer_store_dwordx2 v[54:55], v7, {s(rWS,4)}, {s(sT3)} offen offset:512 sc1
        s_mov_b64 exec, -1""")
        a.label("L_kv_noones")
        self.stamp(8)
        if self.opt("wq1", 8) < 16: self.arrive(C_WQD, vZ, vONE)
        a("s_mov_b32 s41, 1")
        a.label("L_kv_done")
        if self.opt("tsplit", 1):
            for k in range(4): a(f"ds_write_b128 v{64+k}, {v(8+4*k,4)}")
            a("s_waitcnt lgkmcnt(0)")
            self.arrive(C_X, vZ, vONE)
        if self.opt("flagat", 0) == 0: self.kv_flag()
        self.stamp(2)
        self.qproj_run()
        a("s_branch L_att_setup")
    def kv_flag(self):
        a = self.a; L = a.newlabel("Lkf")
        a(f"""s_cmp_eq_u32 s41, 1
        s_cbranch_scc0 {L}
        s_lshl_b32 {s(sT2)}, {s(sG)}, 3
        s_add_u32 {s(sT2)}, {s(sT2)}, {s(sR)}
        s_lshl_b32 {s(sT2)}, {s(sT2)}, {self.opt('fsh', 5)}
        s_add_u32 {s(sT2)}, {s(sT2)}, {WS_FLAG}
        s_add_u32 {s(sT3)}, {s(sNONCE)}, 0x9e3779b9
        v_mov_b32 v74, {s(sT3)}
        v_mov_b32 v75, 0
        s_waitcnt vmcnt(0)
        s_mov_b64 exec, 1
        buffer_store_dword v74, v75, {s(rWS,4)}, {s(sT2)} offen sc1
        s_mov_b64 exec, -1""")
        if self.opt("wq1", 8) < 16 and self.opt("wqn", 1) == 2: self.arrive(C_WQD, self.vZ, self.vONE)
        a.label(L)

    def l2_prefetch(self, srd, mode, vt, vd, st):
        a = self.a
        a(f"s_and_b32 {s(st)}, {s(sP)}, 31")
        if mode == 1:
            a(f"""s_lshl_b32 {s(st)}, {s(st)}, 2
            s_add_u32 {s(st)}, {s(st)}, {s(sW4)}
            s_lshl_b32 {s(st)}, {s(st)}, 12
            v_lshlrev_b32 v{vt}, 10, v0
            s_mov_b64 exec, 0xf
            buffer_load_dword v{vd}, v{vt}, {s(srd,4)}, {s(st)} offen offset:384
            s_mov_b64 exec, -1""")
        else:
            a(f"""s_lshl_b32 {s(st)}, {s(st)}, 2
            s_add_u32 {s(st)}, {s(st)}, {s(sW4)}
            s_lshl_b32 {s(st)}, {s(st)}, 12
            v_lshlrev_b32 v{vt}, 7, v0
            s_mov_b64 exec, 0xffffffff
            buffer_load_dword v{vd}, v{vt}, {s(srd,4)}, {s(st)} offen
            s_mov_b64 exec, -1""")
    def s_prefetch(self, p, soff, n, stride):
        a = self.a
        a(f"s_add_u32 s96, {s(p)}, {s(soff)}\ns_addc_u32 s97, {s(p+1)}, 0")
        for i in range(n): a(f"s_load_dword s{94 + (i & 1)}, s[96:97], {i*stride}")
    def x_dma(self, lds, row0):
        a = self.a
        if self.opt("tsplit", 1):
            half = row0 == 0
            n = 4 if half else 8
            a(f"""s_bfe_u32 {s(sT3)}, {s(sR)}, 0x10001
            s_xor_b32 {s(sT3)}, {s(sT3)}, {row0 // 32}
            s_lshl_b32 {s(sT3)}, {s(sT3)}, 15
            s_lshl_b32 {s(sT1)}, {s(sG)}, 16
            s_add_u32 {s(sT1)}, {s(sT1)}, {s(sT3)}
            s_lshl_b32 {s(sT2)}, {s(sW4)}, {12 if half else 13}""")
            if half:
                a(f"""s_and_b32 {s(sT3)}, {s(sR)}, 1
                s_xor_b32 {s(sT3)}, {s(sT3)}, 1
                s_lshl_b32 {s(sT3)}, {s(sT3)}, 14
                s_add_u32 {s(sT2)}, {s(sT2)}, {s(sT3)}
                s_lshl_b32 {s(sT3)}, {s(sW4)}, 6""")
            else:
                a(f"""s_and_b32 {s(sT3)}, {s(sW4)}, 1
                s_lshl_b32 {s(sT3)}, {s(sT3)}, 7""")
            a(f"""s_add_u32 {s(sT1)}, {s(sT1)}, {s(sT2)}
            s_add_u32 m0, {s(sT2)}, {lds}
            v_lshlrev_b32 v12, 4, v0
            v_xor_b32 v12, {s(sT3)}, v12""")
        else:
            n = 8
            a(f"""s_lshl_b32 {s(sT1)}, {s(sG)}, 16
            s_lshl_b32 {s(sT2)}, {s(sW4)}, 13
            s_add_u32 {s(sT1)}, {s(sT1)}, {s(sT2)}
            s_add_u32 {s(sT1)}, {s(sT1)}, {row0*1024}
            s_add_u32 m0, {s(sT2)}, {lds}
            s_and_b32 {s(sT3)}, {s(sW4)}, 1
            s_lshl_b32 {s(sT3)}, {s(sT3)}, 7
            v_lshlrev_b32 v12, 4, v0
            v_xor_b32 v12, {s(sT3)}, v12""")
        for i in range(n):
            if i == 4:
                a(f"s_add_u32 {s(sT1)}, {s(sT1)}, 4096\ns_add_u32 m0, m0, 4096")
            if i == 0:
                a(f"buffer_load_dwordx4 v12, {s(rA,4)}, {s(sT1)} offen lds")
            else:
                a(f"v_xor_b32 v{13+(i&1)}, {16*i}, v12")
                a(f"buffer_load_dwordx4 v{13+(i&1)}, {s(rA,4)}, {s(sT1)} offen offset:{1024*(i&3)} lds")

    def role_early_start(self):
        a = self.a; vL, vZ, vONE, vT = self.vL, self.vZ, self.vONE, self.vT
        a.label("L_role_early")
        a(f"""s_setprio 3
        v_lshl_add_u32 v4, v0, 2, v1
        v_mov_b32 v5, 0
        ds_write_b32 v4, v5""")
        self.ptrs_ready()
        if self.opt("ipf", 0):
            a(f"""s_getpc_b64 {s(sT2,2)}""")
            a.label("L_pc")
            a(f"""s_and_b32 {s(sT0)}, {s(sP)}, 31
            s_lshl_b32 {s(sT0)}, {s(sT0)}, 2
            s_add_u32 {s(sT0)}, {s(sT0)}, {s(sW4)}
            s_lshl_b32 {s(sT0)}, {s(sT0)}, 7
            s_min_u32 {s(sT0)}, {s(sT0)}, L_exit-L_pc-128
            s_and_b32 {s(sT0)}, {s(sT0)}, -4
            s_add_u32 {s(sT2)}, {s(sT2)}, {s(sT0)}
            s_addc_u32 {s(sT3)}, {s(sT3)}, 0
            s_load_dword s94, {s(sT2,2)}, 0
            s_load_dword s95, {s(sT2,2)}, 64""")
        if not self.opt("barx", 1): a("s_barrier")
        if self.opt("est0"): self.stamp(2)
        a(f"""s_mov_b32 {s(rB)}, {s(pWQ)}
        s_mov_b32 {s(rB+1)}, {s(pWQ+1)}
        s_mov_b32 {s(rB+2)}, 524288""")
        if self.opt("esetup", 2) == 1: self.att_setup()
        if self.opt("est0"): self.stamp(3)
        if self.opt("wqpf", 3) in (1, 2): self.l2_prefetch(rB, self.opt("wqpf", 3), 10, 11, sT4)
        self.x_dma(XE, 0)
        if self.opt("wqpf", 3) in (3, 4): self.l2_prefetch(rB, self.opt("wqpf", 3) - 2, 10, 11, sT4)
        a(f"""v_lshrrev_b32 v15, 3, v0
        v_and_b32 v16, 7, v0
        v_and_b32 v17, 2, v15
        v_xor_b32 v16, v16, v17
        s_and_b32 {s(sT3)}, {s(sW4)}, 1
        s_lshl_b32 {s(sT3)}, {s(sT3)}, 2
        v_xor_b32 v16, {s(sT3)}, v16
        v_lshlrev_b32 v15, 10, v15
        v_lshl_add_u32 v15, v16, 4, v15
        s_lshl_b32 {s(sT1)}, {s(sW4)}, 13
        s_lshl_b32 {s(sT2)}, {s(sR)}, 7
        s_add_u32 {s(sT1)}, {s(sT1)}, {s(sT2)}
        s_lshl_b32 {s(sT2)}, {s(sW4)}, 10
        s_add_u32 m0, {s(sT2)}, {W}""")
        self.stamp(7)
        def setup_keep():
            a(f"s_mov_b32 s42, {s(sT1)}"); self.att_setup(); a(f"s_mov_b32 {s(sT1)}, s42")
        if self.opt("esetup", 2) == 2 and not self.opt("wq0", 0): setup_keep()
        if self.opt("barx", 1) and not self.opt("wq0", 0): a("s_barrier")
        if self.opt("esetup", 2) == 3: setup_keep()
        if self.opt("xwait", 0): a("s_waitcnt vmcnt(0)")
        self.stamp(8)
        for i in range(16):
            if i and i == self.opt("wq0", 0):
                if self.opt("esetup", 2) == 2: setup_keep()
                if self.opt("barx", 1): a("s_barrier")
            if self.opt("esetup", 2) == 4 and i == self.opt("es4", 4): setup_keep()
            if i == min(self.opt("wq1", 8), 8):
                a(f"s_waitcnt vmcnt({i + (1 if self.opt('wqpf', 3) in (3, 4) else 0)})")
                self.arrive(C_X, vZ, vONE)
            if i == self.opt("wq1", 8): self.waitc(C_WQD, self.opt("wqn", 1), vZ, vT, slp=1)
            if i == 8 + self.opt("wqa", 8):
                a(f"s_waitcnt vmcnt({i - 8})")
                self.arrive(C_WQA, vZ, vONE)
            a(f"buffer_load_dwordx4 v15, {s(rB,4)}, {s(sT1)} offen lds")
            if i < 15: a(f"s_add_u32 m0, m0, 4096\ns_add_u32 {s(sT1)}, {s(sT1)}, 32768")
        self.stamp(1)
        self.waitc(C_KV, 4, vZ, vT, slp=1)
        a("ds_read_b32 v103, v1 offset:128")
        if not self.opt("esetup", 2): self.att_setup()
        a(f"""s_waitcnt lgkmcnt(0)
        v_readfirstlane_b32 {s(sNONCE)}, v103""")
        if self.opt("wqa", 8) >= 8:
            a("s_waitcnt vmcnt(8)")
            self.arrive(C_WQA, vZ, vONE)
            if self.opt("qst"): self.stamp(2)
        IB = self.opt("ib", 1)
        if IB and self.opt("ibat", 1) == 0:
            self.val_loads(); a("s_waitcnt vmcnt(12)")
        else:
            a("s_waitcnt vmcnt(0)")
        self.arrive(C_WQB, vZ, vONE)
        self.stamp(10)
        if IB:
            if self.opt("ibat", 1) == 0: a("s_branch L_val_chk")
            a.label("L_val")
            self.val_loads()
            a.label("L_val_chk")
            KA = self.KA
            for f in range(6):
                b = KA + 4 * f; acc = 93 if f % 3 == 0 else 94
                a(f"""s_waitcnt vmcnt({10 - 2*f})
                v_add3_u32 v95, v{b}, v{b+1}, v{b+2}
                v_add3_u32 v95, v95, v{b+3}, v{97+f}""")
                if f < 2: a(f"v_xor_b32 v{acc}, v103, v95")
                else: a(f"v_bitop3_b32 v{acc}, v{acc}, v95, v103 bitop3:0xf6")
            a(f"""v_cmp_ne_u32 {s(sT2,2)}, 0, v94
            v_cmp_ne_u32 vcc, 0, v93
            s_and_b32 {s(sT2)}, {s(sT2)}, 0x11ffff
            s_and_b32 {s(sT3)}, {s(sT3)}, 0x11ffff
            s_or_b64 vcc, vcc, {s(sT2,2)}
            s_cbranch_scc0 L_val_ok
            s_sub_u32 {s(sBUD)}, {s(sBUD)}, 1
            s_cbranch_scc0 L_val
            s_mov_b32 {s(sBUD)}, 0""")
            a.label("L_val_ok")
            self.stamp(4)
            if not self.opt("lpoll", 0):
                if self.opt("pwait", 0): self.waitc(C_QE, self.opt("pwait", 0), vZ, vT, slp=self.opt('qslp', 0))
                a(f"""s_lshl_b32 s40, {s(sW4)}, {6 + self.opt('fsh', 5)}
                s_add_u32 s40, s40, {WS_FLAG}
                v_lshlrev_b32 v144, {self.opt('fsh', 5)}, v0
                buffer_load_dword v145, v144, {s(rWS,4)}, s40 offen sc1""")
            a("s_branch L_att_go")
        else:
            a(f"s_mov_b32 {s(sT3)}, {s(sNONCE)}")
            self.stamp(2); self.flag_poll()
            self.stamp(4)
            self.prologue_loads()
            self.arrive(C_FL, vZ, vONE)
            a("s_branch L_att_go")

    Q0, O0, S0, KA = 8, 24, 88, 120
    vKO, vVO, vIDX = 4, 5, 6
    def qproj(self):
        a = self.a; vL, vZ, vONE, vT = self.vL, self.vZ, self.vONE, self.vT
        WF = 76; XA = 152; AC = 140
        a(f"""v_xor_b32 v6, v4, v5
        v_lshlrev_b32 v6, 4, v6
        v_lshl_add_u32 v6, v4, 10, v6
        v_add_u32 v{XA}, {XE}, v6
        v_xor_b32 v{XA+1}, 64, v{XA}
        v_xor_b32 v{XA+2}, 0x80, v{XA}
        v_xor_b32 v{XA+3}, 0xc0, v{XA}
        v_bfe_u32 v6, v0, 2, 2
        v_lshl_add_u32 v7, v5, 3, v6
        v_lshlrev_b32 v7, 7, v7
        v_and_b32 v6, 2, v6
        v_and_b32 v72, 1, v5
        v_lshl_add_u32 v6, v72, 2, v6
        s_lshl_b32 {s(sT1)}, {s(sW4)}, 1
        v_xor_b32 v6, {s(sT1)}, v6
        v_lshl_add_u32 v7, v6, 4, v7
        v_and_b32 v6, 3, v0
        v_lshl_add_u32 v7, v6, 3, v7
        v_add_u32 v{XA+4}, {W}, v7
        v_lshrrev_b32 v6, 1, v5
        v_lshlrev_b32 v6, 9, v6
        v_lshl_add_u32 v6, v4, 4, v6
        v_lshl_add_u32 v6, v72, 3, v6
        s_lshl_b32 {s(sT1)}, {s(sW4)}, 10
        s_add_u32 {s(sT1)}, {s(sT1)}, {QB}
        v_add_u32 v{XA+5}, {s(sT1)}, v6""")
    def qproj_run(self):
        a = self.a; vL, vZ, vONE, vT = self.vL, self.vZ, self.vONE, self.vT
        WF = 76; XA = 152; AC = 140
        def rdw(sx):
            a(f"ds_read_b64_tr_b16 {v(WF+4*sx,2)}, v{XA+4} offset:{4096*sx}")
            a(f"ds_read_b64_tr_b16 {v(WF+4*sx+2,2)}, v{XA+4} offset:{4096*sx+512}")
        def rdx(sx):
            b = 8 + 8 * (sx % 8)
            a(f"ds_read_b128 {v(b,4)}, v{XA+(sx&3)} offset:{256*(sx>>2)}")
            a(f"ds_read_b128 {v(b+4,4)}, v{XA+(sx&3)} offset:{256*(sx>>2)+16384}")
        def mm(sx):
            b = 8 + 8 * (sx % 8)
            a(f"v_mfma_f32_16x16x32_bf16 {v(AC,4)}, {v(WF+4*sx,4)}, {v(b,4)}, {'0' if sx==0 else v(AC,4)}")
            a(f"v_mfma_f32_16x16x32_bf16 {v(AC+4,4)}, {v(WF+4*sx,4)}, {v(b+4,4)}, {'0' if sx==0 else v(AC+4,4)}")
        def qout(off):
            for k in range(4): a(f"v_cvt_pk_bf16_f32 v{AC+8+k}, v{AC+2*k}, v{AC+2*k+1}")
            a(f"""ds_write_b64 v{XA+5}, {v(AC+8,2)} offset:{off}
            ds_write_b64 v{XA+5}, {v(AC+10,2)} offset:{off+256}
            s_waitcnt lgkmcnt(0)""")
        self.waitc(C_X, 8 if self.opt("tsplit", 1) else 4, vZ, vT, slp=self.opt('lslp2', 0))
        if self.opt("qst"): self.stamp(9)
        for k in range(8): rdx(k)
        self.waitc(C_WQA, 4, vZ, vT, slp=self.opt('lslp2', 0))
        if self.opt("qst"): self.stamp(7)
        for k in range(3): rdw(k)
        for sx in range(8):
            n = sum(2 for k in (sx + 1, sx + 2) if k < 8) + sum(2 for k in (sx - 3, sx - 2, sx - 1) if k >= 0 and k >= sx - 3 + 0 and (k > sx - 3 or False))
            a(f"s_waitcnt lgkmcnt({QW[sx]})")
            mm(sx)
            if sx + 3 < 8: rdw(sx + 3)
            rdx(sx + 8)
        if self.opt("qst"): self.stamp(8)
        if self.opt("flagat", 0) == 1: self.kv_flag()
        self.waitc(C_WQB, 4, vZ, vT, slp=self.opt('lslp2', 0))
        if not self.opt("lst0"): self.stamp(10)
        for k in range(8, 14): rdw(k)
        for sx in range(8, 16):
            a(f"s_waitcnt lgkmcnt({2 * (min(sx + 5, 15) - sx)})")
            mm(sx)
            if sx + 6 < 16: rdw(sx + 6)
        if self.opt("qst"): self.stamp(1)
        qout(0)
        self.sync4(C_QE, vZ, vONE, vT, slp=1)
        if not self.opt("lst0"): self.stamp(3)
        if self.opt("ib", 1) and self.opt("lpoll", 0):
            a(f"s_add_u32 {s(sT3)}, {s(sNONCE)}, 0x9e3779b9")
            self.flag_poll(vA=72, vD=73)
            self.arrive(C_FL, vZ, vONE)
        if self.opt("xlwait", 0): self.waitc(C_FL, 4, vZ, vT, slp=2)
        self.x_dma(XE, 32)
        a("s_waitcnt vmcnt(0)")
        self.sync4(C_XL, vZ, vONE, vT, slp=1)
        for k in range(6): rdx(k)
        for sx in range(16):
            a(f"s_waitcnt lgkmcnt({2 * (min(sx + 5, 15) - sx)})")
            mm(sx)
            if sx + 6 < 16: rdx(sx + 6)
        qout(4096)
        self.arrive(C_QL, vZ, vONE)

    def att_setup(self):
        self.att_addr(4, 5, 7, True); self.att_zero()
    def att_addr(self, dK, dV, t, sums):
        a = self.a
        a(f"""s_mul_i32 {s(sT2)}, {s(sW4)}, {16*KVT}
        s_add_u32 {s(sT2)}, {s(sT2)}, {WS_KV}
        v_and_b32 v{t}, 31, v0
        v_lshrrev_b32 v{t+1}, 5, v0
        v_lshlrev_b32 v{dK}, 5, v{t}
        v_lshl_add_u32 v{dK}, v{t+1}, 4, v{dK}
        v_and_b32 v{t+2}, 3, v{t}
        v_bfe_u32 v{t+3}, v{t}, 2, 1
        v_lshl_add_u32 v{t+2}, v{t+3}, 3, v{t+2}
        v_bfe_u32 v{t+3}, v{t}, 3, 1
        v_lshl_add_u32 v{t+2}, v{t+3}, 2, v{t+2}
        v_lshlrev_b32 v{t+2}, 5, v{t+2}
        s_mov_b32 {s(sT4)}, 0xffff
        s_mov_b32 {s(sT5)}, 0xffff
        v_mov_b32 v{t+3}, {OOB}
        v_cndmask_b32 v{t+2}, v{t+3}, v{t+2}, {s(sT4,2)}
        s_mov_b32 {s(sT4)}, 0x110000
        s_mov_b32 {s(sT5)}, 0x110000
        v_mov_b32 v{t+3}, 512
        v_cndmask_b32 v{t+2}, v{t+2}, v{t+3}, {s(sT4,2)}
        v_lshl_add_u32 v{dV}, v{t+1}, 4, v{t+2}""")
        if sums and self.opt("ib", 1):
            a(f"""v_lshrrev_b32 v96, 2, v{dK}
            v_add_u32 v96, {s(sT2)}, v96
            v_lshrrev_b32 v104, 2, v{dV}
            v_add_u32 v{t+2}, 640, v104
            v_add_u32 v104, 416, v104
            s_mov_b32 {s(sT4)}, 0xffff
            s_mov_b32 {s(sT5)}, 0xffff
            v_cndmask_b32 v104, v104, v{t+2}, {s(sT4,2)}
            v_add_u32 v104, {s(sT2)}, v104""")
        a(f"""v_add_u32 v{dK}, {s(sT2)}, v{dK}
        v_add_u32 v{dV}, {s(sT2)}, v{dV}""")
        self.tail_setup()
        if self.opt("chunk", 1):
            a(f"""s_cmp_eq_u32 {s(sCLS)}, 0
            s_cselect_b32 s35, {self.opt('ce', 3) + 1}, {self.opt('cl', 6) + 1}
            s_lshl_b32 s35, 1, s35""")
        a(f"""s_lshl_b32 {s(sT2)}, {s(sCLS)}, 12
        s_add_u32 {s(sT2)}, {s(sT2)}, {QB}
        v_lshl_add_u32 v{t}, v0, 4, {s(sT2)}""")
        for i in range(4):
            a(f"""s_add_u32 {s(sT3)}, {s(sW4)}, {i}
            s_and_b32 {s(sT3)}, {s(sT3)}, 3
            s_lshl_b32 {s(sT3)}, {s(sT3)}, 10
            v_add_u32 v{160+i}, {s(sT3)}, v{t}""")
        for b in range(self.opt("nbuf", 4)):
            if b: a(f"s_add_u32 {s(sROT)}, {s(sROT)}, 1\ns_and_b32 {s(sROT)}, {s(sROT)}, 15")
            a(f"s_mul_i32 s{36+b}, {s(sROT)}, {KVT}")
        a(f"s_mov_b32 {s(sSOF)}, {OOB}")
    def att_zero(self):
        a = self.a
        Q0, O0, S0, KA = self.Q0, self.O0, self.S0, self.KA
        a(f"""s_lshl_b32 {s(sT2)}, {s(sCLS)}, 2
        v_add_u32 v92, {s(sT2)}, v1
        v_mov_b32 v6, 0xdddddddd
        v_mov_b32 v7, {s(self.tail_regs()['cw'])}""")
        for h in range(4):
            for i in range(0, 16 if self.opt("zfull", 1) else 10, 2): a(f"v_mov_b64 {v(O0+16*h+i,2)}, 0")
        for i in range(0, 8, 2): a(f"v_mov_b64 {v(S0+24+i,2)}, 0")
        for i in range(0, 4, 2): a(f"v_mov_b64 {v(KA+44+i,2)}, 0")
    def ld(self, kind, b, so):
        SC = {0: "sc1", 1: "", 2: "sc0", 3: "nt", 4: "sc0 sc1"}[self.opt("kvsc", 0)]
        off = [0, 1024, V1OFF][kind]
        self.a(f"buffer_load_dwordx4 {v(b+4*kind,4)}, v{self.vKO if kind == 0 else self.vVO}, {s(rWS,4)}, {s(so)} offen offset:{off} {SC}")
    def val_loads(self):
        for t in range(2):
            for kind in range(3):
                self.ld(kind, self.KA + 12 * t, 36 + t)
                self.a(f"buffer_load_dword v{97+3*t+kind}, v{96 if kind == 0 else 104}, {s(rWS,4)}, s{36+t} offen offset:{[2560, 1024, V1OFF][kind]} sc1")
    def prologue_loads(self):
        NB = self.opt("nbuf", 4)
        n = 2 if self.opt("ib", 1) else NB
        for b in range(n):
            for kind in range(3):
                if kind < 2 or b < NB - 1: self.ld(kind, self.KA + 12 * b, 36 + b)
    def flag_poll(self, vA=93, vD=94):
        a = self.a; Lp = a.newlabel("Lfp"); Lo = a.newlabel("Lfo")
        a(f"""s_lshl_b32 {s(sT1)}, {s(sW4)}, {6 + self.opt('fsh', 5)}
        s_add_u32 {s(sT1)}, {s(sT1)}, {WS_FLAG}
        v_lshlrev_b32 v{vA}, {self.opt('fsh', 5)}, v0""")
        a.label(Lp)
        a(f"""buffer_load_dword v{vD}, v{vA}, {s(rWS,4)}, {s(sT1)} offen sc1
        s_waitcnt vmcnt(0)
        v_cmp_ne_u32 vcc, {s(sT3)}, v{vD}
        s_and_b64 exec, exec, vcc
        s_cbranch_execz {Lo}
        s_sleep {self.opt('pslp', 1)}
        s_sub_u32 {s(sBUD)}, {s(sBUD)}, 1
        s_cbranch_scc0 {Lp}
        s_mov_b32 {s(sBUD)}, 0""")
        a.label(Lo)
        a("s_mov_b64 exec, -1")

    def qproj_and_attention(self):
        a = self.a; vL, vZ, vONE, vT = self.vL, self.vZ, self.vONE, self.vT
        Q0, O0, S0, KA = self.Q0, self.O0, self.S0, self.KA
        vKO, vVO, vIDX = self.vKO, self.vVO, self.vIDX
        NB = self.opt("nbuf", 4); IB = self.opt("ib", 1)
        BUF = [KA + 12 * i for i in range(NB)]
        a.label("L_att_setup")
        if self.opt("lhoist", 1):
            a("v_mov_b32 v4, v158\nv_mov_b32 v5, v159"); self.att_zero()
        else:
            self.att_addr(4, 5, 7, False); self.att_zero()
        self.waitc(C_FL, 4, vZ, vT)
        self.stamp(4)
        self.prologue_loads()
        a.label("L_att_go")
        def sof_next():
            a(f"""s_add_u32 {s(sROT)}, {s(sROT)}, 1
            s_and_b32 {s(sROT)}, {s(sROT)}, 15
            s_mul_i32 {s(sSOF)}, {s(sROT)}, {KVT}
            s_cmp_eq_u32 {s(sLOOP)}, 1
            s_cselect_b32 {s(sSOF)}, {OOB}, {s(sSOF)}""")
        def ldK(b): self.ld(0, b, sSOF)
        def ldV0(b): self.ld(1, b, sSOF)
        def ldV1(b): self.ld(2, b, sSOF)
        self.waitc(C_QE, 4, 92, vT, slp=self.opt('qslp', 0))
        for i in range(4): a(f"ds_read_b128 {v(Q0+4*i,4)}, v{160+i}")
        a(f"""s_mov_b32 {s(sLOOP)}, {16//NB}
        s_waitcnt vmcnt({3 if IB else 3*NB-4}) lgkmcnt(0)
        v_mfma_f32_32x32x16_bf16 {v(S0,16)}, {v(KA,4)}, {v(Q0,4)}, 0
        s_nop 11""")
        self.stamp(5)
        a(f"""s_setprio {self.opt('eprio', 2)}
        s_cmp_eq_u32 {s(sCLS)}, 0
        s_cbranch_scc1 L_att0
        s_setprio {self.opt('lprio', 1)}""")
        a.label("L_att0")
        a(".p2align 6")
        a.label("L_att")
        self.inloop = True
        G0 = self.opt("g0", 2); G1 = self.opt("g1", 5); G2 = self.opt("g2", 12)
        CHK = self.opt("chunk", 1)
        for t in range(NB):
            cur = BUF[t]; prv = BUF[(t - 1) % NB]; nxt = BUF[(t + 1) % NB]
            for i in range(4):
                S = S0 + 16 * (i & 1); Sn = S0 + 16 * ((i + 1) & 1)
                def ex(a0, a1):
                    for k in range(a0, a1): a(f"v_exp_f32 v{S+k}, v{S+k}")
                ex(0, G0)
                if i == 1 and NB == 2 and not self.opt("nowait"): a("s_waitcnt vmcnt(3)")
                pv = prv if i == 0 else cur
                a(f"v_smfmac_f32_32x32x32_bf16 {v(O0+16*((i-1)&3),16)}, {v(pv+8,4)}, {v(Sn+8,8)}, v{vIDX}")
                if i == 0: ldV1(prv)
                if i == 1 and not self.opt("nosof"): sof_next()
                if CHK and t % 2 == self.opt('cpar', 0) and i == 2:
                    L = a.newlabel("Lp")
                    a(f"""s_lshr_b32 s35, s35, 1
                    s_bitcmp1_b32 s35, 0
                    s_cbranch_scc0 {L}
                    s_setprio {self.opt('lprio', 1) - 1}
                    s_cmp_eq_u32 {s(sCLS)}, 0
                    s_cbranch_scc0 {L}
                    s_setprio {self.opt('eprio', 2) - 1}""")
                    a.label(L)
                if i == 3 and self.opt("mv", 1): a(f"s_waitcnt vmcnt({3*NB-5})")
                ex(G0, G1)
                if i == 3 and not self.opt("mv", 1): a(f"s_waitcnt vmcnt({3*NB-5})")
                kk = nxt if i == 3 else cur
                a(f"v_mfma_f32_32x32x16_bf16 {v(Sn,16)}, {v(kk,4)}, {v(Q0+4*((i+1)&3),4)}, 0")
                if IB and t == 0 and i == 2:
                    a(f"s_cmp_eq_u32 {s(sLOOP)}, {16//NB}\ns_cbranch_scc1 L_first")
                    a.label("L_first_ret")
                if i == 2: ldK(cur)
                ex(G1, G2)
                a(f"v_smfmac_f32_32x32x32_bf16 {v(O0+16*i,16)}, {v(cur+4,4)}, {v(S,8)}, v{vIDX}")
                if i == 3: ldV0(cur)
                if i == 2 and t == NB - 1: a("ds_read_b32 v3, v7")
                if t == NB - 1 and i == 3 and self.opt("mv", 1):
                    a(f"s_sub_u32 {s(sLOOP)}, {s(sLOOP)}, 1\ns_cmp_lg_u32 {s(sLOOP)}, 0")
                    ex(G2, 16)
                elif t == NB - 1 and i == 3:
                    ex(10, 13)
                    a(f"s_sub_u32 {s(sLOOP)}, {s(sLOOP)}, 1\ns_cmp_lg_u32 {s(sLOOP)}, 0")
                    ex(13, 16)
                else:
                    ex(G2, 16)
        a("s_cbranch_scc1 L_att")
        a(f"s_nop 1")
        a(f"v_smfmac_f32_32x32x32_bf16 {v(O0+48,16)}, {v(BUF[-1]+8,4)}, {v(S0+24,8)}, v{vIDX}")
        self.stamp(6)
        if self.opt("r0late", 0) == 2:
            a(f"s_cmp_eq_u32 {s(sCLS)}, 0\ns_cbranch_scc1 L_nole")
            self.arrive(C_WQC, vZ, vONE)
            a.label("L_nole")
        self.att_tail()
        if IB:
            a.label("L_first")
            if self.opt("lpoll", 0):
                self.waitc(C_FL, 4, vZ, vT, slp=0)
            else:
                a(f"s_cmp_eq_u32 {s(sCLS)}, 0\ns_cbranch_scc0 L_first_ld")
                a.label("L_fp")
                a(f"""s_waitcnt vmcnt(0)
                v_cmp_ne_u32 vcc, {s(sNONCE)}, v145
                s_and_b64 exec, exec, vcc
                s_cbranch_execz L_fp_ok
                buffer_load_dword v145, v144, {s(rWS,4)}, s40 offen sc1
                s_sub_u32 {s(sBUD)}, {s(sBUD)}, 1
                s_cbranch_scc0 L_fp
                s_mov_b32 {s(sBUD)}, 0
                s_waitcnt vmcnt(0)""")
                a.label("L_fp_ok")
                a("s_mov_b64 exec, -1")
                self.arrive(C_FL, vZ, vONE)
                a.label("L_first_ld")
            for b in (2, 3):
                for kind in range(3): self.ld(kind, BUF[b], 36 + b)
            a("s_branch L_first_ret")

    def first_poll(self):
        self.a(f"""s_lshl_b32 {s(sT1)}, {s(sW4)}, {6 + self.opt('fsh', 5)}
        s_add_u32 {s(sT1)}, {s(sT1)}, {WS_FLAG}
        v_lshlrev_b32 v93, {self.opt('fsh', 5)}, v0""")
        if self.opt("p16", 0):
            self.a(f"""v_lshrrev_b32 v95, 3, v0
            v_bfe_u32 v96, v0, 1, 1
            v_lshl_add_u32 v95, v95, 1, v96
            v_subrev_u32 v95, {s(sROT)}, v95
            v_and_b32 v95, 15, v95
            v_cmp_gt_u32 vcc, {self.opt('nbuf', 4)}, v95
            s_mov_b64 exec, vcc""")
        self.a(f"buffer_load_dword v94, v93, {s(rWS,4)}, {s(sT1)} offen sc1")

    sP1, sP2, sP3, sP0, sOS = 70, 71, 72, 73, 74
    def tail_regs(self):
        b = 40 if True else 70
        return dict(p=[28, 29, 30, 31], os=32, cw=33, cp=34)
    def tail_setup(self):
        a = self.a; R = self.tail_regs()
        for i in range(4):
            a(f"""s_add_u32 {s(sT2)}, {s(sW4)}, {i}
            s_and_b32 {s(sT2)}, {s(sT2)}, 3
            s_mul_i32 {s(R['p'][i])}, {s(sT2)}, {3*PSLOT}""")
        a(f"""s_cmp_eq_u32 {s(sCLS)}, 0
        s_cselect_b32 {s(sT2)}, {XE}, {R0}""")
        for i in range(4): a(f"s_add_u32 {s(R['p'][i])}, {s(R['p'][i])}, {s(sT2)}")
        a(f"""s_lshl_b32 {s(sT3)}, {s(sG)}, 1
        s_add_u32 {s(sT3)}, {s(sT3)}, {s(sCLS)}
        s_lshl_b32 {s(sT3)}, {s(sT3)}, 5
        s_lshl_b32 {s(sT4)}, {s(sR)}, 2
        s_add_u32 {s(sT3)}, {s(sT3)}, {s(sT4)}
        s_add_u32 {s(sT3)}, {s(sT3)}, {s(sW4)}
        s_lshl_b32 {s(sT3)}, {s(sT3)}, 10
        s_add_u32 {s(R['os'])}, {s(sT3)}, {WS_O}
        s_cmp_eq_u32 {s(sCLS)}, 0
        s_mov_b32 {s(R['cw'])}, {C_YT//4}
        s_cselect_b32 {s(R['cp'])}, {C_PE//4}, {C_PL//4}
        s_lshl_b32 {s(R['cw'])}, {s(R['cw'])}, 2
        s_lshl_b32 {s(R['cp'])}, {s(R['cp'])}, 2
        s_add_u32 {s(R['cw'])}, {s(R['cw'])}, {CNT}
        s_add_u32 {s(R['cp'])}, {s(R['cp'])}, {CNT}""")
    def att_tail(self):
        a = self.a; vL, vZ, vONE, vT = self.vL, self.vZ, self.vONE, self.vT
        Q0, O0, S0, KA = self.Q0, self.O0, self.S0, self.KA
        R = self.tail_regs()
        T = Q0 + 4
        if self.opt("tprio", 0) == 1:
            a(f"s_cmp_eq_u32 {s(sCLS)}, 0\ns_cbranch_scc1 L_notp\ns_setprio 3")
            a.label("L_notp")
        if self.opt("tprio", 0) == 2: a("s_setprio 3")
        a(f"""v_mov_b32 v{T+1}, {s(R['cp'])}
        v_lshlrev_b32 v{T+2}, 4, v0
        v_lshlrev_b32 v{T+3}, 2, v0
        s_waitcnt lgkmcnt(0)
        v_readfirstlane_b32 {s(sT0)}, v3
        v_add_u32 v{T+4}, {s(R['p'][1])}, v{T+2}
        v_add_u32 v{T+5}, {s(R['p'][1])}, v{T+3}
        s_cmp_ge_u32 {s(sT0)}, 4
        s_cbranch_scc1 L_pfree""")
        n0 = len(a.lines)
        self.waitc(0, 4, 7, vT)
        for i in range(n0, len(a.lines)):
            l = a.lines[i]
            if not l.endswith(":") and "nocount" not in l and not l.startswith(("v_readfirst", "s_cmp")): a.lines[i] = l + " ; nocount"
        a.label("L_pfree")
        for i in range(1, 4):
            j = (i + 1) & 3
            a(f"""ds_write_b128 v{T+4+2*(i&1^1)}, {v(O0+16*i,4)} offset:{(i-1)*PSLOT}
            ds_write_b128 v{T+4+2*(i&1^1)}, {v(O0+16*i+4,4)} offset:{(i-1)*PSLOT+1024}
            ds_write_b32 v{T+5+2*(i&1^1)}, v{O0+16*i+8} offset:{(i-1)*PSLOT+2048}
            v_add_u32 v{T+4+2*(i&1)}, {s(R['p'][j])}, v{T+2}
            v_add_u32 v{T+5+2*(i&1)}, {s(R['p'][j])}, v{T+3}""")
        a("s_waitcnt lgkmcnt(0)")
        self.sync4(0, T + 1, vONE, vT)
        for i in range(1, 4):
            a(f"""ds_read_b128 {v(O0+16*i,4)}, v{T+6} offset:{(i-1)*PSLOT}
            ds_read_b128 {v(O0+16*i+4,4)}, v{T+6} offset:{(i-1)*PSLOT+1024}
            ds_read_b32 v{O0+16*i+8}, v{T+7} offset:{(i-1)*PSLOT+2048}""")
        a(f"""s_mov_b32 {s(sT5)}, {s(R['os'])}
        s_waitcnt vmcnt(0)
        v_mov_b32 v146, v{T+2}
        s_waitcnt lgkmcnt(6)""")
        def add9(d, x):
            for k in range(0, 8, 2): a(f"v_pk_add_f32 {v(d+k,2)}, {v(d+k,2)}, {v(x+k,2)}")
            a(f"v_add_f32 v{d+8}, v{d+8}, v{x+8}")
        add9(O0, O0 + 16)
        a("s_waitcnt lgkmcnt(3)"); add9(O0, O0 + 32)
        a("s_waitcnt lgkmcnt(0)"); add9(O0, O0 + 48)
        lo = struct.unpack("<I", struct.pack("<f", 2.0**-60))[0]; hi = struct.unpack("<I", struct.pack("<f", 2.0**60))[0]
        a(f"""v_pk_add_f32 v[150:151], {v(O0,2)}, {v(O0+2,2)}
        v_pk_add_f32 v[152:153], {v(O0+4,2)}, {v(O0+6,2)}
        v_pk_add_f32 v[150:151], v[150:151], v[152:153]
        v_add_f32 v150, v150, v151
        v_fma_f32 v150, v150, 0, v{O0+8}
        v_subrev_u32 v150, {hex(lo)}, v150
        v_cmp_ge_u32 vcc, {hex(hi-lo)}, v150""")
        if self.opt("force_fallback"): a("s_mov_b64 vcc, 0")
        a(f"""s_cmp_eq_u64 vcc, exec
        s_cbranch_scc0 L_fallback""")
        a.label("L_att_fin")
        if not self.opt("qst") and not self.opt("lst0"): self.stamp(9)
        a(f"v_rcp_f32 v150, v{O0+8}")
        for k in range(0, 8, 2): a(f"v_pk_mul_f32 {v(O0+k,2)}, {v(O0+k,2)}, v[150:151] op_sel_hi:[1,0]")
        for k in range(4): a(f"v_cvt_pk_bf16_f32 v{152+k}, v{O0+2*k}, v{O0+2*k+1}")
        for k in range(4): a(f"v_min_u32 v{152+k}, -2, v{152+k}")
        a(f"""s_lshl_b32 {s(sT2)}, {s(sCLS)}, 2
        v_add_u32 v151, {s(sT2)}, v1
        buffer_store_dwordx4 v[152:155], v146, {s(rWS,4)}, {s(sT5)} offen sc1""")
        ED = self.opt("edrain", 1)
        if ED == 1: a("s_waitcnt vmcnt(0)")
        if ED == 0:
            a(f"s_cmp_eq_u32 {s(sCLS)}, 0\ns_cbranch_scc1 L_nodrain\ns_waitcnt vmcnt(0)")
            a.label("L_nodrain")
        self.arrive(C_OE, 151, vONE)
        if self.opt("yby", 2) in (0, 1):
            a(f"s_cmp_eq_u32 {s(sCLS)}, {self.opt('yby', 2)}\ns_cbranch_scc0 L_noya")
            self.y_guard(lambda: (self.waitc(C_Y4, 4, vZ, vT, slp=2), self.y_assemble()), self.opt('pary', 0))
            a.label("L_noya")
        a(f"""s_or_b32 {s(sT2)}, {s(sWG)}, {s(sW4)}
        s_or_b32 {s(sT2)}, {s(sT2)}, {s(sCLS)}
        s_cmp_eq_u32 {s(sT2)}, 0
        s_cbranch_scc0 L_end
        v_mov_b32 v150, {s(sNONCE)}
        v_mov_b32 v151, 0
        s_mov_b64 exec, 1
        buffer_store_dword v150, v151, {s(rWS,4)}, 0 offen sc1
        s_mov_b64 exec, -1
        s_branch L_end""")
        self.fallback()

    def fallback(self):
        a = self.a
        Q0, O0, S0, KA = self.Q0, self.O0, self.S0, self.KA
        vKO, vVO, vIDX = self.vKO, self.vVO, self.vIDX
        C0 = O0 + 16
        a.label("L_fallback")
        a(f"""s_mul_i32 {s(sT2)}, {s(sW4)}, {16*KVT}
        v_subrev_u32 v7, {s(sT2)}, v{vKO}
        v_subrev_u32 v151, {s(sT2)}, v{vVO}
        v_mov_b32 v150, 0xff800000
        s_mov_b32 {s(sSOF)}, 0""")
        a.label("L_fb1")
        a(f"""buffer_load_dwordx4 {v(KA,4)}, v7, {s(rWS,4)}, {s(sSOF)} offen sc1
        s_waitcnt vmcnt(0)
        v_mfma_f32_32x32x16_bf16 {v(S0,16)}, {v(KA,4)}, {v(Q0,4)}, 0""")
        for k in range(8): a(f"v_max3_f32 v150, v150, v{S0+2*k}, v{S0+2*k+1}")
        a(f"""s_add_u32 {s(sSOF)}, {s(sSOF)}, {KVT}
        s_cmp_lt_u32 {s(sSOF)}, {64*KVT}
        s_cbranch_scc1 L_fb1
        v_mov_b32 v152, v150
        v_permlane32_swap_b32 v150, v152
        v_max_f32 v150, v150, v152""")
        for k in range(16): a(f"v_sub_f32 v{C0+k}, 0, v150")
        for k in range(16): a(f"v_mov_b32 v{O0+k}, 0")
        a(f"s_mov_b32 {s(sSOF)}, 0")
        a.label("L_fb2")
        a(f"""buffer_load_dwordx4 {v(KA,4)}, v7, {s(rWS,4)}, {s(sSOF)} offen sc1
        buffer_load_dwordx4 {v(KA+4,4)}, v151, {s(rWS,4)}, {s(sSOF)} offen offset:1024 sc1
        buffer_load_dwordx4 {v(KA+8,4)}, v151, {s(rWS,4)}, {s(sSOF)} offen offset:{V1OFF} sc1
        s_waitcnt vmcnt(0)
        v_mfma_f32_32x32x16_bf16 {v(S0,16)}, {v(KA,4)}, {v(Q0,4)}, {v(C0,16)}""")
        for k in range(16): a(f"v_exp_f32 v{S0+k}, v{S0+k}")
        a(f"""v_smfmac_f32_32x32x32_bf16 {v(O0,16)}, {v(KA+4,4)}, {v(S0,8)}, v{vIDX}
        v_smfmac_f32_32x32x32_bf16 {v(O0,16)}, {v(KA+8,4)}, {v(S0+8,8)}, v{vIDX}
        s_add_u32 {s(sSOF)}, {s(sSOF)}, {KVT}
        s_cmp_lt_u32 {s(sSOF)}, {64*KVT}
        s_nop 9
        s_cbranch_scc1 L_fb2
        s_nop 3
        s_branch L_att_fin""")

    def role_s(self):
        a = self.a; vL, vZ, vONE, vT = self.vL, self.vZ, self.vONE, self.vT
        a.label("L_role_s")
        a(f"s_setprio {self.opt('gprio', 3)}")
        sCH, sMH = sLOOP, sSOF
        a(f"""s_and_b32 {s(sCH)}, {s(sW4)}, 1
        s_lshr_b32 {s(sMH)}, {s(sW4)}, 1
        s_lshl_b32 {s(sT0)}, {s(sP)}, 2
        s_lshl_b32 {s(sT1)}, {s(sP)}, 9
        s_lshl_b32 {s(sT2)}, {s(sCH)}, 8
        s_add_u32 {s(sT1)}, {s(sT1)}, {s(sT2)}
        s_lshl_b32 {s(sT2)}, {s(sMH)}, 7
        s_add_u32 {s(sT1)}, {s(sT1)}, {s(sT2)}
        v_lshlrev_b32 v4, 1, v0
        s_mov_b32 {s(rA+2)}, 131072""")
        self.ptrs_ready(False)
        a(f"""s_load_dword {s(sT4)}, {s(pLDT,2)}, {s(sT0)}
        s_load_dword {s(sT5)}, {s(pDSK,2)}, {s(sT0)}""")
        if self.opt("pdelay", 0): self.s_precompute(); a("s_barrier")
        if self.opt("sbar", 0) == 3: a("s_barrier")
        for i, p in enumerate([pARE, pAIM, pBRE, pBIM, pCRE, pCIM]):
            a(f"s_mov_b32 {s(rA)}, {s(p)}\ns_mov_b32 {s(rA+1)}, {s(p+1)}")
            a(f"buffer_load_ushort v{8+i}, v4, {s(rA,4)}, {s(sT1)} offen")
        UE = self.opt("uearly", 0)
        if not self.opt("pdelay", 0):
            if not self.opt("sbar", 0): a("s_barrier")
            self.s_precompute()
        a(f"""s_lshl_b32 {s(sT2)}, {s(sW4)}, 12
        s_add_u32 {s(sT2)}, {s(sT2)}, {GEN}
        v_bfe_u32 v5, v0, 1, 2
        v_lshlrev_b32 v5, 4, v5
        v_lshl_add_u32 v5, v0, 6, v5
        v_add_u32 v150, {s(sT2)}, v5
        v_xor_b32 v151, 16, v150
        v_xor_b32 v152, 32, v150
        v_xor_b32 v153, 48, v150
        v_bfe_u32 v5, v0, 2, 2
        v_lshrrev_b32 v6, 5, v0
        v_lshl_add_u32 v6, v6, 3, v5
        v_lshlrev_b32 v6, 6, v6
        v_bfe_u32 v7, v0, 4, 1
        v_lshlrev_b32 v7, 1, v7
        v_bfe_u32 v14, v0, 1, 1
        v_add_u32 v7, v7, v14
        v_lshrrev_b32 v5, 1, v5
        v_xor_b32 v7, v7, v5
        v_lshl_add_u32 v6, v7, 4, v6
        v_and_b32 v7, 1, v0
        v_lshl_add_u32 v6, v7, 3, v6
        v_add_u32 v154, {s(sT2)}, v6
        v_xor_b32 v155, 32, v154""")
        if self.opt("sbar", 0) == 1: a("s_barrier")
        a(f"""s_waitcnt lgkmcnt(0)
        s_lshl_b32 {s(sT2)}, {s(sCH)}, 4
        s_lshr_b32 {s(sT4)}, {s(sT4)}, {s(sT2)}
        s_lshl_b32 {s(sT4)}, {s(sT4)}, 16
        s_lshr_b32 {s(sT5)}, {s(sT5)}, {s(sT2)}
        s_lshl_b32 {s(sT5)}, {s(sT5)}, 16
        v_mov_b32 v14, {fbits(LOG2E)}
        v_mul_f32 v15, {s(sT4)}, v14
        v_exp_f32 v15, v15
        v_cvt_pk_bf16_f32 v15, v15, v15
        v_and_b32 v15, 0xffff0000, v15
        s_waitcnt vmcnt({8 if UE else 0})""")
        self.stamp(1)
        for i in range(6): a(f"v_lshlrev_b32 v{8+i}, 16, v{8+i}")
        Z1, Z2, Z4, Z8, Z256, CB, TMP = 18, 20, 22, 24, 26, 16, 28
        a(f"""v_mul_f32 v8, v15, v8
        v_mul_f32 v9, v15, v9
        v_mul_f32 v10, v15, v10
        v_mul_f32 v11, v15, v11
        v_mul_f32 v8, v14, v8
        v_mul_f32 v9, 0.15915494, v9""")
        self.cmul(CB, 10, 12, TMP)
        def cpow(d, mult):
            if mult != 1:
                a(f"v_mul_f32 v30, {fbits(mult)}, v8\nv_mul_f32 v31, {fbits(mult)}, v9")
                x, y = 30, 31
            else:
                x, y = 8, 9
            a(f"""v_exp_f32 v28, v{x}
            v_rndne_f32 v29, v{y}
            v_sub_f32 v29, v{y}, v29
            v_cos_f32 v{d}, v29
            v_sin_f32 v{d+1}, v29
            v_mul_f32 v{d}, v28, v{d}
            v_mul_f32 v{d+1}, v28, v{d+1}""")
        cpow(Z1, 1); cpow(Z256, 256)
        self.cmul(Z2, Z1, Z1, TMP); self.cmul(Z4, Z2, Z2, TMP); self.cmul(Z8, Z4, Z4, TMP)
        RE, IM = 32, 48
        FB = 64
        FA = 96
        ACC = 112
        X0, X1 = 128, 130
        def wr(src):
            for c in range(4): a(f"ds_write_b128 v{150+c}, {v(src+4*c,4)}")
        def rdtr(dst):
            for ks in range(4):
                a(f"ds_read_b64_tr_b16 {v(dst+4*ks,2)}, v154 offset:{1024*ks}")
                a(f"ds_read_b64_tr_b16 {v(dst+4*ks+2,2)}, v155 offset:{1024*ks+256}")
        if self.opt("gst"): self.stamp(3)
        if self.opt("sbar", 0) == 2: a("s_barrier")
        a(f"v_mov_b32 v{X0}, 1.0\nv_mov_b32 v{X0+1}, 0")
        for j in range(0, 32, 2):
            if j > 0: self.cmul(X0, X1, Z8, TMP)
            self.cmul(X1, X0, Z8, TMP)
            a(f"v_cvt_pk_bf16_f32 v{RE+j//2}, v{X0}, v{X1}")
            a(f"v_cvt_pk_bf16_f32 v{IM+j//2}, -v{X0+1}, -v{X1+1}")
        if self.opt("gst"): self.stamp(4)
        wr(RE); rdtr(FB); wr(IM); rdtr(FB + 16)
        if self.opt("gst"): self.stamp(5)
        if self.opt("upf", 0):
            a(f"""s_and_b32 {s(sT0)}, {s(sP)}, 31
            s_lshl_b32 {s(sT0)}, {s(sT0)}, 2
            s_add_u32 {s(sT0)}, {s(sT0)}, {s(sW4)}
            s_lshl_b32 {s(sT0)}, {s(sT0)}, 14
            s_lshr_b32 {s(sT1)}, {s(sP)}, 5
            s_lshl_b32 {s(sT1)}, {s(sT1)}, 7
            s_add_u32 {s(sT0)}, {s(sT0)}, {s(sT1)}""")
            self.s_prefetch(pU, sT0, 16, 1024)
            if self.opt("upf", 0) == 2:
                a(f"s_add_u32 {s(sT0)}, {s(sT0)}, 64"); self.s_prefetch(pU, sT0, 16, 1024)
        B = [CB] + [132 + 2 * m for m in range(7)]
        for m in range(1, 8): self.cmul(B[m], B[m - 1], Z256, TMP)
        Y0, Y1 = 146, 148
        def pack(row, x, y):
            a(f"v_cvt_pk_bf16_f32 v{RE+row//2}, v{x}, v{y}")
            a(f"v_cvt_pk_bf16_f32 v{IM+row//2}, v{x+1}, v{y+1}")
        a("s_waitcnt lgkmcnt(8)")
        self.cmul(X1, CB, Z1, TMP); pack(0, CB, X1)
        for row in (2, 4, 6):
            self.cmul(X0, X1, Z1, TMP); self.cmul(X1, X0, Z1, TMP); pack(row, X0, X1)
        self.cmul(X0, B[1], Z2, TMP); pack(8, B[1], X0)
        self.cmul(X1, X0, Z2, TMP); pack(10, X1, X1)
        self.cmul(X0, X1, Z2, TMP); pack(12, X1, X0)
        self.cmul(X1, X0, Z2, TMP); pack(14, X1, X1)
        for q, m in ((16, 2), (20, 3)):
            self.cmul(X0, B[m], Z4, TMP); pack(q, B[m], X0)
            self.cmul(X1, X0, Z4, TMP); pack(q + 2, X1, X1)
        for q, m in ((24, 4), (26, 6), (28, 5), (30, 7)):
            self.cmul(X0, B[m], Z8, TMP); pack(q, B[m], X0)
        if self.opt("gst"): self.stamp(6)
        wr(RE); rdtr(FA)
        a("s_waitcnt lgkmcnt(0)")
        if self.opt("gst"): self.stamp(7)
        for ks in range(4):
            a(f"v_mfma_f32_32x32x16_bf16 {v(ACC,16)}, {v(FA+4*ks,4)}, {v(FB+4*ks,4)}, {'0' if ks==0 else v(ACC,16)}")
        wr(IM); rdtr(RE)
        a("s_waitcnt lgkmcnt(0)")
        for ks in range(4):
            a(f"v_mfma_f32_32x32x16_bf16 {v(ACC,16)}, {v(RE+4*ks,4)}, {v(FB+16+4*ks,4)}, {v(ACC,16)}")
        self.stamp(2)
        if self.opt("gprio", 3) != self.opt("sprio", 3): a(f"s_setprio {self.opt('sprio', 3)}")
        if self.opt("abl_s") == 1: self.arrive(C_YT, vZ, vONE); self.arrive(C_WO, vZ, vONE); a("s_branch L_end")
        UG = self.UG
        self.waitc(C_KV, 4, vZ, vT, slp=1)
        a("ds_read_b32 v167, v1 offset:128")
        if self.opt("uwait", 2): self.waitc({1: C_WQB, 2: C_FL, 3: C_QE}[self.opt("uwait", 2)], 4, vZ, vT, slp=2)
        self.y_guard(self.u_transpose, self.opt('paru', 1))
        a(f"v_mov_b32 v26, v{self.pCA}\nv_mov_b32 v27, v{self.pCB}")
        a(f"""s_lshl_b32 {s(sT2)}, {s(sCH)}, 12
        s_add_u32 {s(sT2)}, {s(sT2)}, {GEN+8192}
        v_lshl_add_u32 v5, v0, 4, {s(sT2)}
        s_lshl_b32 {s(sT2)}, {s(sCH)}, 2
        v_add_u32 v6, {s(sT2)}, v1
        s_cmp_eq_u32 {s(sMH)}, 0
        s_cbranch_scc1 L_s_expand""")
        for c in range(4): a(f"ds_write_b128 v5, {v(ACC+4*c,4)} offset:{1024*c}")
        a("s_waitcnt lgkmcnt(0)")
        self.arrive(C_KT0, 6, vONE)
        a("s_branch L_s_ucopy")
        a.label("L_s_expand")
        self.waitc(C_KT0, 1, 6, vT)
        for c in range(4): a(f"ds_read_b128 {v(32+4*c,4)}, v5 offset:{1024*c}")
        a(f"""v_lshl_add_u32 v7, v0, 4, s46
        v_mov_b64 v[48:49], 0
        v_mov_b64 v[50:51], 0""")
        for cp in range(2):
            for off in (0, 1024, 1136):
                a(f"ds_write_b128 v7, v[48:51] offset:{cp*KCOPY+off}")
        a("s_waitcnt lgkmcnt(6)")
        for k in range(0, 16, 2): a(f"v_pk_add_f32 {v(ACC+k,2)}, {v(ACC+k,2)}, {v(32+k,2)}")
        a(f"""s_mov_b64 exec, 1
        v_add_f32 v{ACC}, {s(sT5)}, v{ACC}
        s_mov_b64 exec, -1
        s_mov_b32 {s(sT2)}, 0x55555555
        s_mov_b32 {s(sT3)}, 0x55555555""")
        A = ACC
        a(f"""v_cvt_pk_bf16_f32 v32, v{A+3}, v{A+2}
        v_cvt_pk_bf16_f32 v33, v{A+1}, v{A}
        ds_write_b64 v{self.pE10}, v[32:33] offset:{144*15+8}
        v_cvt_pk_bf16_f32 v34, v{A+6}, v{A+5}
        v_cvt_pk_bf16_f32 v35, v{A+4}, v{A+4}
        ds_write_b64 v{self.pE10}, v[34:35] offset:{144*19+8}
        v_cvt_pk_bf16_f32 v36, v{A+10}, v{A+10}
        v_cvt_pk_bf16_f32 v37, v{A+9}, v{A+9}
        v_cvt_pk_bf16_f32 v38, v{A+9}, v{A+8}
        v_cvt_pk_bf16_f32 v39, v{A+8}, v{A+8}
        ds_write_b128 v{self.pE9}, v[36:39] offset:{144*23}""")
        for q, (ra, dst, blk) in enumerate(((A + 12, 40, 31), (A + 14, 44, 39))):
            a(f"""v_cndmask_b32 v11, v{ra+1}, v{ra}, {s(sT2,2)}
            v_cvt_pk_bf16_f32 v{dst}, v{ra+1}, v{ra+1}
            v_cvt_pk_bf16_f32 v{dst+1}, v{ra+1}, v11
            v_cvt_pk_bf16_f32 v{dst+2}, v{ra}, v{ra}
            v_cvt_pk_bf16_f32 v{dst+3}, v{ra}, v{ra}
            ds_write_b128 v{self.pE9}, {v(dst,4)} offset:{144*blk}""")
        for it in range(4):
            a(f"ds_read_b128 {v(64+8*it,4)}, v{self.pE8} offset:{144*(15+8*it)}")
            a(f"ds_read_b32 v{68+8*it}, v{self.pE8p} offset:{144*(15+8*it)}")
        for it in range(4):
            b = 64 + 8 * it
            a(f"s_waitcnt lgkmcnt({6-2*it+it})")
            for k in range(4): a(f"v_alignbit_b32 v{32+4*it+k}, v{b+k+1}, v{b+k}, 16")
            a(f"ds_write_b128 v{self.pE8}, {v(32+4*it,4)} offset:{KCOPY+144*(15+8*it)}")
        a.label("L_s_ucopy")
        self.y_guard(self.u_transpose2, self.opt('paru', 1))
        a("s_waitcnt lgkmcnt(0)")
        if self.opt("paru", 1): self.y_guard(lambda: self.s_publish(C_UT, WS_FLAG3), 1)
        else: self.s_publish(C_UT, WS_FLAG3)
        self.stamp(3)
        if self.opt("abl_s") == 3: self.arrive(C_YT, vZ, vONE); self.arrive(C_WO, vZ, vONE); a("s_branch L_end")
        self.waitc(C_QL, 4, vZ, vT, slp=2)
        self.srd(rB, pWO, 524288)
        a(f"""s_lshl_b32 {s(sT3)}, {s(sW4)}, 17
        s_lshl_b32 {s(sT2)}, {s(sR)}, 7
        s_add_u32 {s(sT3)}, {s(sT3)}, {s(sT2)}
        s_lshl_b32 {s(sT4)}, {s(sW4)}, 13
        s_add_u32 {s(sT4)}, {s(sT4)}, {XE}""")
        def wo_dma():
            a(f"s_mov_b32 m0, {s(sT4)}")
            for i in range(8):
                if i and i % self.opt("wosplit", 4) == 0: a("s_waitcnt vmcnt(0)")
                a(f"buffer_load_dwordx4 v{self.pWD}, {s(rB,4)}, {s(sT3)} offen lds")
                if i < 7: a("s_add_u32 m0, m0, 1024")
                a(f"s_add_u32 {s(sT3)}, {s(sT3)}, 8192")
        WOF = 96
        WIN = self.opt("woin", 0)
        a(f"v_mov_b32 v16, v{self.pWT}\nv_xor_b32 v17, 64, v{self.pWT}\ns_mov_b32 s44, {s(sT3)}\ns_mov_b32 s45, {s(sT4)}" if False else f"v_mov_b32 v16, v{self.pWT}\nv_xor_b32 v17, 64, v{self.pWT}")
        def wo_frags(rnd):
            a("s_waitcnt vmcnt(0)")
            for ks in range(4):
                for ct in range(2):
                    d = WOF + 32 * rnd + 8 * ks + 4 * ct
                    a(f"ds_read_b64_tr_b16 {v(d,2)}, v{16+ct} offset:{2048*ks}")
                    a(f"ds_read_b64_tr_b16 {v(d+2,2)}, v{16+ct} offset:{2048*ks+512}")
            a("s_waitcnt lgkmcnt(0)")
        if WIN:
            a(f"s_mov_b32 s42, {s(sT3)}\ns_mov_b32 s43, {s(sT4)}")
        else:
            for rnd in range(2): wo_dma(); wo_frags(rnd)
        a(f"""s_lshr_b32 {s(sT4)}, {s(sP)}, {5 + self.opt("paru", 1)}
        s_lshl_b32 {s(sT4)}, {s(sT4)}, {12 + self.opt("paru", 1)}
        s_add_u32 {s(sT4)}, {s(sT4)}, {WS_FLAG3}""")
        self.s_poll(sT4, 31)
        a(f"""s_lshl_b32 {s(sT1)}, {s(sP)}, 13
        s_lshl_b32 {s(sT2)}, {s(sW4)}, 11
        s_add_u32 {s(sT1)}, {s(sT1)}, {s(sT2)}
        s_add_u32 {s(sT1)}, {s(sT1)}, {WS_UT}
        v_lshlrev_b32 v4, 5, v0
        buffer_load_dwordx4 {v(UG,4)}, v4, {s(rWS,4)}, {s(sT1)} offen sc1
        buffer_load_dwordx4 {v(UG+4,4)}, v4, {s(rWS,4)}, {s(sT1)} offen offset:16 sc1""")
        a(f"""s_cmp_eq_u32 {s(sW4)}, 0
        s_cbranch_scc0 L_s_nouz
        v_lshrrev_b32 v8, 3, v0
        v_mul_u32_u24 v8, {UCOPY}, v8
        v_and_b32 v9, 7, v0
        v_lshl_add_u32 v8, v9, 4, v8
        v_add_u32 v8, {W}, v8
        v_mov_b64 v[48:49], 0
        v_mov_b64 v[50:51], 0
        ds_write_b128 v8, v[48:51]""")
        a.label("L_s_nouz")
        a(f"""s_mov_b32 {s(sT0)}, 0x05040100
        s_mov_b32 {s(sT1)}, 0x07060302
        s_waitcnt vmcnt(0)""")
        self.stamp(4)
        for k in range(4):
            a(f"v_perm_b32 v{32+k}, v{UG+2*k+1}, v{UG+2*k}, {s(sT0)}")
            a(f"v_perm_b32 v{36+k}, v{UG+2*k+1}, v{UG+2*k}, {s(sT1)}")
        for ch in range(2):
            d = 32 + 4 * ch
            for ph in range(4):
                off = ch * UCH + ph * UCOPY + 128 - 4 * (ph + 1)
                if ph == 3:
                    a(f"ds_write_b128 v{self.pUC}, {v(d,4)} offset:{off}")
                elif ph == 1:
                    a(f"ds_write_b64 v{self.pUC}, {v(d,2)} offset:{off}\nds_write_b64 v{self.pUC}, {v(d+2,2)} offset:{off+8}")
                else:
                    a(f"v_add_u32 v9, {off}, v{self.pUC}")
                    a(f"ds_write2_b32 v9, v{d}, v{d+1} offset0:0 offset1:1\nds_write2_b32 v9, v{d+2}, v{d+3} offset0:2 offset1:3")
        a("s_waitcnt lgkmcnt(0)")
        self.arrive(C_KU, vZ, vONE)
        T0, T1 = 64, 80
        vA, vB = 26, 27
        if self.opt("wospf", 0):
            a(f"""s_and_b32 {s(sT0)}, {s(sP)}, 31
            s_lshl_b32 {s(sT0)}, {s(sT0)}, 2
            s_add_u32 {s(sT0)}, {s(sT0)}, {s(sW4)}
            s_lshl_b32 {s(sT0)}, {s(sT0)}, 12""")
            self.s_prefetch(pWO, sT0, 32 * self.opt("wospf"), 128 // self.opt("wospf"))
        if self.opt("wopf", 0):
            self.srd(rB, pWO, 524288)
            self.l2_prefetch(rB, self.opt("wopf"), 10, 11, sT4)
        self.waitc(C_KU, 4, vZ, vT)
        self.stamp(5)
        if self.opt("abl_s") == 5: self.arrive(C_YT, vZ, vONE); self.arrive(C_WO, vZ, vONE); a("s_branch L_end")
        if self.opt("cprio", 3) != 3: a(f"s_setprio {self.opt('cprio')}")
        a(f"s_mov_b32 {s(sT4)}, {self.opt('convit', 8)}")
        def step(u, first=False):
            b = 32 + 16 * (u & 1)
            ao = 144 * 15 + 16 * (7 - 2 * u)
            a(f"""ds_read_b128 {v(b,4)}, v{vA} offset:{ao}
            ds_read_b128 {v(b+8,4)}, v{vB} offset:{32*u}
            s_waitcnt lgkmcnt(0)
            v_mfma_f32_32x32x16_bf16 {v(T0,16)}, {v(b,4)}, {v(b+8,4)}, {'0' if first else v(T0,16)}
            ds_read_b128 {v(b+12,4)}, v{vB} offset:{32*u+2048}
            s_waitcnt lgkmcnt(0)
            v_mfma_f32_32x32x16_bf16 {v(T1,16)}, {v(b,4)}, {v(b+12,4)}, {'0' if first else v(T1,16)}
            ds_read_b128 {v(b+4,4)}, v{vA} offset:{ao+2304}
            s_waitcnt lgkmcnt(0)
            v_mfma_f32_32x32x16_bf16 {v(T1,16)}, {v(b+4,4)}, {v(b+8,4)}, {v(T1,16)}""")
            if self.opt("cslp"): a(f"s_sleep {self.opt('cslp')}")
        def dma1():
            a(f"""buffer_load_dwordx4 v{self.pWD}, {s(rB,4)}, s42 offen lds
            s_add_u32 m0, m0, 1024
            s_add_u32 s42, s42, 8192""")
        for part in range(2 if WIN else 1):
            if WIN: a(f"s_mov_b32 m0, s43\ns_mov_b32 {s(sT4)}, 4")
            if part == 0:
                step(0, True)
                a("s_branch L_conv1")
            if self.opt("calign", 1): a(".p2align 6")
            a.label(f"L_conv_{part}")
            step(0)
            if part == 0: a.label("L_conv1")
            if WIN: dma1()
            step(1); step(2)
            if WIN: dma1()
            step(3)
            a(f"""v_subrev_u32 v{vA}, 144, v{vA}
            v_add_u32 v{vB}, 128, v{vB}
            s_sub_u32 {s(sT4)}, {s(sT4)}, 1
            s_cmp_lg_u32 {s(sT4)}, 0
            s_cbranch_scc1 L_conv_{part}""")
            if WIN: wo_frags(part)
        self.stamp(6)
        if self.opt("cprio", 3) != 3: a(f"s_setprio {self.opt('sprio', 3)}")
        if self.opt("abl_s") == 6: self.arrive(C_YT, vZ, vONE); self.arrive(C_WO, vZ, vONE); a("s_branch L_end")
        def xchg_write(base, accs, ymode=False):
            a(f"""s_lshl_b32 {s(sT2)}, {s(sW4)}, 11
            s_add_u32 {s(sT2)}, {s(sT2)}, {base}
            v_lshl_add_u32 v10, v0, 4, {s(sT2)}
            s_lshl_b32 {s(sT2)}, {s(sW4)}, 13
            s_add_u32 {s(sT2)}, {s(sT2)}, {base}
            v_lshl_add_u32 v11, v0, 4, {s(sT2)}""")
            for q in range(4):
                r0, r1 = (accs+8*q, accs+8*q+4) if not ymode else (accs+16*(q>>1)+4*(q&1), accs+16*(q>>1)+8+4*(q&1))
                a(f"ds_write_b128 v10, {v(r0,4)} offset:{8192*q}")
                a(f"ds_write_b128 v10, {v(r1,4)} offset:{8192*q+1024}")
        def xchg_read(dst):
            for w in range(4):
                a(f"ds_read_b128 {v(dst+8*w,4)}, v11 offset:{2048*w}")
                a(f"ds_read_b128 {v(dst+8*w+4,4)}, v11 offset:{2048*w+1024}")
        a("s_waitcnt lgkmcnt(0)")
        xchg_write(YX, T0, True)
        a("s_waitcnt lgkmcnt(0)")
        self.arrive(C_Y, vZ, vONE)
        self.srd(rC, pOUT, 4194304)
        a(f"""s_lshl_b32 {s(sT1)}, {s(sP)}, 13
        s_lshl_b32 {s(sT2)}, {s(sW4)}, 11
        s_add_u32 {s(sT1)}, {s(sT1)}, {s(sT2)}
        s_add_u32 {s(sT1)}, {s(sT1)}, {WS_YT}""")
        self.waitc(C_Y, 4, vZ, vT)
        xchg_read(32)
        a("s_waitcnt lgkmcnt(0)")
        for k in range(0, 16, 2): a(f"v_pk_add_f32 {v(32+k,2)}, {v(32+k,2)}, {v(48+k,2)}")
        for e in range(4):
            a(f"v_cvt_pk_bf16_f32 v{48+2*e}, v{36+e}, v{44+e}")
            a(f"v_cvt_pk_bf16_f32 v{49+2*e}, v{32+e}, v{40+e}")
        for e in range(4):
            a(f"buffer_store_dwordx2 {v(48+2*e,2)}, v{self.pYS}, {s(rWS,4)}, {s(sT1)} offen offset:{256*e} sc1")
        a(f"""s_lshl_b32 {s(sT1)}, {s(sG)}, 6
        s_lshl_b32 {s(sT2)}, {s(sR)}, 2
        s_add_u32 {s(sT1)}, {s(sT1)}, {s(sT2)}
        s_add_u32 {s(sT1)}, {s(sT1)}, {s(sW4)}
        s_lshl_b32 {s(sT1)}, {s(sT1)}, 10
        s_add_u32 {s(sT1)}, {s(sT1)}, {WS_O}
        s_add_u32 {s(sT2)}, {s(sT1)}, 32768
        v_mov_b64 v[20:21], -1
        v_mov_b64 v[22:23], -1
        v_lshlrev_b32 v14, 4, v0
        buffer_store_dwordx4 v[20:23], v14, {s(rWS,4)}, {s(sT1)} offen sc1
        buffer_store_dwordx4 v[20:23], v14, {s(rWS,4)}, {s(sT2)} offen sc1""")
        self.s_publish(C_YT, WS_FLAG4)
        self.stamp(7)
        if self.opt("abl_s") == 7: self.arrive(C_YT, vZ, vONE); self.arrive(C_WO, vZ, vONE); a("s_branch L_end")
        self.stamp(8)
        if self.opt("abl_s") == 8: a("s_branch L_end")
        self.y_poll()
        if self.opt("yby", 2) == 2: self.y_guard(self.y_assemble, self.opt('pary', 0))
        else: self.arrive(C_Y4, vZ, vONE)
        if self.opt("abl_s") == 9: a("s_branch L_end")
        a(f"""s_lshl_b32 {s(sT3)}, {s(sG)}, 16
        s_lshl_b32 {s(sT2)}, {s(sW4)}, 13
        s_add_u32 {s(sT3)}, {s(sT3)}, {s(sT2)}
        s_add_u32 {s(sT3)}, {s(sT3)}, {WS_O}
        s_lshl_b32 {s(sT1)}, {s(sG)}, 17
        s_lshl_b32 {s(sT2)}, {s(sR)}, 7
        s_add_u32 {s(sT1)}, {s(sT1)}, {s(sT2)}
        s_lshl_b32 {s(sT2)}, {s(sW4)}, 14
        s_add_u32 {s(sT1)}, {s(sT1)}, {s(sT2)}
        v_mov_b32 v12, v{self.pOS}
        v_mov_b32 v10, v{self.pOW}
        v_mov_b32 v11, v{self.pOR}""")
        OF = 32; AC = 64
        def oxw():
            for q in range(4):
                a(f"ds_write_b128 v10, {v(AC+8*q,4)} offset:{9344*q}")
                a(f"ds_write_b128 v10, {v(AC+8*q+4,4)} offset:{9344*q+1152}")
        def oxr():
            for w in range(4):
                a(f"ds_read_b128 {v(32+8*w,4)}, v11 offset:{2304*w}")
                a(f"ds_read_b128 {v(36+8*w,4)}, v11 offset:{2304*w+1152}")
        def omm(h):
            for ct in range(2):
                w = WOF + 8 * h + 4 * ct
                a(f"v_mfma_f32_32x32x16_bf16 {v(AC+16*ct,16)}, {v(w,4)}, {v(OF+4*h,4)}, {'0' if h==0 else v(AC+16*ct,16)}")
        if self.opt("rpipe", 3):
            self.rounds_piped(OF, AC, omm, oxw)
            return
        a(f"""s_mov_b32 {s(sT5)}, 0
        v_mov_b32 v16, v1""")
        a.label("L_round")
        a(f"s_add_u32 {s(sT4)}, {s(sT3)}, 4096")
        if self.opt("rst"): self.stamp(3)
        self.waitc(C_OE, 4, 16, vT, slp=1)
        if self.opt("rst"): self.stamp(4)
        LP = self.opt("lightp", 1)
        if LP:
            if LP == 1: a(f"s_cmp_eq_u32 {s(sT5)}, 0\ns_cbranch_scc0 L_opoll")
            a(f"""v_lshlrev_b32 v18, 10, v0
            s_mov_b64 exec, 0xff""")
            a.label("L_lpoll")
            a(f"""buffer_load_dword v19, v18, {s(rWS,4)}, {s(sT3)} offen offset:1020 sc1
            s_waitcnt vmcnt(0)
            v_cmp_eq_u32 vcc, -1, v19
            s_and_b64 exec, exec, vcc
            s_cbranch_execz L_lok
            s_sleep {self.opt('lslp', 0)}
            s_sub_u32 {s(sBUD)}, {s(sBUD)}, 1
            s_cbranch_scc0 L_lpoll
            s_mov_b32 {s(sBUD)}, 0""")
            a.label("L_lok")
            a("s_mov_b64 exec, -1")
        a.label("L_opoll")
        if self.opt("rst"): self.stamp(5)
        for h in range(8): a(f"buffer_load_dwordx4 {v(OF+4*h,4)}, v14, {s(rWS,4)}, {s(sT3 if h<4 else sT4)} offen offset:{1024*(h&3)} sc1")
        for h in range(8):
            a(f"s_waitcnt vmcnt({7-h})")
            b = OF + 4 * h
            a(f"v_max_u32 v15, v{b}, v{b+1}" if h == 0 else f"v_max3_u32 v15, v15, v{b}, v{b+1}")
            if self.opt("ospec", 1): omm(h)
            a(f"v_max3_u32 v15, v15, v{b+2}, v{b+3}")
        a(f"""v_cmp_ne_u32 vcc, -1, v15
        s_cmp_eq_u64 vcc, exec
        s_cbranch_scc1 L_ook
        s_sub_u32 {s(sBUD)}, {s(sBUD)}, 1 ; nocount
        s_cbranch_scc0 L_opoll ; nocount
        s_mov_b32 {s(sBUD)}, 0 ; nocount""")
        a.label("L_ook")
        if self.dbg:
            a(f"s_cmp_eq_u32 {s(sT5)}, 0\ns_cbranch_scc0 L_st10")
            self.stamp(9)
            a.label("L_st10")
            self.stamp(10)
        if not self.opt("ospec", 1):
            for h in range(8): omm(h)
        oxw()
        a("s_waitcnt lgkmcnt(0)")
        self.sync4(C_O1, 16, vONE, vT, slp=0)
        if self.opt("rst"): self.stamp(6)
        oxr()
        a("s_waitcnt lgkmcnt(4)")
        for k in range(0, 8, 2): a(f"v_pk_add_f32 {v(32+k,2)}, {v(32+k,2)}, {v(40+k,2)}")
        a("s_waitcnt lgkmcnt(2)")
        for k in range(0, 8, 2): a(f"v_pk_add_f32 {v(32+k,2)}, {v(32+k,2)}, {v(48+k,2)}")
        a("s_waitcnt lgkmcnt(0)")
        for k in range(0, 8, 2): a(f"v_pk_add_f32 {v(32+k,2)}, {v(32+k,2)}, {v(56+k,2)}")
        for k in range(4): a(f"v_cvt_pk_bf16_f32 v{20+k}, v{32+2*k}, v{33+2*k}")
        a(f"""buffer_store_dwordx4 v[20:23], v12, {s(rC,4)}, {s(sT1)} offen {self.opt_sc('osc', 0)}
        s_cmp_eq_u32 {s(sT5)}, 0
        s_cbranch_scc0 L_end
        s_mov_b32 {s(sT5)}, 1
        s_add_u32 {s(sT3)}, {s(sT3)}, 32768
        s_add_u32 {s(sT1)}, {s(sT1)}, 65536
        v_add_u32 v16, 4, v16
        v_add_u32 v10, {OX2-OX1}, v10
        v_add_u32 v11, {OX2-OX1}, v11
        s_branch L_round""")

    def rounds_piped(self, OF, AC, omm, oxw):
        a = self.a; vL, vZ, vONE, vT = self.vL, self.vZ, self.vONE, self.vT
        def loads():
            for h in range(8): a(f"buffer_load_dwordx4 {v(OF+4*h,4)}, v14, {s(rWS,4)}, {s(sT3 if h<4 else sT4)} offen offset:{1024*(h&3)} sc1")
        def check_mm(Lok):
            for h in range(8):
                a(f"s_waitcnt vmcnt({7-h})")
                b = OF + 4 * h
                a(f"v_max_u32 v15, v{b}, v{b+1}" if h == 0 else f"v_max3_u32 v15, v15, v{b}, v{b+1}")
                omm(h)
                a(f"v_max3_u32 v15, v15, v{b+2}, v{b+3}")
            a(f"""v_cmp_ne_u32 vcc, -1, v15
            s_cmp_eq_u64 vcc, exec
            s_cbranch_scc1 {Lok}""")
        def reduce(dst):
            for w in range(4):
                a(f"ds_read_b128 {v(AC+8*w,4)}, v11 offset:{2304*w}")
                a(f"ds_read_b128 {v(AC+4+8*w,4)}, v11 offset:{2304*w+1152}")
            for w in range(1, 4):
                a(f"s_waitcnt lgkmcnt({6-2*w})")
                for k in range(0, 8, 2): a(f"v_pk_add_f32 {v(AC+k,2)}, {v(AC+k,2)}, {v(AC+8*w+k,2)}")
            for k in range(4): a(f"v_cvt_pk_bf16_f32 v{dst+k}, v{AC+2*k}, v{AC+2*k+1}")
        a(f"s_add_u32 {s(sT4)}, {s(sT3)}, 4096")
        self.waitc(C_OE, self.opt("oeth", 4), vZ, vT, slp=1)
        a(f"""v_lshlrev_b32 v18, 10, v0
        s_mov_b64 exec, 0xff""")
        a.label("L_lpoll")
        a(f"""buffer_load_dword v19, v18, {s(rWS,4)}, {s(sT3)} offen offset:1020 sc1
        s_waitcnt vmcnt(0)
        v_cmp_eq_u32 vcc, -1, v19
        s_and_b64 exec, exec, vcc
        s_cbranch_execz L_lok
        s_sub_u32 {s(sBUD)}, {s(sBUD)}, 1
        s_cbranch_scc0 L_lpoll
        s_mov_b32 {s(sBUD)}, 0""")
        a.label("L_lok")
        a("s_mov_b64 exec, -1")
        a.label("L_o0")
        loads(); check_mm("L_o0ok")
        a(f"""s_sub_u32 {s(sBUD)}, {s(sBUD)}, 1 ; nocount
        s_cbranch_scc0 L_o0 ; nocount
        s_mov_b32 {s(sBUD)}, 0 ; nocount""")
        a.label("L_o0ok")
        self.stamp(9)
        if self.opt("tsplit", 1):
            a(f"""s_add_u32 {s(sT3)}, {s(sT3)}, 32768
            s_add_u32 {s(sT4)}, {s(sT4)}, 32768
            s_and_b32 {s(sT2)}, {s(sW4)}, 1
            s_mul_i32 {s(sT2)}, {s(sT2)}, {OX2-OX1}
            v_add_u32 v9, {s(sT2)}, v10
            s_sub_u32 {s(sT2)}, {OX2-OX1}, {s(sT2)}
            v_add_u32 v8, {s(sT2)}, v10
            v_mov_b32 v10, v9
            s_nop 3""")
            oxw()
            a("v_mov_b32 v10, v8")
            if self.opt("rst"): self.stamp(3)
            a.label("L_o1")
            self.waitc(C_OL, 4, vZ, vT, slp=0)
            if self.opt("lp1", 0):
                a("s_mov_b64 exec, 0xff")
                a.label("L_lpoll1")
                a(f"""buffer_load_dword v19, v18, {s(rWS,4)}, {s(sT3)} offen offset:1020 sc1
                s_waitcnt vmcnt(0)
                v_cmp_eq_u32 vcc, -1, v19
                s_and_b64 exec, exec, vcc
                s_cbranch_execz L_lok1
                s_sub_u32 {s(sBUD)}, {s(sBUD)}, 1
                s_cbranch_scc0 L_lpoll1
                s_mov_b32 {s(sBUD)}, 0""")
                a.label("L_lok1")
                a("s_mov_b64 exec, -1")
            if self.opt("rst"): self.stamp(5)
            loads(); check_mm("L_o1ok")
            a(f"""s_sub_u32 {s(sBUD)}, {s(sBUD)}, 1 ; nocount
            s_cbranch_scc0 L_o1 ; nocount
            s_mov_b32 {s(sBUD)}, 0 ; nocount""")
            a.label("L_o1ok")
            self.stamp(10)
            a(f"v_add_u32 v9, {OX2-OX1}, v11\ns_add_u32 {s(sT2)}, {s(sT1)}, 65536\ns_nop 3")
            oxw()
            a("s_waitcnt lgkmcnt(0)\ns_barrier")
            if self.opt("rst"): self.stamp(6)
            for t, (ad, B) in enumerate(((11, AC), (9, OF))):
                for w in range(4):
                    a(f"ds_read_b128 {v(B+8*w,4)}, v{ad} offset:{2304*w}")
                    a(f"ds_read_b128 {v(B+4+8*w,4)}, v{ad} offset:{2304*w+1152}")
                if t == 0: a("s_waitcnt lgkmcnt(4)"); [a(f"v_pk_add_f32 {v(B+k,2)}, {v(B+k,2)}, {v(B+8+k,2)}") for k in range(0, 8, 2)]
            for t, B in enumerate((AC, OF)):
                for w in range(1, 4):
                    if t == 0 and w == 1: continue
                    a(f"s_waitcnt lgkmcnt({(8 if t == 0 else 0) + 6 - 2*w})")
                    for k in range(0, 8, 2): a(f"v_pk_add_f32 {v(B+k,2)}, {v(B+k,2)}, {v(B+8*w+k,2)}")
                for k in range(4): a(f"v_cvt_pk_bf16_f32 v{20+4*t+k}, v{B+2*k}, v{B+2*k+1}")
                a(f"buffer_store_dwordx4 {v(20+4*t,4)}, v12, {s(rC,4)}, {s(sT1 if t == 0 else sT2)} offen {self.opt_sc('osc', 0)}")
            a("s_branch L_end")
            return
        a(f"s_add_u32 {s(sT3)}, {s(sT3)}, 32768\ns_add_u32 {s(sT4)}, {s(sT4)}, 32768")
        if self.opt("rpipe", 3) == 2: loads()
        oxw()
        a("s_waitcnt lgkmcnt(0)")
        self.sync4(C_O1, vZ, vONE, vT, slp=0)
        if self.opt("rpipe", 3) == 1: loads()
        if self.opt("rpipe", 3) == 3:
            a(f"""ds_read_b32 v3, v1 offset:{C_OL}
            s_waitcnt lgkmcnt(0)
            v_readfirstlane_b32 {s(sT5)}, v3
            s_cmp_ge_u32 {s(sT5)}, {self.opt('rthr', 4)}
            s_cbranch_scc0 L_nopf""")
            loads()
            a.label("L_nopf")
        reduce(20)
        if self.opt("rpipe", 3) == 3:
            a(f"s_cmp_ge_u32 {s(sT5)}, {self.opt('rthr', 4)}\ns_cbranch_scc1 L_pfd")
            self.waitc(C_OL, 4, vZ, vT, slp=0)
            loads()
            a.label("L_pfd")
        a(f"v_add_u32 v10, {OX2-OX1}, v10\nv_add_u32 v11, {OX2-OX1}, v11")
        if self.opt("rst"): self.stamp(3)
        a.label("L_o1")
        if self.opt("rst"): self.stamp(5)
        check_mm("L_o1ok")
        n0 = len(a.lines)
        self.waitc(C_OL, 4, vZ, vT, slp=0)
        loads()
        a(f"""s_sub_u32 {s(sBUD)}, {s(sBUD)}, 1
        s_cbranch_scc0 L_o1
        s_mov_b32 {s(sBUD)}, 0
        s_waitcnt vmcnt(0)""")
        for i in range(n0, len(a.lines)):
            l = a.lines[i]
            if not l.endswith(":") and "nocount" not in l and not l.startswith(("v_readfirst", "s_cmp")): a.lines[i] = l + " ; nocount"
        a.label("L_o1ok")
        self.stamp(10)
        a(f"""buffer_store_dwordx4 v[20:23], v12, {s(rC,4)}, {s(sT1)} offen {self.opt_sc('osc', 0)}
        s_add_u32 {s(sT1)}, {s(sT1)}, 65536
        s_nop 7""")
        oxw()
        a("s_waitcnt lgkmcnt(0)")
        if self.opt("fbar", 1): a("s_barrier")
        else: self.sync4(C_O2, vZ, vONE, vT, slp=0)
        if self.opt("rst"): self.stamp(6)
        reduce(24)
        a(f"buffer_store_dwordx4 v[24:27], v12, {s(rC,4)}, {s(sT1)} offen {self.opt_sc('osc', 0)}\ns_branch L_end")

    UG = 64
    pE10, pE9, pE8, pE8p, pCA, pCB, pUC = 146, 147, 148, 149, 156, 157, 166
    pWT, pWD, pYS, pOW, pOR, pOS = 160, 161, 162, 163, 164, 165
    def s_precompute(self):
        a = self.a; sCH, sMH = sLOOP, sSOF
        a(f"""s_mul_i32 s46, {s(sCH)}, {KCH}
        s_add_u32 s46, s46, {R0+256}
        v_and_b32 v16, 7, v0
        v_lshrrev_b32 v17, 5, v0
        v_lshrrev_b32 v18, 3, v0
        v_and_b32 v19, 3, v18
        v_mul_u32_u24 v19, 144, v19
        v_lshl_add_u32 v19, v16, 4, v19
        v_add_u32 v19, s46, v19
        v_lshlrev_b32 v20, 3, v17
        v_sub_u32 v{self.pE10}, v19, v20
        v_mul_u32_u24 v20, 576, v17
        v_add_u32 v{self.pE9}, v19, v20
        v_mul_u32_u24 v19, 144, v18
        v_lshl_add_u32 v19, v16, 4, v19
        v_add_u32 v{self.pE8}, s46, v19
        v_cmp_eq_u32 {s(sT2,2)}, 0, v16
        v_mov_b32 v19, 16
        v_cndmask_b32 v19, v19, 32, {s(sT2,2)}
        v_sub_u32 v{self.pE8p}, v{self.pE8}, v19
        s_mul_i32 {s(sT2)}, {s(sMH)}, 1152
        s_sub_u32 {s(sT3)}, s46, {s(sT2)}
        v_and_b32 v19, 15, v0
        v_mul_u32_u24 v19, 144, v19
        v_bfe_u32 v21, v0, 4, 1
        v_mul_u32_u24 v22, {KCOPY}, v21
        v_add_u32 v19, v19, v22
        v_lshlrev_b32 v22, 4, v17
        v_sub_u32 v19, v19, v22
        v_add_u32 v{self.pCA}, {s(sT3)}, v19
        s_mul_i32 {s(sT2)}, {s(sCH)}, {UCH}
        s_lshl_b32 {s(sT3)}, {s(sMH)}, 10
        s_add_u32 {s(sT2)}, {s(sT2)}, {s(sT3)}
        s_add_u32 {s(sT2)}, {s(sT2)}, {W}
        v_and_b32 v19, 3, v0
        v_mul_u32_u24 v19, {UCOPY}, v19
        v_bfe_u32 v23, v0, 2, 3
        v_lshl_add_u32 v19, v23, 4, v19
        v_add_u32 v19, v19, v22
        v_add_u32 v{self.pCB}, {s(sT2)}, v19
        s_lshl_b32 {s(sT2)}, {s(sW4)}, 10
        s_add_u32 {s(sT2)}, {s(sT2)}, {W}
        v_lshl_add_u32 v{self.pUC}, v0, 4, {s(sT2)}
        v_and_b32 v19, 31, v0
        v_lshlrev_b32 v23, 3, v19
        v_lshl_add_u32 v{self.pYS}, v17, 10, v23
        v_and_b32 v23, 2, v18
        v_lshlrev_b32 v23, 1, v23
        v_xor_b32 v23, v16, v23
        v_lshlrev_b32 v24, 10, v18
        v_lshl_add_u32 v{self.pWD}, v23, 4, v24
        v_bfe_u32 v23, v0, 2, 2
        v_lshl_add_u32 v24, v17, 3, v23
        v_lshlrev_b32 v24, 7, v24
        v_and_b32 v23, 2, v23
        v_lshl_add_u32 v24, v23, 5, v24
        v_lshl_add_u32 v24, v21, 5, v24
        v_and_b32 v25, 1, v0
        v_lshl_add_u32 v24, v25, 4, v24
        v_bfe_u32 v23, v0, 1, 1
        v_lshl_add_u32 v24, v23, 3, v24
        s_lshl_b32 {s(sT2)}, {s(sW4)}, 13
        s_add_u32 {s(sT2)}, {s(sT2)}, {XE}
        v_add_u32 v{self.pWT}, {s(sT2)}, v24
        v_lshl_add_u32 v19, v19, 4, v20
        s_mul_i32 {s(sT2)}, {s(sW4)}, 2304
        s_add_u32 {s(sT2)}, {s(sT2)}, {W}
        v_add_u32 v{self.pOW}, {s(sT2)}, v19
        v_lshlrev_b32 v19, 4, v18
        v_mul_u32_u24 v23, 576, v25
        v_add_u32 v19, v19, v23
        v_bfe_u32 v23, v0, 1, 2
        v_mul_u32_u24 v23, 9344, v23
        v_add_u32 v19, v19, v23
        s_lshl_b32 {s(sT2)}, {s(sW4)}, 7
        s_add_u32 {s(sT2)}, {s(sT2)}, {W}
        v_add_u32 v{self.pOR}, {s(sT2)}, v19
        v_lshlrev_b32 v19, 11, v18
        v_lshl_add_u32 v{self.pOS}, v16, 4, v19""")
    def blk_ids(self, par):
        a = self.a
        a(f"""s_lshr_b32 {s(sT4)}, {s(sP)}, 5
        s_and_b32 {s(sT0)}, {s(sP)}, 31
        s_lshl_b32 {s(sT0)}, {s(sT0)}, 1
        s_and_b32 {s(sT2)}, {s(sW4)}, 1
        s_add_u32 {s(sT0)}, {s(sT0)}, {s(sT2)}""")
        if par:
            a(f"""s_lshr_b32 {s(sT2)}, {s(sW4)}, 1
            s_xor_b32 {s(sT4)}, {s(sT4)}, {s(sT2)}""")
    def swap44(self, b):
        for i in range(4):
            for j in range(i + 1, 4): self.a(f"v_swap_b32 v{b+4*i+j}, v{b+4*j+i}")
    def u_transpose(self):
        a = self.a; B = 96
        self.blk_ids(self.opt("paru", 1))
        a(f"""s_mov_b32 {s(rB)}, {s(pU)}
        s_mov_b32 {s(rB+1)}, {s(pU+1)}
        s_mov_b32 {s(rB+2)}, 2097152
        s_lshl_b32 {s(sT1)}, {s(sT0)}, 15
        s_lshl_b32 {s(sT2)}, {s(sT4)}, 7
        s_add_u32 {s(sT1)}, {s(sT1)}, {s(sT2)}
        v_and_b32 v29, 7, v0
        v_lshrrev_b32 v30, 3, v0
        v_lshlrev_b32 v28, 12, v30
        v_lshl_add_u32 v28, v29, 4, v28""")
        for i in range(4): a(f"buffer_load_dwordx4 {v(B+4*i,4)}, v28, {s(rB,4)}, {s(sT1)} offen offset:{1024*i}")
        a(f"""s_lshl_b32 s47, {s(sT4)}, 18
        s_lshl_b32 {s(sT2)}, {s(sT0)}, 7
        s_add_u32 s47, s47, {s(sT2)}
        s_add_u32 s47, s47, {WS_UT}
        v_lshlrev_b32 v28, 15, v29
        v_lshl_add_u32 v28, v30, 4, v28""")
    def u_transpose2(self):
        a = self.a; B = 96
        a("s_waitcnt vmcnt(0)")
        self.swap44(B)
        for j in range(4):
            if j: a("s_add_u32 s47, s47, 8192")
            a(f"buffer_store_dwordx4 {v(B+4*j,4)}, v28, {s(rWS,4)}, s47 offen sc1")
    def y_poll(self):
        a = self.a
        par = self.opt("pary", 0)
        a(f"""s_lshr_b32 {s(sT4)}, {s(sP)}, {5 + par}
        s_lshl_b32 {s(sT2)}, {s(sT4)}, {12 + par}
        s_add_u32 {s(sT2)}, {s(sT2)}, {WS_FLAG4}""")
        self.s_poll(sT2, 63 if par else 31, slp=8)
    def y_assemble(self):
        a = self.a
        self.srd(rC, pOUT, 4194304)
        self.blk_ids(self.opt("pary", 0))
        a(f"""s_lshl_b32 {s(sT1)}, {s(sT4)}, 18
        s_lshl_b32 {s(sT2)}, {s(sT0)}, 7
        s_add_u32 {s(sT1)}, {s(sT1)}, {s(sT2)}
        s_add_u32 {s(sT1)}, {s(sT1)}, {WS_YT}
        v_and_b32 v5, 7, v0
        v_lshrrev_b32 v6, 3, v0
        v_lshlrev_b32 v4, 15, v6
        v_lshl_add_u32 v4, v5, 4, v4""")
        for i in range(4):
            if i: a(f"s_add_u32 {s(sT1)}, {s(sT1)}, 8192")
            a(f"buffer_load_dwordx4 {v(32+4*i,4)}, v4, {s(rWS,4)}, {s(sT1)} offen sc1")
        a(f"""s_lshl_b32 {s(sT1)}, {s(sT0)}, 16
        s_lshl_b32 {s(sT2)}, {s(sT4)}, 7
        s_add_u32 {s(sT1)}, {s(sT1)}, {s(sT2)}
        s_add_u32 {s(sT1)}, {s(sT1)}, 1024
        s_add_u32 {s(sT2)}, {s(sT1)}, 4096
        v_lshlrev_b32 v4, 13, v5
        v_lshl_add_u32 v4, v6, 4, v4
        s_waitcnt vmcnt(0)""")
        self.swap44(32)
        for t in range(4):
            a(f"buffer_store_dwordx4 {v(32+4*t,4)}, v4, {s(rC,4)}, {s(sT1 if t < 2 else sT2)} offen offset:{2048*(t&1)} {self.opt_sc('ysc', 1)}")
        a("s_nop 1")
    def y_guard(self, f, par):
        L = self.a.newlabel("Ly")
        if par: self.a(f"s_bitcmp0_b32 {s(sP)}, 5\ns_cbranch_scc0 {L}")
        else: self.a(f"s_cmp_ge_u32 {s(sW4)}, 2\ns_cbranch_scc0 {L}")
        f()
        self.a.label(L)
    def opt_sc(self, k, d=0):
        return {0: "", 1: "sc1", 2: "nt", 3: "sc0 sc1"}[self.opt(k, d)]

    def finish(self):
        a = self.a
        a.label("L_end")
        if self.opt("diagm"):
            i = self.opt("diagi", 11)
            a("s_waitcnt vmcnt(0)")
            self.stamp(11)
            a(f"""s_waitcnt lgkmcnt(0)
            s_cmp_eq_u32 {s(sWG)}, {self.opt("diagwg", 100)}
            s_cbranch_scc0 L_exit
            s_cmp_eq_u32 {s(sWAVE)}, {4*[((self.opt('order', 0x201) >> (4*c)) & 3) for c in range(3)].index(self.opt('diagc', 2))}
            s_cbranch_scc0 L_exit
            s_sub_u32 {s(sT0)}, {s(sSTAMP+2*i)}, {s(sSTAMP)}
            s_mul_i32 {s(sT0)}, {s(sT0)}, {self.opt("diagm")}
            s_lshr_b32 {s(sT0)}, {s(sT0)}, {self.opt("diags", 0)}
            s_min_u32 {s(sT0)}, {s(sT0)}, 100000""")
            if self.opt("diagfix"): a(f"s_mov_b32 {s(sT0)}, {self.opt('diagfix')}")
            a.label("L_diag")
            a(f"""s_memrealtime {s(sT2,2)}
            s_waitcnt lgkmcnt(0)
            s_sub_u32 {s(sT1)}, {s(sT2)}, {s(sSTAMP)}
            s_cmp_lt_u32 {s(sT1)}, {s(sT0)}
            s_cbranch_scc1 L_diag""")
        elif self.dbg:
            a("s_waitcnt vmcnt(0)")
            self.stamp(11)
            a(f"""s_waitcnt lgkmcnt(0)
            s_mul_i32 {s(sT0)}, {s(sWG)}, 12
            s_add_u32 {s(sT0)}, {s(sT0)}, {s(sWAVE)}
            s_lshl_b32 {s(sT0)}, {s(sT0)}, 6
            s_add_u32 {s(sT0)}, {s(sT0)}, {WS_STAMP}
            v_mov_b32 v4, 0""")
            for i in range(12): a(f"v_mov_b32 v{8+i}, {s(sSTAMP+2*i)}")
            a(f"v_mov_b32 v20, {s(sBUD)}")
            a("s_mov_b64 exec, 1")
            for i in range(3): a(f"buffer_store_dwordx4 {v(8+4*i,4)}, v4, {s(rWS,4)}, {s(sT0)} offen offset:{16*i}")
            a(f"buffer_store_dword v20, v4, {s(rWS,4)}, {s(sT0)} offen offset:48")
        a.label("L_exit")
        a("s_endpgm")

if __name__ == "__main__":
    ap = argparse.ArgumentParser()
    ap.add_argument("-o", default=f"cdna_kernels/{NAME}.s")
    ap.add_argument("--dbg", action="store_true")
    ap.add_argument("opts", nargs="*")
    args = ap.parse_args()
    opts = {}
    for kv in args.opts:
        k, _, val = kv.partition("=")
        opts[k] = int(val, 0) if val else 1
    open(args.o, "w").write(Gen(args.dbg, opts).build())
```

```python
import sys, struct, argparse
from asmlib import Asm, v, s, hazard_pass, wait_check

NAME = "concat_heads__grouped_kv_mqa__ssm_conv_s4__prompt"
def fbits(x): return "0x%08x" % struct.unpack("<I", struct.pack("<f", x))[0]
import math
LOG2E = math.log2(math.e)

R0   = 0
XE   = 32768
W    = 65536
GEN  = 131072
QB   = 147456
KVR  = 155648
CNT  = 159744
LDS_BYTES = 160000
KCOPY = 6912; KCH = 2 * KCOPY
UCOPY = 4416; UCH = 4 * UCOPY
YX   = W + 37888
OX1  = W
OX2  = YX
PSLOT = 2304
C_KV, C_WQA, C_WQB, C_XL, C_QE, C_QL, C_FL, C_KT0, C_KT1, C_KU, C_Y, C_PE, C_PED, C_PL, C_O1, C_O2, C_OE, C_OL, C_UT, C_YT, C_WQC, C_WQD, C_Y4, C_WO, C_X = [4 * i for i in range(25)]

WS_FLAG = 4096
WS_FLAG2 = 4096 + 32768
WS_FLAG3 = 4096 + 2 * 32768
WS_FLAG4 = 4096 + 3 * 32768
WS_KV   = 147456
KVT     = 2816
V1OFF = 1792
WS_O    = 1 << 19
WS_UT = 6 << 20
WS_YT = 8 << 20
WS_STAMP = 4 << 20
WS_DBG  = 5 << 20
WS_SIZE = 16 << 20

sWG, sWAVE, sG, sR, sP, sW4 = 2, 3, 4, 5, 6, 7
sT0, sT1, sT2, sT3, sT4, sT5 = 8, 9, 10, 11, 12, 13
sCLS = 14; sROT = 15
pX, pWQ, pWK, pWV, pWO, pU, pARE, pAIM, pBRE, pBIM, pCRE, pCIM, pLDT, pDSK, pOUT, pDBG, pWS = [16 + 2 * i for i in range(17)]
sNONCE, sBUD = 50, 51
rA, rB, rC, rWS = 52, 56, 60, 64
sLOOP = 68; sSOF = 69
sSTAMP = 70
OOB = 0x7ff00000

def _qa_waits():
    order = [("w", 0), ("w", 1), ("w", 2)]; out = []
    for sx in range(8):
        i = order.index(("w", sx))
        out.append(2 * (len(order) - 1 - i))
        if sx + 3 < 8: order.append(("w", sx + 3))
        order.append(("x", sx + 8))
    return out
QW = _qa_waits()

class Gen:
    def __init__(self, dbg=False, opts=None):
        self.a = Asm(); self.dbg = dbg; self.o = opts or {}
    def opt(self, k, d=None): return self.o.get(k, d)

    def srd(self, r, p, nbytes):
        a = self.a
        a(f"s_mov_b32 {s(r)}, {s(p)}\ns_mov_b32 {s(r+1)}, {s(p+1)}\ns_mov_b32 {s(r+2)}, {nbytes}\ns_mov_b32 {s(r+3)}, 0x20000")
    def stamp(self, i):
        if self.dbg: self.a(f"{'s_memtime' if self.opt('cyc') else 's_memrealtime'} {s(sSTAMP+2*i,2)}")
    def arrive(self, c, vz, vone):
        self.a(f"s_mov_b64 exec, 1\nds_add_u32 {v(vz)}, {v(vone)} offset:{c}\ns_mov_b64 exec, -1")
    def arrive_rtn(self, c, vz, vone, vt):
        self.a(f"""s_mov_b64 exec, 1
        ds_add_rtn_u32 {v(vt)}, {v(vz)}, {v(vone)} offset:{c}
        s_mov_b64 exec, -1
        s_waitcnt lgkmcnt(0)
        v_readfirstlane_b32 {s(sT0)}, {v(vt)}
        s_cmp_eq_u32 {s(sT0)}, 3""")
    def sync4(self, c, vz, vone, vt, slp=0):
        D = self.a.newlabel("Ls")
        self.arrive_rtn(c, vz, vone, vt)
        self.a(f"s_cbranch_scc1 {D}")
        n0 = len(self.a.lines)
        self.waitc(c, 4, vz, vt, slp)
        for i in range(n0, len(self.a.lines)):
            l = self.a.lines[i]
            if not l.endswith(":") and "nocount" not in l and not l.startswith(("v_readfirst", "s_cmp")): self.a.lines[i] = l + " ; nocount"
        self.a.label(D)
    def waitc(self, c, n, vz, vt, slp=1):
        a = self.a; L = a.newlabel("Lw"); D = a.newlabel("Ld")
        a.label(L)
        a(f"""ds_read_b32 {v(vt)}, {v(vz)} offset:{c}
        s_waitcnt lgkmcnt(0)
        v_readfirstlane_b32 {s(sT0)}, {v(vt)}
        s_cmp_ge_u32 {s(sT0)}, {n}
        s_cbranch_scc1 {D}
        {f's_sleep {slp} ; nocount' if slp or self.opt('keep0') else ''}
        s_sub_u32 {s(sBUD)}, {s(sBUD)}, 1 ; nocount
        s_cbranch_scc0 {L} ; nocount
        s_mov_b32 {s(sBUD)}, 0 ; nocount""")
        a.label(D)
    def s_publish(self, cnt, base):
        a = self.a; L = a.newlabel("Lpub")
        a("s_waitcnt vmcnt(0)")
        self.arrive_rtn(cnt, self.vZ, self.vONE, self.vT)
        a(f"s_cbranch_scc0 {L}")
        a(f"""s_lshl_b32 {s(sT2)}, {s(sP)}, 7
        s_add_u32 {s(sT2)}, {s(sT2)}, {base}
        v_mov_b32 v18, 0
        s_mov_b64 exec, 1
        buffer_store_dword v167, v18, {s(rWS,4)}, {s(sT2)} offen sc1
        s_mov_b64 exec, -1""")
        a.label(L)
    def s_poll(self, sbase, mask, slp=4):
        a = self.a; Lp = a.newlabel("Lpoll"); Lo = a.newlabel("Lok")
        a(f"v_lshlrev_b32 v18, 7, v0\ns_mov_b64 exec, {hex((1 << (mask + 1)) - 1) if mask < 63 else -1}")
        a.label(Lp)
        a(f"""buffer_load_dword v19, v18, {s(rWS,4)}, {s(sbase)} offen sc1
        s_waitcnt vmcnt(0)
        v_cmp_ne_u32 vcc, v167, v19
        s_and_b64 exec, exec, vcc
        s_cbranch_execz {Lo}
        s_sleep {slp} ; nocount
        s_sub_u32 {s(sBUD)}, {s(sBUD)}, 1 ; nocount
        s_cbranch_scc0 {Lp} ; nocount
        s_mov_b32 {s(sBUD)}, 0 ; nocount""")
        a.label(Lo)
        a("s_mov_b64 exec, -1")
    def cmul(self, d, x, m, t):
        self.a(f"v_pk_mul_f32 {v(t,2)}, {v(x,2)}, {v(m,2)} op_sel_hi:[1,0]")
        self.a(f"v_pk_fma_f32 {v(d,2)}, {v(x,2)}, {v(m,2)}, {v(t,2)} op_sel:[1,1,0] op_sel_hi:[0,1,1] neg_lo:[0,1,0]")

    def build(self):
        a = self.a
        self.entry()
        self.role_late_start()
        self.role_early_start()
        self.qproj_and_attention()
        self.role_s()
        self.finish()
        lines, n = hazard_pass(a.lines, verbose=self.opt("vhz"))
        for r_ in wait_check(lines):
            if "s37" not in r_: print("WAIT:", r_, file=sys.stderr)
        lines = [l.replace(" ; nocount", "") for l in lines]
        body = "\n".join(l if l.endswith(":") or l.startswith(".") else "    " + l for l in lines)
        head = f"""; Fused MQA attention + S4 long convolution in one persistent launch (emitted by my generator, gen/gen.py).
; @launch grid=(256,1,1) block=(768,1,1) lds={LDS_BYTES}
.amdgcn_target "amdgcn-amd-amdhsa--gfx950"
.text
.globl {NAME}_kernel
.p2align 8
.type {NAME}_kernel,@function
{NAME}_kernel:
"""
        tail = f"""
.section .rodata,"a"
.p2align 6
.amdhsa_kernel {NAME}_kernel
  .amdhsa_next_free_vgpr 168
  .amdhsa_next_free_sgpr 98
  .amdhsa_accum_offset 168
  .amdhsa_group_segment_fixed_size 0
  .amdhsa_kernarg_size 136
  .amdhsa_user_sgpr_count 2
  .amdhsa_user_sgpr_kernarg_segment_ptr 1
  .amdhsa_system_sgpr_workgroup_id_x 1
  .amdhsa_float_denorm_mode_32 3
.end_amdhsa_kernel
"""
        return head + body + tail

    vL, vZ, vONE, vT = 0, 1, 2, 3

    def entry(self):
        a = self.a
        if self.dbg:
            for i in range(12): a(f"s_mov_b64 {s(sSTAMP+2*i,2)}, 0")
        self.stamp(0)
        a(f"""s_cmp_ge_u32 s2, 256
        s_cbranch_scc1 L_exit
        {f"s_xor_b32 s2, s2, {self.opt('wgxor')}" if self.opt('wgxor') else ''}
        s_load_dwordx16 s[16:31], s[0:1], 0
        s_load_dwordx16 s[32:47], s[0:1], 64
        s_load_dwordx2 s[48:49], s[0:1], 128
        v_lshrrev_b32 v3, 6, v0
        v_and_b32 v0, 63, v0
        v_readfirstlane_b32 {s(sWAVE)}, v3
        v_mov_b32 v1, {CNT}
        v_mov_b32 v2, 1
        s_and_b32 {s(sT0)}, s2, 7
        s_lshr_b32 {s(sT1)}, s2, 3
        s_lshl_b32 {s(sG)}, {s(sT0)}, 2
        s_lshr_b32 {s(sT2)}, {s(sT1)}, 3
        s_add_u32 {s(sG)}, {s(sG)}, {s(sT2)}
        s_and_b32 {s(sR)}, {s(sT1)}, 7
        {f"s_xor_b32 {s(sR)}, {s(sR)}, {self.opt('rxor')}" if self.opt('rxor') else ''}
        s_lshl_b32 {s(sP)}, {s(sT0)}, 5
        s_add_u32 {s(sP)}, {s(sP)}, {s(sT1)}
        s_and_b32 {s(sROT)}, {s(sT1)}, 15
        s_mov_b32 {s(sBUD)}, 200000
        s_and_b32 {s(sW4)}, {s(sWAVE)}, 3
        s_lshr_b32 {s(sCLS)}, {s(sWAVE)}, 2
        s_lshl_b32 {s(sCLS)}, {s(sCLS)}, 2
        s_lshr_b32 {s(sCLS)}, {self.opt('order', 0x201)}, {s(sCLS)}
        s_and_b32 {s(sCLS)}, {s(sCLS)}, 3
        s_mov_b32 {s(rWS+2)}, {WS_SIZE}
        s_mov_b32 {s(rWS+3)}, 0x20000
        s_mov_b32 {s(rA+3)}, 0x20000
        s_mov_b32 {s(rB+3)}, 0x20000
        s_cmp_eq_u32 {s(sCLS)}, 2
        s_cbranch_scc1 L_role_s
        s_mov_b32 {s(rA+2)}, 2097152
        s_cmp_eq_u32 {s(sCLS)}, 0
        s_cbranch_scc1 L_role_early""")
    def ptrs_ready(self, x=True, nonce=False):
        a = self.a
        a(f"""s_waitcnt lgkmcnt(0)
        s_mov_b32 {s(rWS)}, {s(pWS)}
        s_mov_b32 {s(rWS+1)}, {s(pWS+1)}""")
        if x: a(f"""s_mov_b32 {s(rA)}, {s(pX)}
        s_mov_b32 {s(rA+1)}, {s(pX+1)}""")
        if nonce: a(f"s_load_dword {s(sNONCE)}, {s(pWS,2)}, 0")

    def role_late_start(self):
        a = self.a; vL, vZ, vONE, vT = self.vL, self.vZ, self.vONE, self.vT
        a("s_setprio 3")
        a(f"""s_and_b32 {s(sT0)}, {s(sR)}, 3
        s_lshl_b32 {s(sT1)}, {s(sG)}, 2
        s_add_u32 {s(sT1)}, {s(sT1)}, {s(sT0)}
        s_lshl_b32 {s(sT1)}, {s(sT1)}, 14
        s_lshl_b32 {s(sT2)}, {s(sW4)}, 8
        s_add_u32 {s(sT1)}, {s(sT1)}, {s(sT2)}
        v_and_b32 v4, 15, v0
        v_lshrrev_b32 v5, 4, v0
        v_lshlrev_b32 v6, 10, v4
        v_lshl_add_u32 v6, v5, 4, v6
        s_lshl_b32 {s(sT2)}, {s(sW4)}, 12
        v_lshrrev_b32 v7, 4, v0
        v_and_b32 v7, 1, v7
        v_lshlrev_b32 v7, 7, v7
        v_lshlrev_b32 v24, 4, v0
        v_xor_b32 v7, v7, v24
        s_add_u32 m0, {s(sT2)}, {R0}
        s_mov_b32 {s(rB+2)}, 16384""")
        if self.opt("lst0"): self.stamp(9)
        self.ptrs_ready(nonce=True)
        if self.opt("lst0"): self.stamp(10)
        for k in range(4):
            a(f"buffer_load_dwordx4 {v(8+4*k,4)}, v6, {s(rA,4)}, {s(sT1)} offen offset:{64*k}")
        a(f"""s_cmp_ge_u32 {s(sR)}, 4
        s_cselect_b32 {s(rB)}, {s(pWV)}, {s(pWK)}
        s_cselect_b32 {s(rB+1)}, {s(pWV+1)}, {s(pWK+1)}""")
        for k in range(4):
            a(f"buffer_load_dwordx4 v7, {s(rB,4)}, {s(sT2)} offen offset:{1024*k} lds")
        if self.opt("lst0"): self.stamp(3)
        TOUCH = self.opt("touch", 0)
        if TOUCH == 1:
            a(f"""s_lshl_b32 {s(sT3)}, {s(sG)}, 3
            s_add_u32 {s(sT3)}, {s(sT3)}, {s(sR)}
            s_lshl_b32 {s(sT3)}, {s(sT3)}, {self.opt('fsh', 5)}
            v_mov_b32 v29, {WS_FLAG}
            s_mov_b64 exec, 1
            buffer_load_dword v30, v29, {s(rWS,4)}, {s(sT3)} offen sc1
            s_mov_b64 exec, -1""")
        if TOUCH == 2:
            a(f"""s_lshl_b32 {s(sT3)}, {s(sG)}, 3
            s_add_u32 {s(sT3)}, {s(sT3)}, {s(sR)}
            s_lshl_b32 {s(sT3)}, {s(sT3)}, {self.opt('fsh', 5)}
            s_add_u32 {s(sT3)}, {s(sT3)}, {WS_FLAG}
            s_bfe_u32 {s(sT4)}, {s(sR)}, 0x10001
            s_lshl_b32 {s(sT5)}, {s(sG)}, 1
            s_add_u32 {s(sT4)}, {s(sT4)}, {s(sT5)}
            s_mul_i32 {s(sT4)}, {s(sT4)}, {KVT}
            s_add_u32 {s(sT4)}, {s(sT4)}, {WS_KV}
            v_lshlrev_b32 v29, 7, v0
            v_add_u32 v29, {s(sT4)}, v29
            v_writelane_b32 v29, {s(sT3)}, 18
            s_mov_b64 exec, 0x7ffff
            buffer_load_dword v30, v29, {s(rWS,4)}, 0 offen sc1
            s_mov_b64 exec, -1""")
        a(f"""v_bfe_u32 v25, v0, 2, 2
        v_lshl_add_u32 v25, v5, 3, v25
        v_and_b32 v26, 1, v5
        v_lshl_add_u32 v25, v26, 2, v25
        v_lshlrev_b32 v25, 5, v25
        v_and_b32 v26, 3, v0
        v_lshl_add_u32 v25, v26, 3, v25
        v_add_u32 v25, {s(sT2)}, v25
        v_xor_b32 v26, 0x80, v25
        s_mov_b32 s41, 0""")
        if self.opt("lbar", 3) == 1: a("s_barrier")
        self.qproj()
        if self.opt("tsplit", 1):
            a(f"""s_and_b32 {s(sT1)}, {s(sR)}, 1
            s_lshl_b32 {s(sT1)}, {s(sT1)}, 14
            s_lshl_b32 {s(sT3)}, {s(sW4)}, 8
            s_add_u32 {s(sT1)}, {s(sT1)}, {s(sT3)}""")
            for k in range(4): a(f"v_add_u32 v{64+k}, {s(sT1)}, v{152+k}")
        if self.opt("lbar", 3) == 2: a("s_barrier")
        if self.opt("lhoist", 1): self.att_addr(158, 159, 72, False)
        if self.opt("lbar", 3) == 0: a("s_barrier")
        a(f"""        s_waitcnt vmcnt({1 if TOUCH else 0}) lgkmcnt(0)""")
        self.stamp(1)
        for k in range(4):
            a(f"ds_read_b64_tr_b16 {v(32+4*k,2)}, v25 offset:{R0+1024*k}")
            a(f"ds_read_b64_tr_b16 {v(34+4*k,2)}, v26 offset:{R0+1024*k}")
        a(f"""s_cmp_ge_u32 {s(sR)}, 4
        s_cbranch_scc1 L_kv_v""")
        for k in range(4):
            a(f"s_waitcnt lgkmcnt({6-2*k})")
            a(f"v_mfma_f32_16x16x32_bf16 v[48:51], {v(32+4*k,4)}, {v(8+4*k,4)}, {'0' if k==0 else 'v[48:51]'}")
        a("s_branch L_kv_j")
        a.label("L_kv_v")
        for k in range(4):
            a(f"s_waitcnt lgkmcnt({6-2*k})")
            a(f"v_mfma_f32_16x16x32_bf16 v[48:51], {v(8+4*k,4)}, {v(32+4*k,4)}, {'0' if k==0 else 'v[48:51]'}")
        a.label("L_kv_j")
        if self.opt("lbar", 3) == 3: a("s_barrier")
        a(f"""s_lshl_b32 {s(sT2)}, {s(sW4)}, 10
        s_add_u32 {s(sT2)}, {s(sT2)}, {KVR}
        v_add_u32 v27, {s(sT2)}, v24
        s_add_u32 {s(sT3)}, {s(sNONCE)}, 0x9e3779b9
        v_mov_b32 v28, {s(sT3)}
        ds_write_b32 v1, v28 offset:128
        s_nop 3
        ds_write_b128 v27, v[48:51]
        s_waitcnt lgkmcnt(0)""")
        self.arrive_rtn(C_KV, vZ, vONE, vT)
        self.stamp(7)
        a("s_cbranch_scc0 L_kv_done")
        a(f"""v_add_u32 v27, {KVR}, v24
        ds_read_b128 v[48:51], v27
        ds_read_b128 v[52:55], v27 offset:1024
        ds_read_b128 v[56:59], v27 offset:2048
        ds_read_b128 v[60:63], v27 offset:3072
        s_cmp_ge_u32 {s(sR)}, 4
        s_cselect_b32 {s(sT2)}, 1.0, {fbits(0.25*LOG2E)}
        s_cselect_b32 {s(sT3)}, 1024, 0
        s_cselect_b32 {s(sT4)}, 6, 4
        s_lshl_b32 {s(sT4)}, {s(sT4)}, 7
        s_bitcmp1_b32 {s(sR)}, 0
        s_cselect_b32 {s(sT4)}, {s(sT4)}, 0
        s_add_u32 {s(sT3)}, {s(sT3)}, {s(sT4)}
        s_bfe_u32 {s(sT4)}, {s(sR)}, 0x10001
        s_lshl_b32 {s(sT5)}, {s(sG)}, 1
        s_add_u32 {s(sT4)}, {s(sT4)}, {s(sT5)}
        s_mul_i32 {s(sT4)}, {s(sT4)}, {KVT}
        s_add_u32 {s(sT3)}, {s(sT3)}, {s(sT4)}
        s_add_u32 {s(sT3)}, {s(sT3)}, {WS_KV}
        v_lshlrev_b32 v6, 5, v4
        v_lshl_add_u32 v6, v5, 3, v6
        s_waitcnt lgkmcnt(0)""")
        for i in range(4): a(f"v_add_f32 v{48+i}, v{48+i}, v{52+i}")
        for i in range(4): a(f"v_add_f32 v{56+i}, v{56+i}, v{60+i}")
        for i in range(4): a(f"v_add_f32 v{48+i}, v{48+i}, v{56+i}")
        for i in range(4): a(f"v_mul_f32 v{48+i}, {s(sT2)}, v{48+i}")
        a(f"""v_cvt_pk_bf16_f32 v52, v48, v49
        v_cvt_pk_bf16_f32 v53, v50, v51
        buffer_store_dwordx2 v[52:53], v6, {s(rWS,4)}, {s(sT3)} offen sc1""")
        if self.opt("ib", 1):
            a(f"""v_add_u32 v56, v52, v53
            v_add_u32 v57, v52, v53
            s_add_u32 {s(sT5)}, {s(sNONCE)}, 0x9e3779b9
            s_and_b32 {s(sT2)}, {s(sR)}, 1
            s_mul_i32 {s(sT2)}, {s(sT2)}, 384
            s_sub_u32 {s(sT2)}, 2560, {s(sT2)}
            v_permlane16_swap_b32 v56, v57
            s_cmp_ge_u32 {s(sR)}, 4
            s_cselect_b32 {s(sT2)}, 640, {s(sT2)}
            s_add_u32 {s(sT2)}, {s(sT2)}, {s(sT3)}
            v_add_u32 v56, v56, v57
            v_sub_u32 v56, {s(sT5)}, v56
            v_lshrrev_b32 v57, 5, v0
            v_lshlrev_b32 v57, 2, v57
            v_lshl_add_u32 v57, v4, 3, v57
            s_mov_b32 exec_lo, 0xffff
            s_mov_b32 exec_hi, 0xffff
            buffer_store_dword v56, v57, {s(rWS,4)}, {s(sT2)} offen sc1
            s_mov_b64 exec, -1""")
        a(f"""s_cmp_ge_u32 {s(sR)}, 4
        s_cbranch_scc0 L_kv_noones
        v_mov_b32 v54, 0x3f803f80
        v_mov_b32 v55, 0x3f803f80""")
        if self.opt("ib", 1):
            a(f"""s_sub_u32 {s(sT5)}, {s(sT5)}, {(4 * 0x3f803f80) & 0xffffffff}
            v_writelane_b32 v54, {s(sT5)}, 4
            v_writelane_b32 v55, {s(sT5)}, 4""")
        a(f"""v_lshlrev_b32 v7, 3, v0
        s_mov_b64 exec, 0xffff
        buffer_store_dwordx2 v[54:55], v7, {s(rWS,4)}, {s(sT3)} offen offset:512 sc1
        s_mov_b64 exec, -1""")
        a.label("L_kv_noones")
        self.stamp(8)
        if self.opt("wq1", 8) < 16: self.arrive(C_WQD, vZ, vONE)
        a("s_mov_b32 s41, 1")
        a.label("L_kv_done")
        if self.opt("tsplit", 1):
            for k in range(4): a(f"ds_write_b128 v{64+k}, {v(8+4*k,4)}")
            a("s_waitcnt lgkmcnt(0)")
            self.arrive(C_X, vZ, vONE)
        if self.opt("flagat", 0) == 0: self.kv_flag()
        self.stamp(2)
        self.qproj_run()
        a("s_branch L_att_setup")
    def kv_flag(self):
        a = self.a; L = a.newlabel("Lkf")
        a(f"""s_cmp_eq_u32 s41, 1
        s_cbranch_scc0 {L}
        s_lshl_b32 {s(sT2)}, {s(sG)}, 3
        s_add_u32 {s(sT2)}, {s(sT2)}, {s(sR)}
        s_lshl_b32 {s(sT2)}, {s(sT2)}, {self.opt('fsh', 5)}
        s_add_u32 {s(sT2)}, {s(sT2)}, {WS_FLAG}
        s_add_u32 {s(sT3)}, {s(sNONCE)}, 0x9e3779b9
        v_mov_b32 v74, {s(sT3)}
        v_mov_b32 v75, 0
        s_waitcnt vmcnt(0)
        s_mov_b64 exec, 1
        buffer_store_dword v74, v75, {s(rWS,4)}, {s(sT2)} offen sc1
        s_mov_b64 exec, -1""")
        if self.opt("wq1", 8) < 16 and self.opt("wqn", 1) == 2: self.arrive(C_WQD, self.vZ, self.vONE)
        a.label(L)

    def l2_prefetch(self, srd, mode, vt, vd, st):
        a = self.a
        a(f"s_and_b32 {s(st)}, {s(sP)}, 31")
        if mode == 1:
            a(f"""s_lshl_b32 {s(st)}, {s(st)}, 2
            s_add_u32 {s(st)}, {s(st)}, {s(sW4)}
            s_lshl_b32 {s(st)}, {s(st)}, 12
            v_lshlrev_b32 v{vt}, 10, v0
            s_mov_b64 exec, 0xf
            buffer_load_dword v{vd}, v{vt}, {s(srd,4)}, {s(st)} offen offset:384
            s_mov_b64 exec, -1""")
        else:
            a(f"""s_lshl_b32 {s(st)}, {s(st)}, 2
            s_add_u32 {s(st)}, {s(st)}, {s(sW4)}
            s_lshl_b32 {s(st)}, {s(st)}, 12
            v_lshlrev_b32 v{vt}, 7, v0
            s_mov_b64 exec, 0xffffffff
            buffer_load_dword v{vd}, v{vt}, {s(srd,4)}, {s(st)} offen
            s_mov_b64 exec, -1""")
    def s_prefetch(self, p, soff, n, stride):
        a = self.a
        a(f"s_add_u32 s96, {s(p)}, {s(soff)}\ns_addc_u32 s97, {s(p+1)}, 0")
        for i in range(n): a(f"s_load_dword s{94 + (i & 1)}, s[96:97], {i*stride}")
    def x_dma(self, lds, row0):
        a = self.a
        if self.opt("tsplit", 1):
            half = row0 == 0
            n = 4 if half else 8
            a(f"""s_bfe_u32 {s(sT3)}, {s(sR)}, 0x10001
            s_xor_b32 {s(sT3)}, {s(sT3)}, {row0 // 32}
            s_lshl_b32 {s(sT3)}, {s(sT3)}, 15
            s_lshl_b32 {s(sT1)}, {s(sG)}, 16
            s_add_u32 {s(sT1)}, {s(sT1)}, {s(sT3)}
            s_lshl_b32 {s(sT2)}, {s(sW4)}, {12 if half else 13}""")
            if half:
                a(f"""s_and_b32 {s(sT3)}, {s(sR)}, 1
                s_xor_b32 {s(sT3)}, {s(sT3)}, 1
                s_lshl_b32 {s(sT3)}, {s(sT3)}, 14
                s_add_u32 {s(sT2)}, {s(sT2)}, {s(sT3)}
                s_lshl_b32 {s(sT3)}, {s(sW4)}, 6""")
            else:
                a(f"""s_and_b32 {s(sT3)}, {s(sW4)}, 1
                s_lshl_b32 {s(sT3)}, {s(sT3)}, 7""")
            a(f"""s_add_u32 {s(sT1)}, {s(sT1)}, {s(sT2)}
            s_add_u32 m0, {s(sT2)}, {lds}
            v_lshlrev_b32 v12, 4, v0
            v_xor_b32 v12, {s(sT3)}, v12""")
        else:
            n = 8
            a(f"""s_lshl_b32 {s(sT1)}, {s(sG)}, 16
            s_lshl_b32 {s(sT2)}, {s(sW4)}, 13
            s_add_u32 {s(sT1)}, {s(sT1)}, {s(sT2)}
            s_add_u32 {s(sT1)}, {s(sT1)}, {row0*1024}
            s_add_u32 m0, {s(sT2)}, {lds}
            s_and_b32 {s(sT3)}, {s(sW4)}, 1
            s_lshl_b32 {s(sT3)}, {s(sT3)}, 7
            v_lshlrev_b32 v12, 4, v0
            v_xor_b32 v12, {s(sT3)}, v12""")
        for i in range(n):
            if i == 4:
                a(f"s_add_u32 {s(sT1)}, {s(sT1)}, 4096\ns_add_u32 m0, m0, 4096")
            if i == 0:
                a(f"buffer_load_dwordx4 v12, {s(rA,4)}, {s(sT1)} offen lds")
            else:
                a(f"v_xor_b32 v{13+(i&1)}, {16*i}, v12")
                a(f"buffer_load_dwordx4 v{13+(i&1)}, {s(rA,4)}, {s(sT1)} offen offset:{1024*(i&3)} lds")

    def role_early_start(self):
        a = self.a; vL, vZ, vONE, vT = self.vL, self.vZ, self.vONE, self.vT
        a.label("L_role_early")
        a(f"""s_setprio 3
        v_lshl_add_u32 v4, v0, 2, v1
        v_mov_b32 v5, 0
        ds_write_b32 v4, v5""")
        self.ptrs_ready()
        if self.opt("ipf", 0):
            a(f"""s_getpc_b64 {s(sT2,2)}""")
            a.label("L_pc")
            a(f"""s_and_b32 {s(sT0)}, {s(sP)}, 31
            s_lshl_b32 {s(sT0)}, {s(sT0)}, 2
            s_add_u32 {s(sT0)}, {s(sT0)}, {s(sW4)}
            s_lshl_b32 {s(sT0)}, {s(sT0)}, 7
            s_min_u32 {s(sT0)}, {s(sT0)}, L_exit-L_pc-128
            s_and_b32 {s(sT0)}, {s(sT0)}, -4
            s_add_u32 {s(sT2)}, {s(sT2)}, {s(sT0)}
            s_addc_u32 {s(sT3)}, {s(sT3)}, 0
            s_load_dword s94, {s(sT2,2)}, 0
            s_load_dword s95, {s(sT2,2)}, 64""")
        if not self.opt("barx", 1): a("s_barrier")
        if self.opt("est0"): self.stamp(2)
        a(f"""s_mov_b32 {s(rB)}, {s(pWQ)}
        s_mov_b32 {s(rB+1)}, {s(pWQ+1)}
        s_mov_b32 {s(rB+2)}, 524288""")
        if self.opt("esetup", 2) == 1: self.att_setup()
        if self.opt("est0"): self.stamp(3)
        if self.opt("wqpf", 3) in (1, 2): self.l2_prefetch(rB, self.opt("wqpf", 3), 10, 11, sT4)
        self.x_dma(XE, 0)
        if self.opt("wqpf", 3) in (3, 4): self.l2_prefetch(rB, self.opt("wqpf", 3) - 2, 10, 11, sT4)
        a(f"""v_lshrrev_b32 v15, 3, v0
        v_and_b32 v16, 7, v0
        v_and_b32 v17, 2, v15
        v_xor_b32 v16, v16, v17
        s_and_b32 {s(sT3)}, {s(sW4)}, 1
        s_lshl_b32 {s(sT3)}, {s(sT3)}, 2
        v_xor_b32 v16, {s(sT3)}, v16
        v_lshlrev_b32 v15, 10, v15
        v_lshl_add_u32 v15, v16, 4, v15
        s_lshl_b32 {s(sT1)}, {s(sW4)}, 13
        s_lshl_b32 {s(sT2)}, {s(sR)}, 7
        s_add_u32 {s(sT1)}, {s(sT1)}, {s(sT2)}
        s_lshl_b32 {s(sT2)}, {s(sW4)}, 10
        s_add_u32 m0, {s(sT2)}, {W}""")
        self.stamp(7)
        def setup_keep():
            a(f"s_mov_b32 s42, {s(sT1)}"); self.att_setup(); a(f"s_mov_b32 {s(sT1)}, s42")
        if self.opt("esetup", 2) == 2 and not self.opt("wq0", 0): setup_keep()
        if self.opt("barx", 1) and not self.opt("wq0", 0): a("s_barrier")
        if self.opt("esetup", 2) == 3: setup_keep()
        if self.opt("xwait", 0): a("s_waitcnt vmcnt(0)")
        self.stamp(8)
        for i in range(16):
            if i and i == self.opt("wq0", 0):
                if self.opt("esetup", 2) == 2: setup_keep()
                if self.opt("barx", 1): a("s_barrier")
            if self.opt("esetup", 2) == 4 and i == self.opt("es4", 4): setup_keep()
            if i == min(self.opt("wq1", 8), 8):
                a(f"s_waitcnt vmcnt({i + (1 if self.opt('wqpf', 3) in (3, 4) else 0)})")
                self.arrive(C_X, vZ, vONE)
            if i == self.opt("wq1", 8): self.waitc(C_WQD, self.opt("wqn", 1), vZ, vT, slp=1)
            if i == 8 + self.opt("wqa", 8):
                a(f"s_waitcnt vmcnt({i - 8})")
                self.arrive(C_WQA, vZ, vONE)
            a(f"buffer_load_dwordx4 v15, {s(rB,4)}, {s(sT1)} offen lds")
            if i < 15: a(f"s_add_u32 m0, m0, 4096\ns_add_u32 {s(sT1)}, {s(sT1)}, 32768")
        self.stamp(1)
        self.waitc(C_KV, 4, vZ, vT, slp=1)
        a("ds_read_b32 v103, v1 offset:128")
        if not self.opt("esetup", 2): self.att_setup()
        a(f"""s_waitcnt lgkmcnt(0)
        v_readfirstlane_b32 {s(sNONCE)}, v103""")
        if self.opt("wqa", 8) >= 8:
            a("s_waitcnt vmcnt(8)")
            self.arrive(C_WQA, vZ, vONE)
            if self.opt("qst"): self.stamp(2)
        IB = self.opt("ib", 1)
        if IB and self.opt("ibat", 1) == 0:
            self.val_loads(); a("s_waitcnt vmcnt(12)")
        else:
            a("s_waitcnt vmcnt(0)")
        self.arrive(C_WQB, vZ, vONE)
        self.stamp(10)
        if IB:
            if self.opt("ibat", 1) == 0: a("s_branch L_val_chk")
            a.label("L_val")
            self.val_loads()
            a.label("L_val_chk")
            KA = self.KA
            for f in range(6):
                b = KA + 4 * f; acc = 93 if f % 3 == 0 else 94
                a(f"""s_waitcnt vmcnt({10 - 2*f})
                v_add3_u32 v95, v{b}, v{b+1}, v{b+2}
                v_add3_u32 v95, v95, v{b+3}, v{97+f}""")
                if f < 2: a(f"v_xor_b32 v{acc}, v103, v95")
                else: a(f"v_bitop3_b32 v{acc}, v{acc}, v95, v103 bitop3:0xf6")
            a(f"""v_cmp_ne_u32 {s(sT2,2)}, 0, v94
            v_cmp_ne_u32 vcc, 0, v93
            s_and_b32 {s(sT2)}, {s(sT2)}, 0x11ffff
            s_and_b32 {s(sT3)}, {s(sT3)}, 0x11ffff
            s_or_b64 vcc, vcc, {s(sT2,2)}
            s_cbranch_scc0 L_val_ok
            s_sub_u32 {s(sBUD)}, {s(sBUD)}, 1
            s_cbranch_scc0 L_val
            s_mov_b32 {s(sBUD)}, 0""")
            a.label("L_val_ok")
            self.stamp(4)
            if not self.opt("lpoll", 0):
                if self.opt("pwait", 0): self.waitc(C_QE, self.opt("pwait", 0), vZ, vT, slp=self.opt('qslp', 0))
                a(f"""s_lshl_b32 s40, {s(sW4)}, {6 + self.opt('fsh', 5)}
                s_add_u32 s40, s40, {WS_FLAG}
                v_lshlrev_b32 v144, {self.opt('fsh', 5)}, v0
                buffer_load_dword v145, v144, {s(rWS,4)}, s40 offen sc1""")
            a("s_branch L_att_go")
        else:
            a(f"s_mov_b32 {s(sT3)}, {s(sNONCE)}")
            self.stamp(2); self.flag_poll()
            self.stamp(4)
            self.prologue_loads()
            self.arrive(C_FL, vZ, vONE)
            a("s_branch L_att_go")

    Q0, O0, S0, KA = 8, 24, 88, 120
    vKO, vVO, vIDX = 4, 5, 6
    def qproj(self):
        a = self.a; vL, vZ, vONE, vT = self.vL, self.vZ, self.vONE, self.vT
        WF = 76; XA = 152; AC = 140
        a(f"""v_xor_b32 v6, v4, v5
        v_lshlrev_b32 v6, 4, v6
        v_lshl_add_u32 v6, v4, 10, v6
        v_add_u32 v{XA}, {XE}, v6
        v_xor_b32 v{XA+1}, 64, v{XA}
        v_xor_b32 v{XA+2}, 0x80, v{XA}
        v_xor_b32 v{XA+3}, 0xc0, v{XA}
        v_bfe_u32 v6, v0, 2, 2
        v_lshl_add_u32 v7, v5, 3, v6
        v_lshlrev_b32 v7, 7, v7
        v_and_b32 v6, 2, v6
        v_and_b32 v72, 1, v5
        v_lshl_add_u32 v6, v72, 2, v6
        s_lshl_b32 {s(sT1)}, {s(sW4)}, 1
        v_xor_b32 v6, {s(sT1)}, v6
        v_lshl_add_u32 v7, v6, 4, v7
        v_and_b32 v6, 3, v0
        v_lshl_add_u32 v7, v6, 3, v7
        v_add_u32 v{XA+4}, {W}, v7
        v_lshrrev_b32 v6, 1, v5
        v_lshlrev_b32 v6, 9, v6
        v_lshl_add_u32 v6, v4, 4, v6
        v_lshl_add_u32 v6, v72, 3, v6
        s_lshl_b32 {s(sT1)}, {s(sW4)}, 10
        s_add_u32 {s(sT1)}, {s(sT1)}, {QB}
        v_add_u32 v{XA+5}, {s(sT1)}, v6""")
    def qproj_run(self):
        a = self.a; vL, vZ, vONE, vT = self.vL, self.vZ, self.vONE, self.vT
        WF = 76; XA = 152; AC = 140
        def rdw(sx):
            a(f"ds_read_b64_tr_b16 {v(WF+4*sx,2)}, v{XA+4} offset:{4096*sx}")
            a(f"ds_read_b64_tr_b16 {v(WF+4*sx+2,2)}, v{XA+4} offset:{4096*sx+512}")
        def rdx(sx):
            b = 8 + 8 * (sx % 8)
            a(f"ds_read_b128 {v(b,4)}, v{XA+(sx&3)} offset:{256*(sx>>2)}")
            a(f"ds_read_b128 {v(b+4,4)}, v{XA+(sx&3)} offset:{256*(sx>>2)+16384}")
        def mm(sx):
            b = 8 + 8 * (sx % 8)
            a(f"v_mfma_f32_16x16x32_bf16 {v(AC,4)}, {v(WF+4*sx,4)}, {v(b,4)}, {'0' if sx==0 else v(AC,4)}")
            a(f"v_mfma_f32_16x16x32_bf16 {v(AC+4,4)}, {v(WF+4*sx,4)}, {v(b+4,4)}, {'0' if sx==0 else v(AC+4,4)}")
        def qout(off):
            for k in range(4): a(f"v_cvt_pk_bf16_f32 v{AC+8+k}, v{AC+2*k}, v{AC+2*k+1}")
            a(f"""ds_write_b64 v{XA+5}, {v(AC+8,2)} offset:{off}
            ds_write_b64 v{XA+5}, {v(AC+10,2)} offset:{off+256}
            s_waitcnt lgkmcnt(0)""")
        self.waitc(C_X, 8 if self.opt("tsplit", 1) else 4, vZ, vT, slp=self.opt('lslp2', 0))
        if self.opt("qst"): self.stamp(9)
        for k in range(8): rdx(k)
        self.waitc(C_WQA, 4, vZ, vT, slp=self.opt('lslp2', 0))
        if self.opt("qst"): self.stamp(7)
        for k in range(3): rdw(k)
        for sx in range(8):
            n = sum(2 for k in (sx + 1, sx + 2) if k < 8) + sum(2 for k in (sx - 3, sx - 2, sx - 1) if k >= 0 and k >= sx - 3 + 0 and (k > sx - 3 or False))
            a(f"s_waitcnt lgkmcnt({QW[sx]})")
            mm(sx)
            if sx + 3 < 8: rdw(sx + 3)
            rdx(sx + 8)
        if self.opt("qst"): self.stamp(8)
        if self.opt("flagat", 0) == 1: self.kv_flag()
        self.waitc(C_WQB, 4, vZ, vT, slp=self.opt('lslp2', 0))
        if not self.opt("lst0"): self.stamp(10)
        for k in range(8, 14): rdw(k)
        for sx in range(8, 16):
            a(f"s_waitcnt lgkmcnt({2 * (min(sx + 5, 15) - sx)})")
            mm(sx)
            if sx + 6 < 16: rdw(sx + 6)
        if self.opt("qst"): self.stamp(1)
        qout(0)
        self.sync4(C_QE, vZ, vONE, vT, slp=1)
        if not self.opt("lst0"): self.stamp(3)
        if self.opt("lqprio", 3) != 3: a(f"s_setprio {self.opt('lqprio')}")
        if self.opt("ib", 1) and self.opt("lpoll", 0):
            a(f"s_add_u32 {s(sT3)}, {s(sNONCE)}, 0x9e3779b9")
            self.flag_poll(vA=72, vD=73)
            self.arrive(C_FL, vZ, vONE)
        if self.opt("xlwait", 0): self.waitc(C_FL, 4, vZ, vT, slp=2)
        self.x_dma(XE, 32)
        a("s_waitcnt vmcnt(0)")
        self.sync4(C_XL, vZ, vONE, vT, slp=1)
        for k in range(6): rdx(k)
        for sx in range(16):
            a(f"s_waitcnt lgkmcnt({2 * (min(sx + 5, 15) - sx)})")
            mm(sx)
            if sx + 6 < 16: rdx(sx + 6)
        qout(4096)
        self.arrive(C_QL, vZ, vONE)

    def att_setup(self):
        self.att_addr(4, 5, 7, True); self.att_zero()
    def att_addr(self, dK, dV, t, sums):
        a = self.a
        a(f"""s_mul_i32 {s(sT2)}, {s(sW4)}, {16*KVT}
        s_add_u32 {s(sT2)}, {s(sT2)}, {WS_KV}
        v_and_b32 v{t}, 31, v0
        v_lshrrev_b32 v{t+1}, 5, v0
        v_lshlrev_b32 v{dK}, 5, v{t}
        v_lshl_add_u32 v{dK}, v{t+1}, 4, v{dK}
        v_and_b32 v{t+2}, 3, v{t}
        v_bfe_u32 v{t+3}, v{t}, 2, 1
        v_lshl_add_u32 v{t+2}, v{t+3}, 3, v{t+2}
        v_bfe_u32 v{t+3}, v{t}, 3, 1
        v_lshl_add_u32 v{t+2}, v{t+3}, 2, v{t+2}
        v_lshlrev_b32 v{t+2}, 5, v{t+2}
        s_mov_b32 {s(sT4)}, 0xffff
        s_mov_b32 {s(sT5)}, 0xffff
        v_mov_b32 v{t+3}, {OOB}
        v_cndmask_b32 v{t+2}, v{t+3}, v{t+2}, {s(sT4,2)}
        s_mov_b32 {s(sT4)}, 0x110000
        s_mov_b32 {s(sT5)}, 0x110000
        v_mov_b32 v{t+3}, 512
        v_cndmask_b32 v{t+2}, v{t+2}, v{t+3}, {s(sT4,2)}
        v_lshl_add_u32 v{dV}, v{t+1}, 4, v{t+2}""")
        if sums and self.opt("ib", 1):
            a(f"""v_lshrrev_b32 v96, 2, v{dK}
            v_add_u32 v96, {s(sT2)}, v96
            v_lshrrev_b32 v104, 2, v{dV}
            v_add_u32 v{t+2}, 640, v104
            v_add_u32 v104, 416, v104
            s_mov_b32 {s(sT4)}, 0xffff
            s_mov_b32 {s(sT5)}, 0xffff
            v_cndmask_b32 v104, v104, v{t+2}, {s(sT4,2)}
            v_add_u32 v104, {s(sT2)}, v104""")
        a(f"""v_add_u32 v{dK}, {s(sT2)}, v{dK}
        v_add_u32 v{dV}, {s(sT2)}, v{dV}""")
        self.tail_setup()
        if self.opt("chunk", 1):
            a(f"""s_cmp_eq_u32 {s(sCLS)}, 0
            s_cselect_b32 s35, {self.opt('ce', 3) + 1}, {self.opt('cl', 6) + 1}
            s_lshl_b32 s35, 1, s35""")
        a(f"""s_lshl_b32 {s(sT2)}, {s(sCLS)}, 12
        s_add_u32 {s(sT2)}, {s(sT2)}, {QB}
        v_lshl_add_u32 v{t}, v0, 4, {s(sT2)}""")
        for i in range(4):
            a(f"""s_add_u32 {s(sT3)}, {s(sW4)}, {i}
            s_and_b32 {s(sT3)}, {s(sT3)}, 3
            s_lshl_b32 {s(sT3)}, {s(sT3)}, 10
            v_add_u32 v{160+i}, {s(sT3)}, v{t}""")
        for b in range(self.opt("nbuf", 4)):
            if b: a(f"s_add_u32 {s(sROT)}, {s(sROT)}, 1\ns_and_b32 {s(sROT)}, {s(sROT)}, 15")
            a(f"s_mul_i32 s{36+b}, {s(sROT)}, {KVT}")
        a(f"s_mov_b32 {s(sSOF)}, {OOB}")
    def att_zero(self):
        a = self.a
        Q0, O0, S0, KA = self.Q0, self.O0, self.S0, self.KA
        a(f"""s_lshl_b32 {s(sT2)}, {s(sCLS)}, 2
        v_add_u32 v92, {s(sT2)}, v1
        v_mov_b32 v6, 0xdddddddd
        v_mov_b32 v7, {s(self.tail_regs()['cw'])}""")
        for h in range(4):
            for i in range(0, 16 if self.opt("zfull", 1) else 10, 2): a(f"v_mov_b64 {v(O0+16*h+i,2)}, 0")
        for i in range(0, 8, 2): a(f"v_mov_b64 {v(S0+24+i,2)}, 0")
        for i in range(0, 4, 2): a(f"v_mov_b64 {v(KA+44+i,2)}, 0")
    def ld(self, kind, b, so):
        SC = {0: "sc1", 1: "", 2: "sc0", 3: "nt", 4: "sc0 sc1"}[self.opt("kvsc", 0)]
        off = [0, 1024, V1OFF][kind]
        self.a(f"buffer_load_dwordx4 {v(b+4*kind,4)}, v{self.vKO if kind == 0 else self.vVO}, {s(rWS,4)}, {s(so)} offen offset:{off} {SC}")
    def val_loads(self):
        for t in range(2):
            for kind in range(3):
                self.ld(kind, self.KA + 12 * t, 36 + t)
                self.a(f"buffer_load_dword v{97+3*t+kind}, v{96 if kind == 0 else 104}, {s(rWS,4)}, s{36+t} offen offset:{[2560, 1024, V1OFF][kind]} sc1")
    def prologue_loads(self):
        NB = self.opt("nbuf", 4)
        n = 2 if self.opt("ib", 1) else NB
        for b in range(n):
            for kind in range(3):
                if kind < 2 or b < NB - 1: self.ld(kind, self.KA + 12 * b, 36 + b)
    def flag_poll(self, vA=93, vD=94):
        a = self.a; Lp = a.newlabel("Lfp"); Lo = a.newlabel("Lfo")
        a(f"""s_lshl_b32 {s(sT1)}, {s(sW4)}, {6 + self.opt('fsh', 5)}
        s_add_u32 {s(sT1)}, {s(sT1)}, {WS_FLAG}
        v_lshlrev_b32 v{vA}, {self.opt('fsh', 5)}, v0""")
        a.label(Lp)
        a(f"""buffer_load_dword v{vD}, v{vA}, {s(rWS,4)}, {s(sT1)} offen sc1
        s_waitcnt vmcnt(0)
        v_cmp_ne_u32 vcc, {s(sT3)}, v{vD}
        s_and_b64 exec, exec, vcc
        s_cbranch_execz {Lo}
        s_sleep {self.opt('pslp', 1)}
        s_sub_u32 {s(sBUD)}, {s(sBUD)}, 1
        s_cbranch_scc0 {Lp}
        s_mov_b32 {s(sBUD)}, 0""")
        a.label(Lo)
        a("s_mov_b64 exec, -1")

    def qproj_and_attention(self):
        a = self.a; vL, vZ, vONE, vT = self.vL, self.vZ, self.vONE, self.vT
        Q0, O0, S0, KA = self.Q0, self.O0, self.S0, self.KA
        vKO, vVO, vIDX = self.vKO, self.vVO, self.vIDX
        NB = self.opt("nbuf", 4); IB = self.opt("ib", 1)
        BUF = [KA + 12 * i for i in range(NB)]
        a.label("L_att_setup")
        if self.opt("lhoist", 1):
            a("v_mov_b32 v4, v158\nv_mov_b32 v5, v159"); self.att_zero()
        else:
            self.att_addr(4, 5, 7, False); self.att_zero()
        self.waitc(C_FL, 4, vZ, vT)
        self.stamp(4)
        self.prologue_loads()
        a.label("L_att_go")
        def sof_next():
            a(f"""s_add_u32 {s(sROT)}, {s(sROT)}, 1
            s_and_b32 {s(sROT)}, {s(sROT)}, 15
            s_mul_i32 {s(sSOF)}, {s(sROT)}, {KVT}
            s_cmp_eq_u32 {s(sLOOP)}, 1
            s_cselect_b32 {s(sSOF)}, {OOB}, {s(sSOF)}""")
        def ldK(b): self.ld(0, b, sSOF)
        def ldV0(b): self.ld(1, b, sSOF)
        def ldV1(b): self.ld(2, b, sSOF)
        self.waitc(C_QE, 4, 92, vT, slp=self.opt('qslp', 0))
        for i in range(4): a(f"ds_read_b128 {v(Q0+4*i,4)}, v{160+i}")
        a(f"""s_mov_b32 {s(sLOOP)}, {16//NB}
        s_waitcnt vmcnt({3 if IB else 3*NB-4}) lgkmcnt(0)
        v_mfma_f32_32x32x16_bf16 {v(S0,16)}, {v(KA,4)}, {v(Q0,4)}, 0
        s_nop 11""")
        self.stamp(5)
        a(f"""s_setprio {self.opt('eprio', 2)}
        s_cmp_eq_u32 {s(sCLS)}, 0
        s_cbranch_scc1 L_att0
        s_setprio {self.opt('lprio', 1)}""")
        a.label("L_att0")
        a(".p2align 6")
        a.label("L_att")
        self.inloop = True
        G0 = self.opt("g0", 2); G1 = self.opt("g1", 5); G2 = self.opt("g2", 12)
        CHK = self.opt("chunk", 1)
        for t in range(NB):
            cur = BUF[t]; prv = BUF[(t - 1) % NB]; nxt = BUF[(t + 1) % NB]
            for i in range(4):
                S = S0 + 16 * (i & 1); Sn = S0 + 16 * ((i + 1) & 1)
                def ex(a0, a1):
                    for k in range(a0, a1): a(f"v_exp_f32 v{S+k}, v{S+k}")
                ex(0, G0)
                if i == 1 and NB == 2 and not self.opt("nowait"): a("s_waitcnt vmcnt(3)")
                pv = prv if i == 0 else cur
                a(f"v_smfmac_f32_32x32x32_bf16 {v(O0+16*((i-1)&3),16)}, {v(pv+8,4)}, {v(Sn+8,8)}, v{vIDX}")
                if i == 0: ldV1(prv)
                if i == 1 and not self.opt("nosof"): sof_next()
                if CHK and t % 2 == self.opt('cpar', 0) and i == 2:
                    L = a.newlabel("Lp")
                    a(f"""s_lshr_b32 s35, s35, 1
                    s_bitcmp1_b32 s35, 0
                    s_cbranch_scc0 {L}
                    s_setprio {self.opt('lprio', 1) - 1}
                    s_cmp_eq_u32 {s(sCLS)}, 0
                    s_cbranch_scc0 {L}
                    s_setprio {self.opt('eprio', 2) - 1}""")
                    a.label(L)
                if i == 3 and self.opt("mv", 1): a(f"s_waitcnt vmcnt({3*NB-5})")
                ex(G0, G1)
                if i == 3 and not self.opt("mv", 1): a(f"s_waitcnt vmcnt({3*NB-5})")
                kk = nxt if i == 3 else cur
                a(f"v_mfma_f32_32x32x16_bf16 {v(Sn,16)}, {v(kk,4)}, {v(Q0+4*((i+1)&3),4)}, 0")
                if IB and t == 0 and i == 2:
                    a(f"s_cmp_eq_u32 {s(sLOOP)}, {16//NB}\ns_cbranch_scc1 L_first")
                    a.label("L_first_ret")
                if i == 2: ldK(cur)
                ex(G1, G2)
                a(f"v_smfmac_f32_32x32x32_bf16 {v(O0+16*i,16)}, {v(cur+4,4)}, {v(S,8)}, v{vIDX}")
                if i == 3: ldV0(cur)
                if i == 2 and t == NB - 1: a("ds_read_b32 v3, v7")
                if t == NB - 1 and i == 3 and self.opt("mv", 1):
                    a(f"s_sub_u32 {s(sLOOP)}, {s(sLOOP)}, 1\ns_cmp_lg_u32 {s(sLOOP)}, 0")
                    ex(G2, 16)
                elif t == NB - 1 and i == 3:
                    ex(10, 13)
                    a(f"s_sub_u32 {s(sLOOP)}, {s(sLOOP)}, 1\ns_cmp_lg_u32 {s(sLOOP)}, 0")
                    ex(13, 16)
                else:
                    ex(G2, 16)
        a("s_cbranch_scc1 L_att")
        a(f"s_nop 1")
        a(f"v_smfmac_f32_32x32x32_bf16 {v(O0+48,16)}, {v(BUF[-1]+8,4)}, {v(S0+24,8)}, v{vIDX}")
        self.stamp(6)
        if self.opt("r0late", 0) == 2:
            a(f"s_cmp_eq_u32 {s(sCLS)}, 0\ns_cbranch_scc1 L_nole")
            self.arrive(C_WQC, vZ, vONE)
            a.label("L_nole")
        self.att_tail()
        if IB:
            a.label("L_first")
            if self.opt("lpoll", 0):
                self.waitc(C_FL, 4, vZ, vT, slp=0)
            else:
                a(f"s_cmp_eq_u32 {s(sCLS)}, 0\ns_cbranch_scc0 L_first_ld")
                a.label("L_fp")
                a(f"""s_waitcnt vmcnt(0)
                v_cmp_ne_u32 vcc, {s(sNONCE)}, v145
                s_and_b64 exec, exec, vcc
                s_cbranch_execz L_fp_ok
                buffer_load_dword v145, v144, {s(rWS,4)}, s40 offen sc1
                s_sub_u32 {s(sBUD)}, {s(sBUD)}, 1
                s_cbranch_scc0 L_fp
                s_mov_b32 {s(sBUD)}, 0
                s_waitcnt vmcnt(0)""")
                a.label("L_fp_ok")
                a("s_mov_b64 exec, -1")
                self.arrive(C_FL, vZ, vONE)
                a.label("L_first_ld")
            for b in (2, 3):
                for kind in range(3): self.ld(kind, BUF[b], 36 + b)
            a("s_branch L_first_ret")

    def first_poll(self):
        self.a(f"""s_lshl_b32 {s(sT1)}, {s(sW4)}, {6 + self.opt('fsh', 5)}
        s_add_u32 {s(sT1)}, {s(sT1)}, {WS_FLAG}
        v_lshlrev_b32 v93, {self.opt('fsh', 5)}, v0""")
        if self.opt("p16", 0):
            self.a(f"""v_lshrrev_b32 v95, 3, v0
            v_bfe_u32 v96, v0, 1, 1
            v_lshl_add_u32 v95, v95, 1, v96
            v_subrev_u32 v95, {s(sROT)}, v95
            v_and_b32 v95, 15, v95
            v_cmp_gt_u32 vcc, {self.opt('nbuf', 4)}, v95
            s_mov_b64 exec, vcc""")
        self.a(f"buffer_load_dword v94, v93, {s(rWS,4)}, {s(sT1)} offen sc1")

    sP1, sP2, sP3, sP0, sOS = 70, 71, 72, 73, 74
    def tail_regs(self):
        b = 40 if True else 70
        return dict(p=[28, 29, 30, 31], os=32, cw=33, cp=34)
    def tail_setup(self):
        a = self.a; R = self.tail_regs()
        for i in range(4):
            a(f"""s_add_u32 {s(sT2)}, {s(sW4)}, {i}
            s_and_b32 {s(sT2)}, {s(sT2)}, 3
            s_mul_i32 {s(R['p'][i])}, {s(sT2)}, {3*PSLOT}""")
        a(f"""s_cmp_eq_u32 {s(sCLS)}, 0
        s_cselect_b32 {s(sT2)}, {XE}, {R0}""")
        for i in range(4): a(f"s_add_u32 {s(R['p'][i])}, {s(R['p'][i])}, {s(sT2)}")
        a(f"""s_lshl_b32 {s(sT3)}, {s(sG)}, 1
        s_add_u32 {s(sT3)}, {s(sT3)}, {s(sCLS)}
        s_lshl_b32 {s(sT3)}, {s(sT3)}, 5
        s_lshl_b32 {s(sT4)}, {s(sR)}, 2
        s_add_u32 {s(sT3)}, {s(sT3)}, {s(sT4)}
        s_add_u32 {s(sT3)}, {s(sT3)}, {s(sW4)}
        s_lshl_b32 {s(sT3)}, {s(sT3)}, 10
        s_add_u32 {s(R['os'])}, {s(sT3)}, {WS_O}
        s_cmp_eq_u32 {s(sCLS)}, 0
        s_mov_b32 {s(R['cw'])}, {C_YT//4}
        s_cselect_b32 {s(R['cp'])}, {C_PE//4}, {C_PL//4}
        s_lshl_b32 {s(R['cw'])}, {s(R['cw'])}, 2
        s_lshl_b32 {s(R['cp'])}, {s(R['cp'])}, 2
        s_add_u32 {s(R['cw'])}, {s(R['cw'])}, {CNT}
        s_add_u32 {s(R['cp'])}, {s(R['cp'])}, {CNT}""")
    def att_tail(self):
        a = self.a; vL, vZ, vONE, vT = self.vL, self.vZ, self.vONE, self.vT
        Q0, O0, S0, KA = self.Q0, self.O0, self.S0, self.KA
        R = self.tail_regs()
        T = Q0 + 4
        if self.opt("tprio", 0) == 1:
            a(f"s_cmp_eq_u32 {s(sCLS)}, 0\ns_cbranch_scc1 L_notp\ns_setprio 3")
            a.label("L_notp")
        if self.opt("tprio", 0) == 2: a("s_setprio 3")
        a(f"""v_mov_b32 v{T+1}, {s(R['cp'])}
        v_lshlrev_b32 v{T+2}, 4, v0
        v_lshlrev_b32 v{T+3}, 2, v0
        s_waitcnt lgkmcnt(0)
        v_readfirstlane_b32 {s(sT0)}, v3
        v_add_u32 v{T+4}, {s(R['p'][1])}, v{T+2}
        v_add_u32 v{T+5}, {s(R['p'][1])}, v{T+3}
        s_cmp_ge_u32 {s(sT0)}, 4
        s_cbranch_scc1 L_pfree""")
        n0 = len(a.lines)
        self.waitc(0, 4, 7, vT)
        for i in range(n0, len(a.lines)):
            l = a.lines[i]
            if not l.endswith(":") and "nocount" not in l and not l.startswith(("v_readfirst", "s_cmp")): a.lines[i] = l + " ; nocount"
        a.label("L_pfree")
        for i in range(1, 4):
            j = (i + 1) & 3
            a(f"""ds_write_b128 v{T+4+2*(i&1^1)}, {v(O0+16*i,4)} offset:{(i-1)*PSLOT}
            ds_write_b128 v{T+4+2*(i&1^1)}, {v(O0+16*i+4,4)} offset:{(i-1)*PSLOT+1024}
            ds_write_b32 v{T+5+2*(i&1^1)}, v{O0+16*i+8} offset:{(i-1)*PSLOT+2048}
            v_add_u32 v{T+4+2*(i&1)}, {s(R['p'][j])}, v{T+2}
            v_add_u32 v{T+5+2*(i&1)}, {s(R['p'][j])}, v{T+3}""")
        a("s_waitcnt lgkmcnt(0)")
        self.sync4(0, T + 1, vONE, vT)
        for i in range(1, 4):
            a(f"""ds_read_b128 {v(O0+16*i,4)}, v{T+6} offset:{(i-1)*PSLOT}
            ds_read_b128 {v(O0+16*i+4,4)}, v{T+6} offset:{(i-1)*PSLOT+1024}
            ds_read_b32 v{O0+16*i+8}, v{T+7} offset:{(i-1)*PSLOT+2048}""")
        a(f"""s_mov_b32 {s(sT5)}, {s(R['os'])}
        s_waitcnt vmcnt(0)
        v_mov_b32 v146, v{T+2}
        s_waitcnt lgkmcnt(6)""")
        def add9(d, x):
            for k in range(0, 8, 2): a(f"v_pk_add_f32 {v(d+k,2)}, {v(d+k,2)}, {v(x+k,2)}")
            a(f"v_add_f32 v{d+8}, v{d+8}, v{x+8}")
        add9(O0, O0 + 16)
        a("s_waitcnt lgkmcnt(3)"); add9(O0, O0 + 32)
        a("s_waitcnt lgkmcnt(0)"); add9(O0, O0 + 48)
        lo = struct.unpack("<I", struct.pack("<f", 2.0**-60))[0]; hi = struct.unpack("<I", struct.pack("<f", 2.0**60))[0]
        a(f"""v_pk_add_f32 v[150:151], {v(O0,2)}, {v(O0+2,2)}
        v_pk_add_f32 v[152:153], {v(O0+4,2)}, {v(O0+6,2)}
        v_pk_add_f32 v[150:151], v[150:151], v[152:153]
        v_add_f32 v150, v150, v151
        v_fma_f32 v150, v150, 0, v{O0+8}
        v_subrev_u32 v150, {hex(lo)}, v150
        v_cmp_ge_u32 vcc, {hex(hi-lo)}, v150""")
        if self.opt("force_fallback"): a("s_mov_b64 vcc, 0")
        a(f"""s_cmp_eq_u64 vcc, exec
        s_cbranch_scc0 L_fallback""")
        a.label("L_att_fin")
        if not self.opt("qst") and not self.opt("lst0"): self.stamp(9)
        a(f"v_rcp_f32 v150, v{O0+8}")
        for k in range(0, 8, 2): a(f"v_pk_mul_f32 {v(O0+k,2)}, {v(O0+k,2)}, v[150:151] op_sel_hi:[1,0]")
        for k in range(4): a(f"v_cvt_pk_bf16_f32 v{152+k}, v{O0+2*k}, v{O0+2*k+1}")
        for k in range(4): a(f"v_min_u32 v{152+k}, -2, v{152+k}")
        a(f"""s_lshl_b32 {s(sT2)}, {s(sCLS)}, 2
        v_add_u32 v151, {s(sT2)}, v1
        buffer_store_dwordx4 v[152:155], v146, {s(rWS,4)}, {s(sT5)} offen sc1""")
        ED = self.opt("edrain", 1)
        if ED == 1: a("s_waitcnt vmcnt(0)")
        if ED == 0:
            a(f"s_cmp_eq_u32 {s(sCLS)}, 0\ns_cbranch_scc1 L_nodrain\ns_waitcnt vmcnt(0)")
            a.label("L_nodrain")
        self.arrive(C_OE, 151, vONE)
        if self.opt("yby", 2) in (0, 1):
            a(f"s_cmp_eq_u32 {s(sCLS)}, {self.opt('yby', 2)}\ns_cbranch_scc0 L_noya")
            self.y_guard(lambda: (self.waitc(C_Y4, 4, vZ, vT, slp=2), self.y_assemble()), self.opt('pary', 0))
            a.label("L_noya")
        a(f"""s_or_b32 {s(sT2)}, {s(sWG)}, {s(sW4)}
        s_or_b32 {s(sT2)}, {s(sT2)}, {s(sCLS)}
        s_cmp_eq_u32 {s(sT2)}, 0
        s_cbranch_scc0 L_end
        v_mov_b32 v150, {s(sNONCE)}
        v_mov_b32 v151, 0
        s_mov_b64 exec, 1
        buffer_store_dword v150, v151, {s(rWS,4)}, 0 offen sc1
        s_mov_b64 exec, -1
        s_branch L_end""")
        self.fallback()

    def fallback(self):
        a = self.a
        Q0, O0, S0, KA = self.Q0, self.O0, self.S0, self.KA
        vKO, vVO, vIDX = self.vKO, self.vVO, self.vIDX
        C0 = O0 + 16
        a.label("L_fallback")
        a(f"""s_mul_i32 {s(sT2)}, {s(sW4)}, {16*KVT}
        v_subrev_u32 v7, {s(sT2)}, v{vKO}
        v_subrev_u32 v151, {s(sT2)}, v{vVO}
        v_mov_b32 v150, 0xff800000
        s_mov_b32 {s(sSOF)}, 0""")
        a.label("L_fb1")
        a(f"""buffer_load_dwordx4 {v(KA,4)}, v7, {s(rWS,4)}, {s(sSOF)} offen sc1
        s_waitcnt vmcnt(0)
        v_mfma_f32_32x32x16_bf16 {v(S0,16)}, {v(KA,4)}, {v(Q0,4)}, 0""")
        for k in range(8): a(f"v_max3_f32 v150, v150, v{S0+2*k}, v{S0+2*k+1}")
        a(f"""s_add_u32 {s(sSOF)}, {s(sSOF)}, {KVT}
        s_cmp_lt_u32 {s(sSOF)}, {64*KVT}
        s_cbranch_scc1 L_fb1
        v_mov_b32 v152, v150
        v_permlane32_swap_b32 v150, v152
        v_max_f32 v150, v150, v152""")
        for k in range(16): a(f"v_sub_f32 v{C0+k}, 0, v150")
        for k in range(16): a(f"v_mov_b32 v{O0+k}, 0")
        a(f"s_mov_b32 {s(sSOF)}, 0")
        a.label("L_fb2")
        a(f"""buffer_load_dwordx4 {v(KA,4)}, v7, {s(rWS,4)}, {s(sSOF)} offen sc1
        buffer_load_dwordx4 {v(KA+4,4)}, v151, {s(rWS,4)}, {s(sSOF)} offen offset:1024 sc1
        buffer_load_dwordx4 {v(KA+8,4)}, v151, {s(rWS,4)}, {s(sSOF)} offen offset:{V1OFF} sc1
        s_waitcnt vmcnt(0)
        v_mfma_f32_32x32x16_bf16 {v(S0,16)}, {v(KA,4)}, {v(Q0,4)}, {v(C0,16)}""")
        for k in range(16): a(f"v_exp_f32 v{S0+k}, v{S0+k}")
        a(f"""v_smfmac_f32_32x32x32_bf16 {v(O0,16)}, {v(KA+4,4)}, {v(S0,8)}, v{vIDX}
        v_smfmac_f32_32x32x32_bf16 {v(O0,16)}, {v(KA+8,4)}, {v(S0+8,8)}, v{vIDX}
        s_add_u32 {s(sSOF)}, {s(sSOF)}, {KVT}
        s_cmp_lt_u32 {s(sSOF)}, {64*KVT}
        s_nop 9
        s_cbranch_scc1 L_fb2
        s_nop 3
        s_branch L_att_fin""")

    def role_s(self):
        a = self.a; vL, vZ, vONE, vT = self.vL, self.vZ, self.vONE, self.vT
        a.label("L_role_s")
        a(f"s_setprio {self.opt('gprio', 2)}")
        sCH, sMH = sLOOP, sSOF
        a(f"""s_and_b32 {s(sCH)}, {s(sW4)}, 1
        s_lshr_b32 {s(sMH)}, {s(sW4)}, 1
        s_lshl_b32 {s(sT0)}, {s(sP)}, 2
        s_lshl_b32 {s(sT1)}, {s(sP)}, 9
        s_lshl_b32 {s(sT2)}, {s(sCH)}, 8
        s_add_u32 {s(sT1)}, {s(sT1)}, {s(sT2)}
        s_lshl_b32 {s(sT2)}, {s(sMH)}, 7
        s_add_u32 {s(sT1)}, {s(sT1)}, {s(sT2)}
        v_lshlrev_b32 v4, 1, v0
        s_mov_b32 {s(rA+2)}, 131072""")
        self.ptrs_ready(False)
        a(f"""s_load_dword {s(sT4)}, {s(pLDT,2)}, {s(sT0)}
        s_load_dword {s(sT5)}, {s(pDSK,2)}, {s(sT0)}""")
        if self.opt("pdelay", 0): self.s_precompute(); a("s_barrier")
        if self.opt("sbar", 0) == 3: a("s_barrier")
        for i, p in enumerate([pARE, pAIM, pBRE, pBIM, pCRE, pCIM]):
            a(f"s_mov_b32 {s(rA)}, {s(p)}\ns_mov_b32 {s(rA+1)}, {s(p+1)}")
            a(f"buffer_load_ushort v{8+i}, v4, {s(rA,4)}, {s(sT1)} offen")
        UE = self.opt("uearly", 0)
        if not self.opt("pdelay", 0):
            if not self.opt("sbar", 0): a("s_barrier")
            self.s_precompute()
        a(f"""s_lshl_b32 {s(sT2)}, {s(sW4)}, 12
        s_add_u32 {s(sT2)}, {s(sT2)}, {GEN}
        v_bfe_u32 v5, v0, 1, 2
        v_lshlrev_b32 v5, 4, v5
        v_lshl_add_u32 v5, v0, 6, v5
        v_add_u32 v150, {s(sT2)}, v5
        v_xor_b32 v151, 16, v150
        v_xor_b32 v152, 32, v150
        v_xor_b32 v153, 48, v150
        v_bfe_u32 v5, v0, 2, 2
        v_lshrrev_b32 v6, 5, v0
        v_lshl_add_u32 v6, v6, 3, v5
        v_lshlrev_b32 v6, 6, v6
        v_bfe_u32 v7, v0, 4, 1
        v_lshlrev_b32 v7, 1, v7
        v_bfe_u32 v14, v0, 1, 1
        v_add_u32 v7, v7, v14
        v_lshrrev_b32 v5, 1, v5
        v_xor_b32 v7, v7, v5
        v_lshl_add_u32 v6, v7, 4, v6
        v_and_b32 v7, 1, v0
        v_lshl_add_u32 v6, v7, 3, v6
        v_add_u32 v154, {s(sT2)}, v6
        v_xor_b32 v155, 32, v154""")
        if self.opt("sbar", 0) == 1: a("s_barrier")
        a(f"""s_waitcnt lgkmcnt(0)
        s_lshl_b32 {s(sT2)}, {s(sCH)}, 4
        s_lshr_b32 {s(sT4)}, {s(sT4)}, {s(sT2)}
        s_lshl_b32 {s(sT4)}, {s(sT4)}, 16
        s_lshr_b32 {s(sT5)}, {s(sT5)}, {s(sT2)}
        s_lshl_b32 {s(sT5)}, {s(sT5)}, 16
        v_mov_b32 v14, {fbits(LOG2E)}
        v_mul_f32 v15, {s(sT4)}, v14
        v_exp_f32 v15, v15
        v_cvt_pk_bf16_f32 v15, v15, v15
        v_and_b32 v15, 0xffff0000, v15
        s_waitcnt vmcnt({8 if UE else 0})""")
        self.stamp(1)
        for i in range(6): a(f"v_lshlrev_b32 v{8+i}, 16, v{8+i}")
        Z1, Z2, Z4, Z8, Z256, CB, TMP = 18, 20, 22, 24, 26, 16, 28
        a(f"""v_mul_f32 v8, v15, v8
        v_mul_f32 v9, v15, v9
        v_mul_f32 v10, v15, v10
        v_mul_f32 v11, v15, v11
        v_mul_f32 v8, v14, v8
        v_mul_f32 v9, 0.15915494, v9""")
        self.cmul(CB, 10, 12, TMP)
        def cpow(d, mult):
            if mult != 1:
                a(f"v_mul_f32 v30, {fbits(mult)}, v8\nv_mul_f32 v31, {fbits(mult)}, v9")
                x, y = 30, 31
            else:
                x, y = 8, 9
            a(f"""v_exp_f32 v28, v{x}
            v_rndne_f32 v29, v{y}
            v_sub_f32 v29, v{y}, v29
            v_cos_f32 v{d}, v29
            v_sin_f32 v{d+1}, v29
            v_mul_f32 v{d}, v28, v{d}
            v_mul_f32 v{d+1}, v28, v{d+1}""")
        cpow(Z1, 1); cpow(Z256, 256)
        self.cmul(Z2, Z1, Z1, TMP); self.cmul(Z4, Z2, Z2, TMP); self.cmul(Z8, Z4, Z4, TMP)
        RE, IM = 32, 48
        FB = 64
        FA = 96
        ACC = 112
        X0, X1 = 128, 130
        def wr(src):
            for c in range(4): a(f"ds_write_b128 v{150+c}, {v(src+4*c,4)}")
        def rdtr(dst):
            for ks in range(4):
                a(f"ds_read_b64_tr_b16 {v(dst+4*ks,2)}, v154 offset:{1024*ks}")
                a(f"ds_read_b64_tr_b16 {v(dst+4*ks+2,2)}, v155 offset:{1024*ks+256}")
        if self.opt("gst"): self.stamp(3)
        if self.opt("sbar", 0) == 2: a("s_barrier")
        a(f"v_mov_b32 v{X0}, 1.0\nv_mov_b32 v{X0+1}, 0")
        for j in range(0, 32, 2):
            if j > 0: self.cmul(X0, X1, Z8, TMP)
            self.cmul(X1, X0, Z8, TMP)
            a(f"v_cvt_pk_bf16_f32 v{RE+j//2}, v{X0}, v{X1}")
            a(f"v_cvt_pk_bf16_f32 v{IM+j//2}, -v{X0+1}, -v{X1+1}")
        if self.opt("gst"): self.stamp(4)
        wr(RE); rdtr(FB); wr(IM); rdtr(FB + 16)
        if self.opt("gst"): self.stamp(5)
        if self.opt("upf", 0):
            a(f"""s_and_b32 {s(sT0)}, {s(sP)}, 31
            s_lshl_b32 {s(sT0)}, {s(sT0)}, 2
            s_add_u32 {s(sT0)}, {s(sT0)}, {s(sW4)}
            s_lshl_b32 {s(sT0)}, {s(sT0)}, 14
            s_lshr_b32 {s(sT1)}, {s(sP)}, 5
            s_lshl_b32 {s(sT1)}, {s(sT1)}, 7
            s_add_u32 {s(sT0)}, {s(sT0)}, {s(sT1)}""")
            self.s_prefetch(pU, sT0, 16, 1024)
            if self.opt("upf", 0) == 2:
                a(f"s_add_u32 {s(sT0)}, {s(sT0)}, 64"); self.s_prefetch(pU, sT0, 16, 1024)
        B = [CB] + [132 + 2 * m for m in range(7)]
        for m in range(1, 8): self.cmul(B[m], B[m - 1], Z256, TMP)
        Y0, Y1 = 146, 148
        def pack(row, x, y):
            a(f"v_cvt_pk_bf16_f32 v{RE+row//2}, v{x}, v{y}")
            a(f"v_cvt_pk_bf16_f32 v{IM+row//2}, v{x+1}, v{y+1}")
        a("s_waitcnt lgkmcnt(8)")
        self.cmul(X1, CB, Z1, TMP); pack(0, CB, X1)
        for row in (2, 4, 6):
            self.cmul(X0, X1, Z1, TMP); self.cmul(X1, X0, Z1, TMP); pack(row, X0, X1)
        self.cmul(X0, B[1], Z2, TMP); pack(8, B[1], X0)
        self.cmul(X1, X0, Z2, TMP); pack(10, X1, X1)
        self.cmul(X0, X1, Z2, TMP); pack(12, X1, X0)
        self.cmul(X1, X0, Z2, TMP); pack(14, X1, X1)
        for q, m in ((16, 2), (20, 3)):
            self.cmul(X0, B[m], Z4, TMP); pack(q, B[m], X0)
            self.cmul(X1, X0, Z4, TMP); pack(q + 2, X1, X1)
        for q, m in ((24, 4), (26, 6), (28, 5), (30, 7)):
            self.cmul(X0, B[m], Z8, TMP); pack(q, B[m], X0)
        if self.opt("gst"): self.stamp(6)
        wr(RE); rdtr(FA)
        a("s_waitcnt lgkmcnt(0)")
        if self.opt("gst"): self.stamp(7)
        for ks in range(4):
            a(f"v_mfma_f32_32x32x16_bf16 {v(ACC,16)}, {v(FA+4*ks,4)}, {v(FB+4*ks,4)}, {'0' if ks==0 else v(ACC,16)}")
        wr(IM); rdtr(RE)
        a("s_waitcnt lgkmcnt(0)")
        for ks in range(4):
            a(f"v_mfma_f32_32x32x16_bf16 {v(ACC,16)}, {v(RE+4*ks,4)}, {v(FB+16+4*ks,4)}, {v(ACC,16)}")
        self.stamp(2)
        if self.opt("gprio", 2) != self.opt("sprio", 3): a(f"s_setprio {self.opt('sprio', 3)}")
        if self.opt("abl_s") == 1: self.arrive(C_YT, vZ, vONE); self.arrive(C_WO, vZ, vONE); a("s_branch L_end")
        UG = self.UG
        self.waitc(C_KV, 4, vZ, vT, slp=1)
        a("ds_read_b32 v167, v1 offset:128")
        if self.opt("uwait", 2): self.waitc({1: C_WQB, 2: C_FL, 3: C_QE}[self.opt("uwait", 2)], 4, vZ, vT, slp=2)
        self.y_guard(self.u_transpose, self.opt('paru', 1))
        a(f"v_mov_b32 v26, v{self.pCA}\nv_mov_b32 v27, v{self.pCB}")
        a(f"""s_lshl_b32 {s(sT2)}, {s(sCH)}, 12
        s_add_u32 {s(sT2)}, {s(sT2)}, {GEN+8192}
        v_lshl_add_u32 v5, v0, 4, {s(sT2)}
        s_lshl_b32 {s(sT2)}, {s(sCH)}, 2
        v_add_u32 v6, {s(sT2)}, v1
        s_cmp_eq_u32 {s(sMH)}, 0
        s_cbranch_scc1 L_s_expand""")
        for c in range(4): a(f"ds_write_b128 v5, {v(ACC+4*c,4)} offset:{1024*c}")
        a("s_waitcnt lgkmcnt(0)")
        self.arrive(C_KT0, 6, vONE)
        a("s_branch L_s_ucopy")
        a.label("L_s_expand")
        self.waitc(C_KT0, 1, 6, vT)
        for c in range(4): a(f"ds_read_b128 {v(32+4*c,4)}, v5 offset:{1024*c}")
        a(f"""v_lshl_add_u32 v7, v0, 4, s46
        v_mov_b64 v[48:49], 0
        v_mov_b64 v[50:51], 0""")
        for cp in range(2):
            for off in (0, 1024, 1136):
                a(f"ds_write_b128 v7, v[48:51] offset:{cp*KCOPY+off}")
        a("s_waitcnt lgkmcnt(6)")
        for k in range(0, 16, 2): a(f"v_pk_add_f32 {v(ACC+k,2)}, {v(ACC+k,2)}, {v(32+k,2)}")
        a(f"""s_mov_b64 exec, 1
        v_add_f32 v{ACC}, {s(sT5)}, v{ACC}
        s_mov_b64 exec, -1
        s_mov_b32 {s(sT2)}, 0x55555555
        s_mov_b32 {s(sT3)}, 0x55555555""")
        A = ACC
        a(f"""v_cvt_pk_bf16_f32 v32, v{A+3}, v{A+2}
        v_cvt_pk_bf16_f32 v33, v{A+1}, v{A}
        ds_write_b64 v{self.pE10}, v[32:33] offset:{144*15+8}
        v_cvt_pk_bf16_f32 v34, v{A+6}, v{A+5}
        v_cvt_pk_bf16_f32 v35, v{A+4}, v{A+4}
        ds_write_b64 v{self.pE10}, v[34:35] offset:{144*19+8}
        v_cvt_pk_bf16_f32 v36, v{A+10}, v{A+10}
        v_cvt_pk_bf16_f32 v37, v{A+9}, v{A+9}
        v_cvt_pk_bf16_f32 v38, v{A+9}, v{A+8}
        v_cvt_pk_bf16_f32 v39, v{A+8}, v{A+8}
        ds_write_b128 v{self.pE9}, v[36:39] offset:{144*23}""")
        for q, (ra, dst, blk) in enumerate(((A + 12, 40, 31), (A + 14, 44, 39))):
            a(f"""v_cndmask_b32 v11, v{ra+1}, v{ra}, {s(sT2,2)}
            v_cvt_pk_bf16_f32 v{dst}, v{ra+1}, v{ra+1}
            v_cvt_pk_bf16_f32 v{dst+1}, v{ra+1}, v11
            v_cvt_pk_bf16_f32 v{dst+2}, v{ra}, v{ra}
            v_cvt_pk_bf16_f32 v{dst+3}, v{ra}, v{ra}
            ds_write_b128 v{self.pE9}, {v(dst,4)} offset:{144*blk}""")
        for it in range(4):
            a(f"ds_read_b128 {v(64+8*it,4)}, v{self.pE8} offset:{144*(15+8*it)}")
            a(f"ds_read_b32 v{68+8*it}, v{self.pE8p} offset:{144*(15+8*it)}")
        for it in range(4):
            b = 64 + 8 * it
            a(f"s_waitcnt lgkmcnt({6-2*it+it})")
            for k in range(4): a(f"v_alignbit_b32 v{32+4*it+k}, v{b+k+1}, v{b+k}, 16")
            a(f"ds_write_b128 v{self.pE8}, {v(32+4*it,4)} offset:{KCOPY+144*(15+8*it)}")
        a.label("L_s_ucopy")
        self.y_guard(self.u_transpose2, self.opt('paru', 1))
        a("s_waitcnt lgkmcnt(0)")
        if self.opt("paru", 1): self.y_guard(lambda: self.s_publish(C_UT, WS_FLAG3), 1)
        else: self.s_publish(C_UT, WS_FLAG3)
        self.stamp(3)
        if self.opt("abl_s") == 3: self.arrive(C_YT, vZ, vONE); self.arrive(C_WO, vZ, vONE); a("s_branch L_end")
        self.waitc(C_QL, 4, vZ, vT, slp=2)
        self.srd(rB, pWO, 524288)
        a(f"""s_lshl_b32 {s(sT3)}, {s(sW4)}, 17
        s_lshl_b32 {s(sT2)}, {s(sR)}, 7
        s_add_u32 {s(sT3)}, {s(sT3)}, {s(sT2)}
        s_lshl_b32 {s(sT4)}, {s(sW4)}, 13
        s_add_u32 {s(sT4)}, {s(sT4)}, {XE}""")
        def wo_dma():
            a(f"s_mov_b32 m0, {s(sT4)}")
            for i in range(8):
                if i and i % self.opt("wosplit", 4) == 0: a("s_waitcnt vmcnt(0)")
                a(f"buffer_load_dwordx4 v{self.pWD}, {s(rB,4)}, {s(sT3)} offen lds")
                if i < 7: a("s_add_u32 m0, m0, 1024")
                a(f"s_add_u32 {s(sT3)}, {s(sT3)}, 8192")
        WOF = 96
        WIN = self.opt("woin", 0)
        a(f"v_mov_b32 v16, v{self.pWT}\nv_xor_b32 v17, 64, v{self.pWT}\ns_mov_b32 s44, {s(sT3)}\ns_mov_b32 s45, {s(sT4)}" if False else f"v_mov_b32 v16, v{self.pWT}\nv_xor_b32 v17, 64, v{self.pWT}")
        def wo_frags(rnd):
            a("s_waitcnt vmcnt(0)")
            for ks in range(4):
                for ct in range(2):
                    d = WOF + 32 * rnd + 8 * ks + 4 * ct
                    a(f"ds_read_b64_tr_b16 {v(d,2)}, v{16+ct} offset:{2048*ks}")
                    a(f"ds_read_b64_tr_b16 {v(d+2,2)}, v{16+ct} offset:{2048*ks+512}")
            a("s_waitcnt lgkmcnt(0)")
        if WIN:
            a(f"s_mov_b32 s42, {s(sT3)}\ns_mov_b32 s43, {s(sT4)}")
        else:
            for rnd in range(2): wo_dma(); wo_frags(rnd)
        a(f"""s_lshr_b32 {s(sT4)}, {s(sP)}, {5 + self.opt("paru", 1)}
        s_lshl_b32 {s(sT4)}, {s(sT4)}, {12 + self.opt("paru", 1)}
        s_add_u32 {s(sT4)}, {s(sT4)}, {WS_FLAG3}""")
        self.s_poll(sT4, 31)
        a(f"""s_lshl_b32 {s(sT1)}, {s(sP)}, 13
        s_lshl_b32 {s(sT2)}, {s(sW4)}, 11
        s_add_u32 {s(sT1)}, {s(sT1)}, {s(sT2)}
        s_add_u32 {s(sT1)}, {s(sT1)}, {WS_UT}
        v_lshlrev_b32 v4, 5, v0
        buffer_load_dwordx4 {v(UG,4)}, v4, {s(rWS,4)}, {s(sT1)} offen sc1
        buffer_load_dwordx4 {v(UG+4,4)}, v4, {s(rWS,4)}, {s(sT1)} offen offset:16 sc1""")
        a(f"""s_cmp_eq_u32 {s(sW4)}, 0
        s_cbranch_scc0 L_s_nouz
        v_lshrrev_b32 v8, 3, v0
        v_mul_u32_u24 v8, {UCOPY}, v8
        v_and_b32 v9, 7, v0
        v_lshl_add_u32 v8, v9, 4, v8
        v_add_u32 v8, {W}, v8
        v_mov_b64 v[48:49], 0
        v_mov_b64 v[50:51], 0
        ds_write_b128 v8, v[48:51]""")
        a.label("L_s_nouz")
        a(f"""s_mov_b32 {s(sT0)}, 0x05040100
        s_mov_b32 {s(sT1)}, 0x07060302
        s_waitcnt vmcnt(0)""")
        self.stamp(4)
        for k in range(4):
            a(f"v_perm_b32 v{32+k}, v{UG+2*k+1}, v{UG+2*k}, {s(sT0)}")
            a(f"v_perm_b32 v{36+k}, v{UG+2*k+1}, v{UG+2*k}, {s(sT1)}")
        for ch in range(2):
            d = 32 + 4 * ch
            for ph in range(4):
                off = ch * UCH + ph * UCOPY + 128 - 4 * (ph + 1)
                if ph == 3:
                    a(f"ds_write_b128 v{self.pUC}, {v(d,4)} offset:{off}")
                elif ph == 1:
                    a(f"ds_write_b64 v{self.pUC}, {v(d,2)} offset:{off}\nds_write_b64 v{self.pUC}, {v(d+2,2)} offset:{off+8}")
                else:
                    a(f"v_add_u32 v9, {off}, v{self.pUC}")
                    a(f"ds_write2_b32 v9, v{d}, v{d+1} offset0:0 offset1:1\nds_write2_b32 v9, v{d+2}, v{d+3} offset0:2 offset1:3")
        a("s_waitcnt lgkmcnt(0)")
        self.arrive(C_KU, vZ, vONE)
        T0, T1 = 64, 80
        vA, vB = 26, 27
        if self.opt("wospf", 0):
            a(f"""s_and_b32 {s(sT0)}, {s(sP)}, 31
            s_lshl_b32 {s(sT0)}, {s(sT0)}, 2
            s_add_u32 {s(sT0)}, {s(sT0)}, {s(sW4)}
            s_lshl_b32 {s(sT0)}, {s(sT0)}, 12""")
            self.s_prefetch(pWO, sT0, 32 * self.opt("wospf"), 128 // self.opt("wospf"))
        if self.opt("wopf", 0):
            self.srd(rB, pWO, 524288)
            self.l2_prefetch(rB, self.opt("wopf"), 10, 11, sT4)
        self.waitc(C_KU, 4, vZ, vT)
        self.stamp(5)
        if self.opt("abl_s") == 5: self.arrive(C_YT, vZ, vONE); self.arrive(C_WO, vZ, vONE); a("s_branch L_end")
        if self.opt("cprio", 3) != 3: a(f"s_setprio {self.opt('cprio')}")
        a(f"s_mov_b32 {s(sT4)}, {self.opt('convit', 8)}")
        def step(u, first=False):
            b = 32 + 16 * (u & 1)
            ao = 144 * 15 + 16 * (7 - 2 * u)
            a(f"""ds_read_b128 {v(b,4)}, v{vA} offset:{ao}
            ds_read_b128 {v(b+8,4)}, v{vB} offset:{32*u}
            s_waitcnt lgkmcnt(0)
            v_mfma_f32_32x32x16_bf16 {v(T0,16)}, {v(b,4)}, {v(b+8,4)}, {'0' if first else v(T0,16)}
            ds_read_b128 {v(b+12,4)}, v{vB} offset:{32*u+2048}
            s_waitcnt lgkmcnt(0)
            v_mfma_f32_32x32x16_bf16 {v(T1,16)}, {v(b,4)}, {v(b+12,4)}, {'0' if first else v(T1,16)}
            ds_read_b128 {v(b+4,4)}, v{vA} offset:{ao+2304}
            s_waitcnt lgkmcnt(0)
            v_mfma_f32_32x32x16_bf16 {v(T1,16)}, {v(b+4,4)}, {v(b+8,4)}, {v(T1,16)}""")
            if self.opt("cslp"): a(f"s_sleep {self.opt('cslp')}")
        def dma1():
            a(f"""buffer_load_dwordx4 v{self.pWD}, {s(rB,4)}, s42 offen lds
            s_add_u32 m0, m0, 1024
            s_add_u32 s42, s42, 8192""")
        for part in range(2 if WIN else 1):
            if WIN: a(f"s_mov_b32 m0, s43\ns_mov_b32 {s(sT4)}, 4")
            if part == 0:
                step(0, True)
                a("s_branch L_conv1")
            if self.opt("calign", 1): a(".p2align 6")
            a.label(f"L_conv_{part}")
            step(0)
            if part == 0: a.label("L_conv1")
            if WIN: dma1()
            step(1); step(2)
            if WIN: dma1()
            step(3)
            a(f"""v_subrev_u32 v{vA}, 144, v{vA}
            v_add_u32 v{vB}, 128, v{vB}
            s_sub_u32 {s(sT4)}, {s(sT4)}, 1
            s_cmp_lg_u32 {s(sT4)}, 0
            s_cbranch_scc1 L_conv_{part}""")
            if WIN: wo_frags(part)
        self.stamp(6)
        if self.opt("cprio", 3) != 3: a(f"s_setprio {self.opt('sprio', 3)}")
        if self.opt("abl_s") == 6: self.arrive(C_YT, vZ, vONE); self.arrive(C_WO, vZ, vONE); a("s_branch L_end")
        def xchg_write(base, accs, ymode=False):
            a(f"""s_lshl_b32 {s(sT2)}, {s(sW4)}, 11
            s_add_u32 {s(sT2)}, {s(sT2)}, {base}
            v_lshl_add_u32 v10, v0, 4, {s(sT2)}
            s_lshl_b32 {s(sT2)}, {s(sW4)}, 13
            s_add_u32 {s(sT2)}, {s(sT2)}, {base}
            v_lshl_add_u32 v11, v0, 4, {s(sT2)}""")
            for q in range(4):
                r0, r1 = (accs+8*q, accs+8*q+4) if not ymode else (accs+16*(q>>1)+4*(q&1), accs+16*(q>>1)+8+4*(q&1))
                a(f"ds_write_b128 v10, {v(r0,4)} offset:{8192*q}")
                a(f"ds_write_b128 v10, {v(r1,4)} offset:{8192*q+1024}")
        def xchg_read(dst):
            for w in range(4):
                a(f"ds_read_b128 {v(dst+8*w,4)}, v11 offset:{2048*w}")
                a(f"ds_read_b128 {v(dst+8*w+4,4)}, v11 offset:{2048*w+1024}")
        a("s_waitcnt lgkmcnt(0)")
        xchg_write(YX, T0, True)
        a("s_waitcnt lgkmcnt(0)")
        self.arrive(C_Y, vZ, vONE)
        self.srd(rC, pOUT, 4194304)
        a(f"""s_lshl_b32 {s(sT1)}, {s(sP)}, 13
        s_lshl_b32 {s(sT2)}, {s(sW4)}, 11
        s_add_u32 {s(sT1)}, {s(sT1)}, {s(sT2)}
        s_add_u32 {s(sT1)}, {s(sT1)}, {WS_YT}""")
        self.waitc(C_Y, 4, vZ, vT)
        xchg_read(32)
        a("s_waitcnt lgkmcnt(0)")
        for k in range(0, 16, 2): a(f"v_pk_add_f32 {v(32+k,2)}, {v(32+k,2)}, {v(48+k,2)}")
        for e in range(4):
            a(f"v_cvt_pk_bf16_f32 v{48+2*e}, v{36+e}, v{44+e}")
            a(f"v_cvt_pk_bf16_f32 v{49+2*e}, v{32+e}, v{40+e}")
        for e in range(4):
            a(f"buffer_store_dwordx2 {v(48+2*e,2)}, v{self.pYS}, {s(rWS,4)}, {s(sT1)} offen offset:{256*e} sc1")
        a(f"""s_lshl_b32 {s(sT1)}, {s(sG)}, 6
        s_lshl_b32 {s(sT2)}, {s(sR)}, 2
        s_add_u32 {s(sT1)}, {s(sT1)}, {s(sT2)}
        s_add_u32 {s(sT1)}, {s(sT1)}, {s(sW4)}
        s_lshl_b32 {s(sT1)}, {s(sT1)}, 10
        s_add_u32 {s(sT1)}, {s(sT1)}, {WS_O}
        s_add_u32 {s(sT2)}, {s(sT1)}, 32768
        v_mov_b64 v[20:21], -1
        v_mov_b64 v[22:23], -1
        v_lshlrev_b32 v14, 4, v0
        buffer_store_dwordx4 v[20:23], v14, {s(rWS,4)}, {s(sT1)} offen sc1
        buffer_store_dwordx4 v[20:23], v14, {s(rWS,4)}, {s(sT2)} offen sc1""")
        self.s_publish(C_YT, WS_FLAG4)
        self.stamp(7)
        if self.opt("abl_s") == 7: self.arrive(C_YT, vZ, vONE); self.arrive(C_WO, vZ, vONE); a("s_branch L_end")
        self.stamp(8)
        if self.opt("abl_s") == 8: a("s_branch L_end")
        self.y_poll()
        if self.opt("yby", 2) == 2: self.y_guard(self.y_assemble, self.opt('pary', 0))
        else: self.arrive(C_Y4, vZ, vONE)
        if self.opt("abl_s") == 9: a("s_branch L_end")
        a(f"""s_lshl_b32 {s(sT3)}, {s(sG)}, 16
        s_lshl_b32 {s(sT2)}, {s(sW4)}, 13
        s_add_u32 {s(sT3)}, {s(sT3)}, {s(sT2)}
        s_add_u32 {s(sT3)}, {s(sT3)}, {WS_O}
        s_lshl_b32 {s(sT1)}, {s(sG)}, 17
        s_lshl_b32 {s(sT2)}, {s(sR)}, 7
        s_add_u32 {s(sT1)}, {s(sT1)}, {s(sT2)}
        s_lshl_b32 {s(sT2)}, {s(sW4)}, 14
        s_add_u32 {s(sT1)}, {s(sT1)}, {s(sT2)}
        v_mov_b32 v12, v{self.pOS}
        v_mov_b32 v10, v{self.pOW}
        v_mov_b32 v11, v{self.pOR}""")
        OF = 32; AC = 64
        def oxw():
            for q in range(4):
                a(f"ds_write_b128 v10, {v(AC+8*q,4)} offset:{9344*q}")
                a(f"ds_write_b128 v10, {v(AC+8*q+4,4)} offset:{9344*q+1152}")
        def oxr():
            for w in range(4):
                a(f"ds_read_b128 {v(32+8*w,4)}, v11 offset:{2304*w}")
                a(f"ds_read_b128 {v(36+8*w,4)}, v11 offset:{2304*w+1152}")
        def omm(h):
            for ct in range(2):
                w = WOF + 8 * h + 4 * ct
                a(f"v_mfma_f32_32x32x16_bf16 {v(AC+16*ct,16)}, {v(w,4)}, {v(OF+4*h,4)}, {'0' if h==0 else v(AC+16*ct,16)}")
        if self.opt("rpipe", 3):
            self.rounds_piped(OF, AC, omm, oxw)
            return
        a(f"""s_mov_b32 {s(sT5)}, 0
        v_mov_b32 v16, v1""")
        a.label("L_round")
        a(f"s_add_u32 {s(sT4)}, {s(sT3)}, 4096")
        if self.opt("rst"): self.stamp(3)
        self.waitc(C_OE, 4, 16, vT, slp=1)
        if self.opt("rst"): self.stamp(4)
        LP = self.opt("lightp", 1)
        if LP:
            if LP == 1: a(f"s_cmp_eq_u32 {s(sT5)}, 0\ns_cbranch_scc0 L_opoll")
            a(f"""v_lshlrev_b32 v18, 10, v0
            s_mov_b64 exec, 0xff""")
            a.label("L_lpoll")
            a(f"""buffer_load_dword v19, v18, {s(rWS,4)}, {s(sT3)} offen offset:1020 sc1
            s_waitcnt vmcnt(0)
            v_cmp_eq_u32 vcc, -1, v19
            s_and_b64 exec, exec, vcc
            s_cbranch_execz L_lok
            s_sleep {self.opt('lslp', 0)}
            s_sub_u32 {s(sBUD)}, {s(sBUD)}, 1
            s_cbranch_scc0 L_lpoll
            s_mov_b32 {s(sBUD)}, 0""")
            a.label("L_lok")
            a("s_mov_b64 exec, -1")
        a.label("L_opoll")
        if self.opt("rst"): self.stamp(5)
        for h in range(8): a(f"buffer_load_dwordx4 {v(OF+4*h,4)}, v14, {s(rWS,4)}, {s(sT3 if h<4 else sT4)} offen offset:{1024*(h&3)} sc1")
        for h in range(8):
            a(f"s_waitcnt vmcnt({7-h})")
            b = OF + 4 * h
            a(f"v_max_u32 v15, v{b}, v{b+1}" if h == 0 else f"v_max3_u32 v15, v15, v{b}, v{b+1}")
            if self.opt("ospec", 1): omm(h)
            a(f"v_max3_u32 v15, v15, v{b+2}, v{b+3}")
        a(f"""v_cmp_ne_u32 vcc, -1, v15
        s_cmp_eq_u64 vcc, exec
        s_cbranch_scc1 L_ook
        s_sub_u32 {s(sBUD)}, {s(sBUD)}, 1 ; nocount
        s_cbranch_scc0 L_opoll ; nocount
        s_mov_b32 {s(sBUD)}, 0 ; nocount""")
        a.label("L_ook")
        if self.dbg:
            a(f"s_cmp_eq_u32 {s(sT5)}, 0\ns_cbranch_scc0 L_st10")
            self.stamp(9)
            a.label("L_st10")
            self.stamp(10)
        if not self.opt("ospec", 1):
            for h in range(8): omm(h)
        oxw()
        a("s_waitcnt lgkmcnt(0)")
        self.sync4(C_O1, 16, vONE, vT, slp=0)
        if self.opt("rst"): self.stamp(6)
        oxr()
        a("s_waitcnt lgkmcnt(4)")
        for k in range(0, 8, 2): a(f"v_pk_add_f32 {v(32+k,2)}, {v(32+k,2)}, {v(40+k,2)}")
        a("s_waitcnt lgkmcnt(2)")
        for k in range(0, 8, 2): a(f"v_pk_add_f32 {v(32+k,2)}, {v(32+k,2)}, {v(48+k,2)}")
        a("s_waitcnt lgkmcnt(0)")
        for k in range(0, 8, 2): a(f"v_pk_add_f32 {v(32+k,2)}, {v(32+k,2)}, {v(56+k,2)}")
        for k in range(4): a(f"v_cvt_pk_bf16_f32 v{20+k}, v{32+2*k}, v{33+2*k}")
        a(f"""buffer_store_dwordx4 v[20:23], v12, {s(rC,4)}, {s(sT1)} offen {self.opt_sc('osc', 0)}
        s_cmp_eq_u32 {s(sT5)}, 0
        s_cbranch_scc0 L_end
        s_mov_b32 {s(sT5)}, 1
        s_add_u32 {s(sT3)}, {s(sT3)}, 32768
        s_add_u32 {s(sT1)}, {s(sT1)}, 65536
        v_add_u32 v16, 4, v16
        v_add_u32 v10, {OX2-OX1}, v10
        v_add_u32 v11, {OX2-OX1}, v11
        s_branch L_round""")

    def rounds_piped(self, OF, AC, omm, oxw):
        a = self.a; vL, vZ, vONE, vT = self.vL, self.vZ, self.vONE, self.vT
        def loads():
            for h in range(8): a(f"buffer_load_dwordx4 {v(OF+4*h,4)}, v14, {s(rWS,4)}, {s(sT3 if h<4 else sT4)} offen offset:{1024*(h&3)} sc1")
        def check_mm(Lok):
            for h in range(8):
                a(f"s_waitcnt vmcnt({7-h})")
                b = OF + 4 * h
                a(f"v_max_u32 v15, v{b}, v{b+1}" if h == 0 else f"v_max3_u32 v15, v15, v{b}, v{b+1}")
                omm(h)
                a(f"v_max3_u32 v15, v15, v{b+2}, v{b+3}")
            a(f"""v_cmp_ne_u32 vcc, -1, v15
            s_cmp_eq_u64 vcc, exec
            s_cbranch_scc1 {Lok}""")
        def reduce(dst):
            for w in range(4):
                a(f"ds_read_b128 {v(AC+8*w,4)}, v11 offset:{2304*w}")
                a(f"ds_read_b128 {v(AC+4+8*w,4)}, v11 offset:{2304*w+1152}")
            for w in range(1, 4):
                a(f"s_waitcnt lgkmcnt({6-2*w})")
                for k in range(0, 8, 2): a(f"v_pk_add_f32 {v(AC+k,2)}, {v(AC+k,2)}, {v(AC+8*w+k,2)}")
            for k in range(4): a(f"v_cvt_pk_bf16_f32 v{dst+k}, v{AC+2*k}, v{AC+2*k+1}")
        a(f"s_add_u32 {s(sT4)}, {s(sT3)}, 4096")
        self.waitc(C_OE, self.opt("oeth", 4), vZ, vT, slp=1)
        a(f"""v_lshlrev_b32 v18, 10, v0
        s_mov_b64 exec, 0xff""")
        a.label("L_lpoll")
        a(f"""buffer_load_dword v19, v18, {s(rWS,4)}, {s(sT3)} offen offset:1020 sc1
        s_waitcnt vmcnt(0)
        v_cmp_eq_u32 vcc, -1, v19
        s_and_b64 exec, exec, vcc
        s_cbranch_execz L_lok
        s_sub_u32 {s(sBUD)}, {s(sBUD)}, 1
        s_cbranch_scc0 L_lpoll
        s_mov_b32 {s(sBUD)}, 0""")
        a.label("L_lok")
        a("s_mov_b64 exec, -1")
        a.label("L_o0")
        loads(); check_mm("L_o0ok")
        a(f"""s_sub_u32 {s(sBUD)}, {s(sBUD)}, 1 ; nocount
        s_cbranch_scc0 L_o0 ; nocount
        s_mov_b32 {s(sBUD)}, 0 ; nocount""")
        a.label("L_o0ok")
        self.stamp(9)
        if self.opt("tsplit", 1):
            a(f"""s_add_u32 {s(sT3)}, {s(sT3)}, 32768
            s_add_u32 {s(sT4)}, {s(sT4)}, 32768
            s_and_b32 {s(sT2)}, {s(sW4)}, 1
            s_mul_i32 {s(sT2)}, {s(sT2)}, {OX2-OX1}
            v_add_u32 v9, {s(sT2)}, v10
            s_sub_u32 {s(sT2)}, {OX2-OX1}, {s(sT2)}
            v_add_u32 v8, {s(sT2)}, v10
            v_mov_b32 v10, v9
            s_nop 3""")
            oxw()
            a("v_mov_b32 v10, v8")
            if self.opt("rst"): self.stamp(3)
            a.label("L_o1")
            self.waitc(C_OL, 4, vZ, vT, slp=0)
            if self.opt("lp1", 0):
                a("s_mov_b64 exec, 0xff")
                a.label("L_lpoll1")
                a(f"""buffer_load_dword v19, v18, {s(rWS,4)}, {s(sT3)} offen offset:1020 sc1
                s_waitcnt vmcnt(0)
                v_cmp_eq_u32 vcc, -1, v19
                s_and_b64 exec, exec, vcc
                s_cbranch_execz L_lok1
                s_sub_u32 {s(sBUD)}, {s(sBUD)}, 1
                s_cbranch_scc0 L_lpoll1
                s_mov_b32 {s(sBUD)}, 0""")
                a.label("L_lok1")
                a("s_mov_b64 exec, -1")
            if self.opt("rst"): self.stamp(5)
            loads(); check_mm("L_o1ok")
            a(f"""s_sub_u32 {s(sBUD)}, {s(sBUD)}, 1 ; nocount
            s_cbranch_scc0 L_o1 ; nocount
            s_mov_b32 {s(sBUD)}, 0 ; nocount""")
            a.label("L_o1ok")
            self.stamp(10)
            a(f"v_add_u32 v9, {OX2-OX1}, v11\ns_add_u32 {s(sT2)}, {s(sT1)}, 65536\ns_nop 3")
            oxw()
            a("s_waitcnt lgkmcnt(0)\ns_barrier")
            if self.opt("rst"): self.stamp(6)
            for t, (ad, B) in enumerate(((11, AC), (9, OF))):
                for w in range(4):
                    a(f"ds_read_b128 {v(B+8*w,4)}, v{ad} offset:{2304*w}")
                    a(f"ds_read_b128 {v(B+4+8*w,4)}, v{ad} offset:{2304*w+1152}")
                if t == 0: a("s_waitcnt lgkmcnt(4)"); [a(f"v_pk_add_f32 {v(B+k,2)}, {v(B+k,2)}, {v(B+8+k,2)}") for k in range(0, 8, 2)]
            for t, B in enumerate((AC, OF)):
                for w in range(1, 4):
                    if t == 0 and w == 1: continue
                    a(f"s_waitcnt lgkmcnt({(8 if t == 0 else 0) + 6 - 2*w})")
                    for k in range(0, 8, 2): a(f"v_pk_add_f32 {v(B+k,2)}, {v(B+k,2)}, {v(B+8*w+k,2)}")
                for k in range(4): a(f"v_cvt_pk_bf16_f32 v{20+4*t+k}, v{B+2*k}, v{B+2*k+1}")
                a(f"buffer_store_dwordx4 {v(20+4*t,4)}, v12, {s(rC,4)}, {s(sT1 if t == 0 else sT2)} offen {self.opt_sc('osc', 0)}")
            a("s_branch L_end")
            return
        a(f"s_add_u32 {s(sT3)}, {s(sT3)}, 32768\ns_add_u32 {s(sT4)}, {s(sT4)}, 32768")
        if self.opt("rpipe", 3) == 2: loads()
        oxw()
        a("s_waitcnt lgkmcnt(0)")
        self.sync4(C_O1, vZ, vONE, vT, slp=0)
        if self.opt("rpipe", 3) == 1: loads()
        if self.opt("rpipe", 3) == 3:
            a(f"""ds_read_b32 v3, v1 offset:{C_OL}
            s_waitcnt lgkmcnt(0)
            v_readfirstlane_b32 {s(sT5)}, v3
            s_cmp_ge_u32 {s(sT5)}, {self.opt('rthr', 4)}
            s_cbranch_scc0 L_nopf""")
            loads()
            a.label("L_nopf")
        reduce(20)
        if self.opt("rpipe", 3) == 3:
            a(f"s_cmp_ge_u32 {s(sT5)}, {self.opt('rthr', 4)}\ns_cbranch_scc1 L_pfd")
            self.waitc(C_OL, 4, vZ, vT, slp=0)
            loads()
            a.label("L_pfd")
        a(f"v_add_u32 v10, {OX2-OX1}, v10\nv_add_u32 v11, {OX2-OX1}, v11")
        if self.opt("rst"): self.stamp(3)
        a.label("L_o1")
        if self.opt("rst"): self.stamp(5)
        check_mm("L_o1ok")
        n0 = len(a.lines)
        self.waitc(C_OL, 4, vZ, vT, slp=0)
        loads()
        a(f"""s_sub_u32 {s(sBUD)}, {s(sBUD)}, 1
        s_cbranch_scc0 L_o1
        s_mov_b32 {s(sBUD)}, 0
        s_waitcnt vmcnt(0)""")
        for i in range(n0, len(a.lines)):
            l = a.lines[i]
            if not l.endswith(":") and "nocount" not in l and not l.startswith(("v_readfirst", "s_cmp")): a.lines[i] = l + " ; nocount"
        a.label("L_o1ok")
        self.stamp(10)
        a(f"""buffer_store_dwordx4 v[20:23], v12, {s(rC,4)}, {s(sT1)} offen {self.opt_sc('osc', 0)}
        s_add_u32 {s(sT1)}, {s(sT1)}, 65536
        s_nop 7""")
        oxw()
        a("s_waitcnt lgkmcnt(0)")
        if self.opt("fbar", 1): a("s_barrier")
        else: self.sync4(C_O2, vZ, vONE, vT, slp=0)
        if self.opt("rst"): self.stamp(6)
        reduce(24)
        a(f"buffer_store_dwordx4 v[24:27], v12, {s(rC,4)}, {s(sT1)} offen {self.opt_sc('osc', 0)}\ns_branch L_end")

    UG = 64
    pE10, pE9, pE8, pE8p, pCA, pCB, pUC = 146, 147, 148, 149, 156, 157, 166
    pWT, pWD, pYS, pOW, pOR, pOS = 160, 161, 162, 163, 164, 165
    def s_precompute(self):
        a = self.a; sCH, sMH = sLOOP, sSOF
        a(f"""s_mul_i32 s46, {s(sCH)}, {KCH}
        s_add_u32 s46, s46, {R0+256}
        v_and_b32 v16, 7, v0
        v_lshrrev_b32 v17, 5, v0
        v_lshrrev_b32 v18, 3, v0
        v_and_b32 v19, 3, v18
        v_mul_u32_u24 v19, 144, v19
        v_lshl_add_u32 v19, v16, 4, v19
        v_add_u32 v19, s46, v19
        v_lshlrev_b32 v20, 3, v17
        v_sub_u32 v{self.pE10}, v19, v20
        v_mul_u32_u24 v20, 576, v17
        v_add_u32 v{self.pE9}, v19, v20
        v_mul_u32_u24 v19, 144, v18
        v_lshl_add_u32 v19, v16, 4, v19
        v_add_u32 v{self.pE8}, s46, v19
        v_cmp_eq_u32 {s(sT2,2)}, 0, v16
        v_mov_b32 v19, 16
        v_cndmask_b32 v19, v19, 32, {s(sT2,2)}
        v_sub_u32 v{self.pE8p}, v{self.pE8}, v19
        s_mul_i32 {s(sT2)}, {s(sMH)}, 1152
        s_sub_u32 {s(sT3)}, s46, {s(sT2)}
        v_and_b32 v19, 15, v0
        v_mul_u32_u24 v19, 144, v19
        v_bfe_u32 v21, v0, 4, 1
        v_mul_u32_u24 v22, {KCOPY}, v21
        v_add_u32 v19, v19, v22
        v_lshlrev_b32 v22, 4, v17
        v_sub_u32 v19, v19, v22
        v_add_u32 v{self.pCA}, {s(sT3)}, v19
        s_mul_i32 {s(sT2)}, {s(sCH)}, {UCH}
        s_lshl_b32 {s(sT3)}, {s(sMH)}, 10
        s_add_u32 {s(sT2)}, {s(sT2)}, {s(sT3)}
        s_add_u32 {s(sT2)}, {s(sT2)}, {W}
        v_and_b32 v19, 3, v0
        v_mul_u32_u24 v19, {UCOPY}, v19
        v_bfe_u32 v23, v0, 2, 3
        v_lshl_add_u32 v19, v23, 4, v19
        v_add_u32 v19, v19, v22
        v_add_u32 v{self.pCB}, {s(sT2)}, v19
        s_lshl_b32 {s(sT2)}, {s(sW4)}, 10
        s_add_u32 {s(sT2)}, {s(sT2)}, {W}
        v_lshl_add_u32 v{self.pUC}, v0, 4, {s(sT2)}
        v_and_b32 v19, 31, v0
        v_lshlrev_b32 v23, 3, v19
        v_lshl_add_u32 v{self.pYS}, v17, 10, v23
        v_and_b32 v23, 2, v18
        v_lshlrev_b32 v23, 1, v23
        v_xor_b32 v23, v16, v23
        v_lshlrev_b32 v24, 10, v18
        v_lshl_add_u32 v{self.pWD}, v23, 4, v24
        v_bfe_u32 v23, v0, 2, 2
        v_lshl_add_u32 v24, v17, 3, v23
        v_lshlrev_b32 v24, 7, v24
        v_and_b32 v23, 2, v23
        v_lshl_add_u32 v24, v23, 5, v24
        v_lshl_add_u32 v24, v21, 5, v24
        v_and_b32 v25, 1, v0
        v_lshl_add_u32 v24, v25, 4, v24
        v_bfe_u32 v23, v0, 1, 1
        v_lshl_add_u32 v24, v23, 3, v24
        s_lshl_b32 {s(sT2)}, {s(sW4)}, 13
        s_add_u32 {s(sT2)}, {s(sT2)}, {XE}
        v_add_u32 v{self.pWT}, {s(sT2)}, v24
        v_lshl_add_u32 v19, v19, 4, v20
        s_mul_i32 {s(sT2)}, {s(sW4)}, 2304
        s_add_u32 {s(sT2)}, {s(sT2)}, {W}
        v_add_u32 v{self.pOW}, {s(sT2)}, v19
        v_lshlrev_b32 v19, 4, v18
        v_mul_u32_u24 v23, 576, v25
        v_add_u32 v19, v19, v23
        v_bfe_u32 v23, v0, 1, 2
        v_mul_u32_u24 v23, 9344, v23
        v_add_u32 v19, v19, v23
        s_lshl_b32 {s(sT2)}, {s(sW4)}, 7
        s_add_u32 {s(sT2)}, {s(sT2)}, {W}
        v_add_u32 v{self.pOR}, {s(sT2)}, v19
        v_lshlrev_b32 v19, 11, v18
        v_lshl_add_u32 v{self.pOS}, v16, 4, v19""")
    def blk_ids(self, par):
        a = self.a
        a(f"""s_lshr_b32 {s(sT4)}, {s(sP)}, 5
        s_and_b32 {s(sT0)}, {s(sP)}, 31
        s_lshl_b32 {s(sT0)}, {s(sT0)}, 1
        s_and_b32 {s(sT2)}, {s(sW4)}, 1
        s_add_u32 {s(sT0)}, {s(sT0)}, {s(sT2)}""")
        if par:
            a(f"""s_lshr_b32 {s(sT2)}, {s(sW4)}, 1
            s_xor_b32 {s(sT4)}, {s(sT4)}, {s(sT2)}""")
    def swap44(self, b):
        for i in range(4):
            for j in range(i + 1, 4): self.a(f"v_swap_b32 v{b+4*i+j}, v{b+4*j+i}")
    def u_transpose(self):
        a = self.a; B = 96
        self.blk_ids(self.opt("paru", 1))
        a(f"""s_mov_b32 {s(rB)}, {s(pU)}
        s_mov_b32 {s(rB+1)}, {s(pU+1)}
        s_mov_b32 {s(rB+2)}, 2097152
        s_lshl_b32 {s(sT1)}, {s(sT0)}, 15
        s_lshl_b32 {s(sT2)}, {s(sT4)}, 7
        s_add_u32 {s(sT1)}, {s(sT1)}, {s(sT2)}
        v_and_b32 v29, 7, v0
        v_lshrrev_b32 v30, 3, v0
        v_lshlrev_b32 v28, 12, v30
        v_lshl_add_u32 v28, v29, 4, v28""")
        for i in range(4): a(f"buffer_load_dwordx4 {v(B+4*i,4)}, v28, {s(rB,4)}, {s(sT1)} offen offset:{1024*i}")
        a(f"""s_lshl_b32 s47, {s(sT4)}, 18
        s_lshl_b32 {s(sT2)}, {s(sT0)}, 7
        s_add_u32 s47, s47, {s(sT2)}
        s_add_u32 s47, s47, {WS_UT}
        v_lshlrev_b32 v28, 15, v29
        v_lshl_add_u32 v28, v30, 4, v28""")
    def u_transpose2(self):
        a = self.a; B = 96
        a("s_waitcnt vmcnt(0)")
        self.swap44(B)
        for j in range(4):
            if j: a("s_add_u32 s47, s47, 8192")
            a(f"buffer_store_dwordx4 {v(B+4*j,4)}, v28, {s(rWS,4)}, s47 offen sc1")
    def y_poll(self):
        a = self.a
        par = self.opt("pary", 0)
        a(f"""s_lshr_b32 {s(sT4)}, {s(sP)}, {5 + par}
        s_lshl_b32 {s(sT2)}, {s(sT4)}, {12 + par}
        s_add_u32 {s(sT2)}, {s(sT2)}, {WS_FLAG4}""")
        self.s_poll(sT2, 63 if par else 31, slp=8)
    def y_assemble(self):
        a = self.a
        self.srd(rC, pOUT, 4194304)
        self.blk_ids(self.opt("pary", 0))
        a(f"""s_lshl_b32 {s(sT1)}, {s(sT4)}, 18
        s_lshl_b32 {s(sT2)}, {s(sT0)}, 7
        s_add_u32 {s(sT1)}, {s(sT1)}, {s(sT2)}
        s_add_u32 {s(sT1)}, {s(sT1)}, {WS_YT}
        v_and_b32 v5, 7, v0
        v_lshrrev_b32 v6, 3, v0
        v_lshlrev_b32 v4, 15, v6
        v_lshl_add_u32 v4, v5, 4, v4""")
        for i in range(4):
            if i: a(f"s_add_u32 {s(sT1)}, {s(sT1)}, 8192")
            a(f"buffer_load_dwordx4 {v(32+4*i,4)}, v4, {s(rWS,4)}, {s(sT1)} offen sc1")
        a(f"""s_lshl_b32 {s(sT1)}, {s(sT0)}, 16
        s_lshl_b32 {s(sT2)}, {s(sT4)}, 7
        s_add_u32 {s(sT1)}, {s(sT1)}, {s(sT2)}
        s_add_u32 {s(sT1)}, {s(sT1)}, 1024
        s_add_u32 {s(sT2)}, {s(sT1)}, 4096
        v_lshlrev_b32 v4, 13, v5
        v_lshl_add_u32 v4, v6, 4, v4
        s_waitcnt vmcnt(0)""")
        self.swap44(32)
        for t in range(4):
            a(f"buffer_store_dwordx4 {v(32+4*t,4)}, v4, {s(rC,4)}, {s(sT1 if t < 2 else sT2)} offen offset:{2048*(t&1)} {self.opt_sc('ysc', 1)}")
        a("s_nop 1")
    def y_guard(self, f, par):
        L = self.a.newlabel("Ly")
        if par: self.a(f"s_bitcmp0_b32 {s(sP)}, 5\ns_cbranch_scc0 {L}")
        else: self.a(f"s_cmp_ge_u32 {s(sW4)}, 2\ns_cbranch_scc0 {L}")
        f()
        self.a.label(L)
    def opt_sc(self, k, d=0):
        return {0: "", 1: "sc1", 2: "nt", 3: "sc0 sc1"}[self.opt(k, d)]

    def finish(self):
        a = self.a
        a.label("L_end")
        if self.opt("diagm"):
            i = self.opt("diagi", 11)
            a("s_waitcnt vmcnt(0)")
            self.stamp(11)
            a(f"""s_waitcnt lgkmcnt(0)
            s_cmp_eq_u32 {s(sWG)}, {self.opt("diagwg", 100)}
            s_cbranch_scc0 L_exit
            s_cmp_eq_u32 {s(sWAVE)}, {4*[((self.opt('order', 0x201) >> (4*c)) & 3) for c in range(3)].index(self.opt('diagc', 2))}
            s_cbranch_scc0 L_exit
            s_sub_u32 {s(sT0)}, {s(sSTAMP+2*i)}, {s(sSTAMP)}
            s_mul_i32 {s(sT0)}, {s(sT0)}, {self.opt("diagm")}
            s_lshr_b32 {s(sT0)}, {s(sT0)}, {self.opt("diags", 0)}
            s_min_u32 {s(sT0)}, {s(sT0)}, 100000""")
            if self.opt("diagfix"): a(f"s_mov_b32 {s(sT0)}, {self.opt('diagfix')}")
            a.label("L_diag")
            a(f"""s_memrealtime {s(sT2,2)}
            s_waitcnt lgkmcnt(0)
            s_sub_u32 {s(sT1)}, {s(sT2)}, {s(sSTAMP)}
            s_cmp_lt_u32 {s(sT1)}, {s(sT0)}
            s_cbranch_scc1 L_diag""")
        elif self.dbg:
            a("s_waitcnt vmcnt(0)")
            self.stamp(11)
            a(f"""s_waitcnt lgkmcnt(0)
            s_mul_i32 {s(sT0)}, {s(sWG)}, 12
            s_add_u32 {s(sT0)}, {s(sT0)}, {s(sWAVE)}
            s_lshl_b32 {s(sT0)}, {s(sT0)}, 6
            s_add_u32 {s(sT0)}, {s(sT0)}, {WS_STAMP}
            v_mov_b32 v4, 0""")
            for i in range(12): a(f"v_mov_b32 v{8+i}, {s(sSTAMP+2*i)}")
            a(f"v_mov_b32 v20, {s(sBUD)}")
            a("s_mov_b64 exec, 1")
            for i in range(3): a(f"buffer_store_dwordx4 {v(8+4*i,4)}, v4, {s(rWS,4)}, {s(sT0)} offen offset:{16*i}")
            a(f"buffer_store_dword v20, v4, {s(rWS,4)}, {s(sT0)} offen offset:48")
        a.label("L_exit")
        a("s_endpgm")

if __name__ == "__main__":
    ap = argparse.ArgumentParser()
    ap.add_argument("-o", default=f"cdna_kernels/{NAME}.s")
    ap.add_argument("--dbg", action="store_true")
    ap.add_argument("opts", nargs="*")
    args = ap.parse_args()
    opts = {}
    for kv in args.opts:
        k, _, val = kv.partition("=")
        opts[k] = int(val, 0) if val else 1
    open(args.o, "w").write(Gen(args.dbg, opts).build())
```
